```python
import torch

def _softmax(x, axis=-1):
    return torch.softmax(x, dim=axis)
def _gelu(x):
    return torch.nn.functional.gelu(x, approximate="tanh")
def _silu(x):
    return torch.nn.functional.silu(x)
def _sigmoid(x):
    return torch.sigmoid(x)
def _layernorm(x, axis=-1, eps=1e-5):
    m = x.mean(dim=axis, keepdim=True)
    v = x.var(dim=axis, keepdim=True, unbiased=False)
    return (x - m) / torch.sqrt(v + eps)
def _scatter_add(tgt, idx, src, axis=0):
    return tgt.clone().index_add_(axis, idx, src)
def _segment_sum(src, seg, n):
    out = torch.zeros((n,) + src.shape[1:], dtype=src.dtype)
    return out.index_add_(0, seg, src)
def _pad(x, pw):
    flat = tuple(v for pair in reversed(pw) for v in pair)
    return torch.nn.functional.pad(x, flat)

kernel_name = 'concat_heads__sliding_block__sliding_local_dilated__prompt'

def setup_inputs():

    _w = (lambda a: (lambda t: t.to(torch.bfloat16) if t.is_floating_point() else t)(torch.as_tensor(a)))
    def _A_setup():
        B, S, D = 1, 2048, 448
        return {
            "x": _w((lambda *s: torch.randn(*s, dtype=torch.bfloat16) * 0.2)(B, S, D)),
            "wqkv": _w((lambda *s: torch.randn(*s, dtype=torch.bfloat16) * 0.4)(D, 3 * D)),
            "wo": _w((lambda *s: torch.randn(*s, dtype=torch.bfloat16) * 0.4)(D, D)),
        }
    _A_in = _A_setup()

    def _B_setup():
        B, S, D = 1, 2048, 448
        return {
            "x": _w((lambda *s: torch.randn(*s, dtype=torch.bfloat16) * 0.2)(B, S, D)),
            "wqkv": _w((lambda *s: torch.randn(*s, dtype=torch.bfloat16) * 0.4)(D, 3 * D)),
            "wo": _w((lambda *s: torch.randn(*s, dtype=torch.bfloat16) * 0.4)(D, D)),
        }
    _B_in = _B_setup()

    return {
        "A_x": _A_in["x"],
        "A_wqkv": _A_in["wqkv"],
        "A_wo": _A_in["wo"],
        "B_x": _B_in["x"],
        "B_wqkv": _B_in["wqkv"],
        "B_wo": _B_in["wo"],
    }

def reference(A_x, A_wqkv, A_wo, B_x, B_wqkv, B_wo):
    def _A_ref(x, wqkv, wo):
        B, S, D = x.shape
        H = 16; Dh = D // H; W = 256
        qkv = (lambda x, *d: x.permute(*d))((x @ wqkv).reshape(B, S, 3, H, Dh), 2, 0, 3, 1, 4)
        q, k, v = qkv[0], qkv[1], qkv[2]
        scores = torch.einsum("bhqd,bhkd->bhqk", q, k) * (Dh ** -0.5)
        idx = torch.arange(S)
        mask = (idx[:, None] - idx[None, :] >= 0) & (idx[:, None] - idx[None, :] < W)
        scores = torch.where(mask[None, None], scores, -1e9)
        p = _softmax(scores, axis=-1)
        o = torch.einsum("bhqk,bhkd->bhqd", p, v)
        return (lambda x, *d: x.permute(*d))(o, 0, 2, 1, 3).reshape(B, S, D) @ wo

    def _B_ref(x, wqkv, wo):
        B, S, D = x.shape
        H = 16; Dh = D // H
        W, dil = 8, 2
        qkv = (lambda x, *d: x.permute(*d))((x @ wqkv).reshape(B, S, 3, H, Dh), 2, 0, 3, 1, 4)
        q, k, v = qkv[0], qkv[1], qkv[2]
        scale = Dh ** -0.5
        pos = torch.arange(S)
        off = torch.arange(W) * dil
        idx = pos[:, None] - off[None, :]
        mask = idx >= 0
        idx_c = torch.where(mask, idx, 0).reshape(-1)
        kg = k[:, :, idx_c, :].reshape(B, H, S, W, Dh)
        vg = v[:, :, idx_c, :].reshape(B, H, S, W, Dh)
        logits = torch.einsum("bhsd,bhswd->bhsw", q, kg) * scale
        logits = torch.where(mask[None, None, :, :], logits, -1e9)
        attn = _softmax(logits, axis=-1)
        o = torch.einsum("bhsw,bhswd->bhsd", attn, vg)
        return (lambda x, *d: x.permute(*d))(o, 0, 2, 1, 3).reshape(B, S, D) @ wo

    a = _A_ref(A_x, A_wqkv, A_wo)
    b = _B_ref(B_x, B_wqkv, B_wo)
    return torch.concatenate([a, b], axis=-1)
```

```python
import sys, math, struct, argparse
NAME = "concat_heads__sliding_block__sliding_local_dilated__prompt"
def f32bits(x): return struct.unpack("<I", struct.pack("<f", x))[0]

X_BYTES = 2048*896; W_BYTES = 448*2688; WO_BYTES = 448*896; OUT_BYTES = 2048*1792
WS_KV = 0; WS_OF = 8 << 20; WS_KVFLAG = 16 << 20; WS_OFLAG = (16 << 20) + 65536; WS_QDBG = 20 << 20; WS_STAMP = 32 << 20
WS_RECORDS = 64 << 20
NEG = f32bits(-1.0e30)
CSCALE = f32bits((28 ** -0.5) * math.log2(math.e))
LBIG = f32bits(2.0 ** 64)
OOB = 0x7FF00000
SPIN_MAX = 1 << 22

def vr(a, n): return "v[%d:%d]" % (a, a + n - 1)
sX, sW, sWO, sWS, sOUT, sDBG = "s[4:7]", "s[8:11]", "s[12:15]", "s[16:19]", "s[20:23]", "s[24:27]"
sBR, sHP, sR, sWV = "s28", "s29", "s30", "s31"
sRT, sHH, sW1K, sKC, sXS, sXS2, sWSO, sXB, sWB, sKVO = "s50", "s51", "s52", "s53", "s54", "s55", "s56", "s57", "s58", "s59"
sNON = "s[60:61]"; sT0, sT1, sT2, sT3 = "s62", "s63", "s64", "s65"; sTM = "s[64:65]"; sC = "s66"; sT4 = "s67"; sUP = "s[68:69]"
sXCD, sIDX = "s3", "s33"
vLANE, vXOFF, vWOFF = 1, 2, 3
vXRD = 4; vWRD = 8; vL16 = 9; vT = 10; vKVW = 14; vZ = 15
vWB = 16
vAK, vAV, vAQ = 32, 48, 64
vKP, vVP = 80, 88
vC1, vC2 = 96, 112
vXF = 128
vNON = 240
SLOT = 32768
KVBASE = (98304, 16384)

def lane_mask(fn):
    m = 0
    for l in range(64):
        if fn(l): m |= 1 << l
    return m
def key_of(r, l): return (r & 3) + 8 * (r >> 2) + 4 * (l >> 5)

class Q:
    def __init__(self): self.q = []
    def add(self, tag, n=1): self.q += [tag] * n
    def wait(self, tag):
        idx = [i for i, t in enumerate(self.q) if t == tag]
        if not idx: return None
        n = len(self.q) - 1 - idx[-1]
        self.q = self.q[idx[-1] + 1:]
        return n

class G:
    def __init__(self, stamps=False, depthA=5, depthB=2, dbgq=False, stop=None, exp=""):
        self.exp = exp
        self.l = []; self.stamps = stamps; self.depthA = depthA; self.depthB = depthB; self.dbgq = dbgq; self.stop = stop
        self.nlab = 0
    def e(self, s): self.l.append("    " + s)
    def c(self, s): self.l.append("    ; " + s)
    def lab(self, s): self.l.append(s + ":")
    def newlab(self, p="L"):
        self.nlab += 1; return "%s_%d" % (p, self.nlab)
    def stamp(self, i):
        if self.stamps: self.e("s_memrealtime s[%d:%d]" % (70 + 2*i, 71 + 2*i))
    def mask(self, m):
        self.e("s_mov_b32 s64, 0x%08x" % (m & 0xffffffff)); self.e("s_mov_b32 s65, 0x%08x" % (m >> 32))
    def mfma(self, d, a, b, c):
        self.e("v_mfma_f32_32x32x16_bf16 %s, %s, %s, %s" % (vr(d, 16), vr(a, 4), vr(b, 4), "0" if c is None else vr(c, 16)))
    def wl(self, n):
        if n is not None: self.e("s_waitcnt lgkmcnt(%d)" % min(n, 15))
    def wv(self, n):
        if n is not None: self.e("s_waitcnt vmcnt(%d)" % min(n, 63))

ITEM_KS = [4]*7 + [16, 12]

def advance_kc(g):
    g.e("s_add_u32 %s, %s, 1" % (sKC, sKC)); g.e("s_cmp_eq_u32 %s, 7" % sKC); g.e("s_cselect_b32 %s, 0, %s" % (sKC, sKC))

def issue_item(g, vm, i):
    slot = (i % 5) * SLOT
    if i < 7:
        g.e("s_lshl_b32 %s, %s, 7" % (sXS, sKC))
        g.e("s_add_u32 m0, %s, %d" % (sW1K, slot))
        g.e("s_add_u32 %s, %s, %s" % (sXS, sXS, sXB))
        g.e("s_mul_i32 %s, %s, %d" % (sWSO, sKC, 64 * 2688))
        g.e("buffer_load_dwordx4 v%d, %s, %s offen lds" % (vXOFF, sX, sXS))
        g.e("s_add_u32 m0, %s, %d" % (sW1K, slot + 16384 - 896))
        g.e("s_add_u32 %s, %s, %s" % (sWSO, sWSO, sWB))
        g.e("buffer_load_dwordx4 v%d, %s, %s offen offset:896 lds" % (vWOFF, sW, sWSO))
        g.e("s_add_u32 m0, %s, %d" % (sW1K, slot + 24576 - 1792))
        g.e("s_add_u32 %s, %s, %d" % (sXS2, sXS, 64 * 896))
        g.e("buffer_load_dwordx4 v%d, %s, %s offen offset:1792 lds" % (vWOFF, sW, sWSO))
        g.e("s_add_u32 m0, %s, %d" % (sW1K, slot + 8192))
        advance_kc(g)
        g.e("buffer_load_dwordx4 v%d, %s, %s offen lds" % (vXOFF, sX, sXS2))
        vm.add(i, 4)
    else:
        n = 4 if i == 7 else 3
        for c in range(n):
            g.e("s_mul_i32 %s, %s, %d" % (sWSO, sKC, 64 * 2688))
            g.e("s_add_u32 m0, %s, %d" % (sW1K, slot + c * 8192))
            g.e("s_add_u32 %s, %s, %s" % (sWSO, sWSO, sWB))
            advance_kc(g)
            g.e("buffer_load_dwordx4 v%d, %s, %s offen lds" % (vWOFF, sW, sWSO))
        vm.add(i, n)

def common_setup(g):
    t0, t1, t2 = vT, vT + 1, vT + 2
    for (srd, a, n) in ((12, None, WO_BYTES), (16, 48, WS_RECORDS), (20, 44, OUT_BYTES), (24, 46, 256)):
        if a is None:
            g.e("s_cmp_eq_u32 %s, 0" % sBR)
            g.e("s_cselect_b32 s12, s36, s42"); g.e("s_cselect_b32 s13, s37, s43")
        else:
            g.e("s_mov_b32 s%d, s%d" % (srd, a)); g.e("s_mov_b32 s%d, s%d" % (srd + 1, a + 1))
        g.e("s_mov_b32 s%d, 0x%x" % (srd + 2, n)); g.e("s_mov_b32 s%d, 0x20000" % (srd + 3))
    g.e("v_mov_b32 v%d, 0" % vZ)
    skip = g.newlab("L_non")
    g.e("s_or_b32 %s, s2, %s" % (sT0, sWV)); g.e("s_cmp_lg_u32 %s, 0" % sT0); g.e("s_cbranch_scc1 %s" % skip)
    g.e("s_memrealtime %s" % sNON); g.e("s_waitcnt lgkmcnt(0)"); g.e("s_or_b32 s60, s60, 1")
    g.e("v_mov_b32 v%d, s60" % vNON); g.e("v_mov_b32 v%d, s61" % (vNON + 1))
    g.e("s_mov_b64 exec, 1")
    g.e("buffer_store_dwordx2 %s, v%d, %s, 0 offen sc1" % (vr(vNON, 2), vZ, sDBG))
    g.e("s_mov_b64 exec, -1")
    g.lab(skip)
    g.e("s_mov_b32 s68, 0"); g.e("s_mov_b32 s69, -1")
    g.e("s_mov_b32 %s, 0x%08x" % (sC, CSCALE))
    g.e("v_lshlrev_b32 v%d, 4, v%d" % (vL16, vLANE))
    g.e("v_and_b32 v%d, 31, v%d" % (t0, vLANE))
    g.e("v_bfe_u32 v%d, v%d, 1, 3" % (t1, vLANE))
    g.e("v_lshrrev_b32 v%d, 5, v%d" % (t2, vLANE)); g.e("v_xor_b32 v%d, v%d, v%d" % (t1, t1, t2))
    g.e("s_lshl_b32 %s, %s, 12" % (sT0, sRT))
    g.e("v_lshlrev_b32 v%d, 7, v%d" % (t0, t0)); g.e("v_add_u32 v%d, %s, v%d" % (t0, sT0, t0))
    g.e("v_lshl_add_u32 v%d, v%d, 4, v%d" % (vXRD, t1, t0))
    for k in range(1, 4): g.e("v_xor_b32 v%d, %d, v%d" % (vXRD + k, k << 5, vXRD))
    g.e("v_bfe_u32 v%d, v%d, 2, 2" % (t0, vLANE))
    g.e("v_lshl_add_u32 v%d, v%d, 3, v%d" % (t1, t2, t0))
    g.e("v_lshlrev_b32 v%d, 7, v%d" % (t1, t1))
    g.e("v_lshrrev_b32 v%d, 1, v%d" % (t0, t0)); g.e("v_lshlrev_b32 v%d, 6, v%d" % (t0, t0))
    g.e("v_and_b32 v%d, 3, v%d" % (t2, vLANE)); g.e("v_lshlrev_b32 v%d, 3, v%d" % (t2, t2))
    g.e("v_and_b32 v%d, 16, v%d" % (vWRD, vLANE)); g.e("v_lshl_add_u32 v%d, v%d, 1, v%d" % (t2, vWRD, t2))
    g.e("s_mul_i32 %s, %s, 56" % (sT1, sHH)); g.e("v_add_u32 v%d, %s, v%d" % (t2, sT1, t2))
    g.e("v_xor_b32 v%d, v%d, v%d" % (t2, t2, t0)); g.e("v_add_u32 v%d, v%d, v%d" % (vWRD, t1, t2))
    g.e("s_lshl_b32 %s, %s, 3" % (sKVO, sBR)); g.e("s_add_u32 %s, %s, %s" % (sKVO, sKVO, sHP)); g.e("s_lshl_b32 %s, %s, 4" % (sKVO, sKVO))
    g.e("s_add_u32 %s, %s, %s" % (sKVO, sKVO, sR)); g.e("s_lshl_b32 %s, %s, 15" % (sKVO, sKVO))
    g.e("s_lshl_b32 %s, %s, 14" % (sT1, sHH)); g.e("s_add_u32 %s, %s, %s" % (sKVO, sKVO, sT1))
    g.e("s_add_u32 %s, %s, %s" % (sT4, sKVO, sT0))
    g.e("s_mov_b32 %s, %d" % (sT1, KVBASE[1]))
    g.e("s_cmp_eq_u32 %s, 0" % sHH)
    g.e("s_cselect_b32 %s, 0x%x, %s" % (sT1, KVBASE[0], sT1)); g.e("s_add_u32 %s, %s, %s" % (sT1, sT1, sT0))
    g.e("v_add_u32 v%d, %s, v%d" % (vKVW, sT1, vL16))

def p1(g, isA):
    depth = g.depthA if isA else g.depthB
    vm = Q(); lg = Q()
    for i in range(depth):
        issue_item(g, vm, i)
        if "ibar" in g.exp and i < depth - 1: g.e("s_barrier")
    nxt = [depth]
    g.stamp(1)
    common_setup(g)
    g.e("v_mov_b32 v%d, 0x%08x" % (vT, NEG))
    for r in range(16):
        if isA:
            g.mask(lane_mask(lambda l: key_of(r, l) <= (l & 31)))
            g.e("v_cndmask_b32 v%d, v%d, 0, %s" % (vC1 + r, vT, sTM))
            g.e("v_cndmask_b32 v%d, 0, v%d, %s" % (vC2 + r, vT, sTM))
        else:
            g.mask(lane_mask(lambda l: ((l & 31) - key_of(r, l)) in range(0, 16, 2)))
            g.e("v_cndmask_b32 v%d, v%d, 0, %s" % (vC1 + r, vT, sTM))
            g.mask(lane_mask(lambda l: (32 + (l & 31) - key_of(r, l)) in range(0, 16, 2)))
            g.e("v_cndmask_b32 v%d, v%d, 0, %s" % (vC2 + r, vT, sTM))
    if not isA:
        skip = g.newlab("L_c2")
        g.e("s_or_b32 %s, %s, %s" % (sT0, sR, sRT)); g.e("s_cmp_lg_u32 %s, 0" % sT0); g.e("s_cbranch_scc1 %s" % skip)
        for r in range(16): g.e("v_mov_b32 v%d, v%d" % (vC2 + r, vT))
        g.lab(skip)
    steps = [(i, ks) for i in range(9) for ks in range(ITEM_KS[i])]
    NS = len(steps)
    win = [0]
    def set_window(wn, need_x):
        d = (wn - win[0]) * 65536
        if d:
            for rg in [vWRD] + ([vXRD + k for k in range(4)] if need_x else []):
                g.e("v_add_u32 v%d, 0x%x, v%d" % (rg, d & 0xffffffff, rg))
            win[0] = wn
    def open_item(i):
        g.wv(vm.wait(i))
        g.e("s_barrier")
        if g.stop == "p1": g.stamp(2 + i)
        else:
            if i == 0: g.stamp(2)
            if i == 7: g.stamp(3)
        while nxt[0] <= 8 and nxt[0] <= i + depth and (nxt[0] < 5 or nxt[0] <= i + 3):
            issue_item(g, vm, nxt[0]); nxt[0] += 1
        if i == 5:
            g.e("buffer_load_dwordx2 %s, v%d, %s, 0 offen sc1" % (vr(vNON, 2), vZ, sDBG)); vm.add("non")
    def reads(j):
        i, ks = steps[j]
        if ks == 0: open_item(i)
        slot = i % 5; base = (slot % 2) * SLOT
        if "noread" in g.exp: return
        set_window(slot // 2, i < 7)
        if i < 7:
            b = vWB + (j % 2) * 8
            g.e("ds_read_b128 %s, v%d offset:%d" % (vr(vXF + 4 * j, 4), vXRD + ks, base))
            for t in range(2):
                for h in range(2):
                    g.e("ds_read_b64_tr_b16 %s, v%d offset:%d" % (vr(b + 4*t + 2*h, 2), vWRD, base + 16384 + t * 8192 + ks * 2048 + h * 512))
            lg.add(j, 5)
        else:
            b = vWB + (j % 4) * 4
            for h in range(2):
                g.e("ds_read_b64_tr_b16 %s, v%d offset:%d" % (vr(b + 2*h, 2), vWRD, base + ks * 2048 + h * 512))
            lg.add(j, 2)
    def mm(j):
        i, ks = steps[j]
        if "nomfma" in g.exp: return
        if i < 7:
            b = vWB + (j % 2) * 8; x = vXF + 4 * j
            g.mfma(vAK, b, x, None if j == 0 else vAK)
            g.mfma(vAV, x, b + 4, None if j == 0 else vAV)
        else:
            g.mfma(vAQ, vWB + (j % 4) * 4, vXF + 4 * (j - 28), None if j == 28 else vAQ)
    def kv_post():
        for i in range(8): g.e("v_cvt_pk_bf16_f32 v%d, v%d, v%d" % (vKP + i, vAK + 2*i, vAK + 2*i + 1))
        for i in range(8): g.e("v_cvt_pk_bf16_f32 v%d, v%d, v%d" % (vVP + i, vAV + 2*i, vAV + 2*i + 1))
        g.e("v_mov_b32 v%d, 0x3f803f80" % vT)
        g.mask(lane_mask(lambda l: (l & 31) == 28))
        g.e("v_cndmask_b32 v%d, v%d, v%d, %s" % (vKP + 6, vKP + 6, vT, sUP))
        for i in range(8): g.e("v_cndmask_b32 v%d, v%d, v%d, %s" % (vVP + i, vVP + i, vT, sTM))
        skip = g.newlab("L_nopub")
        if not isA:
            g.e("s_cmp_lg_u32 %s, 3" % sRT); g.e("s_cbranch_scc1 %s" % skip)
        for f in range(4):
            g.e("buffer_store_dwordx4 %s, v%d, %s, %s offen offset:%d sc1" % (vr(vKP + 4*f, 4), vL16, sWS, sT4, f * 1024))
        if not isA: g.lab(skip)
        else: vm.add("kv", 4)
    def kv_lds():
        for f in range(4):
            g.e("ds_write_b128 v%d, %s offset:%d" % (vKVW, vr(vKP + 4*f, 4), 32768 + f * 1024))
        lg.add("kvw", 4)
    issued = [0]
    def issue_upto(j):
        while issued[0] <= j and issued[0] < NS:
            reads(issued[0]); issued[0] += 1
    issue_upto(1)
    for j in range(NS):
        g.wl(lg.wait(j))
        mm(j)
        if j < 26: issue_upto(j + 2)
        elif j == 26: issue_upto(29)
        elif j == 27: issue_upto(31)
        else: issue_upto(j + 4)
        if j == 30: kv_post()
        if j == 45: kv_lds()
    g.stamp(11 if g.stop == "p1" else 4)

vQF = 16
vO = 32
vS = 128
vKB = 176
vVB = 192
vM = 208; vM2 = 209; vNM = 210; vP = 212

def q_pack(g):
    g.e("v_mov_b32 v%d, %s" % (vT, sC))
    g.e("v_cndmask_b32 v%d, v%d, 0, %s" % (vT + 1, vT, sUP))
    g.e("s_nop 7")
    for r in range(16): g.e("v_mul_f32 v%d, v%d, v%d" % (vAQ + r, vT + (1 if r >= 12 else 0), vAQ + r))
    for i in range(8): g.e("v_cvt_pk_bf16_f32 v%d, v%d, v%d" % (vQF + i, vAQ + 2*i, vAQ + 2*i + 1))

def get_nonce(g):
    lp = g.newlab("L_nlp"); ok = g.newlab("L_nok")
    g.e("s_mov_b32 %s, 0" % sT0)
    g.lab(lp)
    g.e("v_readfirstlane_b32 s60, v%d" % vNON); g.e("v_readfirstlane_b32 s61, v%d" % (vNON + 1))
    g.e("s_add_u32 %s, %s, 1" % (sT0, sT0))
    g.e("s_cmp_lg_u32 s60, 0"); g.e("s_cbranch_scc1 %s" % ok)
    g.e("s_cmp_gt_u32 %s, %d" % (sT0, SPIN_MAX)); g.e("s_cbranch_scc1 %s" % ok)
    g.e("buffer_load_dwordx2 %s, v%d, %s, 0 offen sc1" % (vr(vNON, 2), vZ, sDBG))
    g.e("s_waitcnt vmcnt(0)")
    g.e("s_branch %s" % lp)
    g.lab(ok)

def store_flag(g, soff_reg):
    g.e("v_mov_b32 v%d, s60" % vNON); g.e("v_mov_b32 v%d, s61" % (vNON + 1))
    g.e("s_mov_b64 exec, 1")
    g.e("buffer_store_dwordx2 %s, v%d, %s, %s offen sc1" % (vr(vNON, 2), vZ, sWS, soff_reg))
    g.e("s_mov_b64 exec, -1")

def poll(g, vaddr, execmask_reg):
    lp = g.newlab("L_poll"); ok = g.newlab("L_pok")
    g.e("s_mov_b64 exec, %s" % execmask_reg)
    g.e("s_mov_b32 %s, 0" % sT0)
    g.lab(lp)
    g.e("buffer_load_dwordx2 %s, v%d, %s, 0 offen sc1" % (vr(vNON + 2, 2), vaddr, sWS))
    g.e("s_add_u32 %s, %s, 1" % (sT0, sT0))
    g.e("s_waitcnt vmcnt(0)")
    g.e("v_cmp_ne_u64 vcc, %s, %s" % (sNON, vr(vNON + 2, 2)))
    g.e("s_cmp_gt_u32 %s, %d" % (sT0, SPIN_MAX)); g.e("s_cbranch_scc1 %s" % ok)
    g.e("s_cbranch_vccnz %s" % lp)
    g.lab(ok)
    g.e("s_mov_b64 exec, -1")

def end_p1(g):
    q_pack(g)
    if g.dbgq:
        g.e("s_lshr_b32 %s, %s, 1" % (sT0, sT4)); g.e("s_add_u32 %s, %s, 0x%x" % (sT0, sT0, WS_QDBG))
        g.e("s_nop 1")
        for f in range(2): g.e("buffer_store_dwordx4 %s, v%d, %s, %s offen offset:%d" % (vr(vQF + 4*f, 4), vL16, sWS, sT0, f * 1024))
    g.e("s_waitcnt vmcnt(0) lgkmcnt(0)")
    g.e("s_barrier")
    g.stamp(12 if g.stop == "p1" else 5)
    get_nonce(g)
    skip = g.newlab("L_nf")
    g.e("s_cmp_lg_u32 %s, 0" % sWV); g.e("s_cbranch_scc1 %s" % skip)
    g.e("s_lshr_b32 %s, %s, 8" % (sT1, sKVO))
    g.e("s_add_u32 %s, %s, 0x%x" % (sT1, sT1, WS_KVFLAG))
    store_flag(g, sT1)
    g.lab(skip)

def kv_flag_addr(g, vdst):
    g.e("s_lshr_b32 %s, %s, 15" % (sT1, sKVO)); g.e("s_lshl_b32 %s, %s, 7" % (sT1, sT1))
    g.e("s_add_u32 %s, %s, 0x%x" % (sT1, sT1, WS_KVFLAG - 128))
    g.e("v_lshlrev_b32 v%d, 7, v%d" % (vdst, vLANE))
    g.e("v_sub_u32 v%d, %s, v%d" % (vdst, sT1, vdst))

def max16(g, s, dst, first=True):
    if first:
        g.e("v_max3_f32 v%d, v%d, v%d, v%d" % (dst, s, s + 1, s + 2)); rest = list(range(3, 16))
    else: rest = list(range(16))
    while len(rest) >= 2:
        a, b = rest.pop(0), rest.pop(0)
        g.e("v_max3_f32 v%d, v%d, v%d, v%d" % (dst, dst, s + a, s + b))
    if rest: g.e("v_max_f32 v%d, v%d, v%d" % (dst, dst, s + rest[0]))

def xhalf_max(g):
    g.e("v_mov_b32 v%d, v%d" % (vM2, vM)); g.e("s_nop 1")
    g.e("v_permlane32_swap_b32 v%d, v%d" % (vM, vM2)); g.e("s_nop 1")
    g.e("v_max_f32 v%d, v%d, v%d" % (vM, vM, vM2))

def set_shift(g):
    g.e("v_cvt_pk_bf16_f32 v%d, -v%d, 0" % (vM2, vM))
    g.e("v_lshlrev_b32 v%d, 16, v%d" % (vNM, vM2))
    g.e("v_cndmask_b32 v%d, v%d, v%d, %s" % (vQF + 6, vQF + 6, vM2, sUP))

def finish_o(g):
    g.e("v_rcp_f32 v%d, v%d" % (vM, vM2))
    g.e("s_nop 0")
    g.e("v_cndmask_b32 v%d, v%d, 0, %s" % (vM2, vM, sUP))
    for r in range(16): g.e("v_mul_f32 v%d, v%d, v%d" % (vO + r, vM2 if r >= 12 else vM, vO + r))
    for i in range(8): g.e("v_cvt_pk_bf16_f32 v%d, v%d, v%d" % (vP + i, vO + 2*i, vO + 2*i + 1))
    g.e("s_lshl_b32 %s, %s, 6" % (sT0, sBR)); g.e("s_lshl_b32 %s, %s, 2" % (sT1, sR)); g.e("s_add_u32 %s, %s, %s" % (sT0, sT0, sT1))
    g.e("s_add_u32 %s, %s, %s" % (sT0, sT0, sRT)); g.e("s_lshl_b32 %s, %s, 4" % (sT0, sT0))
    g.e("s_lshl_b32 %s, %s, 1" % (sT1, sHP)); g.e("s_add_u32 %s, %s, %s" % (sT0, sT0, sT1)); g.e("s_add_u32 %s, %s, %s" % (sT0, sT0, sHH))
    g.e("s_lshl_b32 %s, %s, 11" % (sT0, sT0)); g.e("s_add_u32 %s, %s, 0x%x" % (sT0, sT0, WS_OF))
    for f in range(2): g.e("buffer_store_dwordx4 %s, v%d, %s, %s offen offset:%d sc1" % (vr(vP + 4*f, 4), vL16, sWS, sT0, f * 1024))

def bcast_l(g):
    g.e("v_mov_b32 v%d, v%d" % (vM, vO + 12)); g.e("v_mov_b32 v%d, v%d" % (vM2, vO + 12)); g.e("s_nop 1")
    g.e("v_permlane32_swap_b32 v%d, v%d" % (vM, vM2)); g.e("s_nop 1")

def attn_A(g):
    lg = Q()
    toff = lambda u: (8 - u) * 4096
    nold = g.newlab("L_nold")
    g.e("s_cmp_lg_u32 %s, 0" % sRT); g.e("s_cbranch_scc1 %s" % nold)
    nopoll = g.newlab("L_nopoll")
    g.e("s_cmp_eq_u32 %s, 0" % sR); g.e("s_cbranch_scc1 %s" % nopoll)
    kv_flag_addr(g, vT)
    g.e("s_cmp_eq_u32 %s, 1" % sR); g.e("s_cselect_b32 s64, 1, 3"); g.e("s_mov_b32 s65, 0")
    poll(g, vT, sTM)
    g.lab(nopoll)
    g.stamp(6)
    g.e("v_readfirstlane_b32 %s, v%d" % (sT2, vKVW))
    for b in (1, 2):
        g.e("s_sub_u32 %s, %s, %d" % (sT1, sKVO, b * 32768))
        g.e("s_cmp_lt_u32 %s, %d" % (sR, b)); g.e("s_cselect_b32 %s, 0x%x, %s" % (sT1, OOB, sT1))
        for t in range(4):
            g.e("s_add_u32 m0, %s, %d" % (sT2, (2 - b) * 16384 + t * 4096))
            g.e("s_add_u32 %s, %s, %d" % (sT0, sT1, t * 4096))
            for f in range(4):
                g.e("buffer_load_dwordx4 v%d, %s, %s offen offset:%d sc1 lds" % (vL16, sWS, sT0, f * 1024))
    g.lab(nold)
    def site(u):
        for (cond, n) in ((u - 1, 16), (u - 5, 0)):
            if 0 <= cond <= 3:
                sk = g.newlab("L_site")
                g.e("s_cmp_lg_u32 %s, %d" % (sRT, cond)); g.e("s_cbranch_scc1 %s" % sk)
                g.e("s_waitcnt vmcnt(%d)" % n); g.e("s_barrier")
                g.lab(sk)
    def rdK(u):
        for j in range(2): g.e("ds_read_b128 %s, v%d offset:%d" % (vr(vKB + (u % 2) * 8 + 4*j, 4), vKVW, toff(u) + j * 1024))
        lg.add(("K", u), 2)
    def rdV(u):
        for j in range(2): g.e("ds_read_b128 %s, v%d offset:%d" % (vr(vVB + (u % 2) * 8 + 4*j, 4), vKVW, toff(u) + 2048 + j * 1024))
        lg.add(("V", u), 2)
    def qk(u, j):
        s = vS + (u % 3) * 16
        c = s if j else (vC1 if u == 0 else vC2 if u == 8 else None)
        g.mfma(s, vKB + (u % 2) * 8 + 4*j, vQF + 4*j, c)
    def pv(u, j):
        g.mfma(vO, vVB + (u % 2) * 8 + 4*j, vS + (u % 3) * 16 + 4*j, None if (u == 0 and j == 0) else vO)
    rdK(0)
    g.wl(lg.wait(("K", 0))); qk(0, 0); qk(0, 1)
    g.e("s_nop 11")
    max16(g, vS, vM); xhalf_max(g); set_shift(g)
    for r in range(16): g.e("v_add_f32 v%d, v%d, v%d" % (vS + r, vNM, vS + r))
    for u in range(9):
        s = vS + (u % 3) * 16
        ex = lambda a, b: [g.e("v_exp_f32 v%d, v%d" % (s + r, s + r)) for r in range(a, b)]
        if u < 8: site(u + 1); rdK(u + 1)
        rdV(u)
        if u > 0: g.wl(lg.wait(("V", u - 1))); pv(u - 1, 0)
        ex(0, 5)
        if u > 0: pv(u - 1, 1)
        ex(5, 10)
        if u < 8: g.wl(lg.wait(("K", u + 1))); qk(u + 1, 0)
        ex(10, 16)
        if u < 8: qk(u + 1, 1)
        else: g.e("s_nop 0")
        for i in range(8): g.e("v_cvt_pk_bf16_f32 v%d, v%d, v%d" % (s + i, s + 2*i, s + 2*i + 1))
        if u < 8: g.e("s_nop 1")
    g.wl(lg.wait(("V", 8))); g.e("s_nop 0"); pv(8, 0); pv(8, 1)
    g.e("s_nop 11")
    bcast_l(g)
    ok = g.newlab("L_aok")
    g.e("s_mov_b32 %s, 0x%08x" % (sT0, LBIG))
    g.e("v_cmp_nlt_f32 vcc, v%d, %s" % (vM2, sT0) if False else "v_cmp_ngt_f32 vcc, %s, v%d" % (sT0, vM2))
    g.e("s_cbranch_vccz %s" % ok)
    fallback_A(g)
    g.lab(ok)
    g.stamp(7)
    finish_o(g)

def fallback_A(g):
    g.e("s_lshl_b32 %s, %s, 2" % (sT1, sR)); g.e("s_add_u32 %s, %s, %s" % (sT1, sT1, sRT)); g.e("s_min_u32 %s, %s, 8" % (sT1, sT1))
    g.e("v_mov_b32 v%d, 0" % vM2)
    g.e("v_cndmask_b32 v%d, v%d, v%d, %s" % (vQF + 6, vQF + 6, vM2, sUP))
    g.e("v_mov_b32 v%d, 0x%08x" % (vM, NEG))
    for r in range(16): g.e("v_mov_b32 v%d, 0" % (vO + r))
    for pas in range(2):
        lp = g.newlab("L_fb"); l0 = g.newlab("L_fb0"); l8 = g.newlab("L_fb8"); lj = g.newlab("L_fbj")
        g.e("s_mov_b32 %s, 0" % sT0)
        g.e("v_add_u32 v%d, 0x8000, v%d" % (vT, vKVW))
        g.lab(lp)
        for j in range(4): g.e("ds_read_b128 %s, v%d offset:%d" % (vr(vKB + 4*j, 4), vT, j * 1024))
        g.e("s_waitcnt lgkmcnt(0)")
        g.e("s_cmp_eq_u32 %s, 0" % sT0); g.e("s_cbranch_scc1 %s" % l0)
        g.e("s_cmp_eq_u32 %s, 8" % sT0); g.e("s_cbranch_scc1 %s" % l8)
        g.mfma(vS, vKB, vQF, None); g.e("s_branch %s" % lj)
        g.lab(l0); g.mfma(vS, vKB, vQF, vC1); g.e("s_branch %s" % lj)
        g.lab(l8); g.mfma(vS, vKB, vQF, vC2)
        g.lab(lj)
        g.mfma(vS, vKB + 4, vQF + 4, vS)
        g.e("s_nop 11")
        if pas == 0:
            max16(g, vS, vM, first=False)
        else:
            for r in range(16): g.e("v_exp_f32 v%d, v%d" % (vS + r, vS + r))
            g.e("s_nop 0")
            for i in range(8): g.e("v_cvt_pk_bf16_f32 v%d, v%d, v%d" % (vS + i, vS + 2*i, vS + 2*i + 1))
            g.e("s_nop 1")
            g.mfma(vO, vKB + 8, vS, vO); g.mfma(vO, vKB + 12, vS + 4, vO)
            g.e("s_nop 11")
        g.e("v_subrev_u32 v%d, 0x1000, v%d" % (vT, vT))
        g.e("s_add_u32 %s, %s, 1" % (sT0, sT0))
        g.e("s_cmp_le_u32 %s, %s" % (sT0, sT1)); g.e("s_cbranch_scc1 %s" % lp)
        if pas == 0:
            xhalf_max(g); set_shift(g); g.e("s_nop 1")
    bcast_l(g)

def attn_B(g):
    nold = g.newlab("L_bnold"); nopoll = g.newlab("L_bnopoll")
    g.e("s_cmp_lg_u32 %s, 0" % sRT); g.e("s_cbranch_scc1 %s" % nold)
    g.e("s_cmp_eq_u32 %s, 0" % sR); g.e("s_cbranch_scc1 %s" % nopoll)
    kv_flag_addr(g, vT)
    g.e("s_mov_b64 %s, 1" % sTM)
    poll(g, vT, sTM)
    g.lab(nopoll)
    g.stamp(6)
    g.e("v_readfirstlane_b32 %s, v%d" % (sT2, vKVW))
    g.e("s_sub_u32 %s, %s, %d" % (sT1, sKVO, 32768 - 3 * 4096))
    g.e("s_cmp_eq_u32 %s, 0" % sR); g.e("s_cselect_b32 %s, 0x%x, %s" % (sT1, OOB, sT1))
    g.e("s_add_u32 m0, %s, %d" % (sT2, 7 * 4096)); g.e("s_nop 0")
    for f in range(4): g.e("buffer_load_dwordx4 v%d, %s, %s offen offset:%d sc1 lds" % (vL16, sWS, sT1, f * 1024))
    g.lab(nold)
    for j in range(2): g.e("ds_read_b128 %s, v%d offset:%d" % (vr(vKB + 4*j, 4), vKVW, 32768 + j * 1024))
    for j in range(2): g.e("ds_read_b128 %s, v%d offset:%d" % (vr(vVB + 4*j, 4), vKVW, 32768 + 2048 + j * 1024))
    g.e("s_waitcnt lgkmcnt(2)")
    g.mfma(vS, vKB, vQF, vC1); g.mfma(vS, vKB + 4, vQF + 4, vS)
    g.e("s_waitcnt vmcnt(0)")
    for j in range(2): g.e("ds_read_b128 %s, v%d offset:%d" % (vr(vKB + 8 + 4*j, 4), vKVW, 28672 + j * 1024))
    for j in range(2): g.e("ds_read_b128 %s, v%d offset:%d" % (vr(vVB + 8 + 4*j, 4), vKVW, 28672 + 2048 + j * 1024))
    g.e("s_waitcnt lgkmcnt(2)")
    g.mfma(vS + 16, vKB + 8, vQF, vC2); g.mfma(vS + 16, vKB + 12, vQF + 4, vS + 16)
    g.e("s_nop 4")
    max16(g, vS, vM); g.e("s_nop 0"); max16(g, vS + 16, vM, first=False); xhalf_max(g)
    for r in range(32): g.e("v_sub_f32 v%d, v%d, v%d" % (vS + r, vS + r, vM))
    for t in range(2):
        s = vS + 16 * t
        for r in range(16): g.e("v_exp_f32 v%d, v%d" % (s + r, s + r))
        g.e("s_nop 0")
        for i in range(8): g.e("v_cvt_pk_bf16_f32 v%d, v%d, v%d" % (s + i, s + 2*i, s + 2*i + 1))
        g.e("s_waitcnt lgkmcnt(0)"); g.e("s_nop 0")
        g.mfma(vO, vVB + 8*t, s, None if t == 0 else vO); g.mfma(vO, vVB + 8*t + 4, s + 4, vO)
    g.e("s_nop 11")
    bcast_l(g)
    g.stamp(7)
    finish_o(g)

vWF = 128
def p3(g):
    t0, t1, t2 = vT, vT + 1, vT + 2
    sCB, sRB = sXS, sXS2
    g.e("s_and_b32 %s, s2, 1" % sCB); g.e("s_lshl_b32 %s, %s, 1" % (sCB, sCB)); g.e("s_bfe_u32 %s, s2, 0x10003" % sT0); g.e("s_add_u32 %s, %s, %s" % (sCB, sCB, sT0))
    g.e("s_bfe_u32 %s, s2, 0x20001" % sRB); g.e("s_lshl_b32 %s, %s, 3" % (sRB, sRB)); g.e("s_bfe_u32 %s, s2, 0x30004" % sT0); g.e("s_add_u32 %s, %s, %s" % (sRB, sRB, sT0))
    g.e("v_lshrrev_b32 v%d, 4, v%d" % (t0, vLANE))
    g.e("v_lshlrev_b32 v%d, 2, v%d" % (t1, t0)); g.e("v_and_b32 v%d, 15, v%d" % (t2, vLANE)); g.e("v_xor_b32 v%d, v%d, v%d" % (t1, t1, t2))
    g.e("v_mul_u32_u24 v%d, 896, v%d" % (vWOFF, t0)); g.e("v_lshl_add_u32 v%d, v%d, 4, v%d" % (vWOFF, t1, vWOFF))
    g.e("s_cmp_eq_u32 %s, 3" % sCB); g.e("s_cselect_b32 %s, 8, 64" % sT0)
    g.e("v_mov_b32 v%d, 0x%x" % (t2, OOB))
    g.e("v_cmp_le_u32 vcc, %s, v%d" % (sT0, t1)); g.e("s_nop 1")
    g.e("v_cndmask_b32 v%d, v%d, v%d, vcc" % (vWOFF, vWOFF, t2))
    g.e("s_mul_i32 %s, %s, 3584" % (sWSO, sWV)); g.e("s_lshl_b32 %s, %s, 8" % (sT0, sCB)); g.e("s_add_u32 %s, %s, %s" % (sWSO, sWSO, sT0))
    g.e("s_barrier")
    g.stamp(8)
    for m in range(15):
        g.e("s_add_u32 m0, %s, %d" % (sW1K, m * 8192))
        if m: g.e("s_add_u32 %s, %s, %d" % (sWSO, sWSO, 8 * 3584))
        else: g.e("s_nop 0")
        g.e("buffer_load_dwordx4 v%d, %s, %s offen lds" % (vWOFF, sWO, sWSO))
    g.e("s_waitcnt vmcnt(15)")
    g.e("s_barrier")
    skip = g.newlab("L_nof")
    g.e("s_cmp_lg_u32 %s, 0" % sWV); g.e("s_cbranch_scc1 %s" % skip)
    g.e("s_lshl_b32 %s, %s, 4" % (sT1, sBR)); g.e("s_add_u32 %s, %s, %s" % (sT1, sT1, sR)); g.e("s_lshl_b32 %s, %s, 3" % (sT1, sT1))
    g.e("s_add_u32 %s, %s, %s" % (sT1, sT1, sHP)); g.e("s_lshl_b32 %s, %s, 7" % (sT1, sT1)); g.e("s_add_u32 %s, %s, 0x%x" % (sT1, sT1, WS_OFLAG))
    store_flag(g, sT1)
    g.lab(skip)
    g.stamp(9)
    sCT, sRT2 = sKC, sXB
    g.e("s_lshr_b32 %s, %s, 1" % (sCT, sWV)); g.e("s_and_b32 %s, %s, 1" % (sRT2, sWV))
    g.e("v_bfe_u32 v%d, v%d, 2, 2" % (t0, vLANE)); g.e("v_lshrrev_b32 v%d, 5, v%d" % (t1, vLANE))
    g.e("v_lshl_add_u32 v%d, v%d, 2, v%d" % (t1, t1, t0)); g.e("v_lshlrev_b32 v%d, 8, v%d" % (t1, t1))
    g.e("v_lshlrev_b32 v%d, 6, v%d" % (t0, t0))
    g.e("v_and_b32 v%d, 3, v%d" % (t2, vLANE)); g.e("v_lshlrev_b32 v%d, 3, v%d" % (t2, t2))
    g.e("v_and_b32 v%d, 16, v%d" % (vWRD, vLANE)); g.e("v_lshl_add_u32 v%d, v%d, 1, v%d" % (t2, vWRD, t2))
    g.e("s_lshl_b32 %s, %s, 6" % (sT0, sCT)); g.e("v_add_u32 v%d, %s, v%d" % (t2, sT0, t2))
    g.e("v_xor_b32 v%d, v%d, v%d" % (t2, t2, t0)); g.e("v_add_u32 v%d, v%d, v%d" % (vWRD, t1, t2))
    g.e("v_add_u32 v%d, 0x10000, v%d" % (vXRD, vWRD))
    g.e("s_lshr_b32 %s, %s, 1" % (sT0, sRB)); g.e("s_lshl_b32 %s, %s, 4" % (sT1, sBR)); g.e("s_add_u32 %s, %s, %s" % (sT0, sT0, sT1))
    g.e("s_lshl_b32 %s, %s, 10" % (sT0, sT0)); g.e("s_add_u32 %s, %s, 0x%x" % (sT0, sT0, WS_OFLAG))
    g.e("v_lshlrev_b32 v%d, 7, v%d" % (vXRD + 1, vLANE)); g.e("v_add_u32 v%d, %s, v%d" % (vXRD + 1, sT0, vXRD + 1))
    g.e("s_waitcnt vmcnt(0)")
    g.e("s_barrier")
    g.stamp(10)
    WFR = 96
    for h in range(16):
        for j in range(2):
            for i in range(2):
                off = (28 * h + 16 * j + 8 * i) * 256
                a = vWRD if off < 65536 else vXRD
                g.e("ds_read_b64_tr_b16 %s, v%d offset:%d" % (vr(WFR + (h * 2 + j) * 4 + 2 * i, 2), a, off % 65536))
    np_ = g.newlab("L_np3")
    g.e("s_cmp_lg_u32 %s, 0" % sWV); g.e("s_cbranch_scc1 %s" % np_)
    g.e("s_mov_b64 %s, 0xff" % sTM)
    poll(g, vXRD + 1, sTM)
    g.lab(np_)
    g.e("s_waitcnt lgkmcnt(0)")
    g.e("s_barrier")
    g.stamp(11)
    g.e("s_lshl_b32 %s, %s, 15" % (sT1, sHH)); g.e("s_and_b32 %s, %s, 3" % (sT0, sWV)); g.e("s_lshl_b32 %s, %s, 12" % (sT0, sT0)); g.e("s_add_u32 %s, %s, %s" % (sT1, sT1, sT0))
    g.e("s_lshl_b32 %s, %s, 21" % (sT0, sBR)); g.e("s_lshl_b32 %s, %s, 16" % (sT2, sRB)); g.e("s_add_u32 %s, %s, %s" % (sT0, sT0, sT2))
    g.e("s_add_u32 %s, %s, %s" % (sT0, sT0, sT1)); g.e("s_add_u32 %s, %s, 0x%x" % (sT0, sT0, WS_OF))
    for a in range(2):
        g.e("s_add_u32 m0, %s, %d" % (sT1, a * 16384))
        if a: g.e("s_add_u32 %s, %s, 16384" % (sT0, sT0))
        else: g.e("s_nop 0")
        for f in range(4): g.e("buffer_load_dwordx4 v%d, %s, %s offen offset:%d sc1 lds" % (vL16, sWS, sT0, f * 1024))
    g.e("s_lshl_b32 %s, %s, 15" % (sT0, sRT2)); g.e("v_add_u32 v%d, %s, v%d" % (vXRD, sT0, vL16))
    g.e("v_and_b32 v%d, 31, v%d" % (t0, vLANE)); g.e("v_mul_u32_u24 v%d, 1792, v%d" % (t0, t0))
    g.e("v_lshrrev_b32 v%d, 5, v%d" % (t1, vLANE)); g.e("v_lshl_add_u32 v%d, v%d, 4, v%d" % (vXOFF, t1, t0))
    g.e("s_lshl_b32 %s, %s, 1" % (sT0, sRB)); g.e("s_add_u32 %s, %s, %s" % (sT0, sT0, sRT2)); g.e("s_mul_i32 %s, %s, %d" % (sT4, sT0, 32 * 1792))
    g.e("s_mul_i32 %s, %s, 896" % (sT0, sBR)); g.e("s_add_u32 %s, %s, %s" % (sT4, sT4, sT0))
    g.e("s_lshl_b32 %s, %s, 8" % (sT0, sCB)); g.e("s_add_u32 %s, %s, %s" % (sT4, sT4, sT0))
    g.e("s_lshl_b32 %s, %s, 6" % (sT0, sCT)); g.e("s_add_u32 %s, %s, %s" % (sT4, sT4, sT0))
    OB = 16
    lg = Q()
    def rd(k):
        g.e("ds_read_b128 %s, v%d offset:%d" % (vr(OB + (k % 4) * 4, 4), vXRD, k * 1024)); lg.add(k)
    for a in range(2):
        g.e("s_waitcnt vmcnt(%d)" % (4 if a == 0 else 0))
        g.e("s_barrier")
        if a == 0: g.stamp(12)
        base = a * 16
        for k in range(base, base + 4): rd(k)
        for k in range(base, base + 16):
            g.wl(lg.wait(k))
            g.mfma(vO, WFR + 4 * k, OB + (k % 4) * 4, None if k == 0 else vO)
            if k + 4 < base + 16: rd(k + 4)
    g.stamp(13)
    done = g.newlab("L_nostore")
    g.e("s_cmp_lt_u32 %s, 3" % sCB); g.e("s_cselect_b32 %s, 4, 2" % sT0)
    g.e("s_cmp_ge_u32 %s, %s" % (sCT, sT0)); g.e("s_cbranch_scc1 %s" % done)
    g.e("s_nop 8")
    PK = 48
    for i in range(8): g.e("v_cvt_pk_bf16_f32 v%d, v%d, v%d" % (PK + i, vO + 2*i, vO + 2*i + 1))
    g.e("s_nop 1")
    for b in (0, 4):
        g.e("v_permlane32_swap_b32 v%d, v%d" % (PK + b, PK + b + 2)); g.e("v_permlane32_swap_b32 v%d, v%d" % (PK + b + 1, PK + b + 3))
    g.e("s_nop 1")
    for b in range(2): g.e("buffer_store_dwordx4 %s, v%d, %s, %s offen offset:%d" % (vr(PK + 4*b, 4), vXOFF, sOUT, sT4, 32 * b))
    g.lab(done)

def write_stamps(g):
    if not g.stamps: return
    g.e("s_waitcnt vmcnt(0)")
    g.stamp(14)
    g.e("s_waitcnt lgkmcnt(0)")
    g.e("s_getreg_b32 s100, hwreg(HW_REG_XCC_ID)"); g.e("s_getreg_b32 s101, hwreg(HW_REG_HW_ID)")
    g.e("s_lshl_b32 %s, s2, 3" % sT0); g.e("s_add_u32 %s, %s, %s" % (sT0, sT0, sWV)); g.e("s_lshl_b32 %s, %s, 7" % (sT0, sT0))
    g.e("s_add_u32 %s, %s, 0x%x" % (sT0, sT0, WS_STAMP))
    g.e("s_mov_b64 exec, 1")
    for i in range(16):
        g.e("v_mov_b32 v20, s%d" % (70 + 2*i)); g.e("v_mov_b32 v21, s%d" % (71 + 2*i))
        g.e("buffer_store_dwordx2 v[20:21], v%d, %s, %s offen offset:%d" % (vZ, sWS, sT0, 8 * i))
        g.e("s_nop 1")

def build(**kw):
    g = G(**kw)
    K = NAME + "_kernel"
    hdr = open("cdna_kernels/%s.s.ref" % NAME).read().split("; Override launch")[0]
    g.l.append(hdr.rstrip())
    g.l.append("; @launch grid=(256,1,1) block=(512,1,1) lds=163840")
    g.l += ['.amdgcn_target "amdgcn-amd-amdhsa--gfx950"', ".text", ".globl " + K, ".p2align 8", ".type %s,@function" % K, K + ":"]
    g.e("s_cmp_ge_u32 s2, 256"); g.e("s_cbranch_scc1 L_end")
    g.e("s_load_dwordx16 s[32:47], s[0:1], 0"); g.e("s_load_dwordx2 s[48:49], s[0:1], 64")
    if g.stamps:
        for i in range(15): g.e("s_mov_b64 s[%d:%d], 0" % (70 + 2*i, 71 + 2*i))
    g.stamp(0)
    t0, t1, t2 = vT, vT + 1, vT + 2
    g.e("v_lshrrev_b32 v%d, 6, v0" % t0)
    g.e("v_and_b32 v%d, 63, v0" % vLANE)
    g.e("v_readfirstlane_b32 %s, v%d" % (sWV, t0))
    g.e("s_lshr_b32 %s, s2, 7" % sBR)
    g.e("s_bfe_u32 %s, s2, 0x20003" % sT2)
    g.e("s_bfe_u32 %s, s2, 0x20005" % sT3)
    g.e("s_and_b32 %s, s2, 1" % sHP); g.e("s_lshl_b32 %s, %s, 2" % (sHP, sHP)); g.e("s_add_u32 %s, %s, %s" % (sHP, sHP, sT2))
    g.e("s_bfe_u32 %s, s2, 0x20001" % sR); g.e("s_lshl_b32 %s, %s, 2" % (sR, sR)); g.e("s_add_u32 %s, %s, %s" % (sR, sR, sT3))
    g.e("s_lshl_b32 %s, %s, 2" % (sKC, sT2)); g.e("s_add_u32 %s, %s, %s" % (sKC, sKC, sT3))
    for _ in range(2):
        g.e("s_sub_u32 %s, %s, 7" % (sT0, sKC)); g.e("s_cmp_ge_u32 %s, 7" % sKC); g.e("s_cselect_b32 %s, %s, %s" % (sKC, sT0, sKC))
    g.e("s_lshl_b32 %s, %s, 10" % (sW1K, sWV))
    g.e("s_lshr_b32 %s, %s, 2" % (sHH, sWV))
    g.e("s_sub_u32 %s, 7, %s" % (sT0, sWV)); g.e("s_cmp_lt_u32 %s, 4" % sWV); g.e("s_cselect_b32 %s, %s, %s" % (sRT, sWV, sT0))
    g.e("s_mul_i32 %s, %s, %d" % (sXB, sR, 128 * 896))
    g.e("s_mul_i32 %s, %s, 112" % (sWB, sHP))
    g.e("v_lshrrev_b32 v%d, 3, v0" % t0)
    g.e("v_lshrrev_b32 v%d, 4, v0" % t1)
    g.e("v_xor_b32 v%d, v%d, v0" % (t1, t1))
    g.e("v_and_b32 v%d, 7, v%d" % (t1, t1))
    g.e("v_mul_u32_u24 v%d, 896, v%d" % (vXOFF, t0))
    g.e("v_lshl_add_u32 v%d, v%d, 4, v%d" % (vXOFF, t1, vXOFF))
    g.e("v_lshrrev_b32 v%d, 2, v0" % t1); g.e("v_and_b32 v%d, 4, v%d" % (t1, t1))
    g.e("v_and_b32 v%d, 7, v0" % t2); g.e("v_xor_b32 v%d, v%d, v%d" % (t1, t1, t2)); g.e("v_min_u32 v%d, 6, v%d" % (t1, t1))
    g.e("v_mul_u32_u24 v%d, 2688, v%d" % (vWOFF, t0))
    g.e("v_lshl_add_u32 v%d, v%d, 4, v%d" % (vWOFF, t1, vWOFF))
    g.e("s_mov_b32 s6, 0x%x" % X_BYTES); g.e("s_mov_b32 s7, 0x20000"); g.e("s_mov_b32 s10, 0x%x" % W_BYTES); g.e("s_mov_b32 s11, 0x20000")
    g.e("s_cmp_eq_u32 %s, 0" % sBR)
    g.e("s_waitcnt lgkmcnt(0)")
    g.e("s_cselect_b32 s4, s32, s38"); g.e("s_cselect_b32 s5, s33, s39"); g.e("s_cselect_b32 s8, s34, s40"); g.e("s_cselect_b32 s9, s35, s41")
    g.e("s_cbranch_scc0 L_B")
    p1(g, True); end_p1(g)
    if g.stop != "p1":
        attn_A(g)
    g.e("s_branch L_p3")
    g.lab("L_B")
    p1(g, False); end_p1(g)
    if g.stop != "p1":
        attn_B(g)
    g.lab("L_p3")
    if g.stop is None: p3(g)
    write_stamps(g)
    g.lab("L_end"); g.e("s_endpgm")
    g.l += ['.section .rodata,"a"', ".p2align 6", ".amdhsa_kernel " + K, "  .amdhsa_next_free_vgpr 256", "  .amdhsa_next_free_sgpr 102",
            "  .amdhsa_accum_offset 256", "  .amdhsa_group_segment_fixed_size 0", "  .amdhsa_kernarg_size 72", "  .amdhsa_user_sgpr_count 2",
            "  .amdhsa_user_sgpr_kernarg_segment_ptr 1", "  .amdhsa_system_sgpr_workgroup_id_x 1", ".end_amdhsa_kernel"]
    return "\n".join(g.l) + "\n"

if __name__ == "__main__":
    ap = argparse.ArgumentParser()
    ap.add_argument("-o", default="k.s"); ap.add_argument("--stamps", action="store_true"); ap.add_argument("--dbgq", action="store_true")
    ap.add_argument("--stop", default=None); ap.add_argument("--exp", default=""); ap.add_argument("--dA", type=int, default=5); ap.add_argument("--dB", type=int, default=2)
    a = ap.parse_args()
    open(a.o, "w").write(build(stamps=a.stamps, dbgq=a.dbgq, stop=a.stop, depthA=a.dA, depthB=a.dB, exp=a.exp))
```

```python
import sys, math, struct, argparse
NAME = "concat_heads__sliding_block__sliding_local_dilated__prompt"
def f32bits(x): return struct.unpack("<I", struct.pack("<f", x))[0]

X_BYTES = 2048*896; W_BYTES = 448*2688; WO_BYTES = 448*896; OUT_BYTES = 2048*1792
WS_KV = 0; WS_OF = 8 << 20; WS_KVFLAG = 16 << 20; WS_OFLAG = (16 << 20) + 65536; WS_QDBG = 20 << 20; WS_STAMP = 32 << 20
WS_RECORDS = 64 << 20
NEG = f32bits(-1.0e30)
CSCALE = f32bits((28 ** -0.5) * math.log2(math.e))
LBIG = f32bits(2.0 ** 64)
OOB = 0x7FF00000
SPIN_MAX = 1 << 22

def vr(a, n): return "v[%d:%d]" % (a, a + n - 1)
sX, sW, sWO, sWS, sOUT, sDBG = "s[4:7]", "s[8:11]", "s[12:15]", "s[16:19]", "s[20:23]", "s[24:27]"
sBR, sHP, sR, sWV = "s28", "s29", "s30", "s31"
sRT, sHH, sW1K, sKC, sXS, sXS2, sWSO, sXB, sWB, sKVO = "s50", "s51", "s52", "s53", "s54", "s55", "s56", "s57", "s58", "s59"
sNON = "s[60:61]"; sT0, sT1, sT2, sT3 = "s62", "s63", "s64", "s65"; sTM = "s[64:65]"; sC = "s66"; sT4 = "s67"; sUP = "s[68:69]"
sXCD, sIDX = "s3", "s33"
vLANE, vXOFF, vWOFF = 1, 2, 3
vXRD = 4; vWRD = 8; vL16 = 9; vT = 10; vKVW = 14; vZ = 15
vWB = 16
vAK, vAV, vAQ = 32, 48, 64
vKP, vVP = 80, 88
vC1, vC2 = 96, 112
vXF = 128
vNON = 240
SLOT = 32768
KVBASE = (98304, 16384)

def lane_mask(fn):
    m = 0
    for l in range(64):
        if fn(l): m |= 1 << l
    return m
def key_of(r, l): return (r & 3) + 8 * (r >> 2) + 4 * (l >> 5)

class Q:
    def __init__(self): self.q = []
    def add(self, tag, n=1): self.q += [tag] * n
    def wait(self, tag):
        idx = [i for i, t in enumerate(self.q) if t == tag]
        if not idx: return None
        n = len(self.q) - 1 - idx[-1]
        self.q = self.q[idx[-1] + 1:]
        return n

class G:
    def __init__(self, stamps=False, depthA=5, depthB=2, dbgq=False, stop=None, exp=""):
        self.exp = exp
        self.l = []; self.stamps = stamps; self.depthA = depthA; self.depthB = depthB; self.dbgq = dbgq; self.stop = stop
        self.nlab = 0
    def e(self, s): self.l.append("    " + s)
    def c(self, s): self.l.append("    ; " + s)
    def lab(self, s): self.l.append(s + ":")
    def newlab(self, p="L"):
        self.nlab += 1; return "%s_%d" % (p, self.nlab)
    def stamp(self, i):
        if self.stamps: self.e("s_memrealtime s[%d:%d]" % (70 + 2*i, 71 + 2*i))
    def mask(self, m):
        self.e("s_mov_b32 s64, 0x%08x" % (m & 0xffffffff)); self.e("s_mov_b32 s65, 0x%08x" % (m >> 32))
    def mfma(self, d, a, b, c):
        self.e("v_mfma_f32_32x32x16_bf16 %s, %s, %s, %s" % (vr(d, 16), vr(a, 4), vr(b, 4), "0" if c is None else vr(c, 16)))
    def wl(self, n):
        if n is not None: self.e("s_waitcnt lgkmcnt(%d)" % min(n, 15))
    def wv(self, n):
        if n is not None: self.e("s_waitcnt vmcnt(%d)" % min(n, 63))

ITEM_KS = [4]*7 + [16, 12]

def advance_kc(g):
    g.e("s_add_u32 %s, %s, 1" % (sKC, sKC)); g.e("s_cmp_eq_u32 %s, 7" % sKC); g.e("s_cselect_b32 %s, 0, %s" % (sKC, sKC))

def issue_item(g, vm, i):
    slot = (i % 5) * SLOT
    if i < 7:
        g.e("s_lshl_b32 %s, %s, 7" % (sXS, sKC))
        g.e("s_add_u32 m0, %s, %d" % (sW1K, slot))
        g.e("s_add_u32 %s, %s, %s" % (sXS, sXS, sXB))
        g.e("s_mul_i32 %s, %s, %d" % (sWSO, sKC, 64 * 2688))
        g.e("buffer_load_dwordx4 v%d, %s, %s offen lds" % (vXOFF, sX, sXS))
        g.e("s_add_u32 m0, %s, %d" % (sW1K, slot + 16384 - 896))
        g.e("s_add_u32 %s, %s, %s" % (sWSO, sWSO, sWB))
        g.e("buffer_load_dwordx4 v%d, %s, %s offen offset:896 lds" % (vWOFF, sW, sWSO))
        g.e("s_add_u32 m0, %s, %d" % (sW1K, slot + 24576 - 1792))
        g.e("s_add_u32 %s, %s, %d" % (sXS2, sXS, 64 * 896))
        g.e("buffer_load_dwordx4 v%d, %s, %s offen offset:1792 lds" % (vWOFF, sW, sWSO))
        g.e("s_add_u32 m0, %s, %d" % (sW1K, slot + 8192))
        advance_kc(g)
        g.e("buffer_load_dwordx4 v%d, %s, %s offen lds" % (vXOFF, sX, sXS2))
        vm.add(i, 4)
    else:
        n = 4 if i == 7 else 3
        for c in range(n):
            g.e("s_mul_i32 %s, %s, %d" % (sWSO, sKC, 64 * 2688))
            g.e("s_add_u32 m0, %s, %d" % (sW1K, slot + c * 8192))
            g.e("s_add_u32 %s, %s, %s" % (sWSO, sWSO, sWB))
            advance_kc(g)
            g.e("buffer_load_dwordx4 v%d, %s, %s offen lds" % (vWOFF, sW, sWSO))
        vm.add(i, n)

def common_setup(g):
    t0, t1, t2 = vT, vT + 1, vT + 2
    for (srd, a, n) in ((12, None, WO_BYTES), (16, 48, WS_RECORDS), (20, 44, OUT_BYTES), (24, 46, 256)):
        if a is None:
            g.e("s_cmp_eq_u32 %s, 0" % sBR)
            g.e("s_cselect_b32 s12, s36, s42"); g.e("s_cselect_b32 s13, s37, s43")
        else:
            g.e("s_mov_b32 s%d, s%d" % (srd, a)); g.e("s_mov_b32 s%d, s%d" % (srd + 1, a + 1))
        g.e("s_mov_b32 s%d, 0x%x" % (srd + 2, n)); g.e("s_mov_b32 s%d, 0x20000" % (srd + 3))
    g.e("v_mov_b32 v%d, 0" % vZ)
    skip = g.newlab("L_non")
    g.e("s_or_b32 %s, s2, %s" % (sT0, sWV)); g.e("s_cmp_lg_u32 %s, 0" % sT0); g.e("s_cbranch_scc1 %s" % skip)
    g.e("s_memrealtime %s" % sNON); g.e("s_waitcnt lgkmcnt(0)"); g.e("s_or_b32 s60, s60, 1")
    g.e("v_mov_b32 v%d, s60" % vNON); g.e("v_mov_b32 v%d, s61" % (vNON + 1))
    g.e("s_mov_b64 exec, 1")
    g.e("buffer_store_dwordx2 %s, v%d, %s, 0 offen sc1" % (vr(vNON, 2), vZ, sDBG))
    g.e("s_mov_b64 exec, -1")
    g.lab(skip)
    g.e("s_mov_b32 s68, 0"); g.e("s_mov_b32 s69, -1")
    g.e("s_mov_b32 %s, 0x%08x" % (sC, CSCALE))
    g.e("v_lshlrev_b32 v%d, 4, v%d" % (vL16, vLANE))
    g.e("v_and_b32 v%d, 31, v%d" % (t0, vLANE))
    g.e("v_bfe_u32 v%d, v%d, 1, 3" % (t1, vLANE))
    g.e("v_lshrrev_b32 v%d, 5, v%d" % (t2, vLANE)); g.e("v_xor_b32 v%d, v%d, v%d" % (t1, t1, t2))
    g.e("s_lshl_b32 %s, %s, 12" % (sT0, sRT))
    g.e("v_lshlrev_b32 v%d, 7, v%d" % (t0, t0)); g.e("v_add_u32 v%d, %s, v%d" % (t0, sT0, t0))
    g.e("v_lshl_add_u32 v%d, v%d, 4, v%d" % (vXRD, t1, t0))
    for k in range(1, 4): g.e("v_xor_b32 v%d, %d, v%d" % (vXRD + k, k << 5, vXRD))
    g.e("v_bfe_u32 v%d, v%d, 2, 2" % (t0, vLANE))
    g.e("v_lshl_add_u32 v%d, v%d, 3, v%d" % (t1, t2, t0))
    g.e("v_lshlrev_b32 v%d, 7, v%d" % (t1, t1))
    g.e("v_lshrrev_b32 v%d, 1, v%d" % (t0, t0)); g.e("v_lshlrev_b32 v%d, 6, v%d" % (t0, t0))
    g.e("v_and_b32 v%d, 3, v%d" % (t2, vLANE)); g.e("v_lshlrev_b32 v%d, 3, v%d" % (t2, t2))
    g.e("v_and_b32 v%d, 16, v%d" % (vWRD, vLANE)); g.e("v_lshl_add_u32 v%d, v%d, 1, v%d" % (t2, vWRD, t2))
    g.e("s_mul_i32 %s, %s, 56" % (sT1, sHH)); g.e("v_add_u32 v%d, %s, v%d" % (t2, sT1, t2))
    g.e("v_xor_b32 v%d, v%d, v%d" % (t2, t2, t0)); g.e("v_add_u32 v%d, v%d, v%d" % (vWRD, t1, t2))
    g.e("s_lshl_b32 %s, %s, 3" % (sKVO, sBR)); g.e("s_add_u32 %s, %s, %s" % (sKVO, sKVO, sHP)); g.e("s_lshl_b32 %s, %s, 4" % (sKVO, sKVO))
    g.e("s_add_u32 %s, %s, %s" % (sKVO, sKVO, sR)); g.e("s_lshl_b32 %s, %s, 15" % (sKVO, sKVO))
    g.e("s_lshl_b32 %s, %s, 14" % (sT1, sHH)); g.e("s_add_u32 %s, %s, %s" % (sKVO, sKVO, sT1))
    g.e("s_add_u32 %s, %s, %s" % (sT4, sKVO, sT0))
    g.e("s_mov_b32 %s, %d" % (sT1, KVBASE[1]))
    g.e("s_cmp_eq_u32 %s, 0" % sHH)
    g.e("s_cselect_b32 %s, 0x%x, %s" % (sT1, KVBASE[0], sT1)); g.e("s_add_u32 %s, %s, %s" % (sT1, sT1, sT0))
    g.e("v_add_u32 v%d, %s, v%d" % (vKVW, sT1, vL16))

def p1(g, isA):
    depth = g.depthA if isA else g.depthB
    vm = Q(); lg = Q()
    for i in range(depth):
        issue_item(g, vm, i)
        if "ibar" in g.exp and i < depth - 1: g.e("s_barrier")
    nxt = [depth]
    g.stamp(1)
    common_setup(g)
    g.e("v_mov_b32 v%d, 0x%08x" % (vT, NEG))
    for r in range(16):
        if isA:
            g.mask(lane_mask(lambda l: key_of(r, l) <= (l & 31)))
            g.e("v_cndmask_b32 v%d, v%d, 0, %s" % (vC1 + r, vT, sTM))
            g.e("v_cndmask_b32 v%d, 0, v%d, %s" % (vC2 + r, vT, sTM))
        else:
            g.mask(lane_mask(lambda l: ((l & 31) - key_of(r, l)) in range(0, 16, 2)))
            g.e("v_cndmask_b32 v%d, v%d, 0, %s" % (vC1 + r, vT, sTM))
            g.mask(lane_mask(lambda l: (32 + (l & 31) - key_of(r, l)) in range(0, 16, 2)))
            g.e("v_cndmask_b32 v%d, v%d, 0, %s" % (vC2 + r, vT, sTM))
    if not isA:
        skip = g.newlab("L_c2")
        g.e("s_or_b32 %s, %s, %s" % (sT0, sR, sRT)); g.e("s_cmp_lg_u32 %s, 0" % sT0); g.e("s_cbranch_scc1 %s" % skip)
        for r in range(16): g.e("v_mov_b32 v%d, v%d" % (vC2 + r, vT))
        g.lab(skip)
    steps = [(i, ks) for i in range(9) for ks in range(ITEM_KS[i])]
    NS = len(steps)
    win = [0]
    def set_window(wn, need_x):
        d = (wn - win[0]) * 65536
        if d:
            for rg in [vWRD] + ([vXRD + k for k in range(4)] if need_x else []):
                g.e("v_add_u32 v%d, 0x%x, v%d" % (rg, d & 0xffffffff, rg))
            win[0] = wn
    def open_item(i):
        g.wv(vm.wait(i))
        g.e("s_barrier")
        if g.stop == "p1": g.stamp(2 + i)
        else:
            if i == 0: g.stamp(2)
            if i == 7: g.stamp(3)
        while nxt[0] <= 8 and nxt[0] <= i + depth and (nxt[0] < 5 or nxt[0] <= i + 3):
            issue_item(g, vm, nxt[0]); nxt[0] += 1
        if i == 5:
            g.e("buffer_load_dwordx2 %s, v%d, %s, 0 offen sc1" % (vr(vNON, 2), vZ, sDBG)); vm.add("non")
    def reads(j):
        i, ks = steps[j]
        if ks == 0: open_item(i)
        slot = i % 5; base = (slot % 2) * SLOT
        if "noread" in g.exp: return
        set_window(slot // 2, i < 7)
        if i < 7:
            b = vWB + (j % 2) * 8
            g.e("ds_read_b128 %s, v%d offset:%d" % (vr(vXF + 4 * j, 4), vXRD + ks, base))
            for t in range(2):
                for h in range(2):
                    g.e("ds_read_b64_tr_b16 %s, v%d offset:%d" % (vr(b + 4*t + 2*h, 2), vWRD, base + 16384 + t * 8192 + ks * 2048 + h * 512))
            lg.add(j, 5)
        else:
            b = vWB + (j % 4) * 4
            for h in range(2):
                g.e("ds_read_b64_tr_b16 %s, v%d offset:%d" % (vr(b + 2*h, 2), vWRD, base + ks * 2048 + h * 512))
            lg.add(j, 2)
    def mm(j):
        i, ks = steps[j]
        if "nomfma" in g.exp: return
        if i < 7:
            b = vWB + (j % 2) * 8; x = vXF + 4 * j
            g.mfma(vAK, b, x, None if j == 0 else vAK)
            g.mfma(vAV, x, b + 4, None if j == 0 else vAV)
        else:
            g.mfma(vAQ, vWB + (j % 4) * 4, vXF + 4 * (j - 28), None if j == 28 else vAQ)
    def kv_post():
        for i in range(8): g.e("v_cvt_pk_bf16_f32 v%d, v%d, v%d" % (vKP + i, vAK + 2*i, vAK + 2*i + 1))
        for i in range(8): g.e("v_cvt_pk_bf16_f32 v%d, v%d, v%d" % (vVP + i, vAV + 2*i, vAV + 2*i + 1))
        g.e("v_mov_b32 v%d, 0x3f803f80" % vT)
        g.mask(lane_mask(lambda l: (l & 31) == 28))
        g.e("v_cndmask_b32 v%d, v%d, v%d, %s" % (vKP + 6, vKP + 6, vT, sUP))
        for i in range(8): g.e("v_cndmask_b32 v%d, v%d, v%d, %s" % (vVP + i, vVP + i, vT, sTM))
        skip = g.newlab("L_nopub")
        if not isA:
            g.e("s_cmp_lg_u32 %s, 3" % sRT); g.e("s_cbranch_scc1 %s" % skip)
        for f in range(4):
            g.e("buffer_store_dwordx4 %s, v%d, %s, %s offen offset:%d sc1" % (vr(vKP + 4*f, 4), vL16, sWS, sT4, f * 1024))
        if not isA: g.lab(skip)
        else: vm.add("kv", 4)
    def kv_lds():
        for f in range(4):
            g.e("ds_write_b128 v%d, %s offset:%d" % (vKVW, vr(vKP + 4*f, 4), 32768 + f * 1024))
        lg.add("kvw", 4)
    issued = [0]
    def issue_upto(j):
        while issued[0] <= j and issued[0] < NS:
            reads(issued[0]); issued[0] += 1
    issue_upto(1)
    for j in range(NS):
        g.wl(lg.wait(j))
        mm(j)
        if j < 26: issue_upto(j + 2)
        elif j == 26: issue_upto(29)
        elif j == 27: issue_upto(31)
        else: issue_upto(j + 4)
        if j == 30: kv_post()
        if j == 45: kv_lds()
    g.stamp(11 if g.stop == "p1" else 4)

vQF = 16
vO = 32
vS = 128
vKB = 176
vVB = 192
vM = 208; vM2 = 209; vNM = 210; vP = 212

def q_pack(g):
    g.e("v_mov_b32 v%d, %s" % (vT, sC))
    g.e("v_cndmask_b32 v%d, v%d, 0, %s" % (vT + 1, vT, sUP))
    g.e("s_nop 7")
    for r in range(16): g.e("v_mul_f32 v%d, v%d, v%d" % (vAQ + r, vT + (1 if r >= 12 else 0), vAQ + r))
    for i in range(8): g.e("v_cvt_pk_bf16_f32 v%d, v%d, v%d" % (vQF + i, vAQ + 2*i, vAQ + 2*i + 1))

def get_nonce(g):
    lp = g.newlab("L_nlp"); ok = g.newlab("L_nok")
    g.e("s_mov_b32 %s, 0" % sT0)
    g.lab(lp)
    g.e("v_readfirstlane_b32 s60, v%d" % vNON); g.e("v_readfirstlane_b32 s61, v%d" % (vNON + 1))
    g.e("s_add_u32 %s, %s, 1" % (sT0, sT0))
    g.e("s_cmp_lg_u32 s60, 0"); g.e("s_cbranch_scc1 %s" % ok)
    g.e("s_cmp_gt_u32 %s, %d" % (sT0, SPIN_MAX)); g.e("s_cbranch_scc1 %s" % ok)
    g.e("buffer_load_dwordx2 %s, v%d, %s, 0 offen sc1" % (vr(vNON, 2), vZ, sDBG))
    g.e("s_waitcnt vmcnt(0)")
    g.e("s_branch %s" % lp)
    g.lab(ok)

def store_flag(g, soff_reg):
    g.e("v_mov_b32 v%d, s60" % vNON); g.e("v_mov_b32 v%d, s61" % (vNON + 1))
    g.e("s_mov_b64 exec, 1")
    g.e("buffer_store_dwordx2 %s, v%d, %s, %s offen sc1" % (vr(vNON, 2), vZ, sWS, soff_reg))
    g.e("s_mov_b64 exec, -1")

def poll(g, vaddr, execmask_reg):
    lp = g.newlab("L_poll"); ok = g.newlab("L_pok")
    g.e("s_mov_b64 exec, %s" % execmask_reg)
    g.e("s_mov_b32 %s, 0" % sT0)
    g.lab(lp)
    g.e("buffer_load_dwordx2 %s, v%d, %s, 0 offen sc1" % (vr(vNON + 2, 2), vaddr, sWS))
    g.e("s_add_u32 %s, %s, 1" % (sT0, sT0))
    g.e("s_waitcnt vmcnt(0)")
    g.e("v_cmp_ne_u64 vcc, %s, %s" % (sNON, vr(vNON + 2, 2)))
    g.e("s_cmp_gt_u32 %s, %d" % (sT0, SPIN_MAX)); g.e("s_cbranch_scc1 %s" % ok)
    g.e("s_cbranch_vccnz %s" % lp)
    g.lab(ok)
    g.e("s_mov_b64 exec, -1")

def end_p1(g):
    q_pack(g)
    if g.dbgq:
        g.e("s_lshr_b32 %s, %s, 1" % (sT0, sT4)); g.e("s_add_u32 %s, %s, 0x%x" % (sT0, sT0, WS_QDBG))
        g.e("s_nop 1")
        for f in range(2): g.e("buffer_store_dwordx4 %s, v%d, %s, %s offen offset:%d" % (vr(vQF + 4*f, 4), vL16, sWS, sT0, f * 1024))
    g.e("s_waitcnt vmcnt(0) lgkmcnt(0)")
    g.e("s_barrier")
    g.stamp(12 if g.stop == "p1" else 5)
    get_nonce(g)
    skip = g.newlab("L_nf")
    g.e("s_cmp_lg_u32 %s, 0" % sWV); g.e("s_cbranch_scc1 %s" % skip)
    g.e("s_lshr_b32 %s, %s, 8" % (sT1, sKVO))
    g.e("s_add_u32 %s, %s, 0x%x" % (sT1, sT1, WS_KVFLAG))
    store_flag(g, sT1)
    g.lab(skip)

def kv_flag_addr(g, vdst):
    g.e("s_lshr_b32 %s, %s, 15" % (sT1, sKVO)); g.e("s_lshl_b32 %s, %s, 7" % (sT1, sT1))
    g.e("s_add_u32 %s, %s, 0x%x" % (sT1, sT1, WS_KVFLAG - 128))
    g.e("v_lshlrev_b32 v%d, 7, v%d" % (vdst, vLANE))
    g.e("v_sub_u32 v%d, %s, v%d" % (vdst, sT1, vdst))

def max16(g, s, dst, first=True):
    if first:
        g.e("v_max3_f32 v%d, v%d, v%d, v%d" % (dst, s, s + 1, s + 2)); rest = list(range(3, 16))
    else: rest = list(range(16))
    while len(rest) >= 2:
        a, b = rest.pop(0), rest.pop(0)
        g.e("v_max3_f32 v%d, v%d, v%d, v%d" % (dst, dst, s + a, s + b))
    if rest: g.e("v_max_f32 v%d, v%d, v%d" % (dst, dst, s + rest[0]))

def xhalf_max(g):
    g.e("v_mov_b32 v%d, v%d" % (vM2, vM)); g.e("s_nop 1")
    g.e("v_permlane32_swap_b32 v%d, v%d" % (vM, vM2)); g.e("s_nop 1")
    g.e("v_max_f32 v%d, v%d, v%d" % (vM, vM, vM2))

def set_shift(g):
    g.e("v_cvt_pk_bf16_f32 v%d, -v%d, 0" % (vM2, vM))
    g.e("v_lshlrev_b32 v%d, 16, v%d" % (vNM, vM2))
    g.e("v_cndmask_b32 v%d, v%d, v%d, %s" % (vQF + 6, vQF + 6, vM2, sUP))

def finish_o(g):
    g.e("v_rcp_f32 v%d, v%d" % (vM, vM2))
    g.e("s_nop 0")
    g.e("v_cndmask_b32 v%d, v%d, 0, %s" % (vM2, vM, sUP))
    for r in range(16): g.e("v_mul_f32 v%d, v%d, v%d" % (vO + r, vM2 if r >= 12 else vM, vO + r))
    for i in range(8): g.e("v_cvt_pk_bf16_f32 v%d, v%d, v%d" % (vP + i, vO + 2*i, vO + 2*i + 1))
    g.e("s_lshl_b32 %s, %s, 6" % (sT0, sBR)); g.e("s_lshl_b32 %s, %s, 2" % (sT1, sR)); g.e("s_add_u32 %s, %s, %s" % (sT0, sT0, sT1))
    g.e("s_add_u32 %s, %s, %s" % (sT0, sT0, sRT)); g.e("s_lshl_b32 %s, %s, 4" % (sT0, sT0))
    g.e("s_lshl_b32 %s, %s, 1" % (sT1, sHP)); g.e("s_add_u32 %s, %s, %s" % (sT0, sT0, sT1)); g.e("s_add_u32 %s, %s, %s" % (sT0, sT0, sHH))
    g.e("s_lshl_b32 %s, %s, 11" % (sT0, sT0)); g.e("s_add_u32 %s, %s, 0x%x" % (sT0, sT0, WS_OF))
    for f in range(2): g.e("buffer_store_dwordx4 %s, v%d, %s, %s offen offset:%d sc1" % (vr(vP + 4*f, 4), vL16, sWS, sT0, f * 1024))

def bcast_l(g):
    g.e("v_mov_b32 v%d, v%d" % (vM, vO + 12)); g.e("v_mov_b32 v%d, v%d" % (vM2, vO + 12)); g.e("s_nop 1")
    g.e("v_permlane32_swap_b32 v%d, v%d" % (vM, vM2)); g.e("s_nop 1")

def attn_A(g):
    lg = Q()
    toff = lambda u: (8 - u) * 4096
    nold = g.newlab("L_nold")
    g.e("s_cmp_lg_u32 %s, 0" % sRT); g.e("s_cbranch_scc1 %s" % nold)
    nopoll = g.newlab("L_nopoll")
    g.e("s_cmp_eq_u32 %s, 0" % sR); g.e("s_cbranch_scc1 %s" % nopoll)
    kv_flag_addr(g, vT)
    g.e("s_cmp_eq_u32 %s, 1" % sR); g.e("s_cselect_b32 s64, 1, 3"); g.e("s_mov_b32 s65, 0")
    poll(g, vT, sTM)
    g.lab(nopoll)
    g.stamp(6)
    g.e("v_readfirstlane_b32 %s, v%d" % (sT2, vKVW))
    for b in (1, 2):
        g.e("s_sub_u32 %s, %s, %d" % (sT1, sKVO, b * 32768))
        g.e("s_cmp_lt_u32 %s, %d" % (sR, b)); g.e("s_cselect_b32 %s, 0x%x, %s" % (sT1, OOB, sT1))
        for t in range(4):
            g.e("s_add_u32 m0, %s, %d" % (sT2, (2 - b) * 16384 + t * 4096))
            g.e("s_add_u32 %s, %s, %d" % (sT0, sT1, t * 4096))
            for f in range(4):
                g.e("buffer_load_dwordx4 v%d, %s, %s offen offset:%d sc1 lds" % (vL16, sWS, sT0, f * 1024))
    g.lab(nold)
    def site(u):
        for (cond, n) in ((u - 1, 16), (u - 5, 0)):
            if 0 <= cond <= 3:
                sk = g.newlab("L_site")
                g.e("s_cmp_lg_u32 %s, %d" % (sRT, cond)); g.e("s_cbranch_scc1 %s" % sk)
                g.e("s_waitcnt vmcnt(%d)" % n); g.e("s_barrier")
                g.lab(sk)
    def rdK(u):
        for j in range(2): g.e("ds_read_b128 %s, v%d offset:%d" % (vr(vKB + (u % 2) * 8 + 4*j, 4), vKVW, toff(u) + j * 1024))
        lg.add(("K", u), 2)
    def rdV(u):
        for j in range(2): g.e("ds_read_b128 %s, v%d offset:%d" % (vr(vVB + (u % 2) * 8 + 4*j, 4), vKVW, toff(u) + 2048 + j * 1024))
        lg.add(("V", u), 2)
    def qk(u, j):
        s = vS + (u % 3) * 16
        c = s if j else (vC1 if u == 0 else vC2 if u == 8 else None)
        g.mfma(s, vKB + (u % 2) * 8 + 4*j, vQF + 4*j, c)
    def pv(u, j):
        g.mfma(vO, vVB + (u % 2) * 8 + 4*j, vS + (u % 3) * 16 + 4*j, None if (u == 0 and j == 0) else vO)
    rdK(0)
    g.wl(lg.wait(("K", 0))); qk(0, 0); qk(0, 1)
    g.e("s_nop 11")
    max16(g, vS, vM); xhalf_max(g); set_shift(g)
    for r in range(16): g.e("v_add_f32 v%d, v%d, v%d" % (vS + r, vNM, vS + r))
    for u in range(9):
        s = vS + (u % 3) * 16
        ex = lambda a, b: [g.e("v_exp_f32 v%d, v%d" % (s + r, s + r)) for r in range(a, b)]
        if u < 8: site(u + 1); rdK(u + 1)
        rdV(u)
        if u > 0: g.wl(lg.wait(("V", u - 1))); pv(u - 1, 0)
        ex(0, 5)
        if u > 0: pv(u - 1, 1)
        ex(5, 10)
        if u < 8: g.wl(lg.wait(("K", u + 1))); qk(u + 1, 0)
        ex(10, 16)
        if u < 8: qk(u + 1, 1)
        else: g.e("s_nop 0")
        for i in range(8): g.e("v_cvt_pk_bf16_f32 v%d, v%d, v%d" % (s + i, s + 2*i, s + 2*i + 1))
        if u < 8: g.e("s_nop 1")
    g.wl(lg.wait(("V", 8))); g.e("s_nop 0"); pv(8, 0); pv(8, 1)
    g.e("s_nop 11")
    bcast_l(g)
    ok = g.newlab("L_aok")
    g.e("s_mov_b32 %s, 0x%08x" % (sT0, LBIG))
    g.e("v_cmp_nlt_f32 vcc, v%d, %s" % (vM2, sT0) if False else "v_cmp_ngt_f32 vcc, %s, v%d" % (sT0, vM2))
    g.e("s_cbranch_vccz %s" % ok)
    fallback_A(g)
    g.lab(ok)
    g.stamp(7)
    finish_o(g)

def fallback_A(g):
    g.e("s_lshl_b32 %s, %s, 2" % (sT1, sR)); g.e("s_add_u32 %s, %s, %s" % (sT1, sT1, sRT)); g.e("s_min_u32 %s, %s, 8" % (sT1, sT1))
    g.e("v_mov_b32 v%d, 0" % vM2)
    g.e("v_cndmask_b32 v%d, v%d, v%d, %s" % (vQF + 6, vQF + 6, vM2, sUP))
    g.e("v_mov_b32 v%d, 0x%08x" % (vM, NEG))
    for r in range(16): g.e("v_mov_b32 v%d, 0" % (vO + r))
    for pas in range(2):
        lp = g.newlab("L_fb"); l0 = g.newlab("L_fb0"); l8 = g.newlab("L_fb8"); lj = g.newlab("L_fbj")
        g.e("s_mov_b32 %s, 0" % sT0)
        g.e("v_add_u32 v%d, 0x8000, v%d" % (vT, vKVW))
        g.lab(lp)
        for j in range(4): g.e("ds_read_b128 %s, v%d offset:%d" % (vr(vKB + 4*j, 4), vT, j * 1024))
        g.e("s_waitcnt lgkmcnt(0)")
        g.e("s_cmp_eq_u32 %s, 0" % sT0); g.e("s_cbranch_scc1 %s" % l0)
        g.e("s_cmp_eq_u32 %s, 8" % sT0); g.e("s_cbranch_scc1 %s" % l8)
        g.mfma(vS, vKB, vQF, None); g.e("s_branch %s" % lj)
        g.lab(l0); g.mfma(vS, vKB, vQF, vC1); g.e("s_branch %s" % lj)
        g.lab(l8); g.mfma(vS, vKB, vQF, vC2)
        g.lab(lj)
        g.mfma(vS, vKB + 4, vQF + 4, vS)
        g.e("s_nop 11")
        if pas == 0:
            max16(g, vS, vM, first=False)
        else:
            for r in range(16): g.e("v_exp_f32 v%d, v%d" % (vS + r, vS + r))
            g.e("s_nop 0")
            for i in range(8): g.e("v_cvt_pk_bf16_f32 v%d, v%d, v%d" % (vS + i, vS + 2*i, vS + 2*i + 1))
            g.e("s_nop 1")
            g.mfma(vO, vKB + 8, vS, vO); g.mfma(vO, vKB + 12, vS + 4, vO)
            g.e("s_nop 11")
        g.e("v_subrev_u32 v%d, 0x1000, v%d" % (vT, vT))
        g.e("s_add_u32 %s, %s, 1" % (sT0, sT0))
        g.e("s_cmp_le_u32 %s, %s" % (sT0, sT1)); g.e("s_cbranch_scc1 %s" % lp)
        if pas == 0:
            xhalf_max(g); set_shift(g); g.e("s_nop 1")
    bcast_l(g)

def attn_B(g):
    nold = g.newlab("L_bnold"); nopoll = g.newlab("L_bnopoll")
    g.e("s_cmp_lg_u32 %s, 0" % sRT); g.e("s_cbranch_scc1 %s" % nold)
    g.e("s_cmp_eq_u32 %s, 0" % sR); g.e("s_cbranch_scc1 %s" % nopoll)
    kv_flag_addr(g, vT)
    g.e("s_mov_b64 %s, 1" % sTM)
    poll(g, vT, sTM)
    g.lab(nopoll)
    g.stamp(6)
    g.e("v_readfirstlane_b32 %s, v%d" % (sT2, vKVW))
    g.e("s_sub_u32 %s, %s, %d" % (sT1, sKVO, 32768 - 3 * 4096))
    g.e("s_cmp_eq_u32 %s, 0" % sR); g.e("s_cselect_b32 %s, 0x%x, %s" % (sT1, OOB, sT1))
    g.e("s_add_u32 m0, %s, %d" % (sT2, 7 * 4096)); g.e("s_nop 0")
    for f in range(4): g.e("buffer_load_dwordx4 v%d, %s, %s offen offset:%d sc1 lds" % (vL16, sWS, sT1, f * 1024))
    g.lab(nold)
    for j in range(2): g.e("ds_read_b128 %s, v%d offset:%d" % (vr(vKB + 4*j, 4), vKVW, 32768 + j * 1024))
    for j in range(2): g.e("ds_read_b128 %s, v%d offset:%d" % (vr(vVB + 4*j, 4), vKVW, 32768 + 2048 + j * 1024))
    g.e("s_waitcnt lgkmcnt(2)")
    g.mfma(vS, vKB, vQF, vC1); g.mfma(vS, vKB + 4, vQF + 4, vS)
    g.e("s_waitcnt vmcnt(0)")
    for j in range(2): g.e("ds_read_b128 %s, v%d offset:%d" % (vr(vKB + 8 + 4*j, 4), vKVW, 28672 + j * 1024))
    for j in range(2): g.e("ds_read_b128 %s, v%d offset:%d" % (vr(vVB + 8 + 4*j, 4), vKVW, 28672 + 2048 + j * 1024))
    g.e("s_waitcnt lgkmcnt(2)")
    g.mfma(vS + 16, vKB + 8, vQF, vC2); g.mfma(vS + 16, vKB + 12, vQF + 4, vS + 16)
    g.e("s_nop 4")
    max16(g, vS, vM); g.e("s_nop 0"); max16(g, vS + 16, vM, first=False); xhalf_max(g)
    for r in range(32): g.e("v_sub_f32 v%d, v%d, v%d" % (vS + r, vS + r, vM))
    for t in range(2):
        s = vS + 16 * t
        for r in range(16): g.e("v_exp_f32 v%d, v%d" % (s + r, s + r))
        g.e("s_nop 0")
        for i in range(8): g.e("v_cvt_pk_bf16_f32 v%d, v%d, v%d" % (s + i, s + 2*i, s + 2*i + 1))
        g.e("s_waitcnt lgkmcnt(0)"); g.e("s_nop 0")
        g.mfma(vO, vVB + 8*t, s, None if t == 0 else vO); g.mfma(vO, vVB + 8*t + 4, s + 4, vO)
    g.e("s_nop 11")
    bcast_l(g)
    g.stamp(7)
    finish_o(g)

vWF = 128
def p3(g):
    t0, t1, t2 = vT, vT + 1, vT + 2
    sCB, sRB = sXS, sXS2
    g.e("s_and_b32 %s, s2, 1" % sCB); g.e("s_lshl_b32 %s, %s, 1" % (sCB, sCB)); g.e("s_bfe_u32 %s, s2, 0x10003" % sT0); g.e("s_add_u32 %s, %s, %s" % (sCB, sCB, sT0))
    g.e("s_bfe_u32 %s, s2, 0x20001" % sRB); g.e("s_lshl_b32 %s, %s, 3" % (sRB, sRB)); g.e("s_bfe_u32 %s, s2, 0x30004" % sT0); g.e("s_add_u32 %s, %s, %s" % (sRB, sRB, sT0))
    g.e("v_lshrrev_b32 v%d, 4, v%d" % (t0, vLANE))
    g.e("v_lshlrev_b32 v%d, 2, v%d" % (t1, t0)); g.e("v_and_b32 v%d, 15, v%d" % (t2, vLANE)); g.e("v_xor_b32 v%d, v%d, v%d" % (t1, t1, t2))
    g.e("v_mul_u32_u24 v%d, 896, v%d" % (vWOFF, t0)); g.e("v_lshl_add_u32 v%d, v%d, 4, v%d" % (vWOFF, t1, vWOFF))
    g.e("s_cmp_eq_u32 %s, 3" % sCB); g.e("s_cselect_b32 %s, 8, 64" % sT0)
    g.e("v_mov_b32 v%d, 0x%x" % (t2, OOB))
    g.e("v_cmp_le_u32 vcc, %s, v%d" % (sT0, t1)); g.e("s_nop 1")
    g.e("v_cndmask_b32 v%d, v%d, v%d, vcc" % (vWOFF, vWOFF, t2))
    g.e("s_mul_i32 %s, %s, 3584" % (sWSO, sWV)); g.e("s_lshl_b32 %s, %s, 8" % (sT0, sCB)); g.e("s_add_u32 %s, %s, %s" % (sWSO, sWSO, sT0))
    g.e("s_barrier")
    g.stamp(8)
    for m in range(15):
        g.e("s_add_u32 m0, %s, %d" % (sW1K, m * 8192))
        if m: g.e("s_add_u32 %s, %s, %d" % (sWSO, sWSO, 8 * 3584))
        else: g.e("s_nop 0")
        g.e("buffer_load_dwordx4 v%d, %s, %s offen lds" % (vWOFF, sWO, sWSO))
    g.e("s_waitcnt vmcnt(15)")
    g.e("s_barrier")
    skip = g.newlab("L_nof")
    g.e("s_cmp_lg_u32 %s, 0" % sWV); g.e("s_cbranch_scc1 %s" % skip)
    g.e("s_lshl_b32 %s, %s, 4" % (sT1, sBR)); g.e("s_add_u32 %s, %s, %s" % (sT1, sT1, sR)); g.e("s_lshl_b32 %s, %s, 3" % (sT1, sT1))
    g.e("s_add_u32 %s, %s, %s" % (sT1, sT1, sHP)); g.e("s_lshl_b32 %s, %s, 7" % (sT1, sT1)); g.e("s_add_u32 %s, %s, 0x%x" % (sT1, sT1, WS_OFLAG))
    store_flag(g, sT1)
    g.lab(skip)
    g.stamp(9)
    sCT, sRT2 = sKC, sXB
    g.e("s_lshr_b32 %s, %s, 1" % (sCT, sWV)); g.e("s_and_b32 %s, %s, 1" % (sRT2, sWV))
    g.e("v_bfe_u32 v%d, v%d, 2, 2" % (t0, vLANE)); g.e("v_lshrrev_b32 v%d, 5, v%d" % (t1, vLANE))
    g.e("v_lshl_add_u32 v%d, v%d, 2, v%d" % (t1, t1, t0)); g.e("v_lshlrev_b32 v%d, 8, v%d" % (t1, t1))
    g.e("v_lshlrev_b32 v%d, 6, v%d" % (t0, t0))
    g.e("v_and_b32 v%d, 3, v%d" % (t2, vLANE)); g.e("v_lshlrev_b32 v%d, 3, v%d" % (t2, t2))
    g.e("v_and_b32 v%d, 16, v%d" % (vWRD, vLANE)); g.e("v_lshl_add_u32 v%d, v%d, 1, v%d" % (t2, vWRD, t2))
    g.e("s_lshl_b32 %s, %s, 6" % (sT0, sCT)); g.e("v_add_u32 v%d, %s, v%d" % (t2, sT0, t2))
    g.e("v_xor_b32 v%d, v%d, v%d" % (t2, t2, t0)); g.e("v_add_u32 v%d, v%d, v%d" % (vWRD, t1, t2))
    g.e("v_add_u32 v%d, 0x10000, v%d" % (vXRD, vWRD))
    g.e("s_lshr_b32 %s, %s, 1" % (sT0, sRB)); g.e("s_lshl_b32 %s, %s, 4" % (sT1, sBR)); g.e("s_add_u32 %s, %s, %s" % (sT0, sT0, sT1))
    g.e("s_lshl_b32 %s, %s, 10" % (sT0, sT0)); g.e("s_add_u32 %s, %s, 0x%x" % (sT0, sT0, WS_OFLAG))
    g.e("v_lshlrev_b32 v%d, 7, v%d" % (vXRD + 1, vLANE)); g.e("v_add_u32 v%d, %s, v%d" % (vXRD + 1, sT0, vXRD + 1))
    g.e("s_waitcnt vmcnt(0)")
    g.e("s_barrier")
    g.stamp(10)
    WFR = 96
    for h in range(16):
        for j in range(2):
            for i in range(2):
                off = (28 * h + 16 * j + 8 * i) * 256
                a = vWRD if off < 65536 else vXRD
                g.e("ds_read_b64_tr_b16 %s, v%d offset:%d" % (vr(WFR + (h * 2 + j) * 4 + 2 * i, 2), a, off % 65536))
    np_ = g.newlab("L_np3")
    g.e("s_cmp_lg_u32 %s, 0" % sWV); g.e("s_cbranch_scc1 %s" % np_)
    g.e("s_mov_b64 %s, 0xff" % sTM)
    poll(g, vXRD + 1, sTM)
    g.lab(np_)
    g.e("s_waitcnt lgkmcnt(0)")
    g.e("s_barrier")
    g.stamp(11)
    g.e("s_lshl_b32 %s, %s, 15" % (sT1, sHH)); g.e("s_and_b32 %s, %s, 3" % (sT0, sWV)); g.e("s_lshl_b32 %s, %s, 12" % (sT0, sT0)); g.e("s_add_u32 %s, %s, %s" % (sT1, sT1, sT0))
    g.e("s_lshl_b32 %s, %s, 21" % (sT0, sBR)); g.e("s_lshl_b32 %s, %s, 16" % (sT2, sRB)); g.e("s_add_u32 %s, %s, %s" % (sT0, sT0, sT2))
    g.e("s_add_u32 %s, %s, %s" % (sT0, sT0, sT1)); g.e("s_add_u32 %s, %s, 0x%x" % (sT0, sT0, WS_OF))
    for a in range(2):
        g.e("s_add_u32 m0, %s, %d" % (sT1, a * 16384))
        if a: g.e("s_add_u32 %s, %s, 16384" % (sT0, sT0))
        else: g.e("s_nop 0")
        for f in range(4): g.e("buffer_load_dwordx4 v%d, %s, %s offen offset:%d sc1 lds" % (vL16, sWS, sT0, f * 1024))
    g.e("s_lshl_b32 %s, %s, 15" % (sT0, sRT2)); g.e("v_add_u32 v%d, %s, v%d" % (vXRD, sT0, vL16))
    g.e("v_and_b32 v%d, 31, v%d" % (t0, vLANE)); g.e("v_mul_u32_u24 v%d, 1792, v%d" % (t0, t0))
    g.e("v_lshrrev_b32 v%d, 5, v%d" % (t1, vLANE)); g.e("v_lshl_add_u32 v%d, v%d, 4, v%d" % (vXOFF, t1, t0))
    g.e("s_lshl_b32 %s, %s, 1" % (sT0, sRB)); g.e("s_add_u32 %s, %s, %s" % (sT0, sT0, sRT2)); g.e("s_mul_i32 %s, %s, %d" % (sT4, sT0, 32 * 1792))
    g.e("s_mul_i32 %s, %s, 896" % (sT0, sBR)); g.e("s_add_u32 %s, %s, %s" % (sT4, sT4, sT0))
    g.e("s_lshl_b32 %s, %s, 8" % (sT0, sCB)); g.e("s_add_u32 %s, %s, %s" % (sT4, sT4, sT0))
    g.e("s_lshl_b32 %s, %s, 6" % (sT0, sCT)); g.e("s_add_u32 %s, %s, %s" % (sT4, sT4, sT0))
    OB = 16
    lg = Q()
    def rd(k):
        g.e("ds_read_b128 %s, v%d offset:%d" % (vr(OB + (k % 4) * 4, 4), vXRD, k * 1024)); lg.add(k)
    for a in range(2):
        g.e("s_waitcnt vmcnt(%d)" % (4 if a == 0 else 0))
        g.e("s_barrier")
        if a == 0: g.stamp(12)
        base = a * 16
        for k in range(base, base + 4): rd(k)
        for k in range(base, base + 16):
            g.wl(lg.wait(k))
            g.mfma(vO, WFR + 4 * k, OB + (k % 4) * 4, None if k == 0 else vO)
            if k + 4 < base + 16: rd(k + 4)
    g.stamp(13)
    done = g.newlab("L_nostore")
    g.e("s_cmp_lt_u32 %s, 3" % sCB); g.e("s_cselect_b32 %s, 4, 2" % sT0)
    g.e("s_cmp_ge_u32 %s, %s" % (sCT, sT0)); g.e("s_cbranch_scc1 %s" % done)
    g.e("s_nop 8")
    PK = 48
    for i in range(8): g.e("v_cvt_pk_bf16_f32 v%d, v%d, v%d" % (PK + i, vO + 2*i, vO + 2*i + 1))
    g.e("s_nop 1")
    for b in (0, 4):
        g.e("v_permlane32_swap_b32 v%d, v%d" % (PK + b, PK + b + 2)); g.e("v_permlane32_swap_b32 v%d, v%d" % (PK + b + 1, PK + b + 3))
    g.e("s_nop 1")
    for b in range(2): g.e("buffer_store_dwordx4 %s, v%d, %s, %s offen offset:%d" % (vr(PK + 4*b, 4), vXOFF, sOUT, sT4, 32 * b))
    g.lab(done)

def write_span(g):
    g.e("s_waitcnt vmcnt(0)")
    g.stamp(14)
    g.e("s_waitcnt lgkmcnt(0)")
    g.e("s_not_b32 s100, s70")
    g.e("s_mov_b64 exec, 1")
    g.e("v_mov_b32 v20, s100")
    g.e("buffer_atomic_umax v20, v%d, %s, 0 offen offset:8" % (vZ, sDBG))
    skip = g.newlab("L_spanB")
    g.e("v_mov_b32 v21, s98")
    g.e("buffer_atomic_umax v21, v%d, %s, 0 offen offset:12" % (vZ, sDBG))
    g.e("s_cmp_lg_u32 %s, 0" % sBR); g.e("s_cbranch_scc1 %s" % skip)
    for k, i in enumerate((0, 1, 2, 3, 4, 5, 7, 8, 9, 10, 11, 12)):
        g.e("v_mov_b32 v%d, s%d" % (22 + k, 70 + 2*i))
        g.e("buffer_atomic_umax v%d, v%d, %s, 0 offen offset:%d" % (22 + k, vZ, sDBG, 16 + 4*k))
    g.lab(skip)

def write_stamps(g):
    if not g.stamps: return
    if "span" in g.exp: return write_span(g)
    g.e("s_waitcnt vmcnt(0)")
    g.stamp(14)
    g.e("s_waitcnt lgkmcnt(0)")
    g.e("s_getreg_b32 s100, hwreg(HW_REG_XCC_ID)"); g.e("s_getreg_b32 s101, hwreg(HW_REG_HW_ID)")
    g.e("s_lshl_b32 %s, s2, 3" % sT0); g.e("s_add_u32 %s, %s, %s" % (sT0, sT0, sWV)); g.e("s_lshl_b32 %s, %s, 7" % (sT0, sT0))
    g.e("s_add_u32 %s, %s, 0x%x" % (sT0, sT0, WS_STAMP))
    g.e("s_mov_b64 exec, 1")
    for i in range(16):
        g.e("v_mov_b32 v20, s%d" % (70 + 2*i)); g.e("v_mov_b32 v21, s%d" % (71 + 2*i))
        g.e("buffer_store_dwordx2 v[20:21], v%d, %s, %s offen offset:%d" % (vZ, sWS, sT0, 8 * i))
        g.e("s_nop 1")

def build(**kw):
    g = G(**kw)
    K = NAME + "_kernel"
    hdr = open("cdna_kernels/%s.s.ref" % NAME).read().split("; Override launch")[0]
    g.l.append(hdr.rstrip())
    g.l.append("; @launch grid=(256,1,1) block=(512,1,1) lds=163840")
    g.l += ['.amdgcn_target "amdgcn-amd-amdhsa--gfx950"', ".text", ".globl " + K, ".p2align 8", ".type %s,@function" % K, K + ":"]
    g.e("s_cmp_ge_u32 s2, 256"); g.e("s_cbranch_scc1 L_end")
    g.e("s_load_dwordx16 s[32:47], s[0:1], 0"); g.e("s_load_dwordx2 s[48:49], s[0:1], 64")
    if g.stamps:
        for i in range(15): g.e("s_mov_b64 s[%d:%d], 0" % (70 + 2*i, 71 + 2*i))
    g.stamp(0)
    t0, t1, t2 = vT, vT + 1, vT + 2
    g.e("v_lshrrev_b32 v%d, 6, v0" % t0)
    g.e("v_and_b32 v%d, 63, v0" % vLANE)
    g.e("v_readfirstlane_b32 %s, v%d" % (sWV, t0))
    g.e("s_lshr_b32 %s, s2, 7" % sBR)
    g.e("s_bfe_u32 %s, s2, 0x20003" % sT2)
    g.e("s_bfe_u32 %s, s2, 0x20005" % sT3)
    g.e("s_and_b32 %s, s2, 1" % sHP); g.e("s_lshl_b32 %s, %s, 2" % (sHP, sHP)); g.e("s_add_u32 %s, %s, %s" % (sHP, sHP, sT2))
    g.e("s_bfe_u32 %s, s2, 0x20001" % sR); g.e("s_lshl_b32 %s, %s, 2" % (sR, sR)); g.e("s_add_u32 %s, %s, %s" % (sR, sR, sT3))
    g.e("s_lshl_b32 %s, %s, 2" % (sKC, sT2)); g.e("s_add_u32 %s, %s, %s" % (sKC, sKC, sT3))
    for _ in range(2):
        g.e("s_sub_u32 %s, %s, 7" % (sT0, sKC)); g.e("s_cmp_ge_u32 %s, 7" % sKC); g.e("s_cselect_b32 %s, %s, %s" % (sKC, sT0, sKC))
    g.e("s_lshl_b32 %s, %s, 10" % (sW1K, sWV))
    g.e("s_lshr_b32 %s, %s, 2" % (sHH, sWV))
    g.e("s_sub_u32 %s, 7, %s" % (sT0, sWV)); g.e("s_cmp_lt_u32 %s, 4" % sWV); g.e("s_cselect_b32 %s, %s, %s" % (sRT, sWV, sT0))
    g.e("s_mul_i32 %s, %s, %d" % (sXB, sR, 128 * 896))
    g.e("s_mul_i32 %s, %s, 112" % (sWB, sHP))
    g.e("v_lshrrev_b32 v%d, 3, v0" % t0)
    g.e("v_lshrrev_b32 v%d, 4, v0" % t1)
    g.e("v_xor_b32 v%d, v%d, v0" % (t1, t1))
    g.e("v_and_b32 v%d, 7, v%d" % (t1, t1))
    g.e("v_mul_u32_u24 v%d, 896, v%d" % (vXOFF, t0))
    g.e("v_lshl_add_u32 v%d, v%d, 4, v%d" % (vXOFF, t1, vXOFF))
    g.e("v_lshrrev_b32 v%d, 2, v0" % t1); g.e("v_and_b32 v%d, 4, v%d" % (t1, t1))
    g.e("v_and_b32 v%d, 7, v0" % t2); g.e("v_xor_b32 v%d, v%d, v%d" % (t1, t1, t2)); g.e("v_min_u32 v%d, 6, v%d" % (t1, t1))
    g.e("v_mul_u32_u24 v%d, 2688, v%d" % (vWOFF, t0))
    g.e("v_lshl_add_u32 v%d, v%d, 4, v%d" % (vWOFF, t1, vWOFF))
    g.e("s_mov_b32 s6, 0x%x" % X_BYTES); g.e("s_mov_b32 s7, 0x20000"); g.e("s_mov_b32 s10, 0x%x" % W_BYTES); g.e("s_mov_b32 s11, 0x20000")
    g.e("s_cmp_eq_u32 %s, 0" % sBR)
    g.e("s_waitcnt lgkmcnt(0)")
    g.e("s_cselect_b32 s4, s32, s38"); g.e("s_cselect_b32 s5, s33, s39"); g.e("s_cselect_b32 s8, s34, s40"); g.e("s_cselect_b32 s9, s35, s41")
    g.e("s_cbranch_scc0 L_B")
    p1(g, True); end_p1(g)
    if g.stop != "p1":
        attn_A(g)
    g.e("s_branch L_p3")
    g.lab("L_B")
    p1(g, False); end_p1(g)
    if g.stop != "p1":
        attn_B(g)
    g.lab("L_p3")
    if g.stop is None: p3(g)
    write_stamps(g)
    g.lab("L_end"); g.e("s_endpgm")
    g.l += ['.section .rodata,"a"', ".p2align 6", ".amdhsa_kernel " + K, "  .amdhsa_next_free_vgpr 256", "  .amdhsa_next_free_sgpr 102",
            "  .amdhsa_accum_offset 256", "  .amdhsa_group_segment_fixed_size 0", "  .amdhsa_kernarg_size 72", "  .amdhsa_user_sgpr_count 2",
            "  .amdhsa_user_sgpr_kernarg_segment_ptr 1", "  .amdhsa_system_sgpr_workgroup_id_x 1", ".end_amdhsa_kernel"]
    return "\n".join(g.l) + "\n"

if __name__ == "__main__":
    ap = argparse.ArgumentParser()
    ap.add_argument("-o", default="k.s"); ap.add_argument("--stamps", action="store_true"); ap.add_argument("--dbgq", action="store_true")
    ap.add_argument("--stop", default=None); ap.add_argument("--exp", default=""); ap.add_argument("--dA", type=int, default=5); ap.add_argument("--dB", type=int, default=2)
    a = ap.parse_args()
    open(a.o, "w").write(build(stamps=a.stamps, dbgq=a.dbgq, stop=a.stop, depthA=a.dA, depthB=a.dB, exp=a.exp))
```

```python
import sys, math, struct, argparse
NAME = "concat_heads__sliding_block__sliding_local_dilated__prompt"
def f32bits(x): return struct.unpack("<I", struct.pack("<f", x))[0]

X_BYTES = 2048*896; W_BYTES = 448*2688; WO_BYTES = 448*896; OUT_BYTES = 2048*1792
WS_KV = 0; WS_OF = 8 << 20; WS_KVFLAG = 16 << 20; WS_OFLAG = (16 << 20) + 65536; WS_QDBG = 20 << 20; WS_STAMP = 32 << 20
WS_RECORDS = 64 << 20
NEG = f32bits(-1.0e30)
CSCALE = f32bits((28 ** -0.5) * math.log2(math.e))
LBIG = f32bits(2.0 ** 64)
OOB = 0x7FF00000
SPIN_MAX = 1 << 18

def vr(a, n): return "v[%d:%d]" % (a, a + n - 1)
sX, sW, sWO, sWS, sOUT, sDBG = "s[4:7]", "s[8:11]", "s[12:15]", "s[16:19]", "s[20:23]", "s[24:27]"
sBR, sHP, sR, sWV = "s28", "s29", "s30", "s31"
sRT, sHH, sW1K, sKC, sXS, sP1K, sWSO, sXB, sWB, sKVO = "s50", "s51", "s52", "s53", "s54", "s55", "s56", "s57", "s58", "s59"
sNON = "s[60:61]"; sT0, sT1, sT2, sT3 = "s62", "s63", "s64", "s65"; sTM = "s[64:65]"; sC = "s66"; sT4 = "s67"; sUP = "s[68:69]"
sCB, sRB, sWOS = "s32", "s33", "s34"
vLANE, vXOFF, vWOFF = 1, 2, 3
vXRD = 4; vWRD = 8; vL16 = 9; vT = 10; vZ = 15
vQF = 16
vACC = 32
vXB = 128; vWB = 152
vC1, vC2 = 192, 208
vAD = 224
vWOO = 233
vNON = 240
vO = 32; vS = 128; vKB = 48; vVB = 64
vM = 80; vM2 = 81; vNM = 82; vP = 84
SLOT = 40960
def hole(r): return 3 * 40960 + 32768 + (56 + r) * 128 + ((7 ^ (4 * ((r >> 1) & 1))) * 16)
HOLEMASK = None
vFA = 234; vFB = 235; vFV = 236; vFW = 237
L_OWN = 0; L_QA = 122880; L_CB = 139264; L_R1 = 32768; L_R2 = 65536; L_W1 = 98304; L_W2A = 0; L_W2B = 65536; L_O = 32768
FBASE = 3 * 40960 + 39936
F_KV0, F_KV1, F_CQ, F_CO = 124, 252, 316, 444
vGR = 238; vGW = 239; vG1 = 244; vG2 = 245; vGV = 246; vGV2 = 247

def lane_mask(fn):
    m = 0
    for l in range(64):
        if fn(l): m |= 1 << l
    return m
def key_of(r, l): return (r & 3) + 8 * (r >> 2) + 4 * (l >> 5)

class Q:
    def __init__(self): self.q = []
    def add(self, tag, n=1): self.q += [tag] * n
    def wait(self, tag):
        idx = [i for i, t in enumerate(self.q) if t == tag]
        if not idx: return None
        n = len(self.q) - 1 - idx[-1]
        self.q = self.q[idx[-1] + 1:]
        return n
    def clear(self): self.q = []

class G:
    def __init__(self, **kw):
        self.l = []; self.nlab = 0; self.slow = []; self.slow2 = []
        self.__dict__.update(kw)
    def e(self, s): self.l.append("    " + s)
    def lab(self, s): self.l.append(s + ":")
    def newlab(self, p="L"):
        self.nlab += 1; return "%s_%d" % (p, self.nlab)
    def astamp(self, i):
        if "astamp" in self.exp: self.e("s_memtime s[%d:%d]" % (70 + 2*i, 71 + 2*i))
    def stamp(self, i):
        if "astamp" in self.exp: return
        if self.stamps: self.e("%s s[%d:%d]" % ("s_memtime" if "cyc" in self.exp else "s_memrealtime", 70 + 2*i, 71 + 2*i))
    def mask(self, m):
        self.e("s_mov_b32 s64, 0x%08x" % (m & 0xffffffff)); self.e("s_mov_b32 s65, 0x%08x" % (m >> 32))
    def mfma(self, d, a, b, c):
        self.e("v_mfma_f32_32x32x16_bf16 %s, %s, %s, %s" % (vr(d, 16), vr(a, 4), vr(b, 4), "0" if c is None else vr(c, 16)))
    def wl(self, n):
        if n is not None: self.e("s_waitcnt lgkmcnt(%d)" % min(n, 15))
    def wv(self, n):
        if n is not None: self.e("s_waitcnt vmcnt(%d)" % min(n, 63))

vXO = 128; vWO = 132; vFVAL = 140
WBIAS = 4096
def producer_prep(g):
    t0, t1, t2, t3 = vT, vT + 1, vT + 2, vT + 3
    g.e("v_lshrrev_b32 v%d, 3, v%d" % (t0, vLANE))
    g.e("v_lshrrev_b32 v%d, 4, v%d" % (t1, vLANE))
    g.e("v_xor_b32 v%d, v%d, v%d" % (t1, t1, vLANE)); g.e("v_and_b32 v%d, 7, v%d" % (t1, t1))
    g.e("v_mul_u32_u24 v%d, 896, v%d" % (t2, t0))
    g.e("v_lshl_add_u32 v%d, v%d, 4, v%d" % (vXO, t1, t2))
    g.e("v_xor_b32 v%d, 64, v%d" % (t3, vXO))
    g.e("v_add_u32 v%d, %d, v%d" % (vXO + 1, 7168 - 1024, t3))
    g.e("v_add_u32 v%d, %d, v%d" % (vXO + 2, 2 * (7168 - 1024), vXO))
    g.e("v_add_u32 v%d, %d, v%d" % (vXO + 3, 3 * (7168 - 1024), t3))
    g.e("v_lshrrev_b32 v%d, 2, v%d" % (t1, vLANE)); g.e("v_and_b32 v%d, 4, v%d" % (t1, t1))
    g.e("v_and_b32 v%d, 7, v%d" % (t2, vLANE)); g.e("v_xor_b32 v%d, v%d, v%d" % (t1, t1, t2)); g.e("v_min_u32 v%d, 6, v%d" % (t1, t1))
    g.e("v_mul_u32_u24 v%d, 2688, v%d" % (t2, t0))
    g.e("v_lshl_add_u32 v%d, v%d, 4, v%d" % (t2, t1, t2))
    for q in (2, 3, 4, 5, 0, 1):
        t, h = divmod(q, 2)
        g.e("v_add_u32 v%d, %d, v%d" % (vWO + q, WBIAS + h * 8 * 2688 + t * 896 - (q % 4) * 1024, t2))
    g.e("s_and_b32 %s, %s, 3" % (sT0, sWV))
    g.e("s_mul_i32 %s, %s, %d" % (sXS, sR, 128 * 896)); g.e("s_mul_i32 %s, %s, %d" % (sT1, sT0, 32 * 896)); g.e("s_add_u32 %s, %s, %s" % (sXS, sXS, sT1))
    g.e("s_mul_i32 %s, %s, 112" % (sWSO, sHP)); g.e("s_mul_i32 %s, %s, %d" % (sT1, sT0, 16 * 2688)); g.e("s_add_u32 %s, %s, %s" % (sWSO, sWSO, sT1))
    g.e("s_lshl_b32 %s, %s, 12" % (sXB, sT0)); g.e("s_mul_i32 %s, %s, 6144" % (sWB, sT0))

def issue_item(g, vm, i):
    slot = (i % 4) * SLOT
    if "nodma" in g.exp and i > 1:
        vm.add(i, 0); return
    g.e("s_add_u32 m0, %s, %d" % (sXB, slot))
    if i: g.e("s_add_u32 %s, %s, 128" % (sXS, sXS))
    else: g.e("s_nop 0")
    for m in range(4): g.e("buffer_load_dwordx4 v%d, %s, %s offen%s lds" % (vXO + m, sX, sXS, " offset:%d" % (m * 1024) if m else ""))
    g.e("s_add_u32 m0, %s, %d" % (sWB, slot + 16384))
    if i: g.e("s_add_u32 %s, %s, %d" % (sWSO, sWSO, 64 * 2688))
    else: g.e("s_nop 0")
    for q in (2, 3, 0, 1): g.e("buffer_load_dwordx4 v%d, %s, %s offen%s lds" % (vWO + q, sW, sWSO, " offset:%d" % (q * 1024) if q else ""))
    g.e("s_add_u32 m0, %s, %d" % (sWB, slot + 16384 + 4096))
    g.e("s_nop 0")
    g.e("buffer_load_dwordx4 v%d, %s, %s offen lds" % (vWO + 4, sW, sWSO))
    if i == 3: g.e("s_mov_b64 exec, %s" % sUP)
    g.e("buffer_load_dwordx4 v%d, %s, %s offen offset:1024 lds" % (vWO + 5, sW, sWSO))
    if i == 3: g.e("s_mov_b64 exec, -1")
    vm.add(i, 10)

def early_setup(g):
    g.e("s_mov_b32 s24, s46"); g.e("s_mov_b32 s25, s47"); g.e("s_mov_b32 s26, 256"); g.e("s_mov_b32 s27, 0x20000")
    g.e("v_mov_b32 v%d, 0" % vZ)
    skip = g.newlab("L_non")
    g.e("s_or_b32 %s, s2, %s" % (sT0, sWV)); g.e("s_cmp_lg_u32 %s, 0" % sT0); g.e("s_cbranch_scc1 %s" % skip)
    g.e("s_memrealtime %s" % sNON); g.e("s_waitcnt lgkmcnt(0)"); g.e("s_or_b32 s60, s60, 1")
    g.e("v_mov_b32 v%d, s60" % vNON); g.e("v_mov_b32 v%d, s61" % (vNON + 1))
    g.e("s_mov_b64 exec, 1")
    g.e("buffer_store_dwordx2 %s, v%d, %s, 0 offen sc1" % (vr(vNON, 2), vZ, sDBG))
    g.e("s_mov_b64 exec, -1")
    g.lab(skip)
    g.e("v_lshlrev_b32 v%d, 4, v%d" % (vL16, vLANE))
    g.e("s_bfe_u32 %s, %s, 0x10001" % (sHH, sWV))

def late_setup(g, isA, masks=True):
    t0, t1, t2 = vT, vT + 1, vT + 2
    save = g.l; groups = []
    def cut():
        if g.l: groups.append(g.l)
        g.l = []
    g.l = []
    g.e("s_cmp_eq_u32 %s, 0" % sBR)
    g.e("s_cselect_b32 s12, s36, s42"); g.e("s_cselect_b32 s13, s37, s43"); cut()
    g.e("s_mov_b32 s14, 0x%x" % WO_BYTES); g.e("s_mov_b32 s15, 0x20000"); cut()
    for (srd, a, n) in ((16, 48, WS_RECORDS), (20, 44, OUT_BYTES)):
        g.e("s_mov_b32 s%d, s%d" % (srd, a)); g.e("s_mov_b32 s%d, s%d" % (srd + 1, a + 1)); cut()
        g.e("s_mov_b32 s%d, 0x%x" % (srd + 2, n)); g.e("s_mov_b32 s%d, 0x20000" % (srd + 3)); cut()
    g.e("s_mov_b32 s68, 0"); g.e("s_mov_b32 s69, -1"); cut()
    g.e("s_mov_b32 %s, 0x%08x" % (sC, CSCALE))
    g.e("s_lshl_b32 %s, %s, 10" % (sW1K, sWV)); cut()
    g.e("s_and_b32 %s, %s, 1" % (sT0, sWV)); g.e("s_sub_u32 %s, 3, %s" % (sT1, sT0)); cut()
    g.e("s_cmp_lt_u32 %s, 4" % sWV); g.e("s_cselect_b32 %s, %s, %s" % (sRT, sT0, sT1)); cut()
    g.e("s_lshl_b32 %s, %s, 3" % (sKVO, sBR)); g.e("s_add_u32 %s, %s, %s" % (sKVO, sKVO, sHP)); cut()
    g.e("s_lshl_b32 %s, %s, 4" % (sKVO, sKVO)); g.e("s_add_u32 %s, %s, %s" % (sKVO, sKVO, sR)); g.e("s_lshl_b32 %s, %s, 15" % (sKVO, sKVO)); cut()
    g.e("s_lshl_b32 %s, %s, 14" % (sT0, sHH)); g.e("s_lshl_b32 %s, %s, 12" % (sT1, sRT)); cut()
    g.e("s_add_u32 %s, %s, %s" % (sT0, sT0, sT1)); g.e("v_add_u32 v%d, %s, v%d" % (vAD, sT0, vL16)); cut()
    for u in range(1, 9 if isA else 2):
        g.e("s_cmp_eq_u32 %s, %d" % (sRT, (u - 1) % 4))
        g.e("s_cselect_b32 %s, 0x%x, 0x%x" % (sT0, 32768 + 12288, (-4096) & 0xffffffff) if False else "s_cselect_b32 %s, %s, %s" % (sT0, "s36", "s37"))
        g.e("v_add_u32 v%d, %s, v%d" % (vAD + u, sT0, vAD + u - 1)); cut()
    g.e("s_and_b32 %s, s2, 1" % sCB); g.e("s_lshl_b32 %s, %s, 1" % (sCB, sCB)); cut()
    g.e("s_bfe_u32 %s, s2, 0x10003" % sT0); g.e("s_add_u32 %s, %s, %s" % (sCB, sCB, sT0)); cut()
    g.e("s_bfe_u32 %s, s2, 0x20001" % sRB); g.e("s_lshl_b32 %s, %s, 3" % (sRB, sRB)); cut()
    g.e("s_bfe_u32 %s, s2, 0x30004" % sT0); g.e("s_add_u32 %s, %s, %s" % (sRB, sRB, sT0)); cut()
    g.e("v_lshrrev_b32 v%d, 4, v%d" % (t0, vLANE)); g.e("v_lshlrev_b32 v%d, 2, v%d" % (t1, t0)); cut()
    g.e("v_and_b32 v%d, 15, v%d" % (t2, vLANE)); g.e("v_xor_b32 v%d, v%d, v%d" % (t1, t1, t2)); cut()
    g.e("v_mul_u32_u24 v%d, 896, v%d" % (vWOO, t0)); g.e("v_lshl_add_u32 v%d, v%d, 4, v%d" % (vWOO, t1, vWOO)); cut()
    g.e("s_cmp_eq_u32 %s, 3" % sCB); g.e("s_cselect_b32 %s, 8, 64" % sT0)
    g.e("v_mov_b32 v%d, 0x%x" % (t2, OOB)); cut()
    g.e("v_cmp_le_u32 vcc, %s, v%d" % (sT0, t1))
    g.e("s_mul_i32 %s, %s, 3584" % (sWOS, sWV)); g.e("s_lshl_b32 %s, %s, 8" % (sT0, sCB))
    g.e("v_cndmask_b32 v%d, v%d, v%d, vcc" % (vWOO, vWOO, t2)); cut()
    g.e("s_add_u32 %s, %s, %s" % (sWOS, sWOS, sT0)); cut()
    if not masks: groups_nomask = True
    g.e("v_mov_b32 v%d, 0x%08x" % (vT, NEG)); cut()
    for r in range(16 if masks else 0):
        if isA:
            g.mask(lane_mask(lambda l: key_of(r, l) <= (l & 31)))
            g.e("v_cndmask_b32 v%d, v%d, 0, %s" % (vC1 + r, vT, sTM)); cut()
            g.e("v_cndmask_b32 v%d, 0, v%d, %s" % (vC2 + r, vT, sTM)); cut()
        else:
            g.mask(lane_mask(lambda l: ((l & 31) - key_of(r, l)) in range(0, 16, 2)))
            g.e("v_cndmask_b32 v%d, v%d, 0, %s" % (vC1 + r, vT, sTM)); cut()
            g.mask(lane_mask(lambda l: (32 + (l & 31) - key_of(r, l)) in range(0, 16, 2)))
            g.e("v_cndmask_b32 v%d, v%d, 0, %s" % (vC2 + r, vT, sTM)); cut()
    g.l = save
    groups.insert(1, ["    s_mov_b32 s36, 0x%x" % (32768 + 12288), "    s_mov_b32 s37, 0x%x" % ((-4096) & 0xffffffff)])
    return groups

def pstamp(g, i):
    if g.stop == "p1": g.stamp(2 + i)
    elif i == 0: g.stamp(2)
    elif i == 6: g.stamp(3)

def flag_addrs(g, rd0, wr0):
    A = [hole(r) + 8 for r in range(8)]
    base = 3 * SLOT + 32768 + 56 * 128
    for (dst, first, src) in ((vFA, rd0, None), (vFB, wr0, sP1K)):
        if src is None: g.e("v_and_b32 v%d, 3, v%d" % (vFW, vLANE))
        else:
            g.e("s_lshr_b32 %s, %s, 10" % (sT0, sP1K)); g.e("v_mov_b32 v%d, %s" % (vFW, sT0))
        g.e("v_and_b32 v%d, 2, v%d" % (dst, vFW)); g.e("v_lshlrev_b32 v%d, 5, v%d" % (dst, dst))
        g.e("v_lshlrev_b32 v%d, 7, v%d" % (vFW, vFW)); g.e("v_sub_u32 v%d, v%d, v%d" % (dst, vFW, dst))
        g.e("v_add_u32 v%d, %d, v%d" % (dst, base + first * 128 + 120, dst))
    g.e("v_mov_b32 v%d, 0x%x" % (vFW, 0x7ffffff0))
    g.e("v_cmp_eq_u32 vcc, 0, v%d" % vLANE); g.e("s_nop 1")
    g.e("v_cndmask_b32 v%d, v%d, v%d, vcc" % (vFB, vFW, vFB))

def spin_flag(g, need, off=0):
    lp = g.newlab("L_spin"); ok = g.newlab("L_spok")
    g.e("s_mov_b32 s35, 0")
    g.lab(lp)
    g.e("ds_read_b32 v%d, v%d offset:%d" % (vFV, vFA, off))
    g.e("s_add_u32 s35, s35, 1")
    g.e("s_waitcnt lgkmcnt(0)")
    g.e("v_cmp_gt_u32 vcc, %d, v%d" % (need, vFV))
    g.e("s_cmp_gt_u32 s35, %d" % (SPIN_MAX * 8)); g.e("s_cbranch_scc1 %s" % ok)
    g.e("s_cbranch_vccnz %s" % lp)
    g.lab(ok)

def spin_word(g, need, areg, off, vdst):
    lp = g.newlab("L_spin"); ok = g.newlab("L_spok")
    g.e("s_mov_b32 s35, 0")
    g.lab(lp)
    g.e("ds_read_b32 v%d, v%d offset:%d" % (vdst, areg, off))
    g.e("s_add_u32 s35, s35, 1")
    g.e("s_waitcnt lgkmcnt(0)")
    g.e("v_cmp_gt_u32 vcc, %d, v%d" % (need, vdst))
    g.e("s_cmp_gt_u32 s35, %d" % (SPIN_MAX * 8)); g.e("s_cbranch_scc1 %s" % ok)
    g.e("s_cbranch_vccnz %s" % lp)
    g.lab(ok)

def check_word(g, need, areg, off, vsrc):
    sl = g.newlab("L_slow"); back = g.newlab("L_back")
    g.e("v_cmp_gt_u32 vcc, %d, v%d" % (need, vsrc)); g.e("s_cbranch_vccnz %s" % sl); g.lab(back)
    g.slow2.append((sl, back, need, areg, off, vsrc))

def set_flag(g, val):
    g.e("v_mov_b32 v%d, %d" % (vFW, val))
    g.e("ds_write_b32 v%d, v%d" % (vFB, vFW))

def producer(g, isA):
    init, dist = (g.iA, g.dA) if isA else (g.iB, g.dB)
    vm = Q()
    if g.prio: g.e("s_setprio %d" % g.prio)
    issue_item(g, vm, 0)
    m = lane_mask(lambda l: ((l & 7) ^ (4 * ((l >> 4) & 1))) != 7)
    g.e("s_mov_b32 s68, 0x%08x" % (m & 0xffffffff)); g.e("s_mov_b32 s69, 0x%08x" % (m >> 32))
    g.e("s_cmp_eq_u32 %s, 7" % sWV); g.e("s_cselect_b64 %s, %s, -1" % (sUP, sUP))
    flag_addrs(g, 4, 0)
    for i in range(7): g.e("v_mov_b32 v%d, %d" % (vFVAL + i, i + 1))
    g.e("s_barrier")
    for i in range(1, init): issue_item(g, vm, i)
    nxt = init
    g.stamp(1)
    for i in range(7):
        while nxt <= 6 and nxt <= i + dist - 1:
            if nxt >= 4: spin_flag(g, nxt - 3)
            issue_item(g, vm, nxt); nxt += 1
        g.wv(vm.wait(i))
        g.e("ds_write_b32 v%d, v%d" % (vFB, vFVAL + i))
        pstamp(g, i)
    if g.prio: g.e("s_setprio 0")
    early_setup(g)
    g.e("buffer_load_dwordx2 %s, v%d, %s, 0 offen sc1" % (vr(vNON, 2), vZ, sDBG))
    for grp in late_setup(g, isA): g.l += grp
    if g.wotouch:
        nt = g.newlab("L_nwt")
        g.e("s_cmp_gt_u32 %s, 5" % sWV); g.e("s_cbranch_scc1 %s" % nt)
        g.e("s_and_b32 %s, %s, 7" % (sT0, sRB)); g.e("s_mul_i32 %s, %s, %d" % (sT0, sT0, 56 * 896))
        g.e("s_lshl_b32 %s, %s, 8" % (sT1, sCB)); g.e("s_add_u32 %s, %s, %s" % (sT0, sT0, sT1))
        g.e("s_and_b32 %s, %s, 1" % (sT1, sWV)); g.e("s_lshl_b32 %s, %s, 7" % (sT1, sT1)); g.e("s_add_u32 %s, %s, %s" % (sT0, sT0, sT1))
        g.e("v_mul_u32_u24 v%d, 896, v%d" % (vT, vLANE))
        g.e("s_mov_b32 s64, -1"); g.e("s_mov_b32 s65, 0xffffff"); g.e("s_mov_b64 exec, %s" % sTM)
        g.e("buffer_load_dword v%d, v%d, %s, %s offen" % (vT + 1, vT, sWO, sT0))
        g.e("s_mov_b64 exec, -1")
        g.lab(nt)
    nw = g.newlab("L_ncw")
    g.e("s_cmp_lg_u32 %s, 4" % sWV); g.e("s_cbranch_scc1 %s" % nw)
    spin_flag(g, 5)
    g.e("v_add_u32 v%d, %d, v%d" % (vT, L_CB, vL16))
    for f in range(8): g.e("ds_write_b128 v%d, %s offset:%d" % (vT, vr(vC1 + 4*f, 4), f * 1024))
    g.lab(nw)
    g.e("s_waitcnt vmcnt(0) lgkmcnt(0)")
    get_nonce(g)
    g.stamp(11 if g.stop == "p1" else 4)

def touch(g, tb, first_chunk, dst):
    t0, t1, t2 = vT, vT + 1, vT + 2
    px, pw = (32, 34) if tb == 0 else (38, 40)
    g.e("s_mov_b32 s16, s%d" % px); g.e("s_mov_b32 s17, s%d" % (px + 1)); g.e("s_mov_b32 s18, 0x%x" % X_BYTES); g.e("s_mov_b32 s19, 0x20000")
    g.e("s_mov_b32 s20, s%d" % pw); g.e("s_mov_b32 s21, s%d" % (pw + 1)); g.e("s_mov_b32 s22, 0x%x" % W_BYTES); g.e("s_mov_b32 s23, 0x20000")
    g.e("s_bfe_u32 %s, s2, 0x40003" % sT0); g.e("s_lshl_b32 %s, %s, 8" % (sT0, sT0))
    g.e("v_add_u32 v%d, %s, v0" % (t0, sT0))
    g.e("v_and_b32 v%d, 511, v%d" % (t1, t0)); g.e("v_mul_u32_u24 v%d, 896, v%d" % (t1, t1))
    g.e("v_lshrrev_b32 v%d, 9, v%d" % (t2, t0)); g.e("v_add_u32 v%d, %d, v%d" % (t2, first_chunk, t2))
    g.e("v_cmp_gt_u32 vcc, 7, v%d" % t2)
    g.e("v_lshl_add_u32 v%d, v%d, 7, v%d" % (t1, t2, t1))
    g.e("v_mov_b32 v%d, 0x%x" % (t2, OOB))
    g.e("v_cndmask_b32 v%d, v%d, v%d, vcc" % (t1, t2, t1))
    g.e("s_bfe_u32 %s, s2, 0x20001" % sT0); g.e("s_mul_i32 %s, %s, %d" % (sT0, sT0, 512 * 896))
    g.e("s_mov_b32 %s, 0x5556" % sT1)
    g.e("v_lshrrev_b32 v%d, 2, v%d" % (t2, t0))
    g.e("buffer_load_dword v%d, v%d, s[16:19], %s offen" % (dst, t1, sT0))
    g.e("v_mul_u32_u24 v%d, %s, v%d" % (t1, sT1, t2)); g.e("v_lshrrev_b32 v%d, 16, v%d" % (t1, t1))
    g.e("v_mul_u32_u24 v%d, %d, v%d" % (vFW, 2688 - 3 * 896, t1))
    g.e("v_mul_u32_u24 v%d, 896, v%d" % (t2, t2))
    g.e("v_and_b32 v%d, 3, v%d" % (t0, t0)); g.e("v_lshl_add_u32 v%d, v%d, 7, v%d" % (t2, t0, t2))
    g.e("s_and_b32 %s, s2, 1" % sT0); g.e("s_mul_i32 %s, %s, 384" % (sT0, sT0)); g.e("s_add_u32 %s, %s, %d" % (sT0, sT0, first_chunk * 64 * 2688))
    g.e("buffer_load_dword v%d, v%d, s[20:23], %s offen" % (dst + 1, t2, sT0))

def consumer(g, isA):
    t0, t1, t2 = vT, vT + 1, vT + 2
    nz = g.newlab("L_nz")
    g.e("s_cmp_lg_u32 %s, 0" % sWV); g.e("s_cbranch_scc1 %s" % nz)
    g.e("v_and_b32 v%d, 7, v%d" % (t0, vLANE)); g.e("v_and_b32 v%d, 2, v%d" % (t1, t0)); g.e("v_lshlrev_b32 v%d, 5, v%d" % (t1, t1))
    g.e("v_lshlrev_b32 v%d, 7, v%d" % (t0, t0)); g.e("v_sub_u32 v%d, v%d, v%d" % (t0, t0, t1))
    g.e("v_add_u32 v%d, %d, v%d" % (t0, 3 * SLOT + 32768 + 56 * 128 + 112, t0))
    for k in range(4): g.e("v_mov_b32 v%d, 0" % (vQF + k))
    g.e("s_mov_b64 exec, 0xff")
    g.e("ds_write_b128 v%d, %s" % (t0, vr(vQF, 4)))
    g.e("s_mov_b64 exec, -1")
    g.e("s_waitcnt lgkmcnt(0)")
    g.lab(nz)
    g.e("s_barrier")
    if not isA and "tA" in g.exp: touch(g, 0, g.tfirst, 249)
    if isA and "tB" in g.exp: touch(g, 1, g.tfirst, 251)
    if not isA and "tbb" in g.exp: touch(g, 1, g.tfirst, 251)
    early_setup(g)
    flag_addrs(g, 0, 4)
    g.e("v_and_b32 v%d, 31, v%d" % (t0, vLANE))
    g.e("v_bfe_u32 v%d, v%d, 1, 3" % (t1, vLANE))
    g.e("v_lshrrev_b32 v%d, 5, v%d" % (t2, vLANE)); g.e("v_xor_b32 v%d, v%d, v%d" % (t1, t1, t2))
    g.e("s_and_b32 %s, %s, 1" % (sT0, sWV)); g.e("s_lshl_b32 %s, %s, 13" % (sT0, sT0))
    g.e("v_lshlrev_b32 v%d, 7, v%d" % (t0, t0)); g.e("v_add_u32 v%d, %s, v%d" % (t0, sT0, t0))
    g.e("v_lshl_add_u32 v%d, v%d, 4, v%d" % (vXRD, t1, t0))
    for k in range(1, 4): g.e("v_xor_b32 v%d, %d, v%d" % (vXRD + k, k << 5, vXRD))
    g.e("v_bfe_u32 v%d, v%d, 2, 2" % (t0, vLANE))
    g.e("v_lshl_add_u32 v%d, v%d, 3, v%d" % (t1, t2, t0))
    g.e("v_lshlrev_b32 v%d, 7, v%d" % (t1, t1))
    g.e("v_lshrrev_b32 v%d, 1, v%d" % (t0, t0)); g.e("v_lshlrev_b32 v%d, 6, v%d" % (t0, t0))
    g.e("v_and_b32 v%d, 3, v%d" % (t2, vLANE)); g.e("v_lshlrev_b32 v%d, 3, v%d" % (t2, t2))
    g.e("v_and_b32 v%d, 16, v%d" % (vWRD, vLANE)); g.e("v_lshl_add_u32 v%d, v%d, 1, v%d" % (t2, vWRD, t2))
    g.e("s_mul_i32 %s, %s, 56" % (sT1, sHH)); g.e("v_add_u32 v%d, %s, v%d" % (t2, sT1, t2))
    g.e("v_xor_b32 v%d, v%d, v%d" % (t2, t2, t0)); g.e("v_add_u32 v%d, v%d, v%d" % (vWRD, t1, t2))
    g.e("s_lshl_b32 %s, %s, 14" % (sT1, sHH)); g.e("s_add_u32 %s, %s, %s" % (sT1, sT1, sT0))
    g.e("v_add_u32 v%d, %s, v%d" % (vXOFF, sT1, vL16))
    g.e("s_lshr_b32 %s, %s, 1" % (sT1, sT1)); g.e("s_add_u32 %s, %s, %d" % (sT1, sT1, L_QA))
    g.e("v_add_u32 v%d, %s, v%d" % (vWOFF, sT1, vL16))
    g.stamp(1)
    lg = Q()
    sa = lambda sl, k: (16 + 5 * sl + k) if sl < 3 else (244 + k)
    for sl in range(4):
        for k in range(4): g.e("v_add_u32 v%d, 0x%x, v%d" % (sa(sl, k), sl * SLOT, vXRD + k))
        g.e("v_add_u32 v%d, 0x%x, v%d" % (sa(sl, 4), sl * SLOT, vWRD))
    slow = []
    xbuf = lambda j: (vXB + (j % 3) * 8) if j < 27 else vC1
    qbuf = lambda j: (vWB + (j % 3) * 12) if j < 24 else (vC1 + 8 + (j - 24) * 4)
    def rd_ops(j):
        i, ks = divmod(j, 4)
        xb, wb = xbuf(j), vWB + (j % 3) * 12
        ax = sa(i % 4, ks); aw = sa(i % 4, 4)
        ops = []
        def tr(t, h): return "ds_read_b64_tr_b16 %s, v%d offset:%d" % (vr((wb + 4*t if t else qbuf(j)) + 2*h, 2), aw, 16384 + ks * 6144 + t * 2048 + h * 512)
        ops.append(((j, "x0"), "ds_read_b128 %s, v%d" % (vr(xb, 4), ax)))
        ops += [((j, "k"), tr(1, 0)), ((j, "k"), tr(1, 1))]
        ops.append(((j, "x1"), "ds_read_b128 %s, v%d offset:4096" % (vr(xb + 4, 4), ax)))
        ops += [((j, "v"), tr(2, 0)), ((j, "v"), tr(2, 1)), ((j, "q"), tr(0, 0)), ((j, "q"), tr(0, 1))]
        return ops
    def emit(op):
        if "noread" in g.exp: return
        if "notr" in g.exp and "tr_b16" in op[1]: return
        if "nox" in g.exp and "b128" in op[1]: return
        if "trb64" in g.exp: op = (op[0], op[1].replace("ds_read_b64_tr_b16", "ds_read_b64"))
        g.e(op[1]); lg.add(op[0])
    def check_item(i):
        g.wl(lg.wait(("flag", i)))
        sl = g.newlab("L_slow"); back = g.newlab("L_back")
        g.e("v_cmp_gt_u32 vcc, %d, v%d" % (i + 1, vFV))
        if "nochk" not in g.exp: g.e("s_cbranch_vccnz %s" % sl)
        g.lab(back)
        pstamp(g, i)
        slow.append((sl, back, i + 1, 0))
    late = late_setup(g, isA, masks=False)
    spin_flag(g, 1)
    pstamp(g, 0)
    for j in range(2):
        for op in rd_ops(j): emit(op)
    aK, aV, aQ = vACC, vACC + 32, vACC + 64
    dist = [2, 1, 1, 2, 1, 1]
    for j in range(28):
        xb, wb = xbuf(j), vWB + (j % 3) * 12
        nx = rd_ops(j + 2) if j + 2 < 28 else []
        first = j == 0
        mms = [((j, "k"), aK, wb + 4, xb), ((j, "x1"), aK + 16, wb + 4, xb + 4), ((j, "v"), aV, xb, wb + 8), (None, aV + 16, xb + 4, wb + 8)]
        if j < 24: mms += [((j, "q"), aQ, qbuf(j), xb), (None, aQ + 16, qbuf(j), xb + 4)]
        for n, (dep, d, a, b) in enumerate(mms):
            if dep is not None: g.wl(lg.wait(dep))
            if "nomfma" not in g.exp: g.mfma(d, a, b, None if first else d)
            if n == 0 and nx and (j + 2) % 4 == 0: check_item((j + 2) // 4)
            for _ in range(dist[n] if j < 24 else 2):
                if nx: emit(nx.pop(0))
            if n == 1 and (j + 3) % 4 == 0 and j + 3 < 28:
                g.e("ds_read_b32 v%d, v%d" % (vFV, vFA)); lg.add(("flag", (j + 3) // 4))
            if n == 4 and j % 4 == 3 and j // 4 in (0, 1, 2, 4):
                set_flag(g, j // 4 + 1); lg.add("done")
            if n == 2 and j == 26:
                g.e("ds_read_b32 v%d, v%d offset:512" % (vFV, vFA)); lg.add("alldone")
            if late and n in (2, 5): g.l += late.pop(0)
            if j == 18 and n == 5: g.e("buffer_load_dwordx2 %s, v%d, %s, 0 offen sc1" % (vr(vNON, 2), vZ, sDBG))
    assert not late, len(late)
    tail = []
    PKB = vXB + 0
    save = g.l; g.l = tail
    g.e("v_mov_b32 v%d, 0x3f803f80" % vT)
    g.mask(lane_mask(lambda l: (l & 31) == 28))
    g.e("s_lshl_b32 %s, %s, 3" % (sT1, sP1K)); g.e("s_add_u32 %s, %s, %s" % (sT1, sT1, sKVO)); g.e("s_add_u32 %s, %s, 4096" % (sT0, sT1))
    def pub(t, f, p):
        if isA: g.e("buffer_store_dwordx4 %s, v%d, %s, %s offen offset:%d sc1" % (vr(p, 4), vL16, sWS, sT0 if t else sT1, f * 1024))
        g.e("ds_write_b128 v%d, %s offset:%d" % (vXOFF, vr(p, 4), t * 4096 + f * 1024))
    for t in range(2):
        p = aK + 16 * t
        for i in range(8): g.e("v_cvt_pk_bf16_f32 v%d, v%d, v%d" % (p + i, p + 2*i, p + 2*i + 1))
        g.e("v_cndmask_b32 v%d, v%d, v%d, %s" % (p + 6, p + 6, vT, sUP))
        for f in range(2): pub(t, f, p + 4*f)
    for t in range(2):
        p = aV + 16 * t
        for f in range(2):
            for i in range(4*f, 4*f + 4): g.e("v_cvt_pk_bf16_f32 v%d, v%d, v%d" % (p + i, p + 2*i, p + 2*i + 1))
            for i in range(4*f, 4*f + 4): g.e("v_cndmask_b32 v%d, v%d, v%d, %s" % (p + i, p + i, vT, sTM))
            pub(t, 2 + f, p + 4*f)
    g.l = save
    g.wl(lg.wait("alldone"))
    sl = g.newlab("L_slow"); back = g.newlab("L_back")
    g.e("v_cmp_gt_u32 vcc, 5, v%d" % vFV); g.e("s_cbranch_vccnz %s" % sl); g.lab(back)
    slow.append((sl, back, 5, 512))
    g.slow += slow
    g.e("s_waitcnt lgkmcnt(0)")
    for n in range(8):
        j = 24 + n // 2
        g.mfma(aQ + 16 * (n % 2), qbuf(j), xbuf(j) + 4 * (n % 2), aQ + 16 * (n % 2))
        k = 6 if n == 0 else (3 if n == 1 else 6)
        g.l += tail[:k]; del tail[:k]
    g.l += tail
    if not isA:
        sk = g.newlab("L_bpub")
        g.e("s_bitcmp0_b32 %s, 0" % sWV); g.e("s_cbranch_scc1 %s" % sk)
        for f in range(4):
            p = (aK + 16 + 4*f) if f < 2 else (aV + 16 + 4*(f - 2))
            g.e("buffer_store_dwordx4 %s, v%d, %s, %s offen offset:%d sc1" % (vr(p, 4), vL16, sWS, sT0, f * 1024))
        g.lab(sk)
    g.e("v_mov_b32 v%d, %s" % (vT + 1, sC))
    g.e("v_cndmask_b32 v%d, v%d, 0, %s" % (vT + 2, vT + 1, sUP))
    for t in range(2):
        a = aQ + 16 * t
        for r in range(16): g.e("v_mul_f32 v%d, v%d, v%d" % (a + r, vT + (2 if r >= 12 else 1), a + r))
        for i in range(8): g.e("v_cvt_pk_bf16_f32 v%d, v%d, v%d" % (a + i, a + 2*i, a + 2*i + 1))
        for f in range(2): g.e("ds_write_b128 v%d, %s offset:%d" % (vWOFF, vr(a + 4*f, 4), t * 2048 + f * 1024))
    g.stamp(11 if g.stop == "p1" else 4)
    g.e("s_waitcnt lgkmcnt(0)")

def get_nonce(g):
    lp = g.newlab("L_nlp"); ok = g.newlab("L_nok")
    g.e("s_mov_b32 %s, 0" % sT0)
    g.lab(lp)
    g.e("v_readfirstlane_b32 s60, v%d" % vNON); g.e("v_readfirstlane_b32 s61, v%d" % (vNON + 1))
    g.e("s_add_u32 %s, %s, 1" % (sT0, sT0))
    g.e("s_cmp_lg_u32 s60, 0"); g.e("s_cbranch_scc1 %s" % ok)
    g.e("s_cmp_gt_u32 %s, %d" % (sT0, SPIN_MAX)); g.e("s_cbranch_scc1 %s" % ok)
    g.e("buffer_load_dwordx2 %s, v%d, %s, 0 offen sc1" % (vr(vNON, 2), vZ, sDBG))
    g.e("s_waitcnt vmcnt(0)")
    g.e("s_branch %s" % lp)
    g.lab(ok)

def store_flag(g, soff_reg):
    g.e("s_mov_b64 exec, 1")
    g.e("buffer_store_dwordx2 %s, v%d, %s, %s offen sc1" % (vr(vNON, 2), vZ, sWS, soff_reg))
    g.e("s_mov_b64 exec, -1")

def poll(g, vaddr, execmask_reg):
    lp = g.newlab("L_poll"); ok = g.newlab("L_pok")
    g.e("s_mov_b64 exec, %s" % execmask_reg)
    g.e("s_mov_b32 %s, 0" % sT0)
    g.lab(lp)
    g.e("buffer_load_dwordx2 %s, v%d, %s, 0 offen sc1" % (vr(vNON + 2, 2), vaddr, sWS))
    g.e("s_add_u32 %s, %s, 1" % (sT0, sT0))
    g.e("s_waitcnt vmcnt(0)")
    g.e("v_cmp_ne_u64 vcc, %s, %s" % (sNON, vr(vNON + 2, 2)))
    g.e("s_cmp_gt_u32 %s, %d" % (sT0, SPIN_MAX)); g.e("s_cbranch_scc1 %s" % ok)
    g.e("s_cbranch_vccnz %s" % lp)
    g.lab(ok)
    g.e("s_mov_b64 exec, -1")

def publish_kv(g, isA):
    done = g.newlab("L_pubd")
    g.e("s_cmp_ge_u32 %s, 4" % sWV); g.e("s_cbranch_scc1 %s" % done)
    g.e("v_add_u32 v%d, %d, v%d" % (vT, L_CB, vL16))
    for f in range(8): g.e("ds_read_b128 %s, v%d offset:%d" % (vr(vC1 + 4*f, 4), vT, f * 1024))
    g.e("s_lshr_b32 %s, %s, 8" % (sT1, sKVO)); g.e("s_lshr_b32 %s, %s, 7" % (sT2, sP1K))
    g.e("s_add_u32 %s, %s, %s" % (sT1, sT1, sT2)); g.e("s_add_u32 %s, %s, 0x%x" % (sT1, sT1, WS_KVFLAG))
    g.e("s_waitcnt vmcnt(0)")
    get_nonce(g)
    store_flag(g, sT1)
    if not isA:
        g.e("s_or_b32 %s, %s, %s" % (sT0, sR, sRT)); g.e("s_cmp_lg_u32 %s, 0" % sT0); g.e("s_cbranch_scc1 %s" % done)
        g.e("s_waitcnt lgkmcnt(0)")
        for r in range(16): g.e("v_mov_b32 v%d, 0x%08x" % (vC2 + r, NEG))
    g.lab(done)

def read_q(g):
    g.e("s_lshl_b32 %s, %s, 2" % (sT0, sHH)); g.e("s_add_u32 %s, %s, %s" % (sT0, sT0, sRT)); g.e("s_lshl_b32 %s, %s, 11" % (sT0, sT0))
    g.e("s_add_u32 %s, %s, %d" % (sT1, sT0, L_QA))
    g.e("v_add_u32 v%d, %s, v%d" % (vT + 1, sT1, vL16))
    for f in range(2): g.e("ds_read_b128 %s, v%d offset:%d" % (vr(vQF + 4*f, 4), vT + 1, f * 1024))
    if g.dbgq:
        g.e("s_lshr_b32 %s, %s, 1" % (sT1, sKVO)); g.e("s_add_u32 %s, %s, %s" % (sT0, sT0, sT1)); g.e("s_add_u32 %s, %s, 0x%x" % (sT0, sT0, WS_QDBG))
        g.e("s_waitcnt lgkmcnt(0)")
        for f in range(2): g.e("buffer_store_dwordx4 %s, v%d, %s, %s offen offset:%d" % (vr(vQF + 4*f, 4), vL16, sWS, sT0, f * 1024))
        g.e("s_waitcnt vmcnt(0)")

def max16(g, s, dst, first=True):
    if first:
        g.e("v_max3_f32 v%d, v%d, v%d, v%d" % (dst, s, s + 1, s + 2)); rest = list(range(3, 16))
    else: rest = list(range(16))
    while len(rest) >= 2:
        a, b = rest.pop(0), rest.pop(0)
        g.e("v_max3_f32 v%d, v%d, v%d, v%d" % (dst, dst, s + a, s + b))
    if rest: g.e("v_max_f32 v%d, v%d, v%d" % (dst, dst, s + rest[0]))

def xhalf_max(g):
    g.e("v_mov_b32 v%d, v%d" % (vM2, vM)); g.e("s_nop 1")
    g.e("v_permlane32_swap_b32 v%d, v%d" % (vM, vM2)); g.e("s_nop 1")
    g.e("v_max_f32 v%d, v%d, v%d" % (vM, vM, vM2))

def set_shift(g):
    g.e("v_cvt_pk_bf16_f32 v%d, -v%d, 0" % (vM2, vM))
    g.e("v_lshlrev_b32 v%d, 16, v%d" % (vNM, vM2))
    g.e("v_cndmask_b32 v%d, v%d, v%d, %s" % (vQF + 6, vQF + 6, vM2, sUP))

def finish_o(g):
    g.e("v_rcp_f32 v%d, v%d" % (vM, vM2))
    g.e("s_lshl_b32 %s, %s, 6" % (sT0, sBR)); g.e("s_lshl_b32 %s, %s, 2" % (sT1, sR)); g.e("s_add_u32 %s, %s, %s" % (sT0, sT0, sT1))
    g.e("v_cndmask_b32 v%d, v%d, 0, %s" % (vM2, vM, sUP))
    g.e("s_add_u32 %s, %s, %s" % (sT0, sT0, sRT)); g.e("s_lshl_b32 %s, %s, 4" % (sT0, sT0))
    g.e("s_lshl_b32 %s, %s, 1" % (sT1, sHP)); g.e("s_add_u32 %s, %s, %s" % (sT0, sT0, sT1)); g.e("s_add_u32 %s, %s, %s" % (sT0, sT0, sHH))
    g.e("s_lshl_b32 %s, %s, 11" % (sT0, sT0)); g.e("s_add_u32 %s, %s, 0x%x" % (sT0, sT0, WS_OF))
    for f in range(2):
        for r in range(8*f, 8*f + 8): g.e("v_mul_f32 v%d, v%d, v%d" % (vO + r, vM2 if r >= 12 else vM, vO + r))
        for i in range(4*f, 4*f + 4): g.e("v_cvt_pk_bf16_f32 v%d, v%d, v%d" % (vP + i, vO + 2*i, vO + 2*i + 1))
        g.e("buffer_store_dwordx4 %s, v%d, %s, %s offen offset:%d sc1" % (vr(vP + 4*f, 4), vL16, sWS, sT0, f * 1024))

def bcast_l(g):
    g.e("v_mov_b32 v%d, v%d" % (vM, vO + 12)); g.e("v_mov_b32 v%d, v%d" % (vM2, vO + 12)); g.e("s_nop 1")
    g.e("v_permlane32_swap_b32 v%d, v%d" % (vM, vM2)); g.e("s_nop 1")

def kv_flag_addr(g, vdst):
    g.e("s_lshr_b32 %s, %s, 8" % (sT1, sKVO)); g.e("s_lshl_b32 %s, %s, 4" % (sT2, sHH)); g.e("s_add_u32 %s, %s, %s" % (sT1, sT1, sT2))
    g.e("s_add_u32 %s, %s, 0x%x" % (sT1, sT1, WS_KVFLAG - 128))
    g.e("v_lshrrev_b32 v%d, 1, v%d" % (vdst, vLANE)); g.e("v_lshlrev_b32 v%d, 7, v%d" % (vdst, vdst))
    g.e("v_sub_u32 v%d, %s, v%d" % (vdst, sT1, vdst))
    g.e("v_and_b32 v%d, 1, v%d" % (vdst + 1, vLANE)); g.e("v_lshl_add_u32 v%d, v%d, 3, v%d" % (vdst, vdst + 1, vdst))

def wo_dma(g, m, ldsbase, row0, last=False):
    sk = g.newlab("L_wsk")
    if last:
        g.e("s_cmp_eq_u32 %s, 7" % sWV); g.e("s_cbranch_scc1 %s" % sk)
    g.e("s_add_u32 m0, %s, %d" % (sW1K, ldsbase + m * 8192))
    g.e("s_add_u32 %s, %s, %d" % (sT3, sWOS, row0 * 896 + m * 8 * 3584))
    g.e("buffer_load_dwordx4 v%d, %s, %s offen lds" % (vWOO, sWO, sT3))
    if last: g.lab(sk)

def attn_A(g):
    lg = Q(); lg.add("q", 2)
    g.e("v_mov_b32 v%d, %d" % (vGR, FBASE))
    g.e("s_lshl_b32 %s, %s, 7" % (sT0, sHH)); g.e("v_add_u32 v%d, %s, v%d" % (vG1, sT0, vGR))
    g.e("v_mov_b32 v%d, 0x7ffffff0" % vGW); g.e("v_mov_b32 v%d, 1" % vGV2)
    g.e("v_cmp_eq_u32 vcc, 0, v%d" % vLANE); g.e("v_mov_b32 v%d, 2" % vG2); g.e("s_nop 0")
    g.e("v_cndmask_b32 v%d, v%d, v%d, vcc" % (vG2 + 3, vGW, vG1))
    g.e("v_cndmask_b32 v%d, v%d, v%d, vcc" % (vGW, vGW, vGR))
    nold = g.newlab("L_nold"); nopoll = g.newlab("L_nopoll")
    g.e("s_cmp_lg_u32 %s, 0" % sRT); g.e("s_cbranch_scc1 %s" % nold)
    g.e("s_cmp_eq_u32 %s, 0" % sR); g.e("s_cbranch_scc1 %s" % nopoll)
    kv_flag_addr(g, vT)
    g.e("s_cmp_eq_u32 %s, 1" % sR); g.e("s_cselect_b32 s64, 3, 15"); g.e("s_mov_b32 s65, 0")
    poll(g, vT, sTM)
    g.lab(nopoll)
    g.stamp(6)
    g.e("s_lshl_b32 %s, %s, 14" % (sT2, sHH))
    for b in (1, 2):
        g.e("s_add_u32 %s, %s, %s" % (sT1, sKVO, sT2))
        g.e("s_sub_u32 %s, %s, %d" % (sT1, sT1, b * 32768))
        g.e("s_cmp_lt_u32 %s, %d" % (sR, b)); g.e("s_cselect_b32 %s, 0x%x, %s" % (sT1, OOB, sT1))
        for t in (3, 2, 1, 0):
            g.e("s_add_u32 m0, %s, %d" % (sT2, (L_R1 if b == 1 else L_R2) + t * 4096))
            g.e("s_add_u32 %s, %s, %d" % (sT0, sT1, t * 4096))
            for f in range(4):
                g.e("buffer_load_dwordx4 v%d, %s, %s offen offset:%d sc1 lds" % (vL16, sWS, sT0, f * 1024))
    g.lab(nold)
    nwo = [0]
    def site(u):
        for (cond, n, lev) in ((u - 1, 16, 1), (u - 5, nwo[0], 2)):
            if 0 <= cond <= 3:
                sk = g.newlab("L_site")
                g.e("s_cmp_lg_u32 %s, %d" % (sRT, cond)); g.e("s_cbranch_scc1 %s" % sk)
                if cond == 0:
                    g.e("s_waitcnt vmcnt(%d)" % n)
                    g.e("ds_write_b32 v%d, v%d offset:%d" % (vG2 + 3, vGV2 if lev == 1 else vG2, F_KV0))
                else: check_word(g, lev, vG1, F_KV0, vGV)
                g.lab(sk)
    def rdK(u):
        for j in range(2): g.e("ds_read_b128 %s, v%d offset:%d" % (vr(vKB + (u % 2) * 8 + 4*j, 4), vAD + u, j * 1024))
        lg.add(("K", u), 2)
    def rdV(u):
        for j in range(2): g.e("ds_read_b128 %s, v%d offset:%d" % (vr(vVB + (u % 2) * 8 + 4*j, 4), vAD + u, 2048 + j * 1024))
        lg.add(("V", u), 2)
    def qk(u, j):
        s = vS + (u % 3) * 16
        c = s if j else (vC1 if u == 0 else vC2 if u == 8 else None)
        g.mfma(s, vKB + (u % 2) * 8 + 4*j, vQF + 4*j, c)
    def pv(u, j):
        g.mfma(vO, vVB + (u % 2) * 8 + 4*j, vS + (u % 3) * 16 + 4*j, None if (u == 0 and j == 0) else vO)
    g.astamp(0)
    rdK(0)
    g.wl(lg.wait(("K", 0))); qk(0, 0); qk(0, 1)
    g.e("ds_add_u32 v%d, v%d offset:%d" % (vGW, vGV2, F_CQ)); lg.add("x")
    g.e("s_nop 10")
    max16(g, vS, vM); xhalf_max(g); set_shift(g)
    for r in range(16): g.e("v_add_f32 v%d, v%d, v%d" % (vS + r, vNM, vS + r))
    for u in range(9):
        s = vS + (u % 3) * 16
        ex = lambda a, b: [g.e("v_exp_f32 v%d, v%d" % (s + r, s + r)) for r in range(a, b)]
        if u < 8: site(u + 1)
        g.astamp(1 + u)
        if u < 7: g.e("ds_read_b32 v%d, v%d offset:%d" % (vGV, vG1, F_KV0)); lg.add("x")
        if u == 2 and g.wopre: g.e("ds_read_b32 v%d, v%d offset:%d" % (vG2 + 4, vGR, F_CQ)); lg.add("x")
        if u < 8: rdK(u + 1)
        rdV(u)
        if u > 0: g.wl(lg.wait(("V", u - 1))); pv(u - 1, 0)
        ex(0, 5)
        if u > 0: pv(u - 1, 1)
        if 3 <= u <= 6 and g.wopre:
            if u == 3: check_word(g, 8, vGR, F_CQ, vG2 + 4)
            for _ in range(2):
                wo_dma(g, nwo[0], L_W1, 0, last=(nwo[0] == 7)); nwo[0] += 1
        ex(5, 10)
        if u < 8: g.wl(lg.wait(("K", u + 1))); qk(u + 1, 0)
        ex(10, 16)
        if u < 8: qk(u + 1, 1)
        else: g.e("s_nop 0")
        for i in range(8): g.e("v_cvt_pk_bf16_f32 v%d, v%d, v%d" % (s + i, s + 2*i, s + 2*i + 1))
    g.astamp(10)
    g.wl(lg.wait(("V", 8))); g.e("s_nop 0"); pv(8, 0); pv(8, 1)
    g.e("s_nop 11")
    bcast_l(g)
    ok = g.newlab("L_aok")
    g.e("s_mov_b32 %s, 0x%08x" % (sT0, LBIG))
    g.e("v_cmp_ngt_f32 vcc, %s, v%d" % (sT0, vM2))
    g.e("s_cbranch_vccz %s" % ok)
    fallback_A(g)
    g.lab(ok)
    g.stamp(7)
    g.astamp(11)
    finish_o(g)
    g.astamp(12)

def fallback_A(g):
    g.e("s_lshl_b32 %s, %s, 2" % (sT1, sR)); g.e("s_add_u32 %s, %s, %s" % (sT1, sT1, sRT))
    g.e("v_mov_b32 v%d, 0" % vM2)
    g.e("v_cndmask_b32 v%d, v%d, v%d, %s" % (vQF + 6, vQF + 6, vM2, sUP))
    g.e("v_mov_b32 v%d, 0x%08x" % (vM, NEG))
    for r in range(16): g.e("v_mov_b32 v%d, 0" % (vO + r))
    for pas in range(2):
        end = g.newlab("L_fbe")
        for u in range(9):
            if u:
                g.e("s_cmp_lt_u32 %s, %d" % (sT1, u)); g.e("s_cbranch_scc1 %s" % end)
            g.e("s_add_u32 %s, %s, %d" % (sT0, sRT, 8 - u))
            g.e("s_lshr_b32 %s, %s, 2" % (sT2, sT0)); g.e("s_lshl_b32 %s, %s, 15" % (sT2, sT2))
            g.e("s_and_b32 %s, %s, 3" % (sT0, sT0)); g.e("s_lshl_b32 %s, %s, 12" % (sT0, sT0)); g.e("s_add_u32 %s, %s, %s" % (sT0, sT0, sT2))
            g.e("s_lshl_b32 %s, %s, 14" % (sT2, sHH)); g.e("s_add_u32 %s, %s, %s" % (sT0, sT0, sT2))
            g.e("s_add_u32 %s, %s, %s" % (sT0, sT0, sKVO)); g.e("s_sub_u32 %s, %s, 65536" % (sT0, sT0))
            for j in range(4 if pas else 2): g.e("buffer_load_dwordx4 %s, v%d, %s, %s offen offset:%d sc1" % (vr(vKB + 4*j, 4), vL16, sWS, sT0, j * 1024))
            g.e("s_waitcnt vmcnt(0)")
            g.mfma(vS, vKB, vQF, vC1 if u == 0 else vC2 if u == 8 else None)
            g.mfma(vS, vKB + 4, vQF + 4, vS)
            g.e("s_nop 11")
            if pas == 0: max16(g, vS, vM, first=False)
            else:
                for r in range(16): g.e("v_exp_f32 v%d, v%d" % (vS + r, vS + r))
                g.e("s_nop 0")
                for i in range(8): g.e("v_cvt_pk_bf16_f32 v%d, v%d, v%d" % (vS + i, vS + 2*i, vS + 2*i + 1))
                g.e("s_nop 1")
                g.mfma(vO, vKB + 8, vS, vO); g.mfma(vO, vKB + 12, vS + 4, vO)
                g.e("s_nop 11")
        g.lab(end)
        if pas == 0:
            xhalf_max(g); set_shift(g); g.e("s_nop 1")
    bcast_l(g)

def attn_B(g):
    nold = g.newlab("L_bnold"); nopoll = g.newlab("L_bnopoll")
    g.e("s_cmp_lg_u32 %s, 0" % sRT); g.e("s_cbranch_scc1 %s" % nold)
    g.e("s_cmp_eq_u32 %s, 0" % sR); g.e("s_cbranch_scc1 %s" % nopoll)
    kv_flag_addr(g, vT)
    g.e("s_mov_b64 %s, 2" % sTM)
    poll(g, vT, sTM)
    g.lab(nopoll)
    g.stamp(6)
    g.e("s_lshl_b32 %s, %s, 14" % (sT2, sHH))
    g.e("s_add_u32 %s, %s, %s" % (sT1, sKVO, sT2))
    g.e("s_sub_u32 %s, %s, %d" % (sT1, sT1, 32768 - 3 * 4096))
    g.e("s_cmp_eq_u32 %s, 0" % sR); g.e("s_cselect_b32 %s, 0x%x, %s" % (sT1, OOB, sT1))
    g.e("s_add_u32 m0, %s, %d" % (sT2, L_R1 + 3 * 4096)); g.e("s_nop 0")
    for f in range(4): g.e("buffer_load_dwordx4 v%d, %s, %s offen offset:%d sc1 lds" % (vL16, sWS, sT1, f * 1024))
    g.lab(nold)
    for j in range(2): g.e("ds_read_b128 %s, v%d offset:%d" % (vr(vKB + 4*j, 4), vAD, j * 1024))
    for j in range(2): g.e("ds_read_b128 %s, v%d offset:%d" % (vr(vVB + 4*j, 4), vAD, 2048 + j * 1024))
    g.e("s_waitcnt lgkmcnt(2)")
    g.mfma(vS, vKB, vQF, vC1); g.mfma(vS, vKB + 4, vQF + 4, vS)
    g.e("s_waitcnt vmcnt(0)")
    for j in range(2): g.e("ds_read_b128 %s, v%d offset:%d" % (vr(vKB + 8 + 4*j, 4), vAD + 1, j * 1024))
    for j in range(2): g.e("ds_read_b128 %s, v%d offset:%d" % (vr(vVB + 8 + 4*j, 4), vAD + 1, 2048 + j * 1024))
    g.e("s_waitcnt lgkmcnt(2)")
    g.mfma(vS + 16, vKB + 8, vQF, vC2); g.mfma(vS + 16, vKB + 12, vQF + 4, vS + 16)
    g.e("s_nop 4")
    max16(g, vS, vM); g.e("s_nop 0"); max16(g, vS + 16, vM, first=False); xhalf_max(g)
    for r in range(32): g.e("v_sub_f32 v%d, v%d, v%d" % (vS + r, vS + r, vM))
    for t in range(2):
        s = vS + 16 * t
        for r in range(16): g.e("v_exp_f32 v%d, v%d" % (s + r, s + r))
        g.e("s_nop 0")
        for i in range(8): g.e("v_cvt_pk_bf16_f32 v%d, v%d, v%d" % (s + i, s + 2*i, s + 2*i + 1))
        g.e("s_waitcnt lgkmcnt(0)"); g.e("s_nop 0")
        g.mfma(vO, vVB + 8*t, s, None if t == 0 else vO); g.mfma(vO, vVB + 8*t + 4, s + 4, vO)
    g.e("s_nop 11")
    bcast_l(g)
    g.stamp(7)
    finish_o(g)

def p3(g, early):
    t0, t1, t2 = vT, vT + 1, vT + 2
    sCT, sRT2 = sKC, sXB
    A1, A2, A3, S1, S2, S3 = 4, 5, 6, 7, 8, 2
    vFL = 3; vB0, vB1 = 13, 14; vOA = 56
    g.stamp(8)
    g.e("s_lshr_b32 %s, %s, 1" % (sCT, sWV)); g.e("s_and_b32 %s, %s, 1" % (sRT2, sWV))
    g.e("v_bfe_u32 v%d, v%d, 2, 2" % (t0, vLANE)); g.e("v_lshrrev_b32 v%d, 5, v%d" % (t1, vLANE))
    g.e("v_lshl_add_u32 v%d, v%d, 2, v%d" % (t1, t1, t0)); g.e("v_lshlrev_b32 v%d, 8, v%d" % (t1, t1))
    g.e("v_lshlrev_b32 v%d, 6, v%d" % (t0, t0))
    g.e("v_and_b32 v%d, 3, v%d" % (t2, vLANE)); g.e("v_lshlrev_b32 v%d, 3, v%d" % (t2, t2))
    g.e("v_and_b32 v%d, 16, v%d" % (A2, vLANE)); g.e("v_lshl_add_u32 v%d, v%d, 1, v%d" % (t2, A2, t2))
    g.e("s_lshl_b32 %s, %s, 6" % (sT0, sCT)); g.e("v_add_u32 v%d, %s, v%d" % (t2, sT0, t2))
    g.e("v_xor_b32 v%d, v%d, v%d" % (t2, t2, t0)); g.e("v_add_u32 v%d, v%d, v%d" % (A2, t1, t2))
    g.e("v_add_u32 v%d, 0x%x, v%d" % (A1, L_W1, A2)); g.e("v_add_u32 v%d, 0x%x, v%d" % (A3, L_W2B, A2))
    g.e("s_lshr_b32 %s, %s, 1" % (sT0, sRB)); g.e("s_lshl_b32 %s, %s, 4" % (sT1, sBR)); g.e("s_add_u32 %s, %s, %s" % (sT0, sT0, sT1))
    g.e("s_lshl_b32 %s, %s, 10" % (sT0, sT0)); g.e("s_add_u32 %s, %s, 0x%x" % (sT0, sT0, WS_OFLAG))
    g.e("v_lshlrev_b32 v%d, 7, v%d" % (vFL, vLANE)); g.e("v_add_u32 v%d, %s, v%d" % (vFL, sT0, vFL))
    g.e("s_add_u32 %s, %s, %s" % (sT1, sT1, sR)); g.e("s_lshl_b32 %s, %s, 3" % (sT1, sT1)); g.e("s_add_u32 %s, %s, %s" % (sT1, sT1, sHP))
    g.e("s_lshl_b32 %s, %s, 7" % (sT1, sT1)); g.e("s_add_u32 s36, %s, 0x%x" % (sT1, WS_OFLAG))
    g.e("s_lshr_b32 %s, %s, 2" % (sT2, sWV))
    sOS, sOL = sXS, sWSO
    g.e("s_and_b32 %s, %s, 3" % (sT0, sWV)); g.e("s_lshl_b32 %s, %s, 11" % (sT0, sT0))
    g.e("s_lshl_b32 %s, %s, 13" % (sOL, sT2)); g.e("s_add_u32 %s, %s, %s" % (sOL, sOL, sT0))
    g.e("s_lshl_b32 %s, %s, 15" % (sOS, sT2)); g.e("s_add_u32 %s, %s, %s" % (sOS, sOS, sT0))
    g.e("s_lshl_b32 %s, %s, 21" % (sT0, sBR)); g.e("s_add_u32 %s, %s, %s" % (sOS, sOS, sT0))
    g.e("s_lshl_b32 %s, %s, 16" % (sT0, sRB)); g.e("s_add_u32 %s, %s, %s" % (sOS, sOS, sT0)); g.e("s_add_u32 %s, %s, 0x%x" % (sOS, sOS, WS_OF))
    g.e("s_lshl_b32 %s, %s, 13" % (sT0, sRT2)); g.e("v_add_u32 v%d, %s, v%d" % (vB0, sT0, vL16)); g.e("v_add_u32 v%d, 0x%x, v%d" % (vB1, L_O, vB0))
    g.e("v_and_b32 v%d, 31, v%d" % (t0, vLANE)); g.e("v_mul_u32_u24 v%d, 1792, v%d" % (t0, t0))
    g.e("v_lshrrev_b32 v%d, 5, v%d" % (t1, vLANE)); g.e("v_lshl_add_u32 v%d, v%d, 4, v%d" % (vOA, t1, t0))
    g.e("s_lshl_b32 %s, %s, 1" % (sT0, sRB)); g.e("s_add_u32 %s, %s, %s" % (sT0, sT0, sRT2)); g.e("s_mul_i32 %s, %s, %d" % (sT4, sT0, 32 * 1792))
    g.e("s_mul_i32 %s, %s, 896" % (sT0, sBR)); g.e("s_add_u32 %s, %s, %s" % (sT4, sT4, sT0))
    g.e("s_lshl_b32 %s, %s, 8" % (sT0, sCB)); g.e("s_add_u32 %s, %s, %s" % (sT4, sT4, sT0))
    g.e("s_lshl_b32 %s, %s, 6" % (sT0, sCT)); g.e("s_add_u32 %s, %s, %s" % (sT4, sT4, sT0))
    g.e("s_waitcnt vmcnt(0)")
    g.e("s_barrier")
    nf = g.newlab("L_nof")
    g.e("s_cmp_lg_u32 %s, 0" % sWV); g.e("s_cbranch_scc1 %s" % nf)
    store_flag(g, "s36")
    g.lab(nf)
    g.stamp(9)
    if not early:
        for m in range(8): wo_dma(g, m, L_W1, 0)
    for m in range(4): wo_dma(g, m, L_W2A, 252)
    for m in range(3): wo_dma(g, m, L_W2B, 380)
    WFR = 96
    def trs(sel):
        for h in range(16):
            for j in range(2):
                for i in range(2):
                    row = 28 * h + 16 * j + 8 * i
                    if not sel(row): continue
                    if row < 252: a, off = A1, row * 256
                    elif row < 380: a, off = A2, (row - 252) * 256
                    else: a, off = A3, (row - 380) * 256
                    g.e("ds_read_b64_tr_b16 %s, v%d offset:%d" % (vr(WFR + (h * 2 + j) * 4 + 2 * i, 2), a, off))
    if not early:
        g.e("s_waitcnt vmcnt(7)"); g.e("s_barrier")
    trs(lambda row: row < 252)
    g.stamp(10)
    np_ = g.newlab("L_np3")
    g.e("s_cmp_lg_u32 %s, 7" % sWV); g.e("s_cbranch_scc1 %s" % np_)
    g.e("s_mov_b64 %s, 0xff" % sTM)
    poll(g, vFL, sTM)
    g.lab(np_)
    g.e("s_waitcnt vmcnt(0)")
    g.e("s_barrier")
    g.stamp(11)
    def odma(a):
        g.e("s_add_u32 m0, %s, %d" % (sOL, L_O + a * 16384 if a < 2 else (a - 2) * 16384))
        g.e("s_add_u32 %s, %s, %d" % (sT2, sOS, a * 8192))
        for f in range(2): g.e("buffer_load_dwordx4 v%d, %s, %s offen offset:%d sc1 lds" % (vL16, sWS, sT2, f * 1024))
    for a in range(2): odma(a)
    trs(lambda row: row >= 252)
    OB = 16
    lg = Q()
    def rd(k):
        a = k // 8
        if k % 8 == 0:
            g.e("s_waitcnt vmcnt(%d)%s" % ((2, 4, 2, 0)[a], " lgkmcnt(0)" if a == 0 else "")); g.e("s_barrier")
            if a == 0:
                g.stamp(12)
                odma(2); odma(3)
        g.e("ds_read_b128 %s, v%d offset:%d" % (vr(OB + (k % 4) * 4, 4), vB1 if a < 2 else vB0, (a % 2) * 16384 + (k % 8) * 1024))
        lg.add(k)
    for k in range(3): rd(k)
    for k in range(32):
        g.wl(lg.wait(k))
        g.mfma(vO, WFR + 4 * k, OB + (k % 4) * 4, None if k == 0 else vO)
        if k + 3 < 32: rd(k + 3)
    g.stamp(13)
    done = g.newlab("L_nostore")
    g.e("s_cmp_lt_u32 %s, 3" % sCB); g.e("s_cselect_b32 %s, 4, 2" % sT0)
    g.e("s_cmp_ge_u32 %s, %s" % (sCT, sT0)); g.e("s_cbranch_scc1 %s" % done)
    g.e("s_nop 8")
    PK = 48
    for i in range(8): g.e("v_cvt_pk_bf16_f32 v%d, v%d, v%d" % (PK + i, vO + 2*i, vO + 2*i + 1))
    g.e("s_nop 1")
    for b in (0, 4):
        g.e("v_permlane32_swap_b32 v%d, v%d" % (PK + b, PK + b + 2)); g.e("v_permlane32_swap_b32 v%d, v%d" % (PK + b + 1, PK + b + 3))
    g.e("s_nop 1")
    for b in range(2): g.e("buffer_store_dwordx4 %s, v%d, %s, %s offen offset:%d" % (vr(PK + 4*b, 4), vOA, sOUT, sT4, 32 * b))
    g.lab(done)

def write_stamps(g):
    if not g.stamps: return
    g.e("s_waitcnt vmcnt(0)")
    g.stamp(14)
    g.e("s_waitcnt lgkmcnt(0)")
    g.e("s_getreg_b32 s100, hwreg(HW_REG_XCC_ID)"); g.e("s_getreg_b32 s101, hwreg(HW_REG_HW_ID)")
    g.e("s_lshl_b32 %s, s2, 3" % sT0); g.e("s_add_u32 %s, %s, %s" % (sT0, sT0, sWV)); g.e("s_lshl_b32 %s, %s, 7" % (sT0, sT0))
    g.e("s_add_u32 %s, %s, 0x%x" % (sT0, sT0, WS_STAMP))
    g.e("s_mov_b64 exec, 1")
    for i in range(16):
        g.e("v_mov_b32 v20, s%d" % (70 + 2*i)); g.e("v_mov_b32 v21, s%d" % (71 + 2*i))
        g.e("buffer_store_dwordx2 v[20:21], v%d, %s, %s offen offset:%d" % (vZ, sWS, sT0, 8 * i))
        g.e("s_nop 1")

def branch(g, isA):
    n = "A" if isA else "B"
    g.e("s_cmp_lt_u32 %s, 4" % sWV); g.e("s_cbranch_scc1 L_cons%s" % n)
    producer(g, isA)
    g.e("s_branch L_x%s" % n)
    g.lab("L_cons%s" % n)
    consumer(g, isA)
    g.lab("L_x%s" % n)
    g.e("s_barrier")
    g.stamp(12 if g.stop == "p1" else 5)
    read_q(g)
    publish_kv(g, isA)
    if g.stop != "p1":
        if isA: attn_A(g)
        else: attn_B(g)
        if g.stop is None: p3(g, isA and g.wopre)
    write_stamps(g)
    g.e("s_endpgm")
    for (sl, back, need, off) in g.slow:
        g.lab(sl); spin_flag(g, need, off); g.e("s_branch %s" % back)
    g.slow = []
    for (sl, back, need, areg, off, vsrc) in g.slow2:
        g.lab(sl); spin_word(g, need, areg, off, vsrc); g.e("s_branch %s" % back)
    g.slow2 = []

def build(**kw):
    g = G(**kw)
    K = NAME + "_kernel"
    hdr = open("cdna_kernels/%s.s.ref" % NAME).read().split("; Override launch")[0]
    g.l.append(hdr.rstrip())
    g.l.append("; @launch grid=(256,1,1) block=(512,1,1) lds=163840")
    g.l += ['.amdgcn_target "amdgcn-amd-amdhsa--gfx950"', ".text", ".globl " + K, ".p2align 8", ".type %s,@function" % K, K + ":"]
    g.e("s_cmp_ge_u32 s2, 256"); g.e("s_cbranch_scc1 L_end")
    g.e("s_load_dwordx16 s[32:47], s[0:1], 0"); g.e("s_load_dwordx2 s[48:49], s[0:1], 64")
    if g.stamps:
        for i in range(15): g.e("s_mov_b64 s[%d:%d], 0" % (70 + 2*i, 71 + 2*i))
    g.stamp(0)
    t0, t1, t2 = vT, vT + 1, vT + 2
    g.e("v_lshrrev_b32 v%d, 6, v0" % t0)
    g.e("v_and_b32 v%d, 63, v0" % vLANE)
    g.e("v_readfirstlane_b32 %s, v%d" % (sWV, t0))
    g.e("s_lshr_b32 %s, s2, 7" % sBR)
    g.e("s_bfe_u32 %s, s2, 0x20003" % sT2)
    g.e("s_bfe_u32 %s, s2, 0x20005" % sT3)
    g.e("s_and_b32 %s, s2, 1" % sHP); g.e("s_lshl_b32 %s, %s, 2" % (sHP, sHP)); g.e("s_add_u32 %s, %s, %s" % (sHP, sHP, sT2))
    g.e("s_bfe_u32 %s, s2, 0x20001" % sR); g.e("s_lshl_b32 %s, %s, 2" % (sR, sR)); g.e("s_add_u32 %s, %s, %s" % (sR, sR, sT3))
    g.e("s_and_b32 %s, %s, 3" % (sP1K, sWV)); g.e("s_lshl_b32 %s, %s, 10" % (sP1K, sP1K))
    producer_prep(g)
    g.e("s_mov_b32 s6, 0x%x" % X_BYTES); g.e("s_mov_b32 s7, 0x20000"); g.e("s_mov_b32 s10, 0x%x" % (W_BYTES + WBIAS)); g.e("s_mov_b32 s11, 0x20000")
    g.e("s_cmp_eq_u32 %s, 0" % sBR)
    g.e("s_waitcnt lgkmcnt(0)")
    g.e("s_cselect_b32 s4, s32, s38"); g.e("s_cselect_b32 s5, s33, s39"); g.e("s_cselect_b32 s8, s34, s40"); g.e("s_cselect_b32 s9, s35, s41")
    g.e("s_sub_u32 s8, s8, %d" % WBIAS); g.e("s_subb_u32 s9, s9, 0")
    g.e("s_cmp_eq_u32 %s, 0" % sBR)
    g.e("s_cbranch_scc0 L_B")
    branch(g, True)
    g.lab("L_B")
    if "noB" in g.exp:
        if "tA" in g.exp:
            g.e("s_cmp_ge_u32 %s, 4" % sWV); g.e("s_cbranch_scc1 L_end")
            touch(g, 0, g.tfirst, 249)
        g.e("s_endpgm")
    branch(g, False)
    g.lab("L_end"); g.e("s_endpgm")
    g.l += ['.section .rodata,"a"', ".p2align 6", ".amdhsa_kernel " + K, "  .amdhsa_next_free_vgpr 256", "  .amdhsa_next_free_sgpr 102",
            "  .amdhsa_accum_offset 256", "  .amdhsa_group_segment_fixed_size 0", "  .amdhsa_kernarg_size 72", "  .amdhsa_user_sgpr_count 2",
            "  .amdhsa_user_sgpr_kernarg_segment_ptr 1", "  .amdhsa_system_sgpr_workgroup_id_x 1", ".end_amdhsa_kernel"]
    return "\n".join(g.l) + "\n"

if __name__ == "__main__":
    ap = argparse.ArgumentParser()
    ap.add_argument("-o", default="k.s"); ap.add_argument("--stamps", action="store_true"); ap.add_argument("--dbgq", action="store_true")
    ap.add_argument("--stop", default=None); ap.add_argument("--exp", default="")
    ap.add_argument("--iA", type=int, default=2); ap.add_argument("--dA", type=int, default=2); ap.add_argument("--iB", type=int, default=2); ap.add_argument("--dB", type=int, default=2)
    ap.add_argument("--wopre", type=int, default=1); ap.add_argument("--rot", type=int, default=0); ap.add_argument("--wotouch", type=int, default=1); ap.add_argument("--prio", type=int, default=0); ap.add_argument("--tfirst", type=int, default=2)
    a = ap.parse_args()
    o = a.o; d = vars(a); d.pop("o")
    open(o, "w").write(build(**d))
```

```python
import sys, math, struct, argparse
NAME = "concat_heads__sliding_block__sliding_local_dilated__prompt"
def f32bits(x): return struct.unpack("<I", struct.pack("<f", x))[0]

X_BYTES = 2048*896; W_BYTES = 448*2688; WO_BYTES = 448*896; OUT_BYTES = 2048*1792
WS_KV = 0; WS_OF = 8 << 20; WS_KVFLAG = 16 << 20; WS_OFLAG = (16 << 20) + 65536; WS_QDBG = 20 << 20; WS_STAMP = 32 << 20
WS_RECORDS = 64 << 20
NEG = f32bits(-1.0e30)
CSCALE = f32bits((28 ** -0.5) * math.log2(math.e))
LBIG = f32bits(2.0 ** 64)
OOB = 0x7FF00000
SPIN_MAX = 1 << 22

def vr(a, n): return "v[%d:%d]" % (a, a + n - 1)
sX, sW, sWO, sWS, sOUT, sDBG = "s[4:7]", "s[8:11]", "s[12:15]", "s[16:19]", "s[20:23]", "s[24:27]"
sBR, sHP, sR, sWV = "s28", "s29", "s30", "s31"
sRT, sHH, sW1K, sKC, sXS, sXS2, sWSO, sXB, sWB, sKVO = "s50", "s51", "s52", "s53", "s54", "s55", "s56", "s57", "s58", "s59"
sNON = "s[60:61]"; sT0, sT1, sT2, sT3 = "s62", "s63", "s64", "s65"; sTM = "s[64:65]"; sC = "s66"; sT4 = "s67"; sUP = "s[68:69]"
sXCD, sIDX = "s3", "s33"
vLANE, vXOFF, vWOFF = 1, 2, 3
vXRD = 4; vWRD = 8; vL16 = 9; vT = 10; vKVW = 14; vZ = 15
vWB = 16
vAK, vAV, vAQ = 32, 48, 64
vKP, vVP = 80, 88
vC1, vC2 = 96, 112
vXF = 128
vNON = 240
SLOT = 32768
KVBASE = (98304, 16384)

def lane_mask(fn):
    m = 0
    for l in range(64):
        if fn(l): m |= 1 << l
    return m
def key_of(r, l): return (r & 3) + 8 * (r >> 2) + 4 * (l >> 5)

class Q:
    def __init__(self): self.q = []
    def add(self, tag, n=1): self.q += [tag] * n
    def wait(self, tag):
        idx = [i for i, t in enumerate(self.q) if t == tag]
        if not idx: return None
        n = len(self.q) - 1 - idx[-1]
        self.q = self.q[idx[-1] + 1:]
        return n

class G:
    def __init__(self, stamps=False, depthA=5, depthB=2, dbgq=False, stop=None, exp="", initA=2, initB=2, dper=1, kvs=(30, 33, 36, 39)):
        self.exp = exp; self.initA = initA; self.initB = initB; self.dper = dper; self.kvs = kvs
        self.l = []; self.stamps = stamps; self.depthA = depthA; self.depthB = depthB; self.dbgq = dbgq; self.stop = stop
        self.nlab = 0
    def e(self, s): self.l.append("    " + s)
    def c(self, s): self.l.append("    ; " + s)
    def lab(self, s): self.l.append(s + ":")
    def newlab(self, p="L"):
        self.nlab += 1; return "%s_%d" % (p, self.nlab)
    def stamp(self, i):
        if self.stamps: self.e("s_memrealtime s[%d:%d]" % (70 + 2*i, 71 + 2*i))
    def mask(self, m):
        self.e("s_mov_b32 s64, 0x%08x" % (m & 0xffffffff)); self.e("s_mov_b32 s65, 0x%08x" % (m >> 32))
    def mfma(self, d, a, b, c):
        self.e("v_mfma_f32_32x32x16_bf16 %s, %s, %s, %s" % (vr(d, 16), vr(a, 4), vr(b, 4), "0" if c is None else vr(c, 16)))
    def wl(self, n):
        if n is not None: self.e("s_waitcnt lgkmcnt(%d)" % min(n, 15))
    def wv(self, n):
        if n is not None: self.e("s_waitcnt vmcnt(%d)" % min(n, 63))

ITEM_KS = [4]*7 + [16, 12]

def advance_kc(g):
    g.e("s_add_u32 %s, %s, 1" % (sKC, sKC)); g.e("s_cmp_eq_u32 %s, 7" % sKC); g.e("s_cselect_b32 %s, 0, %s" % (sKC, sKC))

def item_ops(i):
    slot = (i % 5) * SLOT
    ops = []
    if i < 7:
        def o0(g):
            g.e("s_lshl_b32 %s, %s, 7" % (sXS, sKC))
            g.e("s_add_u32 m0, %s, %d" % (sW1K, slot))
            g.e("s_add_u32 %s, %s, %s" % (sXS, sXS, sXB))
            g.e("buffer_load_dwordx4 v%d, %s, %s offen lds" % (vXOFF, sX, sXS))
        def o1(g):
            g.e("s_mul_i32 %s, %s, %d" % (sWSO, sKC, 64 * 2688))
            g.e("s_add_u32 m0, %s, %d" % (sW1K, slot + 16384 - 896))
            g.e("s_add_u32 %s, %s, %s" % (sWSO, sWSO, sWB))
            g.e("buffer_load_dwordx4 v%d, %s, %s offen offset:896 lds" % (vWOFF, sW, sWSO))
        def o2(g):
            g.e("s_add_u32 m0, %s, %d" % (sW1K, slot + 24576 - 1792))
            g.e("s_add_u32 %s, %s, %d" % (sXS2, sXS, 64 * 896))
            g.e("buffer_load_dwordx4 v%d, %s, %s offen offset:1792 lds" % (vWOFF, sW, sWSO))
        def o3(g):
            g.e("s_add_u32 m0, %s, %d" % (sW1K, slot + 8192))
            advance_kc(g)
            g.e("buffer_load_dwordx4 v%d, %s, %s offen lds" % (vXOFF, sX, sXS2))
        ops = [o0, o1, o2, o3]
    else:
        for c in range(4 if i == 7 else 3):
            def o(g, c=c):
                g.e("s_mul_i32 %s, %s, %d" % (sWSO, sKC, 64 * 2688))
                g.e("s_add_u32 m0, %s, %d" % (sW1K, slot + c * 8192))
                g.e("s_add_u32 %s, %s, %s" % (sWSO, sWSO, sWB))
                advance_kc(g)
                g.e("buffer_load_dwordx4 v%d, %s, %s offen lds" % (vWOFF, sW, sWSO))
            ops.append(o)
    return ops

def common_setup(g):
    t0, t1, t2 = vT, vT + 1, vT + 2
    for (srd, a, n) in ((12, None, WO_BYTES), (16, 48, WS_RECORDS), (20, 44, OUT_BYTES), (24, 46, 256)):
        if a is None:
            g.e("s_cmp_eq_u32 %s, 0" % sBR)
            g.e("s_cselect_b32 s12, s36, s42"); g.e("s_cselect_b32 s13, s37, s43")
        else:
            g.e("s_mov_b32 s%d, s%d" % (srd, a)); g.e("s_mov_b32 s%d, s%d" % (srd + 1, a + 1))
        g.e("s_mov_b32 s%d, 0x%x" % (srd + 2, n)); g.e("s_mov_b32 s%d, 0x20000" % (srd + 3))
    g.e("v_mov_b32 v%d, 0" % vZ)
    skip = g.newlab("L_non")
    g.e("s_or_b32 %s, s2, %s" % (sT0, sWV)); g.e("s_cmp_lg_u32 %s, 0" % sT0); g.e("s_cbranch_scc1 %s" % skip)
    g.e("s_memrealtime %s" % sNON); g.e("s_waitcnt lgkmcnt(0)"); g.e("s_or_b32 s60, s60, 1")
    g.e("v_mov_b32 v%d, s60" % vNON); g.e("v_mov_b32 v%d, s61" % (vNON + 1))
    g.e("s_mov_b64 exec, 1")
    g.e("buffer_store_dwordx2 %s, v%d, %s, 0 offen sc1" % (vr(vNON, 2), vZ, sDBG))
    g.e("s_mov_b64 exec, -1")
    g.lab(skip)
    g.e("s_mov_b32 s68, 0"); g.e("s_mov_b32 s69, -1")
    g.e("s_mov_b32 %s, 0x%08x" % (sC, CSCALE))
    g.e("v_lshlrev_b32 v%d, 4, v%d" % (vL16, vLANE))
    g.e("v_and_b32 v%d, 31, v%d" % (t0, vLANE))
    g.e("v_bfe_u32 v%d, v%d, 1, 3" % (t1, vLANE))
    g.e("v_lshrrev_b32 v%d, 5, v%d" % (t2, vLANE)); g.e("v_xor_b32 v%d, v%d, v%d" % (t1, t1, t2))
    g.e("s_lshl_b32 %s, %s, 12" % (sT0, sRT))
    g.e("v_lshlrev_b32 v%d, 7, v%d" % (t0, t0)); g.e("v_add_u32 v%d, %s, v%d" % (t0, sT0, t0))
    g.e("v_lshl_add_u32 v%d, v%d, 4, v%d" % (vXRD, t1, t0))
    for k in range(1, 4): g.e("v_xor_b32 v%d, %d, v%d" % (vXRD + k, k << 5, vXRD))
    g.e("v_bfe_u32 v%d, v%d, 2, 2" % (t0, vLANE))
    g.e("v_lshl_add_u32 v%d, v%d, 3, v%d" % (t1, t2, t0))
    g.e("v_lshlrev_b32 v%d, 7, v%d" % (t1, t1))
    g.e("v_lshrrev_b32 v%d, 1, v%d" % (t0, t0)); g.e("v_lshlrev_b32 v%d, 6, v%d" % (t0, t0))
    g.e("v_and_b32 v%d, 3, v%d" % (t2, vLANE)); g.e("v_lshlrev_b32 v%d, 3, v%d" % (t2, t2))
    g.e("v_and_b32 v%d, 16, v%d" % (vWRD, vLANE)); g.e("v_lshl_add_u32 v%d, v%d, 1, v%d" % (t2, vWRD, t2))
    g.e("s_mul_i32 %s, %s, 56" % (sT1, sHH)); g.e("v_add_u32 v%d, %s, v%d" % (t2, sT1, t2))
    g.e("v_xor_b32 v%d, v%d, v%d" % (t2, t2, t0)); g.e("v_add_u32 v%d, v%d, v%d" % (vWRD, t1, t2))
    g.e("s_lshl_b32 %s, %s, 3" % (sKVO, sBR)); g.e("s_add_u32 %s, %s, %s" % (sKVO, sKVO, sHP)); g.e("s_lshl_b32 %s, %s, 4" % (sKVO, sKVO))
    g.e("s_add_u32 %s, %s, %s" % (sKVO, sKVO, sR)); g.e("s_lshl_b32 %s, %s, 15" % (sKVO, sKVO))
    g.e("s_lshl_b32 %s, %s, 14" % (sT1, sHH)); g.e("s_add_u32 %s, %s, %s" % (sKVO, sKVO, sT1))
    g.e("s_add_u32 %s, %s, %s" % (sT4, sKVO, sT0))
    g.e("s_mov_b32 %s, %d" % (sT1, KVBASE[1]))
    g.e("s_cmp_eq_u32 %s, 0" % sHH)
    g.e("s_cselect_b32 %s, 0x%x, %s" % (sT1, KVBASE[0], sT1)); g.e("s_add_u32 %s, %s, %s" % (sT1, sT1, sT0))
    g.e("v_add_u32 v%d, %s, v%d" % (vKVW, sT1, vL16))

def p1(g, isA):
    depth = g.depthA if isA else g.depthB
    vm = Q(); lg = Q()
    dq = [(i, op) for i in range(9) for op in item_ops(i)]
    cur = [-1]
    def dma(maxn=1, lim=None):
        n = 0
        while dq and n < maxn:
            i, op = dq[0]
            if lim is not None:
                if i > lim: break
            elif not (i <= cur[0] + depth and (i < 5 or i <= cur[0] + 3)): break
            dq.pop(0); op(g); vm.add(i); n += 1
    init = g.initA if isA else g.initB
    dma(99, lim=init - 1)
    g.stamp(1)
    common_setup(g)
    g.e("v_mov_b32 v%d, 0x%08x" % (vT, NEG))
    for r in range(16):
        if isA:
            g.mask(lane_mask(lambda l: key_of(r, l) <= (l & 31)))
            g.e("v_cndmask_b32 v%d, v%d, 0, %s" % (vC1 + r, vT, sTM))
            g.e("v_cndmask_b32 v%d, 0, v%d, %s" % (vC2 + r, vT, sTM))
        else:
            g.mask(lane_mask(lambda l: ((l & 31) - key_of(r, l)) in range(0, 16, 2)))
            g.e("v_cndmask_b32 v%d, v%d, 0, %s" % (vC1 + r, vT, sTM))
            g.mask(lane_mask(lambda l: (32 + (l & 31) - key_of(r, l)) in range(0, 16, 2)))
            g.e("v_cndmask_b32 v%d, v%d, 0, %s" % (vC2 + r, vT, sTM))
    if not isA:
        skip = g.newlab("L_c2")
        g.e("s_or_b32 %s, %s, %s" % (sT0, sR, sRT)); g.e("s_cmp_lg_u32 %s, 0" % sT0); g.e("s_cbranch_scc1 %s" % skip)
        for r in range(16): g.e("v_mov_b32 v%d, v%d" % (vC2 + r, vT))
        g.lab(skip)
    steps = [(i, ks) for i in range(9) for ks in range(ITEM_KS[i])]
    NS = len(steps)
    win = [0]
    def set_window(wn, need_x):
        d = (wn - win[0]) * 65536
        if d:
            for rg in [vWRD] + ([vXRD + k for k in range(4)] if need_x else []):
                g.e("v_add_u32 v%d, 0x%x, v%d" % (rg, d & 0xffffffff, rg))
            win[0] = wn
    def open_item(i):
        dma(99, lim=i)
        g.wv(vm.wait(i))
        g.e("s_barrier")
        if g.stop == "p1": g.stamp(2 + i)
        else:
            if i == 0: g.stamp(2)
            if i == 7: g.stamp(3)
        cur[0] = i
        if i == 5:
            g.e("buffer_load_dwordx2 %s, v%d, %s, 0 offen sc1" % (vr(vNON, 2), vZ, sDBG)); vm.add("non")
    def reads(j):
        i, ks = steps[j]
        if ks == 0: open_item(i)
        slot = i % 5; base = (slot % 2) * SLOT
        if "noread" in g.exp: return
        set_window(slot // 2, i < 7)
        if i < 7:
            b = vWB + (j % 2) * 8
            g.e("ds_read_b128 %s, v%d offset:%d" % (vr(vXF + 4 * j, 4), vXRD + ks, base))
            for t in range(2):
                for h in range(2):
                    g.e("ds_read_b64_tr_b16 %s, v%d offset:%d" % (vr(b + 4*t + 2*h, 2), vWRD, base + 16384 + t * 8192 + ks * 2048 + h * 512))
            lg.add(j, 5)
        else:
            b = vWB + (j % 4) * 4
            for h in range(2):
                g.e("ds_read_b64_tr_b16 %s, v%d offset:%d" % (vr(b + 2*h, 2), vWRD, base + ks * 2048 + h * 512))
            lg.add(j, 2)
    def mm(j):
        i, ks = steps[j]
        if "nomfma" in g.exp: return
        if i < 7:
            b = vWB + (j % 2) * 8; x = vXF + 4 * j
            g.mfma(vAK, b, x, None if j == 0 else vAK)
            g.mfma(vAV, x, b + 4, None if j == 0 else vAV)
        else:
            g.mfma(vAQ, vWB + (j % 4) * 4, vXF + 4 * (j - 28), None if j == 28 else vAQ)
    def kv_post():
        for i in range(8): g.e("v_cvt_pk_bf16_f32 v%d, v%d, v%d" % (vKP + i, vAK + 2*i, vAK + 2*i + 1))
        for i in range(8): g.e("v_cvt_pk_bf16_f32 v%d, v%d, v%d" % (vVP + i, vAV + 2*i, vAV + 2*i + 1))
        g.e("v_mov_b32 v%d, 0x3f803f80" % vT)
        g.mask(lane_mask(lambda l: (l & 31) == 28))
        g.e("v_cndmask_b32 v%d, v%d, v%d, %s" % (vKP + 6, vKP + 6, vT, sUP))
        for i in range(8): g.e("v_cndmask_b32 v%d, v%d, v%d, %s" % (vVP + i, vVP + i, vT, sTM))
    def kv_store(fs):
        skip = g.newlab("L_nopub")
        if not isA:
            g.e("s_cmp_lg_u32 %s, 3" % sRT); g.e("s_cbranch_scc1 %s" % skip)
        for f in fs:
            g.e("buffer_store_dwordx4 %s, v%d, %s, %s offen offset:%d sc1" % (vr(vKP + 4*f, 4), vL16, sWS, sT4, f * 1024))
        if not isA: g.lab(skip)
        else: vm.add("kv", len(fs))
    def kv_lds():
        for f in range(4):
            g.e("ds_write_b128 v%d, %s offset:%d" % (vKVW, vr(vKP + 4*f, 4), 32768 + f * 1024))
        lg.add("kvw", 4)
    issued = [0]
    def issue_upto(j):
        while issued[0] <= j and issued[0] < NS:
            reads(issued[0]); issued[0] += 1
    issue_upto(1)
    for j in range(NS):
        g.wl(lg.wait(j))
        mm(j)
        if j < 26: issue_upto(j + 2)
        elif j == 26: issue_upto(29)
        elif j == 27: issue_upto(31)
        else: issue_upto(j + 4)
        dma(g.dper)
        if j == 30: kv_post()
        if j in g.kvs: kv_store([g.kvs.index(j)] if len(g.kvs) == 4 else [0, 1, 2, 3])
        if j == 45: kv_lds()
    g.stamp(11 if g.stop == "p1" else 4)

vQF = 16
vO = 32
vS = 128
vKB = 176
vVB = 192
vM = 208; vM2 = 209; vNM = 210; vP = 212

def q_pack(g):
    g.e("v_mov_b32 v%d, %s" % (vT, sC))
    g.e("v_cndmask_b32 v%d, v%d, 0, %s" % (vT + 1, vT, sUP))
    g.e("s_nop 7")
    for r in range(16): g.e("v_mul_f32 v%d, v%d, v%d" % (vAQ + r, vT + (1 if r >= 12 else 0), vAQ + r))
    for i in range(8): g.e("v_cvt_pk_bf16_f32 v%d, v%d, v%d" % (vQF + i, vAQ + 2*i, vAQ + 2*i + 1))

def get_nonce(g):
    lp = g.newlab("L_nlp"); ok = g.newlab("L_nok")
    g.e("s_mov_b32 %s, 0" % sT0)
    g.lab(lp)
    g.e("v_readfirstlane_b32 s60, v%d" % vNON); g.e("v_readfirstlane_b32 s61, v%d" % (vNON + 1))
    g.e("s_add_u32 %s, %s, 1" % (sT0, sT0))
    g.e("s_cmp_lg_u32 s60, 0"); g.e("s_cbranch_scc1 %s" % ok)
    g.e("s_cmp_gt_u32 %s, %d" % (sT0, SPIN_MAX)); g.e("s_cbranch_scc1 %s" % ok)
    g.e("buffer_load_dwordx2 %s, v%d, %s, 0 offen sc1" % (vr(vNON, 2), vZ, sDBG))
    g.e("s_waitcnt vmcnt(0)")
    g.e("s_branch %s" % lp)
    g.lab(ok)

def store_flag(g, soff_reg):
    g.e("v_mov_b32 v%d, s60" % vNON); g.e("v_mov_b32 v%d, s61" % (vNON + 1))
    g.e("s_mov_b64 exec, 1")
    g.e("buffer_store_dwordx2 %s, v%d, %s, %s offen sc1" % (vr(vNON, 2), vZ, sWS, soff_reg))
    g.e("s_mov_b64 exec, -1")

def poll(g, vaddr, execmask_reg):
    lp = g.newlab("L_poll"); ok = g.newlab("L_pok")
    g.e("s_mov_b64 exec, %s" % execmask_reg)
    g.e("s_mov_b32 %s, 0" % sT0)
    g.lab(lp)
    g.e("buffer_load_dwordx2 %s, v%d, %s, 0 offen sc1" % (vr(vNON + 2, 2), vaddr, sWS))
    g.e("s_add_u32 %s, %s, 1" % (sT0, sT0))
    g.e("s_waitcnt vmcnt(0)")
    g.e("v_cmp_ne_u64 vcc, %s, %s" % (sNON, vr(vNON + 2, 2)))
    g.e("s_cmp_gt_u32 %s, %d" % (sT0, SPIN_MAX)); g.e("s_cbranch_scc1 %s" % ok)
    g.e("s_cbranch_vccnz %s" % lp)
    g.lab(ok)
    g.e("s_mov_b64 exec, -1")

def end_p1(g):
    q_pack(g)
    if g.dbgq:
        g.e("s_lshr_b32 %s, %s, 1" % (sT0, sT4)); g.e("s_add_u32 %s, %s, 0x%x" % (sT0, sT0, WS_QDBG))
        g.e("s_nop 1")
        for f in range(2): g.e("buffer_store_dwordx4 %s, v%d, %s, %s offen offset:%d" % (vr(vQF + 4*f, 4), vL16, sWS, sT0, f * 1024))
    g.e("s_waitcnt vmcnt(0) lgkmcnt(0)")
    g.e("s_barrier")
    g.stamp(12 if g.stop == "p1" else 5)
    get_nonce(g)
    skip = g.newlab("L_nf")
    g.e("s_cmp_lg_u32 %s, 0" % sWV); g.e("s_cbranch_scc1 %s" % skip)
    g.e("s_lshr_b32 %s, %s, 8" % (sT1, sKVO))
    g.e("s_add_u32 %s, %s, 0x%x" % (sT1, sT1, WS_KVFLAG))
    store_flag(g, sT1)
    g.lab(skip)

def kv_flag_addr(g, vdst):
    g.e("s_lshr_b32 %s, %s, 15" % (sT1, sKVO)); g.e("s_lshl_b32 %s, %s, 7" % (sT1, sT1))
    g.e("s_add_u32 %s, %s, 0x%x" % (sT1, sT1, WS_KVFLAG - 128))
    g.e("v_lshlrev_b32 v%d, 7, v%d" % (vdst, vLANE))
    g.e("v_sub_u32 v%d, %s, v%d" % (vdst, sT1, vdst))

def max16(g, s, dst, first=True):
    if first:
        g.e("v_max3_f32 v%d, v%d, v%d, v%d" % (dst, s, s + 1, s + 2)); rest = list(range(3, 16))
    else: rest = list(range(16))
    while len(rest) >= 2:
        a, b = rest.pop(0), rest.pop(0)
        g.e("v_max3_f32 v%d, v%d, v%d, v%d" % (dst, dst, s + a, s + b))
    if rest: g.e("v_max_f32 v%d, v%d, v%d" % (dst, dst, s + rest[0]))

def xhalf_max(g):
    g.e("v_mov_b32 v%d, v%d" % (vM2, vM)); g.e("s_nop 1")
    g.e("v_permlane32_swap_b32 v%d, v%d" % (vM, vM2)); g.e("s_nop 1")
    g.e("v_max_f32 v%d, v%d, v%d" % (vM, vM, vM2))

def set_shift(g):
    g.e("v_cvt_pk_bf16_f32 v%d, -v%d, 0" % (vM2, vM))
    g.e("v_lshlrev_b32 v%d, 16, v%d" % (vNM, vM2))
    g.e("v_cndmask_b32 v%d, v%d, v%d, %s" % (vQF + 6, vQF + 6, vM2, sUP))

def finish_o(g):
    g.e("v_rcp_f32 v%d, v%d" % (vM, vM2))
    g.e("s_nop 0")
    g.e("v_cndmask_b32 v%d, v%d, 0, %s" % (vM2, vM, sUP))
    for r in range(16): g.e("v_mul_f32 v%d, v%d, v%d" % (vO + r, vM2 if r >= 12 else vM, vO + r))
    for i in range(8): g.e("v_cvt_pk_bf16_f32 v%d, v%d, v%d" % (vP + i, vO + 2*i, vO + 2*i + 1))
    g.e("s_lshl_b32 %s, %s, 6" % (sT0, sBR)); g.e("s_lshl_b32 %s, %s, 2" % (sT1, sR)); g.e("s_add_u32 %s, %s, %s" % (sT0, sT0, sT1))
    g.e("s_add_u32 %s, %s, %s" % (sT0, sT0, sRT)); g.e("s_lshl_b32 %s, %s, 4" % (sT0, sT0))
    g.e("s_lshl_b32 %s, %s, 1" % (sT1, sHP)); g.e("s_add_u32 %s, %s, %s" % (sT0, sT0, sT1)); g.e("s_add_u32 %s, %s, %s" % (sT0, sT0, sHH))
    g.e("s_lshl_b32 %s, %s, 11" % (sT0, sT0)); g.e("s_add_u32 %s, %s, 0x%x" % (sT0, sT0, WS_OF))
    for f in range(2): g.e("buffer_store_dwordx4 %s, v%d, %s, %s offen offset:%d sc1" % (vr(vP + 4*f, 4), vL16, sWS, sT0, f * 1024))

def bcast_l(g):
    g.e("v_mov_b32 v%d, v%d" % (vM, vO + 12)); g.e("v_mov_b32 v%d, v%d" % (vM2, vO + 12)); g.e("s_nop 1")
    g.e("v_permlane32_swap_b32 v%d, v%d" % (vM, vM2)); g.e("s_nop 1")

def attn_A(g):
    lg = Q()
    toff = lambda u: (8 - u) * 4096
    nold = g.newlab("L_nold")
    g.e("s_cmp_lg_u32 %s, 0" % sRT); g.e("s_cbranch_scc1 %s" % nold)
    nopoll = g.newlab("L_nopoll")
    g.e("s_cmp_eq_u32 %s, 0" % sR); g.e("s_cbranch_scc1 %s" % nopoll)
    kv_flag_addr(g, vT)
    g.e("s_cmp_eq_u32 %s, 1" % sR); g.e("s_cselect_b32 s64, 1, 3"); g.e("s_mov_b32 s65, 0")
    poll(g, vT, sTM)
    g.lab(nopoll)
    g.stamp(6)
    g.e("v_readfirstlane_b32 %s, v%d" % (sT2, vKVW))
    for b in (1, 2):
        g.e("s_sub_u32 %s, %s, %d" % (sT1, sKVO, b * 32768))
        g.e("s_cmp_lt_u32 %s, %d" % (sR, b)); g.e("s_cselect_b32 %s, 0x%x, %s" % (sT1, OOB, sT1))
        for t in range(4):
            g.e("s_add_u32 m0, %s, %d" % (sT2, (2 - b) * 16384 + t * 4096))
            g.e("s_add_u32 %s, %s, %d" % (sT0, sT1, t * 4096))
            for f in range(4):
                g.e("buffer_load_dwordx4 v%d, %s, %s offen offset:%d sc1 lds" % (vL16, sWS, sT0, f * 1024))
    g.lab(nold)
    def site(u):
        for (cond, n) in ((u - 1, 16), (u - 5, 0)):
            if 0 <= cond <= 3:
                sk = g.newlab("L_site")
                g.e("s_cmp_lg_u32 %s, %d" % (sRT, cond)); g.e("s_cbranch_scc1 %s" % sk)
                g.e("s_waitcnt vmcnt(%d)" % n); g.e("s_barrier")
                g.lab(sk)
    def rdK(u):
        for j in range(2): g.e("ds_read_b128 %s, v%d offset:%d" % (vr(vKB + (u % 2) * 8 + 4*j, 4), vKVW, toff(u) + j * 1024))
        lg.add(("K", u), 2)
    def rdV(u):
        for j in range(2): g.e("ds_read_b128 %s, v%d offset:%d" % (vr(vVB + (u % 2) * 8 + 4*j, 4), vKVW, toff(u) + 2048 + j * 1024))
        lg.add(("V", u), 2)
    def qk(u, j):
        s = vS + (u % 3) * 16
        c = s if j else (vC1 if u == 0 else vC2 if u == 8 else None)
        g.mfma(s, vKB + (u % 2) * 8 + 4*j, vQF + 4*j, c)
    def pv(u, j):
        g.mfma(vO, vVB + (u % 2) * 8 + 4*j, vS + (u % 3) * 16 + 4*j, None if (u == 0 and j == 0) else vO)
    rdK(0)
    g.wl(lg.wait(("K", 0))); qk(0, 0); qk(0, 1)
    g.e("s_nop 11")
    max16(g, vS, vM); xhalf_max(g); set_shift(g)
    for r in range(16): g.e("v_add_f32 v%d, v%d, v%d" % (vS + r, vNM, vS + r))
    for u in range(9):
        s = vS + (u % 3) * 16
        ex = lambda a, b: [g.e("v_exp_f32 v%d, v%d" % (s + r, s + r)) for r in range(a, b)]
        if u < 8: site(u + 1); rdK(u + 1)
        rdV(u)
        if u > 0: g.wl(lg.wait(("V", u - 1))); pv(u - 1, 0)
        ex(0, 5)
        if u > 0: pv(u - 1, 1)
        ex(5, 10)
        if u < 8: g.wl(lg.wait(("K", u + 1))); qk(u + 1, 0)
        ex(10, 16)
        if u < 8: qk(u + 1, 1)
        else: g.e("s_nop 0")
        for i in range(8): g.e("v_cvt_pk_bf16_f32 v%d, v%d, v%d" % (s + i, s + 2*i, s + 2*i + 1))
        if u < 8: g.e("s_nop 1")
    g.wl(lg.wait(("V", 8))); g.e("s_nop 0"); pv(8, 0); pv(8, 1)
    g.e("s_nop 11")
    bcast_l(g)
    ok = g.newlab("L_aok")
    g.e("s_mov_b32 %s, 0x%08x" % (sT0, LBIG))
    g.e("v_cmp_nlt_f32 vcc, v%d, %s" % (vM2, sT0) if False else "v_cmp_ngt_f32 vcc, %s, v%d" % (sT0, vM2))
    g.e("s_cbranch_vccz %s" % ok)
    fallback_A(g)
    g.lab(ok)
    g.stamp(7)
    finish_o(g)

def fallback_A(g):
    g.e("s_lshl_b32 %s, %s, 2" % (sT1, sR)); g.e("s_add_u32 %s, %s, %s" % (sT1, sT1, sRT)); g.e("s_min_u32 %s, %s, 8" % (sT1, sT1))
    g.e("v_mov_b32 v%d, 0" % vM2)
    g.e("v_cndmask_b32 v%d, v%d, v%d, %s" % (vQF + 6, vQF + 6, vM2, sUP))
    g.e("v_mov_b32 v%d, 0x%08x" % (vM, NEG))
    for r in range(16): g.e("v_mov_b32 v%d, 0" % (vO + r))
    for pas in range(2):
        lp = g.newlab("L_fb"); l0 = g.newlab("L_fb0"); l8 = g.newlab("L_fb8"); lj = g.newlab("L_fbj")
        g.e("s_mov_b32 %s, 0" % sT0)
        g.e("v_add_u32 v%d, 0x8000, v%d" % (vT, vKVW))
        g.lab(lp)
        for j in range(4): g.e("ds_read_b128 %s, v%d offset:%d" % (vr(vKB + 4*j, 4), vT, j * 1024))
        g.e("s_waitcnt lgkmcnt(0)")
        g.e("s_cmp_eq_u32 %s, 0" % sT0); g.e("s_cbranch_scc1 %s" % l0)
        g.e("s_cmp_eq_u32 %s, 8" % sT0); g.e("s_cbranch_scc1 %s" % l8)
        g.mfma(vS, vKB, vQF, None); g.e("s_branch %s" % lj)
        g.lab(l0); g.mfma(vS, vKB, vQF, vC1); g.e("s_branch %s" % lj)
        g.lab(l8); g.mfma(vS, vKB, vQF, vC2)
        g.lab(lj)
        g.mfma(vS, vKB + 4, vQF + 4, vS)
        g.e("s_nop 11")
        if pas == 0:
            max16(g, vS, vM, first=False)
        else:
            for r in range(16): g.e("v_exp_f32 v%d, v%d" % (vS + r, vS + r))
            g.e("s_nop 0")
            for i in range(8): g.e("v_cvt_pk_bf16_f32 v%d, v%d, v%d" % (vS + i, vS + 2*i, vS + 2*i + 1))
            g.e("s_nop 1")
            g.mfma(vO, vKB + 8, vS, vO); g.mfma(vO, vKB + 12, vS + 4, vO)
            g.e("s_nop 11")
        g.e("v_subrev_u32 v%d, 0x1000, v%d" % (vT, vT))
        g.e("s_add_u32 %s, %s, 1" % (sT0, sT0))
        g.e("s_cmp_le_u32 %s, %s" % (sT0, sT1)); g.e("s_cbranch_scc1 %s" % lp)
        if pas == 0:
            xhalf_max(g); set_shift(g); g.e("s_nop 1")
    bcast_l(g)

def attn_B(g):
    nold = g.newlab("L_bnold"); nopoll = g.newlab("L_bnopoll")
    g.e("s_cmp_lg_u32 %s, 0" % sRT); g.e("s_cbranch_scc1 %s" % nold)
    g.e("s_cmp_eq_u32 %s, 0" % sR); g.e("s_cbranch_scc1 %s" % nopoll)
    kv_flag_addr(g, vT)
    g.e("s_mov_b64 %s, 1" % sTM)
    poll(g, vT, sTM)
    g.lab(nopoll)
    g.stamp(6)
    g.e("v_readfirstlane_b32 %s, v%d" % (sT2, vKVW))
    g.e("s_sub_u32 %s, %s, %d" % (sT1, sKVO, 32768 - 3 * 4096))
    g.e("s_cmp_eq_u32 %s, 0" % sR); g.e("s_cselect_b32 %s, 0x%x, %s" % (sT1, OOB, sT1))
    g.e("s_add_u32 m0, %s, %d" % (sT2, 7 * 4096)); g.e("s_nop 0")
    for f in range(4): g.e("buffer_load_dwordx4 v%d, %s, %s offen offset:%d sc1 lds" % (vL16, sWS, sT1, f * 1024))
    g.lab(nold)
    for j in range(2): g.e("ds_read_b128 %s, v%d offset:%d" % (vr(vKB + 4*j, 4), vKVW, 32768 + j * 1024))
    for j in range(2): g.e("ds_read_b128 %s, v%d offset:%d" % (vr(vVB + 4*j, 4), vKVW, 32768 + 2048 + j * 1024))
    g.e("s_waitcnt lgkmcnt(2)")
    g.mfma(vS, vKB, vQF, vC1); g.mfma(vS, vKB + 4, vQF + 4, vS)
    g.e("s_waitcnt vmcnt(0)")
    for j in range(2): g.e("ds_read_b128 %s, v%d offset:%d" % (vr(vKB + 8 + 4*j, 4), vKVW, 28672 + j * 1024))
    for j in range(2): g.e("ds_read_b128 %s, v%d offset:%d" % (vr(vVB + 8 + 4*j, 4), vKVW, 28672 + 2048 + j * 1024))
    g.e("s_waitcnt lgkmcnt(2)")
    g.mfma(vS + 16, vKB + 8, vQF, vC2); g.mfma(vS + 16, vKB + 12, vQF + 4, vS + 16)
    g.e("s_nop 4")
    max16(g, vS, vM); g.e("s_nop 0"); max16(g, vS + 16, vM, first=False); xhalf_max(g)
    for r in range(32): g.e("v_sub_f32 v%d, v%d, v%d" % (vS + r, vS + r, vM))
    for t in range(2):
        s = vS + 16 * t
        for r in range(16): g.e("v_exp_f32 v%d, v%d" % (s + r, s + r))
        g.e("s_nop 0")
        for i in range(8): g.e("v_cvt_pk_bf16_f32 v%d, v%d, v%d" % (s + i, s + 2*i, s + 2*i + 1))
        g.e("s_waitcnt lgkmcnt(0)"); g.e("s_nop 0")
        g.mfma(vO, vVB + 8*t, s, None if t == 0 else vO); g.mfma(vO, vVB + 8*t + 4, s + 4, vO)
    g.e("s_nop 11")
    bcast_l(g)
    g.stamp(7)
    finish_o(g)

vWF = 128
def p3(g):
    t0, t1, t2 = vT, vT + 1, vT + 2
    sCB, sRB = sXS, sXS2
    g.e("s_and_b32 %s, s2, 1" % sCB); g.e("s_lshl_b32 %s, %s, 1" % (sCB, sCB)); g.e("s_bfe_u32 %s, s2, 0x10003" % sT0); g.e("s_add_u32 %s, %s, %s" % (sCB, sCB, sT0))
    g.e("s_bfe_u32 %s, s2, 0x20001" % sRB); g.e("s_lshl_b32 %s, %s, 3" % (sRB, sRB)); g.e("s_bfe_u32 %s, s2, 0x30004" % sT0); g.e("s_add_u32 %s, %s, %s" % (sRB, sRB, sT0))
    g.e("v_lshrrev_b32 v%d, 4, v%d" % (t0, vLANE))
    g.e("v_lshlrev_b32 v%d, 2, v%d" % (t1, t0)); g.e("v_and_b32 v%d, 15, v%d" % (t2, vLANE)); g.e("v_xor_b32 v%d, v%d, v%d" % (t1, t1, t2))
    g.e("v_mul_u32_u24 v%d, 896, v%d" % (vWOFF, t0)); g.e("v_lshl_add_u32 v%d, v%d, 4, v%d" % (vWOFF, t1, vWOFF))
    g.e("s_cmp_eq_u32 %s, 3" % sCB); g.e("s_cselect_b32 %s, 8, 64" % sT0)
    g.e("v_mov_b32 v%d, 0x%x" % (t2, OOB))
    g.e("v_cmp_le_u32 vcc, %s, v%d" % (sT0, t1)); g.e("s_nop 1")
    g.e("v_cndmask_b32 v%d, v%d, v%d, vcc" % (vWOFF, vWOFF, t2))
    g.e("s_mul_i32 %s, %s, 3584" % (sWSO, sWV)); g.e("s_lshl_b32 %s, %s, 8" % (sT0, sCB)); g.e("s_add_u32 %s, %s, %s" % (sWSO, sWSO, sT0))
    g.e("s_barrier")
    g.stamp(8)
    for m in range(15):
        g.e("s_add_u32 m0, %s, %d" % (sW1K, m * 8192))
        if m: g.e("s_add_u32 %s, %s, %d" % (sWSO, sWSO, 8 * 3584))
        else: g.e("s_nop 0")
        g.e("buffer_load_dwordx4 v%d, %s, %s offen lds" % (vWOFF, sWO, sWSO))
    g.e("s_waitcnt vmcnt(15)")
    g.e("s_barrier")
    skip = g.newlab("L_nof")
    g.e("s_cmp_lg_u32 %s, 0" % sWV); g.e("s_cbranch_scc1 %s" % skip)
    g.e("s_lshl_b32 %s, %s, 4" % (sT1, sBR)); g.e("s_add_u32 %s, %s, %s" % (sT1, sT1, sR)); g.e("s_lshl_b32 %s, %s, 3" % (sT1, sT1))
    g.e("s_add_u32 %s, %s, %s" % (sT1, sT1, sHP)); g.e("s_lshl_b32 %s, %s, 7" % (sT1, sT1)); g.e("s_add_u32 %s, %s, 0x%x" % (sT1, sT1, WS_OFLAG))
    store_flag(g, sT1)
    g.lab(skip)
    g.stamp(9)
    sCT, sRT2 = sKC, sXB
    g.e("s_lshr_b32 %s, %s, 1" % (sCT, sWV)); g.e("s_and_b32 %s, %s, 1" % (sRT2, sWV))
    g.e("v_bfe_u32 v%d, v%d, 2, 2" % (t0, vLANE)); g.e("v_lshrrev_b32 v%d, 5, v%d" % (t1, vLANE))
    g.e("v_lshl_add_u32 v%d, v%d, 2, v%d" % (t1, t1, t0)); g.e("v_lshlrev_b32 v%d, 8, v%d" % (t1, t1))
    g.e("v_lshlrev_b32 v%d, 6, v%d" % (t0, t0))
    g.e("v_and_b32 v%d, 3, v%d" % (t2, vLANE)); g.e("v_lshlrev_b32 v%d, 3, v%d" % (t2, t2))
    g.e("v_and_b32 v%d, 16, v%d" % (vWRD, vLANE)); g.e("v_lshl_add_u32 v%d, v%d, 1, v%d" % (t2, vWRD, t2))
    g.e("s_lshl_b32 %s, %s, 6" % (sT0, sCT)); g.e("v_add_u32 v%d, %s, v%d" % (t2, sT0, t2))
    g.e("v_xor_b32 v%d, v%d, v%d" % (t2, t2, t0)); g.e("v_add_u32 v%d, v%d, v%d" % (vWRD, t1, t2))
    g.e("v_add_u32 v%d, 0x10000, v%d" % (vXRD, vWRD))
    g.e("s_lshr_b32 %s, %s, 1" % (sT0, sRB)); g.e("s_lshl_b32 %s, %s, 4" % (sT1, sBR)); g.e("s_add_u32 %s, %s, %s" % (sT0, sT0, sT1))
    g.e("s_lshl_b32 %s, %s, 10" % (sT0, sT0)); g.e("s_add_u32 %s, %s, 0x%x" % (sT0, sT0, WS_OFLAG))
    g.e("v_lshlrev_b32 v%d, 7, v%d" % (vXRD + 1, vLANE)); g.e("v_add_u32 v%d, %s, v%d" % (vXRD + 1, sT0, vXRD + 1))
    g.e("s_waitcnt vmcnt(0)")
    g.e("s_barrier")
    g.stamp(10)
    WFR = 96
    for h in range(16):
        for j in range(2):
            for i in range(2):
                off = (28 * h + 16 * j + 8 * i) * 256
                a = vWRD if off < 65536 else vXRD
                g.e("ds_read_b64_tr_b16 %s, v%d offset:%d" % (vr(WFR + (h * 2 + j) * 4 + 2 * i, 2), a, off % 65536))
    np_ = g.newlab("L_np3")
    g.e("s_cmp_lg_u32 %s, 0" % sWV); g.e("s_cbranch_scc1 %s" % np_)
    g.e("s_mov_b64 %s, 0xff" % sTM)
    poll(g, vXRD + 1, sTM)
    g.lab(np_)
    g.e("s_waitcnt lgkmcnt(0)")
    g.e("s_barrier")
    g.stamp(11)
    g.e("s_lshl_b32 %s, %s, 15" % (sT1, sHH)); g.e("s_and_b32 %s, %s, 3" % (sT0, sWV)); g.e("s_lshl_b32 %s, %s, 12" % (sT0, sT0)); g.e("s_add_u32 %s, %s, %s" % (sT1, sT1, sT0))
    g.e("s_lshl_b32 %s, %s, 21" % (sT0, sBR)); g.e("s_lshl_b32 %s, %s, 16" % (sT2, sRB)); g.e("s_add_u32 %s, %s, %s" % (sT0, sT0, sT2))
    g.e("s_add_u32 %s, %s, %s" % (sT0, sT0, sT1)); g.e("s_add_u32 %s, %s, 0x%x" % (sT0, sT0, WS_OF))
    for a in range(2):
        g.e("s_add_u32 m0, %s, %d" % (sT1, a * 16384))
        if a: g.e("s_add_u32 %s, %s, 16384" % (sT0, sT0))
        else: g.e("s_nop 0")
        for f in range(4): g.e("buffer_load_dwordx4 v%d, %s, %s offen offset:%d sc1 lds" % (vL16, sWS, sT0, f * 1024))
    g.e("s_lshl_b32 %s, %s, 15" % (sT0, sRT2)); g.e("v_add_u32 v%d, %s, v%d" % (vXRD, sT0, vL16))
    g.e("v_and_b32 v%d, 31, v%d" % (t0, vLANE)); g.e("v_mul_u32_u24 v%d, 1792, v%d" % (t0, t0))
    g.e("v_lshrrev_b32 v%d, 5, v%d" % (t1, vLANE)); g.e("v_lshl_add_u32 v%d, v%d, 4, v%d" % (vXOFF, t1, t0))
    g.e("s_lshl_b32 %s, %s, 1" % (sT0, sRB)); g.e("s_add_u32 %s, %s, %s" % (sT0, sT0, sRT2)); g.e("s_mul_i32 %s, %s, %d" % (sT4, sT0, 32 * 1792))
    g.e("s_mul_i32 %s, %s, 896" % (sT0, sBR)); g.e("s_add_u32 %s, %s, %s" % (sT4, sT4, sT0))
    g.e("s_lshl_b32 %s, %s, 8" % (sT0, sCB)); g.e("s_add_u32 %s, %s, %s" % (sT4, sT4, sT0))
    g.e("s_lshl_b32 %s, %s, 6" % (sT0, sCT)); g.e("s_add_u32 %s, %s, %s" % (sT4, sT4, sT0))
    OB = 16
    lg = Q()
    def rd(k):
        g.e("ds_read_b128 %s, v%d offset:%d" % (vr(OB + (k % 4) * 4, 4), vXRD, k * 1024)); lg.add(k)
    for a in range(2):
        g.e("s_waitcnt vmcnt(%d)" % (4 if a == 0 else 0))
        g.e("s_barrier")
        if a == 0: g.stamp(12)
        base = a * 16
        for k in range(base, base + 4): rd(k)
        for k in range(base, base + 16):
            g.wl(lg.wait(k))
            g.mfma(vO, WFR + 4 * k, OB + (k % 4) * 4, None if k == 0 else vO)
            if k + 4 < base + 16: rd(k + 4)
    g.stamp(13)
    done = g.newlab("L_nostore")
    g.e("s_cmp_lt_u32 %s, 3" % sCB); g.e("s_cselect_b32 %s, 4, 2" % sT0)
    g.e("s_cmp_ge_u32 %s, %s" % (sCT, sT0)); g.e("s_cbranch_scc1 %s" % done)
    g.e("s_nop 8")
    PK = 48
    for i in range(8): g.e("v_cvt_pk_bf16_f32 v%d, v%d, v%d" % (PK + i, vO + 2*i, vO + 2*i + 1))
    g.e("s_nop 1")
    for b in (0, 4):
        g.e("v_permlane32_swap_b32 v%d, v%d" % (PK + b, PK + b + 2)); g.e("v_permlane32_swap_b32 v%d, v%d" % (PK + b + 1, PK + b + 3))
    g.e("s_nop 1")
    for b in range(2): g.e("buffer_store_dwordx4 %s, v%d, %s, %s offen offset:%d" % (vr(PK + 4*b, 4), vXOFF, sOUT, sT4, 32 * b))
    g.lab(done)

def write_span(g):
    g.e("s_waitcnt vmcnt(0)")
    g.stamp(14)
    g.e("s_waitcnt lgkmcnt(0)")
    g.e("s_not_b32 s100, s70")
    g.e("s_mov_b64 exec, 1")
    g.e("v_mov_b32 v20, s100")
    g.e("buffer_atomic_umax v20, v%d, %s, 0 offen offset:8" % (vZ, sDBG))
    skip = g.newlab("L_spanB")
    g.e("v_mov_b32 v21, s98")
    g.e("buffer_atomic_umax v21, v%d, %s, 0 offen offset:12" % (vZ, sDBG))
    g.e("s_cmp_lg_u32 %s, 0" % sBR); g.e("s_cbranch_scc1 %s" % skip)
    for k, i in enumerate((0, 1, 2, 3, 4, 5, 7, 8, 9, 10, 11, 12)):
        g.e("v_mov_b32 v%d, s%d" % (22 + k, 70 + 2*i))
        g.e("buffer_atomic_umax v%d, v%d, %s, 0 offen offset:%d" % (22 + k, vZ, sDBG, 16 + 4*k))
    g.lab(skip)

def write_stamps(g):
    if not g.stamps: return
    if "span" in g.exp: return write_span(g)
    g.e("s_waitcnt vmcnt(0)")
    g.stamp(14)
    g.e("s_waitcnt lgkmcnt(0)")
    g.e("s_getreg_b32 s100, hwreg(HW_REG_XCC_ID)"); g.e("s_getreg_b32 s101, hwreg(HW_REG_HW_ID)")
    g.e("s_lshl_b32 %s, s2, 3" % sT0); g.e("s_add_u32 %s, %s, %s" % (sT0, sT0, sWV)); g.e("s_lshl_b32 %s, %s, 7" % (sT0, sT0))
    g.e("s_add_u32 %s, %s, 0x%x" % (sT0, sT0, WS_STAMP))
    g.e("s_mov_b64 exec, 1")
    for i in range(16):
        g.e("v_mov_b32 v20, s%d" % (70 + 2*i)); g.e("v_mov_b32 v21, s%d" % (71 + 2*i))
        g.e("buffer_store_dwordx2 v[20:21], v%d, %s, %s offen offset:%d" % (vZ, sWS, sT0, 8 * i))
        g.e("s_nop 1")

def build(**kw):
    g = G(**kw)
    K = NAME + "_kernel"
    hdr = open("cdna_kernels/%s.s.ref" % NAME).read().split("; Override launch")[0]
    g.l.append(hdr.rstrip())
    g.l.append("; @launch grid=(256,1,1) block=(512,1,1) lds=163840")
    g.l += ['.amdgcn_target "amdgcn-amd-amdhsa--gfx950"', ".text", ".globl " + K, ".p2align 8", ".type %s,@function" % K, K + ":"]
    g.e("s_cmp_ge_u32 s2, 256"); g.e("s_cbranch_scc1 L_end")
    g.e("s_load_dwordx16 s[32:47], s[0:1], 0"); g.e("s_load_dwordx2 s[48:49], s[0:1], 64")
    if g.stamps:
        for i in range(15): g.e("s_mov_b64 s[%d:%d], 0" % (70 + 2*i, 71 + 2*i))
    g.stamp(0)
    t0, t1, t2 = vT, vT + 1, vT + 2
    g.e("v_lshrrev_b32 v%d, 6, v0" % t0)
    g.e("v_and_b32 v%d, 63, v0" % vLANE)
    g.e("v_readfirstlane_b32 %s, v%d" % (sWV, t0))
    g.e("s_lshr_b32 %s, s2, 7" % sBR)
    g.e("s_bfe_u32 %s, s2, 0x20003" % sT2)
    g.e("s_bfe_u32 %s, s2, 0x20005" % sT3)
    g.e("s_and_b32 %s, s2, 1" % sHP); g.e("s_lshl_b32 %s, %s, 2" % (sHP, sHP)); g.e("s_add_u32 %s, %s, %s" % (sHP, sHP, sT2))
    g.e("s_bfe_u32 %s, s2, 0x20001" % sR); g.e("s_lshl_b32 %s, %s, 2" % (sR, sR)); g.e("s_add_u32 %s, %s, %s" % (sR, sR, sT3))
    g.e("s_lshl_b32 %s, %s, 2" % (sKC, sT2)); g.e("s_add_u32 %s, %s, %s" % (sKC, sKC, sT3))
    for _ in range(2):
        g.e("s_sub_u32 %s, %s, 7" % (sT0, sKC)); g.e("s_cmp_ge_u32 %s, 7" % sKC); g.e("s_cselect_b32 %s, %s, %s" % (sKC, sT0, sKC))
    g.e("s_lshl_b32 %s, %s, 10" % (sW1K, sWV))
    g.e("s_lshr_b32 %s, %s, 2" % (sHH, sWV))
    g.e("s_sub_u32 %s, 7, %s" % (sT0, sWV)); g.e("s_cmp_lt_u32 %s, 4" % sWV); g.e("s_cselect_b32 %s, %s, %s" % (sRT, sWV, sT0))
    g.e("s_mul_i32 %s, %s, %d" % (sXB, sR, 128 * 896))
    g.e("s_mul_i32 %s, %s, 112" % (sWB, sHP))
    g.e("v_lshrrev_b32 v%d, 3, v0" % t0)
    g.e("v_lshrrev_b32 v%d, 4, v0" % t1)
    g.e("v_xor_b32 v%d, v%d, v0" % (t1, t1))
    g.e("v_and_b32 v%d, 7, v%d" % (t1, t1))
    g.e("v_mul_u32_u24 v%d, 896, v%d" % (vXOFF, t0))
    g.e("v_lshl_add_u32 v%d, v%d, 4, v%d" % (vXOFF, t1, vXOFF))
    g.e("v_lshrrev_b32 v%d, 2, v0" % t1); g.e("v_and_b32 v%d, 4, v%d" % (t1, t1))
    g.e("v_and_b32 v%d, 7, v0" % t2); g.e("v_xor_b32 v%d, v%d, v%d" % (t1, t1, t2)); g.e("v_min_u32 v%d, 6, v%d" % (t1, t1))
    g.e("v_mul_u32_u24 v%d, 2688, v%d" % (vWOFF, t0))
    g.e("v_lshl_add_u32 v%d, v%d, 4, v%d" % (vWOFF, t1, vWOFF))
    g.e("s_mov_b32 s6, 0x%x" % X_BYTES); g.e("s_mov_b32 s7, 0x20000"); g.e("s_mov_b32 s10, 0x%x" % W_BYTES); g.e("s_mov_b32 s11, 0x20000")
    g.e("s_cmp_eq_u32 %s, 0" % sBR)
    g.e("s_waitcnt lgkmcnt(0)")
    g.e("s_cselect_b32 s4, s32, s38"); g.e("s_cselect_b32 s5, s33, s39"); g.e("s_cselect_b32 s8, s34, s40"); g.e("s_cselect_b32 s9, s35, s41")
    g.e("s_cbranch_scc0 L_B")
    p1(g, True); end_p1(g)
    if g.stop != "p1":
        attn_A(g)
    g.e("s_branch L_p3")
    g.lab("L_B")
    if "noB" in g.exp: g.e("s_endpgm")
    p1(g, False); end_p1(g)
    if g.stop != "p1":
        attn_B(g)
    g.lab("L_p3")
    if g.stop is None: p3(g)
    write_stamps(g)
    g.lab("L_end"); g.e("s_endpgm")
    g.l += ['.section .rodata,"a"', ".p2align 6", ".amdhsa_kernel " + K, "  .amdhsa_next_free_vgpr 256", "  .amdhsa_next_free_sgpr 102",
            "  .amdhsa_accum_offset 256", "  .amdhsa_group_segment_fixed_size 0", "  .amdhsa_kernarg_size 72", "  .amdhsa_user_sgpr_count 2",
            "  .amdhsa_user_sgpr_kernarg_segment_ptr 1", "  .amdhsa_system_sgpr_workgroup_id_x 1", ".end_amdhsa_kernel"]
    return "\n".join(g.l) + "\n"

if __name__ == "__main__":
    ap = argparse.ArgumentParser()
    ap.add_argument("-o", default="k.s"); ap.add_argument("--stamps", action="store_true"); ap.add_argument("--dbgq", action="store_true")
    ap.add_argument("--stop", default=None); ap.add_argument("--exp", default=""); ap.add_argument("--iA", type=int, default=2); ap.add_argument("--iB", type=int, default=2); ap.add_argument("--dper", type=int, default=1); ap.add_argument("--kvs", default="30,33,36,39"); ap.add_argument("--dA", type=int, default=3); ap.add_argument("--dB", type=int, default=2)
    a = ap.parse_args()
    open(a.o, "w").write(build(stamps=a.stamps, dbgq=a.dbgq, stop=a.stop, depthA=a.dA, depthB=a.dB, exp=a.exp, initA=a.iA, initB=a.iB, dper=a.dper, kvs=tuple(int(x) for x in a.kvs.split(","))))
```

```python
import sys, math, struct, argparse
NAME = "concat_heads__sliding_block__sliding_local_dilated__prompt"
def f32bits(x): return struct.unpack("<I", struct.pack("<f", x))[0]

X_BYTES = 2048*896; W_BYTES = 448*2688; WO_BYTES = 448*896; OUT_BYTES = 2048*1792
WS_OF = 8 << 20; WS_KVFLAG = 16 << 20; WS_OFLAG = (16 << 20) + 65536; WS_QDBG = 20 << 20; WS_STAMP = 32 << 20
WS_RECORDS = 64 << 20
NEG = f32bits(-1.0e30); CSCALE = f32bits((28 ** -0.5) * math.log2(math.e)); LBIG = f32bits(2.0 ** 64)
OOB = 0x7FF00000; SPIN_MAX = 1 << 20; WBIAS = 4096

def vr(a, n): return "v[%d:%d]" % (a, a + n - 1)
sX, sW, sWO, sWS, sOUT, sDBG = "s[4:7]", "s[8:11]", "s[12:15]", "s[16:19]", "s[20:23]", "s[24:27]"
sBR, sHP, sR, sWV = "s28", "s29", "s30", "s31"
sRT, sHH, sW1K, sKC, sXS, sP, sWSO, sXB, sWB, sKVO = "s50", "s51", "s52", "s53", "s54", "s55", "s56", "s57", "s58", "s59"
sNON = "s[60:61]"; sT0, sT1, sT2, sT3 = "s62", "s63", "s64", "s65"; sTM = "s[64:65]"; sC = "s66"; sT4 = "s67"; sUP = "s[68:69]"
sCB, sRB, sWOS, sSPN = "s32", "s33", "s34", "s35"
sHM = "s[38:39]"
vLANE = 1; vKVW = 2; vQW = 3; vXRD = 4; vWRD = 8; vL16 = 9; vT = 10; vZ = 15
vQF = 16
vACC = 32
vC1, vC2 = 96, 112
vXB = 128; vWB = 152
vXF = 128
vAD = 176
vNON = 240; vFA = 244; vFB = 245; vFV = 246; vONE = 247; vWOO = 248; vGR = 249; vGW = 250; vG1 = 251; vGV = 252; vGX = 254
vXO = 16; vWO = 20; vWQ = 24
vO = 32; vS = 128; vKB = 48; vVB = 64; vM = 80; vM2 = 81; vNM = 82; vP = 84
SLOT = 32768
L_R1 = 32768; L_R2 = 0; L_OWN = 131072; L_QA = 122880; L_WQ = 65536
L_W1A = 65536; L_W1B = 98304; L_W2 = 0; L_O = 131072
FBASE = 98304 - 1024
def fw(r, hi): return r * 128 + (112 if ((r >> 1) & 1) == 0 else 48) + 8 + 4 * hi
F_KV = lambda b, h: fw(2 * b + h, 1)
F_OWN, F_QRDY, F_CQ, F_XD = fw(4, 1), fw(5, 1), fw(6, 1), fw(7, 1)
F_ST = fw(0, 0) - 4

def lane_mask(fn):
    m = 0
    for l in range(64):
        if fn(l): m |= 1 << l
    return m
def key_of(r, l): return (r & 3) + 8 * (r >> 2) + 4 * (l >> 5)

class Q:
    def __init__(self): self.q = []
    def add(self, tag, n=1): self.q += [tag] * n
    def wait(self, tag):
        idx = [i for i, t in enumerate(self.q) if t == tag]
        if not idx: return None
        n = len(self.q) - 1 - idx[-1]
        self.q = self.q[idx[-1] + 1:]
        return n
    def clear(self): self.q = []

class G:
    def __init__(self, **kw):
        self.l = []; self.nlab = 0; self.slow = []
        self.__dict__.update(kw)
    def e(self, s): self.l.append("    " + s)
    def lab(self, s): self.l.append(s + ":")
    def newlab(self, p="L"):
        self.nlab += 1; return "%s_%d" % (p, self.nlab)
    def stamp(self, i):
        if getattr(self, "only", None) and i not in self.only: return
        if self.stamps: self.e("%s s[%d:%d]" % ("s_memtime" if "cyc" in self.exp else "s_memrealtime", 70 + 2*i, 71 + 2*i))
    def mask(self, m):
        self.e("s_mov_b32 s64, 0x%08x" % (m & 0xffffffff)); self.e("s_mov_b32 s65, 0x%08x" % (m >> 32))
    def mfma(self, d, a, b, c):
        self.e("v_mfma_f32_32x32x16_bf16 %s, %s, %s, %s" % (vr(d, 16), vr(a, 4), vr(b, 4), "0" if c is None else vr(c, 16)))
    def wl(self, n):
        if n is not None: self.e("s_waitcnt lgkmcnt(%d)" % min(n, 15))
    def wv(self, n):
        if n is not None: self.e("s_waitcnt vmcnt(%d)" % min(n, 63))
    def capture(self, fn):
        save = self.l; self.l = []; groups = []
        def cut():
            if self.l: groups.append(self.l)
            self.l = []
        fn(cut); cut(); self.l = save
        return groups

def spin(g, need, areg, off, vdst):
    lp = g.newlab("L_spin"); ok = g.newlab("L_spok")
    g.e("s_mov_b32 %s, 0" % sSPN)
    g.lab(lp)
    g.e("ds_read_b32 v%d, v%d offset:%d" % (vdst, areg, off))
    g.e("s_add_u32 %s, %s, 1" % (sSPN, sSPN))
    g.e("s_waitcnt lgkmcnt(0)")
    g.e("v_cmp_gt_u32 vcc, %d, v%d" % (need, vdst))
    g.e("s_cmp_gt_u32 %s, %d" % (sSPN, SPIN_MAX * 8)); g.e("s_cbranch_scc1 %s" % ok)
    g.e("s_cbranch_vccnz %s" % lp)
    g.lab(ok)
def check(g, need, areg, off, vsrc):
    if g.inl:
        lp = g.newlab("L_cl"); ok = g.newlab("L_cok")
        g.e("s_mov_b32 %s, %d" % (sSPN, -(SPIN_MAX * 8) & 0xffffffff))
        g.lab(lp)
        g.e("v_cmp_gt_u32 vcc, %d, v%d" % (need, vsrc)); g.e("s_cbranch_vccz %s" % ok)
        g.e("ds_read_b32 v%d, v%d offset:%d" % (vsrc, areg, off))
        g.e("s_add_u32 %s, %s, 1" % (sSPN, sSPN))
        g.e("s_waitcnt lgkmcnt(0)")
        g.e("s_cbranch_scc0 %s" % lp)
        g.lab(ok)
        return
    sl = g.newlab("L_slow"); back = g.newlab("L_back")
    g.e("v_cmp_gt_u32 vcc, %d, v%d" % (need, vsrc)); g.e("s_cbranch_vccnz %s" % sl); g.lab(back)
    g.slow.append((sl, back, need, areg, off, vsrc))
def bump(g, areg, off=0): g.e("ds_add_u32 v%d, v%d offset:%d" % (areg, vONE, off))

def flag_regs(g, prod):
    t0 = vT
    g.e("v_and_b32 v%d, 3, v%d" % (t0, vLANE)); g.e("v_and_b32 v%d, 2, v%d" % (vFA, t0)); g.e("v_lshlrev_b32 v%d, 5, v%d" % (vFA, vFA))
    g.e("v_lshlrev_b32 v%d, 7, v%d" % (t0, t0)); g.e("v_sub_u32 v%d, v%d, v%d" % (vFA, t0, vFA))
    g.e("v_add_u32 v%d, %d, v%d" % (vFA, FBASE + 120, vFA))
    g.e("v_mov_b32 v%d, %d" % (vGR, FBASE)); g.e("v_mov_b32 v%d, 0x7ffffff0" % vGW); g.e("v_mov_b32 v%d, 1" % vONE)
    g.e("v_cmp_eq_u32 vcc, 0, v%d" % vLANE)
    g.e("s_lshl_b32 %s, %s, 7" % (sT0, sP)); g.e("s_and_b32 %s, %s, 2" % (sT1, sP)); g.e("s_lshl_b32 %s, %s, 5" % (sT1, sT1))
    g.e("s_sub_u32 %s, %s, %s" % (sT0, sT0, sT1))
    g.e("s_cmp_lt_u32 %s, 4" % sWV); g.e("s_cselect_b32 %s, 512, 0" % sT1); g.e("s_add_u32 %s, %s, %s" % (sT0, sT0, sT1)); g.e("s_add_u32 %s, %s, 120" % (sT0, sT0))
    g.e("v_cndmask_b32 v%d, v%d, v%d, vcc" % (vGW, vGW, vGR))
    g.e("v_add_u32 v%d, %s, v%d" % (vFB, sT0, vGW))

def get_nonce(g):
    lp = g.newlab("L_nlp"); ok = g.newlab("L_nok")
    g.e("s_mov_b32 %s, 0" % sSPN)
    g.lab(lp)
    g.e("v_readfirstlane_b32 s60, v%d" % vNON); g.e("v_readfirstlane_b32 s61, v%d" % (vNON + 1))
    g.e("s_add_u32 %s, %s, 1" % (sSPN, sSPN))
    g.e("s_cmp_lg_u32 s60, 0"); g.e("s_cbranch_scc1 %s" % ok)
    g.e("s_cmp_gt_u32 %s, %d" % (sSPN, SPIN_MAX)); g.e("s_cbranch_scc1 %s" % ok)
    g.e("buffer_load_dwordx2 %s, v%d, %s, 0 offen sc1" % (vr(vNON, 2), vZ, sDBG))
    g.e("s_waitcnt vmcnt(0)")
    g.e("s_branch %s" % lp)
    g.lab(ok)
def store_flag(g, soff):
    g.e("s_mov_b64 exec, 1")
    g.e("buffer_store_dwordx2 %s, v%d, %s, %s offen sc1" % (vr(vNON, 2), vZ, sWS, soff))
    g.e("s_mov_b64 exec, -1")
def poll(g, vaddr, mask):
    lp = g.newlab("L_poll"); ok = g.newlab("L_pok")
    g.e("s_mov_b64 exec, %s" % mask)
    g.e("s_mov_b32 %s, 0" % sSPN)
    g.lab(lp)
    g.e("buffer_load_dwordx2 %s, v%d, %s, 0 offen sc1" % (vr(vNON + 2, 2), vaddr, sWS))
    g.e("s_add_u32 %s, %s, 1" % (sSPN, sSPN))
    g.e("s_waitcnt vmcnt(0)")
    g.e("v_cmp_ne_u64 vcc, %s, %s" % (sNON, vr(vNON + 2, 2)))
    g.e("s_cmp_gt_u32 %s, %d" % (sSPN, SPIN_MAX)); g.e("s_cbranch_scc1 %s" % ok)
    g.e("s_cbranch_vccnz %s" % lp)
    g.lab(ok)
    g.e("s_mov_b64 exec, -1")

def setup_scalars(g, cut):
    g.e("s_cmp_eq_u32 %s, 0" % sBR)
    g.e("s_cselect_b32 s12, s36, s42"); g.e("s_cselect_b32 s13, s37, s43"); cut()
    g.e("s_mov_b32 s14, 0x%x" % WO_BYTES); g.e("s_mov_b32 s15, 0x20000"); cut()
    for (srd, a, n) in ((16, 48, WS_RECORDS), (20, 44, OUT_BYTES)):
        g.e("s_mov_b32 s%d, s%d" % (srd, a)); g.e("s_mov_b32 s%d, s%d" % (srd + 1, a + 1)); cut()
        g.e("s_mov_b32 s%d, 0x%x" % (srd + 2, n)); g.e("s_mov_b32 s%d, 0x20000" % (srd + 3)); cut()
    g.e("s_mov_b32 s68, 0"); g.e("s_mov_b32 s69, -1"); cut()
    g.e("s_mov_b32 %s, 0x%08x" % (sC, CSCALE)); g.e("s_lshl_b32 %s, %s, 10" % (sW1K, sWV)); cut()
    g.e("s_lshr_b32 %s, %s, 2" % (sHH, sWV)); g.e("s_sub_u32 %s, 3, %s" % (sT1, sP)); cut()
    g.e("s_cmp_lt_u32 %s, 4" % sWV); g.e("s_cselect_b32 %s, %s, %s" % (sRT, sT1, sP)); cut()
    g.e("s_lshl_b32 %s, %s, 3" % (sKVO, sBR)); g.e("s_add_u32 %s, %s, %s" % (sKVO, sKVO, sHP)); cut()
    g.e("s_lshl_b32 %s, %s, 4" % (sKVO, sKVO)); g.e("s_add_u32 %s, %s, %s" % (sKVO, sKVO, sR)); g.e("s_lshl_b32 %s, %s, 15" % (sKVO, sKVO)); cut()
    if g.map == 0:
        g.e("s_and_b32 %s, s2, 1" % sCB); g.e("s_lshl_b32 %s, %s, 1" % (sCB, sCB)); cut()
        g.e("s_bfe_u32 %s, s2, 0x10003" % sT0); g.e("s_add_u32 %s, %s, %s" % (sCB, sCB, sT0)); cut()
        g.e("s_bfe_u32 %s, s2, 0x20001" % sRB); g.e("s_lshl_b32 %s, %s, 3" % (sRB, sRB)); cut()
        g.e("s_bfe_u32 %s, s2, 0x30004" % sT0); g.e("s_add_u32 %s, %s, %s" % (sRB, sRB, sT0)); cut()
    else:
        g.e("s_and_b32 %s, s2, 1" % sCB); g.e("s_lshl_b32 %s, %s, 1" % (sCB, sCB)); cut()
        g.e("s_bfe_u32 %s, s2, 0x10003" % sT0); g.e("s_add_u32 %s, %s, %s" % (sCB, sCB, sT0)); cut()
        g.e("s_bfe_u32 %s, s2, 0x10001" % sRB); g.e("s_lshl_b32 %s, %s, 4" % (sRB, sRB)); cut()
        g.e("s_lshr_b32 %s, s2, 4" % sT0); g.e("s_add_u32 %s, %s, %s" % (sRB, sRB, sT0)); cut()
    g.e("s_mul_i32 %s, %s, 3584" % (sWOS, sWV)); g.e("s_lshl_b32 %s, %s, 8" % (sT0, sCB)); g.e("s_add_u32 %s, %s, %s" % (sWOS, sWOS, sT0)); cut()

def setup_vec(g, isA, cut):
    t0, t1, t2 = vT, vT + 1, vT + 2
    g.e("s_lshl_b32 %s, %s, 14" % (sT0, sHH)); g.e("s_lshl_b32 %s, %s, 12" % (sT1, sRT)); cut()
    g.e("s_add_u32 %s, %s, %s" % (sT0, sT0, sT1)); g.e("s_add_u32 %s, %s, %d" % (sT0, sT0, L_OWN)); g.e("v_add_u32 v%d, %s, v%d" % (vAD, sT0, vL16)); cut()
    for u in range(1, 9 if isA else 2):
        cross = ((L_R1 - L_OWN) if u <= 4 else (L_R2 - L_R1)) + 12288
        g.e("s_mov_b32 %s, 0x%x" % (sT1, cross & 0xffffffff))
        g.e("s_cmp_eq_u32 %s, %d" % (sRT, (u - 1) % 4))
        g.e("s_cselect_b32 %s, %s, 0x%x" % (sT0, sT1, (-4096) & 0xffffffff))
        g.e("v_add_u32 v%d, %s, v%d" % (vAD + u, sT0, vAD + u - 1)); cut()
    g.e("v_lshrrev_b32 v%d, 4, v%d" % (t0, vLANE)); g.e("v_lshlrev_b32 v%d, 2, v%d" % (t1, t0)); cut()
    g.e("v_and_b32 v%d, 15, v%d" % (t2, vLANE)); g.e("v_xor_b32 v%d, v%d, v%d" % (t1, t1, t2)); cut()
    g.e("v_mul_u32_u24 v%d, 896, v%d" % (vWOO, t0)); g.e("v_lshl_add_u32 v%d, v%d, 4, v%d" % (vWOO, t1, vWOO)); cut()
    g.e("s_cmp_eq_u32 %s, 3" % sCB); g.e("s_cselect_b32 %s, 8, 64" % sT0)
    g.e("v_mov_b32 v%d, 0x%x" % (t2, OOB)); cut()
    g.e("v_cmp_le_u32 vcc, %s, v%d" % (sT0, t1))
    g.e("s_lshl_b32 %s, %s, 7" % (sT1, sHH)); g.e("v_add_u32 v%d, %s, v%d" % (vG1, sT1, vGR))
    g.e("v_cndmask_b32 v%d, v%d, v%d, vcc" % (vWOO, vWOO, t2)); cut()

def masks(g, isA):
    g.e("v_mov_b32 v%d, 0x%08x" % (vT, NEG))
    for r in range(16):
        if isA:
            g.mask(lane_mask(lambda l: key_of(r, l) <= (l & 31)))
            g.e("v_cndmask_b32 v%d, v%d, 0, %s" % (vC1 + r, vT, sTM))
            g.e("v_cndmask_b32 v%d, 0, v%d, %s" % (vC2 + r, vT, sTM))
        else:
            g.mask(lane_mask(lambda l: ((l & 31) - key_of(r, l)) in range(0, 16, 2)))
            g.e("v_cndmask_b32 v%d, v%d, 0, %s" % (vC1 + r, vT, sTM))
            g.mask(lane_mask(lambda l: (32 + (l & 31) - key_of(r, l)) in range(0, 16, 2)))
            g.e("v_cndmask_b32 v%d, v%d, 0, %s" % (vC2 + r, vT, sTM))
    if not isA:
        skip = g.newlab("L_c2")
        g.e("s_or_b32 %s, %s, %s" % (sT0, sR, sRT)); g.e("s_cmp_lg_u32 %s, 0" % sT0); g.e("s_cbranch_scc1 %s" % skip)
        for r in range(16): g.e("v_mov_b32 v%d, v%d" % (vC2 + r, vT))
        g.lab(skip)

def xrd_addr(g, dst, srow_shift_reg):
    t0, t1, t2 = vT, vT + 1, vT + 2
    g.e("v_and_b32 v%d, 31, v%d" % (t0, vLANE)); g.e("v_bfe_u32 v%d, v%d, 1, 3" % (t1, vLANE))
    g.e("v_lshrrev_b32 v%d, 5, v%d" % (t2, vLANE)); g.e("v_xor_b32 v%d, v%d, v%d" % (t1, t1, t2))
    g.e("v_lshlrev_b32 v%d, 7, v%d" % (t0, t0)); g.e("v_add_u32 v%d, %s, v%d" % (t0, srow_shift_reg, t0))
    g.e("v_lshl_add_u32 v%d, v%d, 4, v%d" % (dst, t1, t0))
    for k in range(1, 4): g.e("v_xor_b32 v%d, %d, v%d" % (dst + k, k << 5, dst))
def wrd_addr(g, dst, colbyte):
    t0, t1, t2 = vT, vT + 1, vT + 2
    g.e("v_bfe_u32 v%d, v%d, 2, 2" % (t0, vLANE)); g.e("v_lshrrev_b32 v%d, 5, v%d" % (t2, vLANE))
    g.e("v_lshl_add_u32 v%d, v%d, 3, v%d" % (t1, t2, t0)); g.e("v_lshlrev_b32 v%d, 7, v%d" % (t1, t1))
    g.e("v_lshrrev_b32 v%d, 1, v%d" % (t0, t0)); g.e("v_lshlrev_b32 v%d, 6, v%d" % (t0, t0))
    g.e("v_and_b32 v%d, 3, v%d" % (t2, vLANE)); g.e("v_lshlrev_b32 v%d, 3, v%d" % (t2, t2))
    g.e("v_and_b32 v%d, 16, v%d" % (dst, vLANE)); g.e("v_lshl_add_u32 v%d, v%d, 1, v%d" % (t2, dst, t2))
    g.e("v_add_u32 v%d, %s, v%d" % (t2, colbyte, t2))
    g.e("v_xor_b32 v%d, v%d, v%d" % (t2, t2, t0)); g.e("v_add_u32 v%d, v%d, v%d" % (dst, t1, t2))

def producer_prep(g):
    t0, t1, t2, t3 = vT, vT + 1, vT + 2, vT + 3
    g.e("v_lshrrev_b32 v%d, 3, v%d" % (t0, vLANE)); g.e("v_lshrrev_b32 v%d, 4, v%d" % (t1, vLANE))
    g.e("v_xor_b32 v%d, v%d, v%d" % (t1, t1, vLANE)); g.e("v_and_b32 v%d, 7, v%d" % (t1, t1))
    g.e("v_mul_u32_u24 v%d, 896, v%d" % (t2, t0))
    g.e("v_lshl_add_u32 v%d, v%d, 4, v%d" % (vXO, t1, t2))
    g.e("v_xor_b32 v%d, 64, v%d" % (t3, vXO))
    g.e("v_add_u32 v%d, %d, v%d" % (vXO + 1, 7168 - 1024, t3))
    g.e("v_add_u32 v%d, %d, v%d" % (vXO + 2, 2 * (7168 - 1024), vXO))
    g.e("v_add_u32 v%d, %d, v%d" % (vXO + 3, 3 * (7168 - 1024), t3))
    g.e("v_lshrrev_b32 v%d, 2, v%d" % (t1, vLANE)); g.e("v_and_b32 v%d, 4, v%d" % (t1, t1))
    g.e("v_and_b32 v%d, 7, v%d" % (t2, vLANE)); g.e("v_xor_b32 v%d, v%d, v%d" % (t1, t1, t2)); g.e("v_min_u32 v%d, 6, v%d" % (t1, t1))
    g.e("v_mul_u32_u24 v%d, 2688, v%d" % (t2, t0)); g.e("v_lshl_add_u32 v%d, v%d, 4, v%d" % (t2, t1, t2))
    for q in range(4):
        t, h = divmod(q, 2)
        g.e("v_add_u32 v%d, %d, v%d" % (vWO + q, WBIAS + h * 8 * 2688 + (t + 1) * 896 - q * 1024, t2))
    for h in range(2): g.e("v_add_u32 v%d, %d, v%d" % (vWQ + h, WBIAS + h * 8 * 2688 - h * 1024, t2))
    g.e("s_mul_i32 %s, %s, %d" % (sXS, sR, 128 * 896)); g.e("s_mul_i32 %s, %s, %d" % (sT1, sP, 32 * 896)); g.e("s_add_u32 %s, %s, %s" % (sXS, sXS, sT1))
    g.e("s_mul_i32 %s, %s, 112" % (sWSO, sHP)); g.e("s_mul_i32 %s, %s, %d" % (sT1, sP, 16 * 2688)); g.e("s_add_u32 %s, %s, %s" % (sWSO, sWSO, sT1))
    g.e("s_lshl_b32 %s, %s, 12" % (sXB, sP)); g.e("s_lshl_b32 %s, %s, 11" % (sWB, sP))

def issue_item(g, vm, i):
    if i < 7:
        slot = (i % 5) * SLOT
        g.e("s_add_u32 m0, %s, %d" % (sXB, slot))
        if i: g.e("s_add_u32 %s, %s, 128" % (sXS, sXS))
        else: g.e("s_nop 0")
        for m in range(4): g.e("buffer_load_dwordx4 v%d, %s, %s offen%s%s lds" % (vXO + m, sX, sXS, " offset:%d" % (m * 1024) if m else "", g.ldf))
        g.e("s_add_u32 m0, %s, %d" % (sXB, slot + 16384))
        if i: g.e("s_add_u32 %s, %s, %d" % (sWSO, sWSO, 64 * 2688))
        else: g.e("s_mov_b32 %s, %s" % (sKC, sWSO))
        for q in range(4):
            if i == 2 and q == 3: g.e("s_mov_b64 exec, %s" % sHM)
            g.e("buffer_load_dwordx4 v%d, %s, %s offen%s%s lds" % (vWO + q, sW, sWSO, " offset:%d" % (q * 1024) if q else "", g.ldf))
        if i == 2: g.e("s_mov_b64 exec, -1")
        vm.add(i, 8)
    else:
        cs = range(4) if i == 7 else range(4, 7)
        for c in cs:
            g.e("s_add_u32 m0, %s, %d" % (sWB, L_WQ + c * 8192))
            if c: g.e("s_add_u32 %s, %s, %d" % (sKC, sKC, 64 * 2688))
            else: g.e("s_nop 0")
            g.e("buffer_load_dwordx4 v%d, %s, %s offen lds" % (vWQ, sW, sKC))
            if c == 3: g.e("s_mov_b64 exec, %s" % sHM)
            g.e("buffer_load_dwordx4 v%d, %s, %s offen offset:1024 lds" % (vWQ + 1, sW, sKC))
            if c == 3: g.e("s_mov_b64 exec, -1")
        vm.add(i, 2 * len(cs))

def early_dbg(g):
    g.e("s_mov_b32 s24, s46"); g.e("s_mov_b32 s25, s47"); g.e("s_mov_b32 s26, 256"); g.e("s_mov_b32 s27, 0x20000")
    g.e("v_mov_b32 v%d, 0" % vZ); g.e("v_lshlrev_b32 v%d, 4, v%d" % (vL16, vLANE))

def producer(g, isA):
    dist = g.dA if isA else g.dB
    assert dist >= 2
    vm = Q(); lg = Q()
    vm.add(0, 8); vm.add(1, 8)
    m = lane_mask(lambda l: ((l & 7) ^ (4 * ((l >> 4) & 1))) != 7)
    g.e("s_mov_b32 s38, 0x%08x" % (m & 0xffffffff)); g.e("s_mov_b32 s39, 0x%08x" % (m >> 32))
    g.e("s_cmp_eq_u32 %s, 7" % sWV); g.e("s_cselect_b64 %s, %s, -1" % (sHM, sHM))
    g.stamp(1)
    nxt = 2; win = 0
    for i in range(9):
        g.wv(vm.wait(i))
        if i >= 1: g.wl(lg.wait(("x", i - 1)))
        bump(g, vFB); lg.add("f")
        if i == 0: g.stamp(2)
        if "pit" in g.exp and i >= 1: g.only = None; g.stamp(2 + i); g.only = (0, 1, 2, 14)
        if i < 7:
            wn = (i % 5) // 2
            if wn != win:
                for k in range(4): g.e("v_add_u32 v%d, 0x%x, v%d" % (vXRD + k, ((wn - win) * 65536) & 0xffffffff, vXRD + k))
                win = wn
            for ks in range(4): g.e("ds_read_b128 %s, v%d offset:%d" % (vr(vXF + 16 * i + 4 * ks, 4), vXRD + ks, (i % 5 % 2) * SLOT))
            lg.add(("x", i), 4)
        while nxt <= 8 and nxt <= i + dist:
            if nxt >= 5:
                spin(g, nxt - 4, vFA, 512, vFV); lg.clear()
            if nxt == 8 and g.late8: break
            issue_item(g, vm, nxt); nxt += 1
        if i == g.ps1:
            early_dbg(g)
            wrd_addr(g, vWRD, 0); g.e("v_add_u32 v%d, %d, v%d" % (vWRD, L_WQ, vWRD)); wrd_addr(g, vQW, 56); g.e("v_add_u32 v%d, %d, v%d" % (vQW, L_WQ, vQW))
            for grp in g.capture(lambda cut: setup_scalars(g, cut)): g.l += grp
        if i == g.ps2: masks(g, isA)
        if i == 7:
            bump(g, vGW, F_XD); lg.add("f")
            g.e("buffer_load_dwordx2 %s, v%d, %s, 0 offen sc1" % (vr(vNON, 2), vZ, sDBG)); vm.add("non")
            g.stamp(3)
            q_phase_begin = True
            break
    late = g.capture(lambda cut: setup_vec(g, isA, cut))
    aQ = vACC; WB = 64
    def rd(j, hds=(0, 1)):
        c, ks = divmod(j, 4)
        b = WB + (j % 3) * 8
        for hd in hds:
            for h in range(2):
                g.e("ds_read_b64_tr_b16 %s, v%d offset:%d" % (vr(b + 4*hd + 2*h, 2), vQW if hd else vWRD, c * 8192 + ks * 2048 + h * 512))
            lg.add((j, hd), 2)
    spin(g, 8, vFA, 0, vFV); lg.clear()
    if g.late8 == 1:
        spin(g, 4, vGR, F_ST, vFV); issue_item(g, vm, 8)
    if g.qprio: g.e("s_setprio %d" % g.qprio)
    g.stamp(5)
    rd(0); rd(1)
    for j in range(28):
        b = WB + (j % 3) * 8
        if j == g.late8 and g.late8 > 1: issue_item(g, vm, 8)
        if j == 12 - 0 * g.late8 + (0 if g.late8 else -2):
            g.wv(vm.wait(8)); bump(g, vFB); lg.add("f")
        for hd in range(2):
            g.wl(lg.wait((j, hd)))
            g.mfma(aQ + 16 * hd, b + 4 * hd, vXF + 4 * j, None if j == 0 else aQ + 16 * hd)
            if hd == 0:
                if j == 13: g.e("ds_read_b32 v%d, v%d" % (vFV, vFA)); lg.add("flag")
                if j == 14:
                    g.wl(lg.wait("flag")); check(g, 9, vFA, 0, vFV); g.stamp(6)
            if j + 2 < 28: rd(j + 2, (hd,))
            if late and j >= 16: g.l += late.pop(0)
    for grp in late: g.l += grp
    g.e("v_mov_b32 v%d, %s" % (vT + 1, sC))
    g.e("v_cndmask_b32 v%d, v%d, 0, %s" % (vT + 2, vT + 1, sUP))
    g.e("s_lshl_b32 %s, %s, 11" % (sT0, sP)); g.e("s_add_u32 %s, %s, %d" % (sT0, sT0, L_QA)); g.e("v_add_u32 v%d, %s, v%d" % (vT, sT0, vL16))
    g.e("s_nop 5")
    for hd in range(2):
        a = aQ + 16 * hd; p = a if hd == 0 else vQF
        for r in range(16): g.e("v_mul_f32 v%d, v%d, v%d" % (a + r, vT + (2 if r >= 12 else 1), a + r))
        for i in range(8): g.e("v_cvt_pk_bf16_f32 v%d, v%d, v%d" % (p + i, a + 2*i, a + 2*i + 1))
        if hd == 0:
            for f in range(2): g.e("ds_write_b128 v%d, %s offset:%d" % (vT, vr(p + 4*f, 4), f * 1024))
            g.e("s_waitcnt lgkmcnt(0)")
            bump(g, vGW, F_QRDY)
    if g.qprio: g.e("s_setprio %d" % g.aprio)
    g.e("s_waitcnt vmcnt(0)")
    get_nonce(g)
    if g.wotouch:
        nt = g.newlab("L_nwt")
        g.e("s_cmp_gt_u32 %s, 5" % sWV); g.e("s_cbranch_scc1 %s" % nt)
        nsh = 8 if g.map == 0 else 16
        g.e("s_and_b32 %s, %s, %d" % (sT0, sRB, nsh - 1)); g.e("s_mul_i32 %s, %s, %d" % (sT0, sT0, (448 // nsh) * 896))
        g.e("s_lshl_b32 %s, %s, 8" % (sT1, sCB)); g.e("s_add_u32 %s, %s, %s" % (sT0, sT0, sT1))
        g.e("s_and_b32 %s, %s, 1" % (sT1, sWV)); g.e("s_lshl_b32 %s, %s, 7" % (sT1, sT1)); g.e("s_add_u32 %s, %s, %s" % (sT0, sT0, sT1))
        g.e("v_mul_u32_u24 v%d, 896, v%d" % (vT, vLANE))
        mm = (1 << (448 // nsh)) - 1
        g.mask(mm); g.e("s_mov_b64 exec, %s" % sTM)
        g.e("buffer_load_dword v%d, v%d, %s, %s offen" % (vGX + 1, vT, sWO, sT0))
        g.e("s_mov_b64 exec, -1")
        g.lab(nt)
    g.stamp(4)
    spin(g, 4, vGR, F_OWN, vFV)

def consumer(g, isA):
    t0, t1, t2 = vT, vT + 1, vT + 2
    early_dbg(g)
    skip = g.newlab("L_non")
    g.e("s_or_b32 %s, s2, %s" % (sT0, sWV)); g.e("s_cmp_lg_u32 %s, 0" % sT0); g.e("s_cbranch_scc1 %s" % skip)
    g.e("s_memrealtime %s" % sNON); g.e("s_waitcnt lgkmcnt(0)"); g.e("s_or_b32 s60, s60, 1")
    g.e("v_mov_b32 v%d, s60" % vNON); g.e("v_mov_b32 v%d, s61" % (vNON + 1))
    g.e("s_mov_b64 exec, 1")
    g.e("buffer_store_dwordx2 %s, v%d, %s, 0 offen sc1" % (vr(vNON, 2), vZ, sDBG))
    g.e("s_mov_b64 exec, -1")
    g.lab(skip)
    if g.ctouch:
        ct = g.newlab("L_ct")
        g.e("s_cmp_lg_u32 %s, 1" % sWV); g.e("s_cbranch_scc1 %s" % ct)
        pc = g.newlab("L_pc")
        g.e("s_getpc_b64 s[16:17]")
        g.lab(pc)
        g.e("s_sub_u32 s16, s16, %s-%s_kernel" % (pc, NAME)); g.e("s_subb_u32 s17, s17, 0")
        g.e("s_mov_b32 s18, L_codeend-%s_kernel" % NAME); g.e("s_mov_b32 s19, 0x20000")
        g.e("s_lshr_b32 %s, s2, 3" % sT0); g.e("s_mul_i32 %s, %s, %d" % (sT0, sT0, 16 * 128))
        g.e("v_lshlrev_b32 v%d, 7, v%d" % (vT, vLANE))
        g.e("s_mov_b64 exec, 0xffff")
        g.e("buffer_load_dword v192, v%d, s[16:19], %s offen" % (vT, sT0))
        g.e("s_mov_b64 exec, -1")
        g.lab(ct)
    if g.touch and not isA: touch(g)
    g.e("s_and_b32 %s, %s, 1" % (sT2, sWV)); g.e("s_lshl_b32 %s, %s, 13" % (sT2, sT2))
    xrd_addr(g, vXRD, sT2)
    g.e("s_lshr_b32 %s, %s, 1" % (sT3, sWV)); g.e("s_mul_i32 %s, %s, 56" % (sT1, sT3))
    wrd_addr(g, vWRD, sT1)
    sa = lambda wn, k: vQF + 5 * wn + k
    for wn in range(3):
        for k in range(4): g.e("v_add_u32 v%d, 0x%x, v%d" % (sa(wn, k), wn * 65536, vXRD + k))
        g.e("v_add_u32 v%d, 0x%x, v%d" % (sa(wn, 4), wn * 65536, vWRD))
    g.e("s_lshl_b32 %s, %s, 13" % (sT4, sWV))
    g.e("s_add_u32 %s, %s, %d" % (sT0, sT4, L_OWN)); g.e("v_add_u32 v%d, %s, v%d" % (vKVW, sT0, vL16))
    for grp in g.capture(lambda cut: setup_scalars(g, cut)): g.l += grp
    g.stamp(1)
    lg = Q()
    def rd_ops(j):
        i, ks = divmod(j, 4)
        xb, wb = vXB + (j % 3) * 8, vWB + (j % 3) * 8
        sl = i % 5; ax = sa(sl // 2, ks); aw = sa(sl // 2, 4); base = (sl % 2) * SLOT
        tr = lambda t, h: "ds_read_b64_tr_b16 %s, v%d offset:%d" % (vr(wb + 4*t + 2*h, 2), aw, base + 16384 + ks * 4096 + t * 2048 + h * 512)
        return [((j, "x0"), "ds_read_b128 %s, v%d offset:%d" % (vr(xb, 4), ax, base)), ((j, "k"), tr(0, 0)), ((j, "k"), tr(0, 1)),
                ((j, "x1"), "ds_read_b128 %s, v%d offset:%d" % (vr(xb + 4, 4), ax, base + 4096)), ((j, "v"), tr(1, 0)), ((j, "v"), tr(1, 1))]
    def emit(op):
        g.e(op[1]); lg.add(op[0])
    spin(g, 1, vFA, 0, vFV)
    g.stamp(2)
    for j in range(2):
        for op in rd_ops(j): emit(op)
    aK, aV = vACC, vACC + 32
    dist = [2, 1, 2, 1]
    for j in range(28):
        xb, wb = vXB + (j % 3) * 8, vWB + (j % 3) * 8
        nx = rd_ops(j + 2) if j + 2 < 28 else []
        mms = [((j, "k"), aK, wb, xb), ((j, "x1"), aK + 16, wb, xb + 4), ((j, "v"), aV, xb, wb + 4), (None, aV + 16, xb + 4, wb + 4)]
        for n, (dep, d, a, b) in enumerate(mms):
            if dep is not None: g.wl(lg.wait(dep))
            g.mfma(d, a, b, None if j == 0 else d)
            if n == 0 and nx and (j + 2) % 4 == 0:
                g.wl(lg.wait(("flag", (j + 2) // 4))); check(g, (j + 2) // 4 + 1, vFA, 0, vFV)
                if "pit" in g.exp: g.only = None; g.stamp(2 + (j + 2) // 4); g.only = (0, 1, 2, 14)
            for _ in range(dist[n]):
                if nx: emit(nx.pop(0))
            if n == 1 and (j + 3) % 4 == 0 and j + 3 < 28:
                g.e("ds_read_b32 v%d, v%d" % (vFV, vFA)); lg.add(("flag", (j + 3) // 4))
            if n == 3 and j % 4 == 3:
                bump(g, vFB); lg.add("done")
            if n == 1 and j == 26:
                g.e("ds_read_b32 v%d, v%d offset:512" % (vFV, vFA)); lg.add("alldone")
            if j == 18 and n == 3: g.e("buffer_load_dwordx2 %s, v%d, %s, 0 offen sc1" % (vr(vNON, 2), vZ, sDBG))
    g.stamp(3)
    g.e("v_mov_b32 v%d, 0x3f803f80" % vT)
    g.mask(lane_mask(lambda l: (l & 31) == 28))
    g.e("s_add_u32 %s, %s, %s" % (sT1, sT4, sKVO)); g.e("s_add_u32 %s, %s, 4096" % (sT0, sT1))
    g.wl(lg.wait("alldone")); check(g, 5, vFA, 512, vFV)
    g.e("s_nop 1")
    def pub(t, f, p):
        if isA: g.e("buffer_store_dwordx4 %s, v%d, %s, %s offen offset:%d%s" % (vr(p, 4), vL16, sWS, sT0 if t else sT1, f * 1024, g.stf))
    for t in range(2):
        p = aK + 16 * t
        for i in range(8): g.e("v_cvt_pk_bf16_f32 v%d, v%d, v%d" % (p + i, p + 2*i, p + 2*i + 1))
        g.e("v_cndmask_b32 v%d, v%d, v%d, %s" % (p + 6, p + 6, vT, sUP))
        for f in range(2): pub(t, f, p + 4*f)
    for t in range(2):
        p = aV + 16 * t
        for f in range(2):
            for i in range(4*f, 4*f + 4): g.e("v_cvt_pk_bf16_f32 v%d, v%d, v%d" % (p + i, p + 2*i, p + 2*i + 1))
            for i in range(4*f, 4*f + 4): g.e("v_cndmask_b32 v%d, v%d, v%d, %s" % (p + i, p + i, vT, sTM))
            pub(t, 2 + f, p + 4*f)
    if not isA:
        sk = g.newlab("L_bpub")
        g.e("s_bitcmp0_b32 %s, 0" % sWV); g.e("s_cbranch_scc1 %s" % sk)
        for f in range(4):
            p = (aK + 16 + 4*f) if f < 2 else (aV + 16 + 4*(f - 2))
            g.e("buffer_store_dwordx4 %s, v%d, %s, %s offen offset:%d%s" % (vr(p, 4), vL16, sWS, sT0, f * 1024, g.stf))
        g.lab(sk)
    bump(g, vGW, F_ST)
    for t in range(2):
        for f in range(4):
            p = (aK + 16*t + 4*f) if f < 2 else (aV + 16*t + 4*(f - 2))
            g.e("ds_write_b128 v%d, %s offset:%d" % (vKVW, vr(p, 4), t * 4096 + f * 1024))
    for grp in g.capture(lambda cut: setup_vec(g, isA, cut)): g.l += grp
    g.e("s_waitcnt lgkmcnt(0)")
    bump(g, vGW, F_OWN)
    g.e("s_lshr_b32 %s, %s, 8" % (sT1, sKVO)); g.e("s_lshl_b32 %s, %s, 3" % (sT2, sWV))
    g.e("s_add_u32 %s, %s, %s" % (sT1, sT1, sT2)); g.e("s_add_u32 %s, %s, 0x%x" % (sT1, sT1, WS_KVFLAG))
    g.e("s_waitcnt vmcnt(0)")
    get_nonce(g)
    store_flag(g, sT1)
    g.stamp(4)
    done = g.newlab("L_ldd")
    if not isA or g.r2late:
        g.e("s_cmp_lt_u32 %s, 2" % sWV); g.e("s_cbranch_scc1 %s" % done)
    fetch_remote(g, isA)
    if not isA:
        g.e("s_waitcnt vmcnt(0)")
        bump(g, vFB)
    g.lab(done)
    g.stamp(6)
    masks(g, isA)
    g.e("s_lshl_b32 %s, %s, 11" % (sT0, sRT)); g.e("s_add_u32 %s, %s, %d" % (sT0, sT0, L_QA)); g.e("v_add_u32 v%d, %s, v%d" % (vT, sT0, vL16))
    spin(g, 4, vGR, F_OWN, vFV); spin(g, 4, vGR, F_QRDY, vFV)
    for f in range(2): g.e("ds_read_b128 %s, v%d offset:%d" % (vr(vQF + 4*f, 4), vT, f * 1024))

def fetch_remote(g, isA):
    nopoll = g.newlab("L_nopoll")
    g.e("s_lshr_b32 %s, %s, 1" % (sT3, sRT))
    spin(g, 7, vFA, 512, vFV); spin(g, 4, vGR, F_XD, vFV)
    g.e("s_and_b32 %s, %s, 1" % (sT2, sRT)); g.e("s_add_u32 %s, %s, 1" % (sT4, sT3))
    g.e("s_lshl_b32 %s, %s, 15" % (sT0, sT4)); g.e("s_sub_u32 %s, %s, %s" % (sXS, sKVO, sT0))
    g.e("s_cmp_lt_u32 %s, %s" % (sR, sT4)); g.e("s_cselect_b32 %s, 0x%x, %s" % (sWSO, OOB, sXS))
    g.e("s_cbranch_scc1 %s" % nopoll)
    g.e("s_lshr_b32 %s, %s, 8" % (sT0, sXS)); g.e("s_lshl_b32 %s, %s, 4" % (sT1, sT2)); g.e("s_add_u32 %s, %s, %s" % (sT0, sT0, sT1))
    g.e("s_add_u32 %s, %s, 0x%x" % (sT0, sT0, WS_KVFLAG))
    g.e("v_lshlrev_b32 v%d, 3, v%d" % (vT, vLANE)); g.e("v_add_u32 v%d, %s, v%d" % (vT, sT0, vT))
    poll(g, vT, "3" if isA else "2")
    g.lab(nopoll)
    g.stamp(5)
    g.e("s_lshl_b32 %s, %s, 14" % (sT2, sT2)); g.e("s_add_u32 %s, %s, %s" % (sWSO, sWSO, sT2))
    g.e("s_lshl_b32 %s, %s, 15" % (sT0, sT3)); g.e("s_sub_u32 %s, %d, %s" % (sT0, L_R1, sT0)); g.e("s_add_u32 %s, %s, %s" % (sT2, sT2, sT0))
    for t in ((3, 2, 1, 0) if isA else (3,)):
        g.e("s_add_u32 m0, %s, %d" % (sT2, t * 4096))
        g.e("s_add_u32 %s, %s, %d" % (sT0, sWSO, t * 4096))
        for f in range(4): g.e("buffer_load_dwordx4 v%d, %s, %s offen offset:%d sc1 lds" % (vL16, sWS, sT0, f * 1024))
    g.e("s_lshl_b32 %s, %s, 7" % (sT0, sRT)); g.e("s_lshl_b32 %s, %s, 6" % (sT1, sT3)); g.e("s_sub_u32 %s, %s, %s" % (sT0, sT0, sT1))
    g.e("s_add_u32 %s, %s, 124" % (sT0, sT0)); g.e("v_add_u32 v%d, %s, v%d" % (vFB, sT0, vGW))

def touch(g):
    if g.touch == 1: return touch1(g)
    t0, t1, t2, t3 = vT, vT + 1, vT + 2, vT + 3
    isw = g.newlab("L_tw"); end = g.newlab("L_te")
    g.e("s_bfe_u32 %s, s2, 0x40003" % sT0); g.e("s_lshl_b32 %s, %s, 7" % (sT0, sT0))
    g.e("v_and_b32 v%d, 127, v0" % t0); g.e("v_add_u32 v%d, %s, v%d" % (t0, sT0, t0))
    g.e("v_mov_b32 v%d, 0x%x" % (t3, OOB))
    g.e("s_mov_b32 s19, 0x20000"); g.e("s_mov_b32 s23, 0x20000")
    g.e("s_cmp_ge_u32 %s, 2" % sWV); g.e("s_cbranch_scc1 %s" % isw)
    g.e("s_mov_b32 s16, s32"); g.e("s_mov_b32 s17, s33"); g.e("s_mov_b32 s18, 0x%x" % X_BYTES)
    g.e("s_mov_b32 s20, s4"); g.e("s_mov_b32 s21, s5"); g.e("s_mov_b32 s22, 0x%x" % X_BYTES)
    g.e("v_and_b32 v%d, 511, v%d" % (t1, t0)); g.e("v_mul_u32_u24 v%d, 896, v%d" % (t1, t1))
    g.e("v_lshrrev_b32 v%d, 9, v%d" % (t2, t0)); g.e("v_cmp_gt_u32 vcc, 3, v%d" % t2)
    g.e("v_lshl_add_u32 v%d, v%d, 7, v%d" % (t1, t2, t1))
    g.e("s_bfe_u32 %s, s2, 0x20001" % sT0); g.e("s_mul_i32 %s, %s, %d" % (sT0, sT0, 512 * 896))
    g.e("v_cndmask_b32 v%d, v%d, v%d, vcc" % (t1, t3, t1))
    n = 0
    for srd in ("s[16:19]", "s[20:23]"):
        for c0 in (1, 4):
            g.e("buffer_load_dword v%d, v%d, %s, %s offen offset:%d" % (186 + n, t1, srd, sT0, c0 * 128)); n += 1
    g.e("s_branch %s" % end)
    g.lab(isw)
    g.e("s_mov_b32 s16, s34"); g.e("s_mov_b32 s17, s35"); g.e("s_mov_b32 s18, 0x%x" % W_BYTES)
    g.e("s_mov_b32 s20, s40"); g.e("s_mov_b32 s21, s41"); g.e("s_mov_b32 s22, 0x%x" % W_BYTES)
    g.e("v_lshrrev_b32 v%d, 3, v%d" % (t2, t0)); g.e("v_cmp_gt_u32 vcc, 192, v%d" % t2)
    g.e("v_mul_u32_u24 v%d, 2688, v%d" % (t1, t2))
    g.e("v_bfe_u32 v%d, v%d, 2, 1" % (t2, t0)); g.e("v_mul_u32_u24 v%d, 896, v%d" % (t2, t2)); g.e("v_add_u32 v%d, v%d, v%d" % (t1, t1, t2))
    g.e("v_and_b32 v%d, 3, v%d" % (t2, t0)); g.e("v_lshlrev_b32 v%d, 7, v%d" % (t2, t2)); g.e("v_add_u32 v%d, v%d, v%d" % (t1, t1, t2))
    g.e("v_cndmask_b32 v%d, v%d, v%d, vcc" % (t1, t3, t1))
    g.e("v_lshrrev_b32 v%d, 2, v%d" % (t0, t0)); g.e("v_mul_u32_u24 v%d, 2688, v%d" % (t0, t0)); g.e("v_add_u32 v%d, v%d, v%d" % (t0, t0, t2))
    g.e("s_and_b32 %s, s2, 1" % sT0); g.e("s_mul_i32 %s, %s, 384" % (sT0, sT0))
    g.e("s_add_u32 %s, %s, %d" % (sT1, sT0, 64 * 2688 + 896)); g.e("s_add_u32 %s, %s, %d" % (sT2, sT0, 4 * 64 * 2688 + 896))
    n = 0
    for srd in ("s[16:19]", "s[20:23]"):
        for so in (sT1, sT2):
            g.e("buffer_load_dword v%d, v%d, %s, %s offen" % (186 + n, t1, srd, so)); n += 1
        g.e("buffer_load_dword v%d, v%d, %s, %s offen" % (186 + n, t0, srd, sT0)); n += 1
    g.lab(end)

def touch1(g):
    t0, t1, t2 = vT, vT + 1, vT + 2
    for tb in ([0, 1] if g.map == 0 else [1]):
        px, pw = (32, 34) if tb == 0 else (4, None)
        if tb == 0:
            g.e("s_mov_b32 s16, s32"); g.e("s_mov_b32 s17, s33"); g.e("s_mov_b32 s20, s34"); g.e("s_mov_b32 s21, s35")
        else:
            g.e("s_mov_b32 s16, s4"); g.e("s_mov_b32 s17, s5"); g.e("s_mov_b32 s20, s40"); g.e("s_mov_b32 s21, s41")
        g.e("s_mov_b32 s18, 0x%x" % X_BYTES); g.e("s_mov_b32 s19, 0x20000"); g.e("s_mov_b32 s22, 0x%x" % W_BYTES); g.e("s_mov_b32 s23, 0x20000")
        g.e("s_bfe_u32 %s, s2, 0x40003" % sT0); g.e("s_lshl_b32 %s, %s, 8" % (sT0, sT0))
        g.e("v_add_u32 v%d, %s, v0" % (t0, sT0))
        g.e("v_and_b32 v%d, 511, v%d" % (t1, t0)); g.e("v_mul_u32_u24 v%d, 896, v%d" % (t1, t1))
        g.e("v_lshrrev_b32 v%d, 9, v%d" % (t2, t0)); g.e("v_add_u32 v%d, %d, v%d" % (t2, g.tfirst, t2))
        g.e("v_cmp_gt_u32 vcc, 7, v%d" % t2)
        g.e("v_lshl_add_u32 v%d, v%d, 7, v%d" % (t1, t2, t1))
        g.e("v_mov_b32 v%d, 0x%x" % (t2, OOB))
        g.e("v_cndmask_b32 v%d, v%d, v%d, vcc" % (t1, t2, t1))
        g.e("s_bfe_u32 %s, s2, 0x20001" % sT0); g.e("s_mul_i32 %s, %s, %d" % (sT0, sT0, 512 * 896))
        g.e("v_lshrrev_b32 v%d, 2, v%d" % (t2, t0))
        g.e("buffer_load_dword v%d, v%d, s[16:19], %s offen%s" % (188 + 2*tb, t1, sT0, g.tf))
        g.e("v_mul_u32_u24 v%d, 896, v%d" % (t2, t2))
        g.e("v_and_b32 v%d, 3, v%d" % (t0, t0)); g.e("v_lshl_add_u32 v%d, v%d, 7, v%d" % (t2, t0, t2))
        g.e("s_and_b32 %s, s2, 1" % sT0); g.e("s_mul_i32 %s, %s, 384" % (sT0, sT0)); g.e("s_add_u32 %s, %s, %d" % (sT0, sT0, g.tfirst * 64 * 2688))
        g.e("buffer_load_dword v%d, v%d, s[20:23], %s offen%s" % (189 + 2*tb, t2, sT0, g.tf))

def max16(g, s, dst, first=True):
    if first:
        g.e("v_max3_f32 v%d, v%d, v%d, v%d" % (dst, s, s + 1, s + 2)); rest = list(range(3, 16))
    else: rest = list(range(16))
    while len(rest) >= 2:
        a, b = rest.pop(0), rest.pop(0)
        g.e("v_max3_f32 v%d, v%d, v%d, v%d" % (dst, dst, s + a, s + b))
    if rest: g.e("v_max_f32 v%d, v%d, v%d" % (dst, dst, s + rest[0]))
def xhalf_max(g):
    g.e("v_mov_b32 v%d, v%d" % (vM2, vM)); g.e("s_nop 1")
    g.e("v_permlane32_swap_b32 v%d, v%d" % (vM, vM2)); g.e("s_nop 1")
    g.e("v_max_f32 v%d, v%d, v%d" % (vM, vM, vM2))
def set_shift(g):
    g.e("v_cvt_pk_bf16_f32 v%d, -v%d, 0" % (vM2, vM))
    g.e("v_lshlrev_b32 v%d, 16, v%d" % (vNM, vM2))
    g.e("v_cndmask_b32 v%d, v%d, v%d, %s" % (vQF + 6, vQF + 6, vM2, sUP))
def bcast_l(g):
    g.e("v_mov_b32 v%d, v%d" % (vM, vO + 12)); g.e("v_mov_b32 v%d, v%d" % (vM2, vO + 12)); g.e("s_nop 1")
    g.e("v_permlane32_swap_b32 v%d, v%d" % (vM, vM2)); g.e("s_nop 1")
def finish_o(g):
    g.e("v_rcp_f32 v%d, v%d" % (vM, vM2))
    g.e("s_lshl_b32 %s, %s, 6" % (sT0, sBR)); g.e("s_lshl_b32 %s, %s, 2" % (sT1, sR)); g.e("s_add_u32 %s, %s, %s" % (sT0, sT0, sT1))
    g.e("v_cndmask_b32 v%d, v%d, 0, %s" % (vM2, vM, sUP))
    g.e("s_add_u32 %s, %s, %s" % (sT0, sT0, sRT)); g.e("s_lshl_b32 %s, %s, 4" % (sT0, sT0))
    g.e("s_lshl_b32 %s, %s, 1" % (sT1, sHP)); g.e("s_add_u32 %s, %s, %s" % (sT0, sT0, sT1)); g.e("s_add_u32 %s, %s, %s" % (sT0, sT0, sHH))
    g.e("s_lshl_b32 %s, %s, 11" % (sT0, sT0)); g.e("s_add_u32 %s, %s, 0x%x" % (sT0, sT0, WS_OF))
    for f in range(2):
        for r in range(8*f, 8*f + 8): g.e("v_mul_f32 v%d, v%d, v%d" % (vO + r, vM2 if r >= 12 else vM, vO + r))
        for i in range(4*f, 4*f + 4): g.e("v_cvt_pk_bf16_f32 v%d, v%d, v%d" % (vP + i, vO + 2*i, vO + 2*i + 1))
        g.e("buffer_store_dwordx4 %s, v%d, %s, %s offen offset:%d%s" % (vr(vP + 4*f, 4), vL16, sWS, sT0, f * 1024, g.stf))
def dbg_q(g):
    if not g.dbgq: return
    g.e("s_lshl_b32 %s, %s, 2" % (sT0, sHH)); g.e("s_add_u32 %s, %s, %s" % (sT0, sT0, sRT)); g.e("s_lshl_b32 %s, %s, 11" % (sT0, sT0))
    g.e("s_lshr_b32 %s, %s, 1" % (sT1, sKVO)); g.e("s_add_u32 %s, %s, %s" % (sT0, sT0, sT1)); g.e("s_add_u32 %s, %s, 0x%x" % (sT0, sT0, WS_QDBG))
    g.e("s_waitcnt lgkmcnt(0)")
    for f in range(2): g.e("buffer_store_dwordx4 %s, v%d, %s, %s offen offset:%d" % (vr(vQF + 4*f, 4), vL16, sWS, sT0, f * 1024))
    g.e("s_waitcnt vmcnt(0)")

def wo_dma(g, m, ldsbase, row0, last=False):
    sk = g.newlab("L_wsk")
    if last:
        g.e("s_cmp_eq_u32 %s, 7" % sWV); g.e("s_cbranch_scc1 %s" % sk)
    g.e("s_add_u32 m0, %s, %d" % (sW1K, ldsbase + m * 8192))
    g.e("s_add_u32 %s, %s, %d" % (sT3, sWOS, row0 * 896 + m * 8 * 3584))
    g.e("buffer_load_dwordx4 v%d, %s, %s offen lds" % (vWOO, sWO, sT3))
    if last: g.lab(sk)
def wo1(g, n):
    if n < 4: wo_dma(g, n, L_W1A, 0, last=(n == 3))
    else: wo_dma(g, n - 4, L_W1B, 120)

def attn_A(g):
    lg = Q(); lg.add("q", 2)
    nwo = [0]; nwo0 = [0]
    def site(u):
        for (cond, b) in ((u - 1, 0), (u - 5, 1)):
            if 0 <= cond <= 3:
                sk = g.newlab("L_site")
                g.e("s_cmp_lg_u32 %s, %d" % (sRT, cond)); g.e("s_cbranch_scc1 %s" % sk)
                check(g, 1, vG1, F_KV(b, 0), vGV + b)
                g.lab(sk)
    def rdF(): g.e("ds_read2_b32 %s, v%d offset0:%d offset1:%d" % (vr(vGV, 2), vG1, F_KV(0, 0) // 4, F_KV(1, 0) // 4)); lg.add("x")
    def rdK(u):
        for j in range(2): g.e("ds_read_b128 %s, v%d offset:%d" % (vr(vKB + (u % 2) * 8 + 4*j, 4), vAD + u, j * 1024))
        lg.add(("K", u), 2)
    def rdV(u):
        for j in range(2): g.e("ds_read_b128 %s, v%d offset:%d" % (vr(vVB + (u % 2) * 8 + 4*j, 4), vAD + u, 2048 + j * 1024))
        lg.add(("V", u), 2)
    def qk(u, j):
        s = vS + (u % 3) * 16
        g.mfma(s, vKB + (u % 2) * 8 + 4*j, vQF + 4*j, s if j else (vC1 if u == 0 else vC2 if u == 8 else None))
    def pv(u, j):
        g.mfma(vO, vVB + (u % 2) * 8 + 4*j, vS + (u % 3) * 16 + 4*j, None if (u == 0 and j == 0) else vO)
    rdF(); rdK(0)
    g.wl(lg.wait(("K", 0))); qk(0, 0); qk(0, 1)
    bump(g, vGW, F_CQ); lg.add("x")
    g.e("s_nop 10")
    max16(g, vS, vM); xhalf_max(g); set_shift(g)
    for r in range(16): g.e("v_add_f32 v%d, v%d, v%d" % (vS + r, vNM, vS + r))
    for u in range(9):
        s = vS + (u % 3) * 16
        ex = lambda a, b: [g.e("v_exp_f32 v%d, v%d" % (s + r, s + r)) for r in range(a, b)]
        if g.r2late and u == g.r2fetch:
            sk = g.newlab("L_r2f")
            g.e("s_cmp_ge_u32 %s, 2" % sWV); g.e("s_cbranch_scc1 %s" % sk)
            fetch_remote(g, True)
            g.lab(sk)
            nwo0[0] = nwo[0]
        if u in (0, g.r2step):
            sk = g.newlab("L_ld")
            g.e("s_cmp_%s_u32 %s, 2" % ("lt" if u == 0 else "ge", sWV)); g.e("s_cbranch_scc1 %s" % sk)
            if u == 0:
                g.e("s_cmp_ge_u32 %s, 4" % sWV); g.e("s_cbranch_scc1 %s" % sk)
            g.e("s_waitcnt vmcnt(%d)" % (nwo[0] - nwo0[0])); bump(g, vFB)
            g.lab(sk)
        if u < 8: site(u + 1)
        if u < 7: rdF()
        if u == g.wostep - 1: g.e("ds_read_b32 v%d, v%d offset:%d" % (vGX, vGR, F_CQ)); lg.add("x")
        if u < 8: rdK(u + 1)
        rdV(u)
        if u > 0: g.wl(lg.wait(("V", u - 1))); pv(u - 1, 0)
        ex(0, 5)
        if u > 0: pv(u - 1, 1)
        if g.wostep <= u < g.wostep + 4:
            if u == g.wostep: check(g, 8, vGR, F_CQ, vGX)
            for _ in range(2): wo1(g, nwo[0]); nwo[0] += 1
        ex(5, 10)
        if u < 8: g.wl(lg.wait(("K", u + 1))); qk(u + 1, 0)
        ex(10, 16)
        if u < 8: qk(u + 1, 1)
        else: g.e("s_nop 0")
        for i in range(8): g.e("v_cvt_pk_bf16_f32 v%d, v%d, v%d" % (s + i, s + 2*i, s + 2*i + 1))
    g.wl(lg.wait(("V", 8))); g.e("s_nop 0"); pv(8, 0); pv(8, 1)
    g.e("s_nop 11")
    bcast_l(g)
    fb = g.newlab("L_fb"); ok = g.newlab("L_aok")
    g.e("s_mov_b32 %s, 0x%08x" % (sT0, LBIG))
    g.e("v_cmp_ngt_f32 vcc, %s, v%d" % (sT0, vM2))
    g.e("s_cbranch_vccnz %s" % fb)
    g.lab(ok)
    g.fb = (fb, ok)
    g.stamp(8)
    finish_o(g)

def fallback_A(g):
    fb, ok = g.fb
    g.lab(fb)
    g.e("s_lshl_b32 %s, %s, 2" % (sT1, sR)); g.e("s_add_u32 %s, %s, %s" % (sT1, sT1, sRT))
    g.e("v_mov_b32 v%d, 0" % vM2)
    g.e("v_cndmask_b32 v%d, v%d, v%d, %s" % (vQF + 6, vQF + 6, vM2, sUP))
    g.e("v_mov_b32 v%d, 0x%08x" % (vM, NEG))
    for r in range(16): g.e("v_mov_b32 v%d, 0" % (vO + r))
    for pas in range(2):
        lp = g.newlab("L_fbl"); l0 = g.newlab("L_fb0"); l8 = g.newlab("L_fb8"); lj = g.newlab("L_fbj")
        g.e("s_mov_b32 %s, 0" % sT4)
        g.lab(lp)
        g.e("s_add_u32 %s, %s, 8" % (sT0, sRT)); g.e("s_sub_u32 %s, %s, %s" % (sT0, sT0, sT4))
        g.e("s_lshr_b32 %s, %s, 2" % (sT2, sT0)); g.e("s_lshl_b32 %s, %s, 15" % (sT2, sT2))
        g.e("s_and_b32 %s, %s, 3" % (sT0, sT0)); g.e("s_lshl_b32 %s, %s, 12" % (sT0, sT0)); g.e("s_add_u32 %s, %s, %s" % (sT0, sT0, sT2))
        g.e("s_lshl_b32 %s, %s, 14" % (sT2, sHH)); g.e("s_add_u32 %s, %s, %s" % (sT0, sT0, sT2))
        g.e("s_add_u32 %s, %s, %s" % (sT0, sT0, sKVO)); g.e("s_sub_u32 %s, %s, 65536" % (sT0, sT0))
        for j in range(4): g.e("buffer_load_dwordx4 %s, v%d, %s, %s offen offset:%d sc1" % (vr(vKB + 4*j, 4), vL16, sWS, sT0, j * 1024))
        g.e("s_waitcnt vmcnt(0)")
        g.e("s_cmp_eq_u32 %s, 0" % sT4); g.e("s_cbranch_scc1 %s" % l0)
        g.e("s_cmp_eq_u32 %s, 8" % sT4); g.e("s_cbranch_scc1 %s" % l8)
        g.mfma(vS, vKB, vQF, None); g.e("s_branch %s" % lj)
        g.lab(l0); g.mfma(vS, vKB, vQF, vC1); g.e("s_branch %s" % lj)
        g.lab(l8); g.mfma(vS, vKB, vQF, vC2)
        g.lab(lj)
        g.mfma(vS, vKB + 4, vQF + 4, vS)
        g.e("s_nop 11")
        if pas == 0: max16(g, vS, vM, first=False)
        else:
            for r in range(16): g.e("v_exp_f32 v%d, v%d" % (vS + r, vS + r))
            g.e("s_nop 0")
            for i in range(8): g.e("v_cvt_pk_bf16_f32 v%d, v%d, v%d" % (vS + i, vS + 2*i, vS + 2*i + 1))
            g.e("s_nop 1")
            g.mfma(vO, vKB + 8, vS, vO); g.mfma(vO, vKB + 12, vS + 4, vO)
            g.e("s_nop 11")
        g.e("s_add_u32 %s, %s, 1" % (sT4, sT4))
        g.e("s_min_u32 %s, %s, 8" % (sT0, sT1))
        g.e("s_cmp_le_u32 %s, %s" % (sT4, sT0)); g.e("s_cbranch_scc1 %s" % lp)
        if pas == 0:
            xhalf_max(g); set_shift(g); g.e("s_nop 1")
    bcast_l(g)
    g.e("s_branch %s" % ok)

def attn_B(g):
    for j in range(2): g.e("ds_read_b128 %s, v%d offset:%d" % (vr(vKB + 4*j, 4), vAD, j * 1024))
    for j in range(2): g.e("ds_read_b128 %s, v%d offset:%d" % (vr(vVB + 4*j, 4), vAD, 2048 + j * 1024))
    g.e("s_waitcnt lgkmcnt(2)")
    g.mfma(vS, vKB, vQF, vC1); g.mfma(vS, vKB + 4, vQF + 4, vS)
    bump(g, vGW, F_CQ)
    sk = g.newlab("L_bs")
    g.e("s_cmp_lg_u32 %s, 0" % sRT); g.e("s_cbranch_scc1 %s" % sk)
    spin(g, 1, vG1, F_KV(0, 0), vGV)
    g.lab(sk)
    for j in range(2): g.e("ds_read_b128 %s, v%d offset:%d" % (vr(vKB + 8 + 4*j, 4), vAD + 1, j * 1024))
    for j in range(2): g.e("ds_read_b128 %s, v%d offset:%d" % (vr(vVB + 8 + 4*j, 4), vAD + 1, 2048 + j * 1024))
    g.e("s_waitcnt lgkmcnt(2)")
    g.mfma(vS + 16, vKB + 8, vQF, vC2); g.mfma(vS + 16, vKB + 12, vQF + 4, vS + 16)
    g.e("s_nop 4")
    max16(g, vS, vM); g.e("s_nop 0"); max16(g, vS + 16, vM, first=False); xhalf_max(g)
    for r in range(32): g.e("v_sub_f32 v%d, v%d, v%d" % (vS + r, vS + r, vM))
    for t in range(2):
        s = vS + 16 * t
        for r in range(16): g.e("v_exp_f32 v%d, v%d" % (s + r, s + r))
        g.e("s_nop 0")
        for i in range(8): g.e("v_cvt_pk_bf16_f32 v%d, v%d, v%d" % (s + i, s + 2*i, s + 2*i + 1))
        g.e("s_waitcnt lgkmcnt(0)"); g.e("s_nop 0")
        g.mfma(vO, vVB + 8*t, s, None if t == 0 else vO); g.mfma(vO, vVB + 8*t + 4, s + 4, vO)
    g.e("s_nop 11")
    bcast_l(g)
    g.stamp(8)
    finish_o(g)
    if g.bpre:
        spin(g, 8, vGR, F_CQ, vGX)
        for n in range(8): wo1(g, n)

def p3(g):
    t0, t1, t2 = vT, vT + 1, vT + 2
    sCT, sRT2 = sKC, sXB
    A1, A2, A3 = 4, 5, 6
    vFL = 3; vB0, vB1 = 13, 14; vOA = 56
    g.e("s_lshr_b32 %s, %s, 1" % (sCT, sWV)); g.e("s_and_b32 %s, %s, 1" % (sRT2, sWV))
    g.e("v_bfe_u32 v%d, v%d, 2, 2" % (t0, vLANE)); g.e("v_lshrrev_b32 v%d, 5, v%d" % (t1, vLANE))
    g.e("v_lshl_add_u32 v%d, v%d, 2, v%d" % (t1, t1, t0)); g.e("v_lshlrev_b32 v%d, 8, v%d" % (t1, t1))
    g.e("v_lshlrev_b32 v%d, 6, v%d" % (t0, t0))
    g.e("v_and_b32 v%d, 3, v%d" % (t2, vLANE)); g.e("v_lshlrev_b32 v%d, 3, v%d" % (t2, t2))
    g.e("v_and_b32 v%d, 16, v%d" % (A3, vLANE)); g.e("v_lshl_add_u32 v%d, v%d, 1, v%d" % (t2, A3, t2))
    g.e("s_lshl_b32 %s, %s, 6" % (sT0, sCT)); g.e("v_add_u32 v%d, %s, v%d" % (t2, sT0, t2))
    g.e("v_xor_b32 v%d, v%d, v%d" % (t2, t2, t0)); g.e("v_add_u32 v%d, v%d, v%d" % (A3, t1, t2))
    g.e("v_add_u32 v%d, 0x%x, v%d" % (A1, L_W1A, A3)); g.e("v_add_u32 v%d, 0x%x, v%d" % (A2, L_W1B, A3))
    g.e("s_lshr_b32 %s, %s, 1" % (sT0, sRB)); g.e("s_lshl_b32 %s, %s, 4" % (sT1, sBR)); g.e("s_add_u32 %s, %s, %s" % (sT0, sT0, sT1))
    g.e("s_lshl_b32 %s, %s, 10" % (sT0, sT0)); g.e("s_add_u32 %s, %s, 0x%x" % (sT0, sT0, WS_OFLAG))
    g.e("v_lshlrev_b32 v%d, 7, v%d" % (vFL, vLANE)); g.e("v_add_u32 v%d, %s, v%d" % (vFL, sT0, vFL))
    g.e("s_add_u32 %s, %s, %s" % (sT1, sT1, sR)); g.e("s_lshl_b32 %s, %s, 3" % (sT1, sT1)); g.e("s_add_u32 %s, %s, %s" % (sT1, sT1, sHP))
    g.e("s_lshl_b32 %s, %s, 7" % (sT1, sT1)); g.e("s_add_u32 s36, %s, 0x%x" % (sT1, WS_OFLAG))
    g.e("s_lshr_b32 %s, %s, 2" % (sT2, sWV))
    sOS, sOL = sXS, sWSO
    g.e("s_and_b32 %s, %s, 3" % (sT0, sWV)); g.e("s_lshl_b32 %s, %s, 11" % (sT0, sT0))
    g.e("s_lshl_b32 %s, %s, 13" % (sOL, sT2)); g.e("s_add_u32 %s, %s, %s" % (sOL, sOL, sT0))
    g.e("s_lshl_b32 %s, %s, 15" % (sOS, sT2)); g.e("s_add_u32 %s, %s, %s" % (sOS, sOS, sT0))
    g.e("s_lshl_b32 %s, %s, 21" % (sT0, sBR)); g.e("s_add_u32 %s, %s, %s" % (sOS, sOS, sT0))
    g.e("s_lshl_b32 %s, %s, 16" % (sT0, sRB)); g.e("s_add_u32 %s, %s, %s" % (sOS, sOS, sT0)); g.e("s_add_u32 %s, %s, 0x%x" % (sOS, sOS, WS_OF))
    g.e("s_lshl_b32 %s, %s, 13" % (sT0, sRT2)); g.e("v_add_u32 v%d, %s, v%d" % (vB0, sT0, vL16))
    g.e("v_add_u32 v%d, 0x%x, v%d" % (vB1, L_O, vB0)); g.e("v_add_u32 v%d, 0x%x, v%d" % (vB0, L_W1A, vB0))
    g.e("v_and_b32 v%d, 31, v%d" % (t0, vLANE)); g.e("v_mul_u32_u24 v%d, 1792, v%d" % (t0, t0))
    g.e("v_lshrrev_b32 v%d, 5, v%d" % (t1, vLANE)); g.e("v_lshl_add_u32 v%d, v%d, 4, v%d" % (vOA, t1, t0))
    g.e("s_lshl_b32 %s, %s, 1" % (sT0, sRB)); g.e("s_add_u32 %s, %s, %s" % (sT0, sT0, sRT2)); g.e("s_mul_i32 %s, %s, %d" % (sT4, sT0, 32 * 1792))
    g.e("s_mul_i32 %s, %s, 896" % (sT0, sBR)); g.e("s_add_u32 %s, %s, %s" % (sT4, sT4, sT0))
    g.e("s_lshl_b32 %s, %s, 8" % (sT0, sCB)); g.e("s_add_u32 %s, %s, %s" % (sT4, sT4, sT0))
    g.e("s_lshl_b32 %s, %s, 6" % (sT0, sCT)); g.e("s_add_u32 %s, %s, %s" % (sT4, sT4, sT0))
    if g.bpre:
        wa = g.newlab("L_wa"); wb = g.newlab("L_wb")
        g.e("s_cmp_eq_u32 %s, 0" % sBR); g.e("s_cbranch_scc1 %s" % wa)
        g.e("s_waitcnt vmcnt(7)"); g.e("s_branch %s" % wb)
        g.lab(wa); g.e("s_waitcnt vmcnt(0)"); g.lab(wb)
    else: g.e("s_waitcnt vmcnt(0)")
    g.e("s_barrier")
    nf = g.newlab("L_nof")
    g.e("s_cmp_lg_u32 %s, 0" % sWV); g.e("s_cbranch_scc1 %s" % nf)
    store_flag(g, "s36")
    g.lab(nf)
    g.stamp(9)
    if not g.bpre:
        early = g.newlab("L_early")
        g.e("s_cmp_eq_u32 %s, 0" % sBR); g.e("s_cbranch_scc1 %s" % early)
        for n in range(8): wo1(g, n)
        g.lab(early)
    for m in range(7): wo_dma(g, m, L_W2, 248)
    early2 = g.newlab("L_early2")
    g.e("s_cmp_eq_u32 %s, 0" % sBR); g.e("s_cbranch_scc1 %s" % early2)
    g.e("s_waitcnt vmcnt(7)"); g.e("s_barrier")
    g.lab(early2)
    WFR = 96
    def trs(sel):
        for h in range(16):
            for j in range(2):
                for i in range(2):
                    row = 28 * h + 16 * j + 8 * i
                    if not sel(row): continue
                    a, off = (A1, row * 256) if row < 120 else (A2, (row - 120) * 256) if row < 248 else (A3, (row - 248) * 256)
                    g.e("ds_read_b64_tr_b16 %s, v%d offset:%d" % (vr(WFR + (h * 2 + j) * 4 + 2 * i, 2), a, off))
    trs(lambda row: row < 248)
    g.stamp(10)
    np_ = g.newlab("L_np3")
    g.e("s_cmp_lg_u32 %s, 7" % sWV); g.e("s_cbranch_scc1 %s" % np_)
    poll(g, vFL, "0xff")
    g.lab(np_)
    g.e("s_waitcnt vmcnt(0) lgkmcnt(0)")
    g.e("s_barrier")
    g.stamp(11)
    for a in range(4):
        g.e("s_add_u32 m0, %s, %d" % (sOL, L_O + a * 16384 if a < 2 else L_W1A + (a - 2) * 16384))
        g.e("s_add_u32 %s, %s, %d" % (sT2, sOS, a * 8192))
        for f in range(2): g.e("buffer_load_dwordx4 v%d, %s, %s offen offset:%d sc1 lds" % (vL16, sWS, sT2, f * 1024))
    trs(lambda row: row >= 248)
    OB = 16
    lg = Q()
    def rd(k):
        a = k // 8
        if k % 8 == 0:
            g.e("s_waitcnt vmcnt(%d)" % (6 - 2 * a)); g.e("s_barrier")
            if a == 0: g.stamp(12)
        g.e("ds_read_b128 %s, v%d offset:%d" % (vr(OB + (k % 4) * 4, 4), vB1 if a < 2 else vB0, (a % 2) * 16384 + (k % 8) * 1024))
        lg.add(k)
    for k in range(3): rd(k)
    for k in range(32):
        g.wl(lg.wait(k))
        g.mfma(vO, WFR + 4 * k, OB + (k % 4) * 4, None if k == 0 else vO)
        if k + 3 < 32: rd(k + 3)
    g.stamp(13)
    done = g.newlab("L_nostore")
    g.e("s_cmp_lt_u32 %s, 3" % sCB); g.e("s_cselect_b32 %s, 4, 2" % sT0)
    g.e("s_cmp_ge_u32 %s, %s" % (sCT, sT0)); g.e("s_cbranch_scc1 %s" % done)
    g.e("s_nop 8")
    PK = 48
    for i in range(8): g.e("v_cvt_pk_bf16_f32 v%d, v%d, v%d" % (PK + i, vO + 2*i, vO + 2*i + 1))
    g.e("s_nop 1")
    for b in (0, 4):
        g.e("v_permlane32_swap_b32 v%d, v%d" % (PK + b, PK + b + 2)); g.e("v_permlane32_swap_b32 v%d, v%d" % (PK + b + 1, PK + b + 3))
    g.e("s_nop 1")
    for b in range(2): g.e("buffer_store_dwordx4 %s, v%d, %s, %s offen offset:%d%s" % (vr(PK + 4*b, 4), vOA, sOUT, sT4, 32 * b, g.outflag))
    g.lab(done)

def write_stamps(g):
    if not g.stamps: return
    g.e("s_waitcnt vmcnt(0)")
    g.stamp(14)
    g.e("s_waitcnt lgkmcnt(0)")
    g.e("s_getreg_b32 s100, hwreg(HW_REG_XCC_ID)"); g.e("s_getreg_b32 s101, hwreg(HW_REG_HW_ID)")
    g.e("s_lshl_b32 %s, s2, 3" % sT0); g.e("s_add_u32 %s, %s, %s" % (sT0, sT0, sWV)); g.e("s_lshl_b32 %s, %s, 7" % (sT0, sT0))
    g.e("s_add_u32 %s, %s, 0x%x" % (sT0, sT0, WS_STAMP))
    g.e("s_mov_b64 exec, 1")
    for i in range(16):
        g.e("v_mov_b32 v20, s%d" % (70 + 2*i)); g.e("v_mov_b32 v21, s%d" % (71 + 2*i))
        g.e("buffer_store_dwordx2 v[20:21], v%d, %s, %s offen offset:%d" % (vZ, sWS, sT0, 8 * i))
        g.e("s_nop 1")

def branch(g, isA):
    n = "A" if isA else "B"
    g.e("s_cmp_lt_u32 %s, 4" % sWV); g.e("s_cbranch_scc1 L_cons%s" % n)
    producer(g, isA)
    g.e("s_branch L_x%s" % n)
    g.lab("L_cons%s" % n)
    consumer(g, isA)
    g.lab("L_x%s" % n)
    g.stamp(7)
    if g.cprio:
        sk = g.newlab("L_cp")
        g.e("s_cmp_ge_u32 %s, 4" % sWV); g.e("s_cbranch_scc1 %s" % sk); g.e("s_setprio %d" % g.cprio); g.lab(sk)
    dbg_q(g)
    if isA: attn_A(g)
    else: attn_B(g)

def build(**kw):
    g = G(**kw)
    K = NAME + "_kernel"
    hdr = open("cdna_kernels/%s.s.ref" % NAME).read().split("; Override launch")[0]
    g.l.append(hdr.rstrip())
    g.l.append("; @launch grid=(256,1,1) block=(512,1,1) lds=163840")
    g.l += ['.amdgcn_target "amdgcn-amd-amdhsa--gfx950"', ".text", ".globl " + K, ".p2align 8", ".type %s,@function" % K, K + ":"]
    g.e("s_cmp_ge_u32 s2, 256"); g.e("s_cbranch_scc1 L_end")
    g.e("s_load_dwordx16 s[32:47], s[0:1], 0"); g.e("s_load_dwordx2 s[48:49], s[0:1], 64")
    if g.stamps:
        for i in range(15): g.e("s_mov_b64 s[%d:%d], 0" % (70 + 2*i, 71 + 2*i))
    g.stamp(0)
    if "pit" in g.exp: g.only = (0, 1, 2, 14)
    g.e("v_lshrrev_b32 v%d, 6, v0" % vT)
    g.e("v_and_b32 v%d, 63, v0" % vLANE)
    g.e("v_readfirstlane_b32 %s, v%d" % (sWV, vT))
    if g.map == 0:
        g.e("s_lshr_b32 %s, s2, 7" % sBR)
        g.e("s_bfe_u32 %s, s2, 0x20003" % sT2); g.e("s_bfe_u32 %s, s2, 0x20005" % sT3)
        g.e("s_and_b32 %s, s2, 1" % sHP); g.e("s_lshl_b32 %s, %s, 2" % (sHP, sHP)); g.e("s_add_u32 %s, %s, %s" % (sHP, sHP, sT2))
        g.e("s_bfe_u32 %s, s2, 0x20001" % sR); g.e("s_lshl_b32 %s, %s, 2" % (sR, sR)); g.e("s_add_u32 %s, %s, %s" % (sR, sR, sT3))
    else:
        g.e("s_bfe_u32 %s, s2, 0x10002" % sBR)
        g.e("s_bfe_u32 %s, s2, 0x20003" % sT2); g.e("s_lshr_b32 %s, s2, 5" % sT3)
        g.e("s_and_b32 %s, s2, 1" % sHP); g.e("s_lshl_b32 %s, %s, 2" % (sHP, sHP)); g.e("s_add_u32 %s, %s, %s" % (sHP, sHP, sT2))
        g.e("s_bfe_u32 %s, s2, 0x10001" % sR); g.e("s_lshl_b32 %s, %s, 3" % (sR, sR)); g.e("s_add_u32 %s, %s, %s" % (sR, sR, sT3))
    g.e("s_and_b32 %s, %s, 3" % (sP, sWV))
    t0, t1 = vT, vT + 1
    nz = g.newlab("L_nz")
    g.e("s_cmp_lg_u32 %s, 0" % sWV); g.e("s_cbranch_scc1 %s" % nz)
    g.e("v_and_b32 v%d, 7, v%d" % (t0, vLANE)); g.e("v_and_b32 v%d, 2, v%d" % (t1, t0)); g.e("v_lshlrev_b32 v%d, 5, v%d" % (t1, t1))
    g.e("v_lshlrev_b32 v%d, 7, v%d" % (t0, t0)); g.e("v_sub_u32 v%d, v%d, v%d" % (t0, t0, t1))
    g.e("v_add_u32 v%d, %d, v%d" % (t0, FBASE + 112, t0))
    for k in range(4): g.e("v_mov_b32 v%d, 0" % (vACC + k))
    g.e("s_mov_b64 exec, 0xff")
    g.e("ds_write_b128 v%d, %s" % (t0, vr(vACC, 4)))
    g.e("s_mov_b64 exec, -1")
    g.lab(nz)
    producer_prep(g)
    flag_regs(g, True)
    xrd_addr(g, vXRD, sXB)
    g.e("s_mov_b32 s6, 0x%x" % X_BYTES); g.e("s_mov_b32 s7, 0x20000"); g.e("s_mov_b32 s10, 0x%x" % (W_BYTES + WBIAS)); g.e("s_mov_b32 s11, 0x20000")
    g.e("s_cmp_eq_u32 %s, 0" % sBR)
    if "st0" in g.exp: g.stamp(3)
    g.e("s_waitcnt lgkmcnt(0)")
    if "st0" in g.exp: g.stamp(4)
    g.e("s_cselect_b32 s4, s32, s38"); g.e("s_cselect_b32 s5, s33, s39"); g.e("s_cselect_b32 s8, s34, s40"); g.e("s_cselect_b32 s9, s35, s41")
    g.e("s_sub_u32 s8, s8, %d" % WBIAS); g.e("s_subb_u32 s9, s9, 0")
    g.e("s_cmp_lt_u32 %s, 4" % sWV); g.e("s_cbranch_scc1 L_noiss0")
    issue_item(g, Q(), 0)
    g.lab("L_noiss0")
    g.e("s_barrier")
    g.e("s_cmp_lt_u32 %s, 4" % sWV); g.e("s_cbranch_scc1 L_noiss")
    if "st0" in g.exp: g.stamp(5)
    issue_item(g, Q(), 1)
    if "st0" in g.exp: g.stamp(6)
    g.lab("L_noiss")
    if "st0" in g.exp: g.stamps_save = g.stamps; g.only = (1, 2, 14)
    g.e("s_cmp_eq_u32 %s, 0" % sBR)
    g.e("s_cbranch_scc1 L_A")
    branch(g, False)
    g.e("s_branch L_p3")
    g.lab("L_A")
    branch(g, True)
    g.lab("L_p3")
    p3(g)
    write_stamps(g)
    g.lab("L_end"); g.e("s_endpgm")
    for (sl, back, need, areg, off, vsrc) in g.slow:
        g.lab(sl); spin(g, need, areg, off, vsrc); g.e("s_branch %s" % back)
    fallback_A(g)
    g.lab("L_codeend")
    g.l += ['.section .rodata,"a"', ".p2align 6", ".amdhsa_kernel " + K, "  .amdhsa_next_free_vgpr 256", "  .amdhsa_next_free_sgpr 102",
            "  .amdhsa_accum_offset 256", "  .amdhsa_group_segment_fixed_size 0", "  .amdhsa_kernarg_size 72", "  .amdhsa_user_sgpr_count 2",
            "  .amdhsa_user_sgpr_kernarg_segment_ptr 1", "  .amdhsa_system_sgpr_workgroup_id_x 1", ".end_amdhsa_kernel"]
    return "\n".join(g.l) + "\n"

if __name__ == "__main__":
    ap = argparse.ArgumentParser()
    ap.add_argument("-o", default="k.s"); ap.add_argument("--stamps", action="store_true"); ap.add_argument("--dbgq", action="store_true")
    ap.add_argument("--exp", default=""); ap.add_argument("--dA", type=int, default=2); ap.add_argument("--dB", type=int, default=2)
    ap.add_argument("--wotouch", type=int, default=1); ap.add_argument("--touch", type=int, default=1); ap.add_argument("--tfirst", type=int, default=2)
    ap.add_argument("--map", type=int, default=0); ap.add_argument("--r2late", type=int, default=1); ap.add_argument("--r2fetch", type=int, default=2); ap.add_argument("--ctouch", type=int, default=0); ap.add_argument("--cprio", type=int, default=0); ap.add_argument("--inl", type=int, default=1); ap.add_argument("--ps1", type=int, default=2); ap.add_argument("--ps2", type=int, default=3); ap.add_argument("--ldf", default=""); ap.add_argument("--tf", default=""); ap.add_argument("--late8", type=int, default=0); ap.add_argument("--bpre", type=int, default=1); ap.add_argument("--qprio", type=int, default=2); ap.add_argument("--aprio", type=int, default=0); ap.add_argument("--stf", default=" sc1"); ap.add_argument("--qst", type=int, default=0); ap.add_argument("--r2step", type=int, default=4); ap.add_argument("--wostep", type=int, default=2); ap.add_argument("--outflag", default=" nt")
    a = ap.parse_args()
    o = a.o; d = vars(a); d.pop("o")
    open(o, "w").write(build(**d))
```

```python
import sys, math, struct, argparse
NAME = "concat_heads__sliding_block__sliding_local_dilated__prompt"
def f32bits(x): return struct.unpack("<I", struct.pack("<f", x))[0]

X_BYTES = 2048*896; W_BYTES = 448*2688; WO_BYTES = 448*896; OUT_BYTES = 2048*1792
WS_OF = 8 << 20; WS_KVFLAG = 16 << 20; WS_OFLAG = (16 << 20) + 65536; WS_QDBG = 20 << 20; WS_STAMP = 32 << 20
WS_RECORDS = 64 << 20
NEG = f32bits(-1.0e30); CSCALE = f32bits((28 ** -0.5) * math.log2(math.e)); LBIG = f32bits(2.0 ** 64)
OOB = 0x7FF00000; SPIN_MAX = 1 << 20; WBIAS = 4096

def vr(a, n): return "v[%d:%d]" % (a, a + n - 1)
sX, sW, sWO, sWS, sOUT, sDBG = "s[4:7]", "s[8:11]", "s[12:15]", "s[16:19]", "s[20:23]", "s[24:27]"
sBR, sHP, sR, sWV = "s28", "s29", "s30", "s31"
sRT, sHH, sW1K, sKC, sXS, sP, sWSO, sXB, sWB, sKVO = "s50", "s51", "s52", "s53", "s54", "s55", "s56", "s57", "s58", "s59"
sNON = "s[60:61]"; sT0, sT1, sT2, sT3 = "s62", "s63", "s64", "s65"; sTM = "s[64:65]"; sC = "s66"; sT4 = "s67"; sUP = "s[68:69]"
sCB, sRB, sWOS, sSPN = "s32", "s33", "s34", "s35"
sHM = "s[38:39]"
vLANE = 1; vKVW = 2; vQW = 3; vXRD = 4; vWRD = 8; vL16 = 9; vT = 10; vZ = 15
vQF = 16
vACC = 32
vC1, vC2 = 96, 112
vXB = 128; vWB = 152
vXF = 128
vAD = 176
vNON = 240; vFA = 244; vFB = 245; vFV = 246; vONE = 247; vWOO = 248; vGR = 249; vGW = 250; vG1 = 251; vGV = 252; vGX = 254
vXO = 16; vWO = 20; vWQ = 24
vO = 32; vS = 128; vKB = 48; vVB = 64; vM = 80; vM2 = 81; vNM = 82; vP = 84
SLOT = 32768
L_R1 = 32768; L_R2 = 0; L_OWN = 131072; L_QA = 122880; L_WQ = 65536
L_W1A = 65536; L_W1B = 98304; L_W2 = 0; L_O = 131072
FBASE = 98304 - 1024
def fw(r, hi): return r * 128 + (112 if ((r >> 1) & 1) == 0 else 48) + 8 + 4 * hi
F_KV = lambda b, h: fw(2 * b + h, 1)
F_OWN, F_QRDY, F_CQ, F_XD = fw(4, 1), fw(5, 1), fw(6, 1), fw(7, 1)
F_ST = fw(0, 0) - 4

def lane_mask(fn):
    m = 0
    for l in range(64):
        if fn(l): m |= 1 << l
    return m
def key_of(r, l): return (r & 3) + 8 * (r >> 2) + 4 * (l >> 5)

class Q:
    def __init__(self): self.q = []
    def add(self, tag, n=1): self.q += [tag] * n
    def wait(self, tag):
        idx = [i for i, t in enumerate(self.q) if t == tag]
        if not idx: return None
        n = len(self.q) - 1 - idx[-1]
        self.q = self.q[idx[-1] + 1:]
        return n
    def clear(self): self.q = []

class G:
    def __init__(self, **kw):
        self.l = []; self.nlab = 0; self.slow = []
        self.__dict__.update(kw)
    def e(self, s): self.l.append("    " + s)
    def lab(self, s): self.l.append(s + ":")
    def newlab(self, p="L"):
        self.nlab += 1; return "%s_%d" % (p, self.nlab)
    def stamp(self, i):
        if getattr(self, "only", None) and i not in self.only: return
        if self.stamps: self.e("%s s[%d:%d]" % ("s_memtime" if "cyc" in self.exp else "s_memrealtime", 70 + 2*i, 71 + 2*i))
    def mask(self, m):
        self.e("s_mov_b32 s64, 0x%08x" % (m & 0xffffffff)); self.e("s_mov_b32 s65, 0x%08x" % (m >> 32))
    def mfma(self, d, a, b, c):
        self.e("v_mfma_f32_32x32x16_bf16 %s, %s, %s, %s" % (vr(d, 16), vr(a, 4), vr(b, 4), "0" if c is None else vr(c, 16)))
    def wl(self, n):
        if n is not None: self.e("s_waitcnt lgkmcnt(%d)" % min(n, 15))
    def wv(self, n):
        if n is not None: self.e("s_waitcnt vmcnt(%d)" % min(n, 63))
    def capture(self, fn):
        save = self.l; self.l = []; groups = []
        def cut():
            if self.l: groups.append(self.l)
            self.l = []
        fn(cut); cut(); self.l = save
        return groups

def spin(g, need, areg, off, vdst):
    lp = g.newlab("L_spin"); ok = g.newlab("L_spok")
    g.e("s_mov_b32 %s, 0" % sSPN)
    g.lab(lp)
    g.e("ds_read_b32 v%d, v%d offset:%d" % (vdst, areg, off))
    g.e("s_add_u32 %s, %s, 1" % (sSPN, sSPN))
    g.e("s_waitcnt lgkmcnt(0)")
    g.e("v_cmp_gt_u32 vcc, %d, v%d" % (need, vdst))
    g.e("s_cmp_gt_u32 %s, %d" % (sSPN, SPIN_MAX * 8)); g.e("s_cbranch_scc1 %s" % ok)
    g.e("s_cbranch_vccnz %s" % lp)
    g.lab(ok)
def check(g, need, areg, off, vsrc):
    if g.inl:
        lp = g.newlab("L_cl"); ok = g.newlab("L_cok")
        g.e("s_mov_b32 %s, %d" % (sSPN, -(SPIN_MAX * 8) & 0xffffffff))
        g.lab(lp)
        g.e("v_cmp_gt_u32 vcc, %d, v%d" % (need, vsrc)); g.e("s_cbranch_vccz %s" % ok)
        g.e("ds_read_b32 v%d, v%d offset:%d" % (vsrc, areg, off))
        g.e("s_add_u32 %s, %s, 1" % (sSPN, sSPN))
        g.e("s_waitcnt lgkmcnt(0)")
        g.e("s_cbranch_scc0 %s" % lp)
        g.lab(ok)
        return
    sl = g.newlab("L_slow"); back = g.newlab("L_back")
    g.e("v_cmp_gt_u32 vcc, %d, v%d" % (need, vsrc)); g.e("s_cbranch_vccnz %s" % sl); g.lab(back)
    g.slow.append((sl, back, need, areg, off, vsrc))
def bump(g, areg, off=0): g.e("ds_add_u32 v%d, v%d offset:%d" % (areg, vONE, off))

def flag_regs(g, prod):
    t0 = vT
    g.e("v_and_b32 v%d, 3, v%d" % (t0, vLANE)); g.e("v_and_b32 v%d, 2, v%d" % (vFA, t0)); g.e("v_lshlrev_b32 v%d, 5, v%d" % (vFA, vFA))
    g.e("v_lshlrev_b32 v%d, 7, v%d" % (t0, t0)); g.e("v_sub_u32 v%d, v%d, v%d" % (vFA, t0, vFA))
    g.e("v_add_u32 v%d, %d, v%d" % (vFA, FBASE + 120, vFA))
    g.e("v_mov_b32 v%d, %d" % (vGR, FBASE)); g.e("v_mov_b32 v%d, 0x7ffffff0" % vGW); g.e("v_mov_b32 v%d, 1" % vONE)
    g.e("v_cmp_eq_u32 vcc, 0, v%d" % vLANE)
    g.e("s_lshl_b32 %s, %s, 7" % (sT0, sP)); g.e("s_and_b32 %s, %s, 2" % (sT1, sP)); g.e("s_lshl_b32 %s, %s, 5" % (sT1, sT1))
    g.e("s_sub_u32 %s, %s, %s" % (sT0, sT0, sT1))
    g.e("s_cmp_lt_u32 %s, 4" % sWV); g.e("s_cselect_b32 %s, 512, 0" % sT1); g.e("s_add_u32 %s, %s, %s" % (sT0, sT0, sT1)); g.e("s_add_u32 %s, %s, 120" % (sT0, sT0))
    g.e("v_cndmask_b32 v%d, v%d, v%d, vcc" % (vGW, vGW, vGR))
    g.e("v_add_u32 v%d, %s, v%d" % (vFB, sT0, vGW))

def get_nonce(g):
    lp = g.newlab("L_nlp"); ok = g.newlab("L_nok")
    g.e("s_mov_b32 %s, 0" % sSPN)
    g.lab(lp)
    g.e("v_readfirstlane_b32 s60, v%d" % vNON); g.e("v_readfirstlane_b32 s61, v%d" % (vNON + 1))
    g.e("s_add_u32 %s, %s, 1" % (sSPN, sSPN))
    g.e("s_cmp_lg_u32 s60, 0"); g.e("s_cbranch_scc1 %s" % ok)
    g.e("s_cmp_gt_u32 %s, %d" % (sSPN, SPIN_MAX)); g.e("s_cbranch_scc1 %s" % ok)
    g.e("buffer_load_dwordx2 %s, v%d, %s, 0 offen sc1" % (vr(vNON, 2), vZ, sDBG))
    g.e("s_waitcnt vmcnt(0)")
    g.e("s_branch %s" % lp)
    g.lab(ok)
def store_flag(g, soff):
    g.e("s_mov_b64 exec, 1")
    g.e("buffer_store_dwordx2 %s, v%d, %s, %s offen sc1" % (vr(vNON, 2), vZ, sWS, soff))
    g.e("s_mov_b64 exec, -1")
def poll(g, vaddr, mask):
    lp = g.newlab("L_poll"); ok = g.newlab("L_pok")
    g.e("s_mov_b64 exec, %s" % mask)
    g.e("s_mov_b32 %s, 0" % sSPN)
    g.lab(lp)
    g.e("buffer_load_dwordx2 %s, v%d, %s, 0 offen sc1" % (vr(vNON + 2, 2), vaddr, sWS))
    g.e("s_add_u32 %s, %s, 1" % (sSPN, sSPN))
    g.e("s_waitcnt vmcnt(0)")
    g.e("v_cmp_ne_u64 vcc, %s, %s" % (sNON, vr(vNON + 2, 2)))
    g.e("s_cmp_gt_u32 %s, %d" % (sSPN, SPIN_MAX)); g.e("s_cbranch_scc1 %s" % ok)
    g.e("s_cbranch_vccnz %s" % lp)
    g.lab(ok)
    g.e("s_mov_b64 exec, -1")

def setup_scalars(g, cut):
    g.e("s_cmp_eq_u32 %s, 0" % sBR)
    g.e("s_cselect_b32 s12, s36, s42"); g.e("s_cselect_b32 s13, s37, s43"); cut()
    g.e("s_mov_b32 s14, 0x%x" % WO_BYTES); g.e("s_mov_b32 s15, 0x20000"); cut()
    for (srd, a, n) in ((16, 48, WS_RECORDS), (20, 44, OUT_BYTES)):
        g.e("s_mov_b32 s%d, s%d" % (srd, a)); g.e("s_mov_b32 s%d, s%d" % (srd + 1, a + 1)); cut()
        g.e("s_mov_b32 s%d, 0x%x" % (srd + 2, n)); g.e("s_mov_b32 s%d, 0x20000" % (srd + 3)); cut()
    g.e("s_mov_b32 s68, 0"); g.e("s_mov_b32 s69, -1"); cut()
    g.e("s_mov_b32 %s, 0x%08x" % (sC, CSCALE)); g.e("s_lshl_b32 %s, %s, 10" % (sW1K, sWV)); cut()
    g.e("s_lshr_b32 %s, %s, 2" % (sHH, sWV)); g.e("s_sub_u32 %s, 3, %s" % (sT1, sP)); cut()
    g.e("s_cmp_lt_u32 %s, 4" % sWV); g.e("s_cselect_b32 %s, %s, %s" % (sRT, sT1, sP)); cut()
    g.e("s_lshl_b32 %s, %s, 3" % (sKVO, sBR)); g.e("s_add_u32 %s, %s, %s" % (sKVO, sKVO, sHP)); cut()
    g.e("s_lshl_b32 %s, %s, 4" % (sKVO, sKVO)); g.e("s_add_u32 %s, %s, %s" % (sKVO, sKVO, sR)); g.e("s_lshl_b32 %s, %s, 15" % (sKVO, sKVO)); cut()
    if g.map == 0:
        g.e("s_and_b32 %s, s2, 1" % sCB); g.e("s_lshl_b32 %s, %s, 1" % (sCB, sCB)); cut()
        g.e("s_bfe_u32 %s, s2, 0x10003" % sT0); g.e("s_add_u32 %s, %s, %s" % (sCB, sCB, sT0)); cut()
        g.e("s_bfe_u32 %s, s2, 0x20001" % sRB); g.e("s_lshl_b32 %s, %s, 3" % (sRB, sRB)); cut()
        g.e("s_bfe_u32 %s, s2, 0x30004" % sT0); g.e("s_add_u32 %s, %s, %s" % (sRB, sRB, sT0)); cut()
    else:
        g.e("s_and_b32 %s, s2, 1" % sCB); g.e("s_lshl_b32 %s, %s, 1" % (sCB, sCB)); cut()
        g.e("s_bfe_u32 %s, s2, 0x10003" % sT0); g.e("s_add_u32 %s, %s, %s" % (sCB, sCB, sT0)); cut()
        g.e("s_bfe_u32 %s, s2, 0x10001" % sRB); g.e("s_lshl_b32 %s, %s, 4" % (sRB, sRB)); cut()
        g.e("s_lshr_b32 %s, s2, 4" % sT0); g.e("s_add_u32 %s, %s, %s" % (sRB, sRB, sT0)); cut()
    g.e("s_mul_i32 %s, %s, 3584" % (sWOS, sWV)); g.e("s_lshl_b32 %s, %s, 8" % (sT0, sCB)); g.e("s_add_u32 %s, %s, %s" % (sWOS, sWOS, sT0)); cut()

def setup_vec(g, isA, cut):
    t0, t1, t2 = vT, vT + 1, vT + 2
    g.e("s_lshl_b32 %s, %s, 14" % (sT0, sHH)); g.e("s_lshl_b32 %s, %s, 12" % (sT1, sRT)); cut()
    g.e("s_add_u32 %s, %s, %s" % (sT0, sT0, sT1)); g.e("s_add_u32 %s, %s, %d" % (sT0, sT0, L_OWN)); g.e("v_add_u32 v%d, %s, v%d" % (vAD, sT0, vL16)); cut()
    for u in range(1, 9 if isA else 2):
        cross = ((L_R1 - L_OWN) if u <= 4 else (L_R2 - L_R1)) + 12288
        g.e("s_mov_b32 %s, 0x%x" % (sT1, cross & 0xffffffff))
        g.e("s_cmp_eq_u32 %s, %d" % (sRT, (u - 1) % 4))
        g.e("s_cselect_b32 %s, %s, 0x%x" % (sT0, sT1, (-4096) & 0xffffffff))
        g.e("v_add_u32 v%d, %s, v%d" % (vAD + u, sT0, vAD + u - 1)); cut()
    g.e("v_lshrrev_b32 v%d, 4, v%d" % (t0, vLANE)); g.e("v_lshlrev_b32 v%d, 2, v%d" % (t1, t0)); cut()
    g.e("v_and_b32 v%d, 15, v%d" % (t2, vLANE)); g.e("v_xor_b32 v%d, v%d, v%d" % (t1, t1, t2)); cut()
    g.e("v_mul_u32_u24 v%d, 896, v%d" % (vWOO, t0)); g.e("v_lshl_add_u32 v%d, v%d, 4, v%d" % (vWOO, t1, vWOO)); cut()
    g.e("s_cmp_eq_u32 %s, 3" % sCB); g.e("s_cselect_b32 %s, 8, 64" % sT0)
    g.e("v_mov_b32 v%d, 0x%x" % (t2, OOB)); cut()
    g.e("v_cmp_le_u32 vcc, %s, v%d" % (sT0, t1))
    g.e("s_lshl_b32 %s, %s, 7" % (sT1, sHH)); g.e("v_add_u32 v%d, %s, v%d" % (vG1, sT1, vGR))
    g.e("v_cndmask_b32 v%d, v%d, v%d, vcc" % (vWOO, vWOO, t2)); cut()

def masks(g, isA):
    g.e("v_mov_b32 v%d, 0x%08x" % (vT, NEG))
    for r in range(16):
        if isA:
            g.mask(lane_mask(lambda l: key_of(r, l) <= (l & 31)))
            g.e("v_cndmask_b32 v%d, v%d, 0, %s" % (vC1 + r, vT, sTM))
            g.e("v_cndmask_b32 v%d, 0, v%d, %s" % (vC2 + r, vT, sTM))
        else:
            g.mask(lane_mask(lambda l: ((l & 31) - key_of(r, l)) in range(0, 16, 2)))
            g.e("v_cndmask_b32 v%d, v%d, 0, %s" % (vC1 + r, vT, sTM))
            g.mask(lane_mask(lambda l: (32 + (l & 31) - key_of(r, l)) in range(0, 16, 2)))
            g.e("v_cndmask_b32 v%d, v%d, 0, %s" % (vC2 + r, vT, sTM))
    if not isA:
        skip = g.newlab("L_c2")
        g.e("s_or_b32 %s, %s, %s" % (sT0, sR, sRT)); g.e("s_cmp_lg_u32 %s, 0" % sT0); g.e("s_cbranch_scc1 %s" % skip)
        for r in range(16): g.e("v_mov_b32 v%d, v%d" % (vC2 + r, vT))
        g.lab(skip)

def xrd_addr(g, dst, srow_shift_reg):
    t0, t1, t2 = vT, vT + 1, vT + 2
    g.e("v_and_b32 v%d, 31, v%d" % (t0, vLANE)); g.e("v_bfe_u32 v%d, v%d, 1, 3" % (t1, vLANE))
    g.e("v_lshrrev_b32 v%d, 5, v%d" % (t2, vLANE)); g.e("v_xor_b32 v%d, v%d, v%d" % (t1, t1, t2))
    g.e("v_lshlrev_b32 v%d, 7, v%d" % (t0, t0)); g.e("v_add_u32 v%d, %s, v%d" % (t0, srow_shift_reg, t0))
    g.e("v_lshl_add_u32 v%d, v%d, 4, v%d" % (dst, t1, t0))
    for k in range(1, 4): g.e("v_xor_b32 v%d, %d, v%d" % (dst + k, k << 5, dst))
def wrd_addr(g, dst, colbyte):
    t0, t1, t2 = vT, vT + 1, vT + 2
    g.e("v_bfe_u32 v%d, v%d, 2, 2" % (t0, vLANE)); g.e("v_lshrrev_b32 v%d, 5, v%d" % (t2, vLANE))
    g.e("v_lshl_add_u32 v%d, v%d, 3, v%d" % (t1, t2, t0)); g.e("v_lshlrev_b32 v%d, 7, v%d" % (t1, t1))
    g.e("v_lshrrev_b32 v%d, 1, v%d" % (t0, t0)); g.e("v_lshlrev_b32 v%d, 6, v%d" % (t0, t0))
    g.e("v_and_b32 v%d, 3, v%d" % (t2, vLANE)); g.e("v_lshlrev_b32 v%d, 3, v%d" % (t2, t2))
    g.e("v_and_b32 v%d, 16, v%d" % (dst, vLANE)); g.e("v_lshl_add_u32 v%d, v%d, 1, v%d" % (t2, dst, t2))
    g.e("v_add_u32 v%d, %s, v%d" % (t2, colbyte, t2))
    g.e("v_xor_b32 v%d, v%d, v%d" % (t2, t2, t0)); g.e("v_add_u32 v%d, v%d, v%d" % (dst, t1, t2))

def producer_prep(g):
    t0, t1, t2, t3 = vT, vT + 1, vT + 2, vT + 3
    g.e("v_lshrrev_b32 v%d, 3, v%d" % (t0, vLANE)); g.e("v_lshrrev_b32 v%d, 4, v%d" % (t1, vLANE))
    g.e("v_xor_b32 v%d, v%d, v%d" % (t1, t1, vLANE)); g.e("v_and_b32 v%d, 7, v%d" % (t1, t1))
    g.e("v_mul_u32_u24 v%d, 896, v%d" % (t2, t0))
    g.e("v_lshl_add_u32 v%d, v%d, 4, v%d" % (vXO, t1, t2))
    g.e("v_xor_b32 v%d, 64, v%d" % (t3, vXO))
    g.e("v_add_u32 v%d, %d, v%d" % (vXO + 1, 7168 - 1024, t3))
    g.e("v_add_u32 v%d, %d, v%d" % (vXO + 2, 2 * (7168 - 1024), vXO))
    g.e("v_add_u32 v%d, %d, v%d" % (vXO + 3, 3 * (7168 - 1024), t3))
    g.e("v_lshrrev_b32 v%d, 2, v%d" % (t1, vLANE)); g.e("v_and_b32 v%d, 4, v%d" % (t1, t1))
    g.e("v_and_b32 v%d, 7, v%d" % (t2, vLANE)); g.e("v_xor_b32 v%d, v%d, v%d" % (t1, t1, t2)); g.e("v_min_u32 v%d, 6, v%d" % (t1, t1))
    g.e("v_mul_u32_u24 v%d, 2688, v%d" % (t2, t0)); g.e("v_lshl_add_u32 v%d, v%d, 4, v%d" % (t2, t1, t2))
    for q in range(4):
        t, h = divmod(q, 2)
        g.e("v_add_u32 v%d, %d, v%d" % (vWO + q, WBIAS + h * 8 * 2688 + (t + 1) * 896 - q * 1024, t2))
    for h in range(2): g.e("v_add_u32 v%d, %d, v%d" % (vWQ + h, WBIAS + h * 8 * 2688 - h * 1024, t2))
    g.e("s_mul_i32 %s, %s, %d" % (sXS, sR, 128 * 896)); g.e("s_mul_i32 %s, %s, %d" % (sT1, sP, 32 * 896)); g.e("s_add_u32 %s, %s, %s" % (sXS, sXS, sT1))
    g.e("s_mul_i32 %s, %s, 112" % (sWSO, sHP)); g.e("s_mul_i32 %s, %s, %d" % (sT1, sP, 16 * 2688)); g.e("s_add_u32 %s, %s, %s" % (sWSO, sWSO, sT1))
    g.e("s_lshl_b32 %s, %s, 12" % (sXB, sP)); g.e("s_lshl_b32 %s, %s, 11" % (sWB, sP))

def issue_item(g, vm, i):
    if i < 7:
        slot = (i % 5) * SLOT
        g.e("s_add_u32 m0, %s, %d" % (sXB, slot))
        if i: g.e("s_add_u32 %s, %s, 128" % (sXS, sXS))
        else: g.e("s_nop 0")
        for m in range(4): g.e("buffer_load_dwordx4 v%d, %s, %s offen%s%s lds" % (vXO + m, sX, sXS, " offset:%d" % (m * 1024) if m else "", g.ldf))
        g.e("s_add_u32 m0, %s, %d" % (sXB, slot + 16384))
        if i: g.e("s_add_u32 %s, %s, %d" % (sWSO, sWSO, 64 * 2688))
        else: g.e("s_mov_b32 %s, %s" % (sKC, sWSO))
        for q in range(4):
            if i == 2 and q == 3: g.e("s_mov_b64 exec, %s" % sHM)
            g.e("buffer_load_dwordx4 v%d, %s, %s offen%s%s lds" % (vWO + q, sW, sWSO, " offset:%d" % (q * 1024) if q else "", g.ldf))
        if i == 2: g.e("s_mov_b64 exec, -1")
        vm.add(i, 8)
    else:
        cs = range(4) if i == 7 else range(4, 7)
        for c in cs:
            g.e("s_add_u32 m0, %s, %d" % (sWB, L_WQ + c * 8192))
            if c: g.e("s_add_u32 %s, %s, %d" % (sKC, sKC, 64 * 2688))
            else: g.e("s_nop 0")
            g.e("buffer_load_dwordx4 v%d, %s, %s offen lds" % (vWQ, sW, sKC))
            if c == 3: g.e("s_mov_b64 exec, %s" % sHM)
            g.e("buffer_load_dwordx4 v%d, %s, %s offen offset:1024 lds" % (vWQ + 1, sW, sKC))
            if c == 3: g.e("s_mov_b64 exec, -1")
        vm.add(i, 2 * len(cs))

def early_dbg(g):
    g.e("s_mov_b32 s24, s46"); g.e("s_mov_b32 s25, s47"); g.e("s_mov_b32 s26, 256"); g.e("s_mov_b32 s27, 0x20000")
    g.e("v_mov_b32 v%d, 0" % vZ); g.e("v_lshlrev_b32 v%d, 4, v%d" % (vL16, vLANE))

def producer(g, isA):
    dist = g.dA if isA else g.dB
    assert dist >= 2
    vm = Q(); lg = Q()
    vm.add(0, 8); vm.add(1, 8)
    m = lane_mask(lambda l: ((l & 7) ^ (4 * ((l >> 4) & 1))) != 7)
    g.e("s_mov_b32 s38, 0x%08x" % (m & 0xffffffff)); g.e("s_mov_b32 s39, 0x%08x" % (m >> 32))
    g.e("s_cmp_eq_u32 %s, 7" % sWV); g.e("s_cselect_b64 %s, %s, -1" % (sHM, sHM))
    g.stamp(1)
    nxt = 2; win = 0
    for i in range(9):
        g.wv(vm.wait(i))
        if i >= 1: g.wl(lg.wait(("x", i - 1)))
        bump(g, vFB); lg.add("f")
        if i == 0: g.stamp(2)
        if "pit" in g.exp and i >= 1: g.only = None; g.stamp(2 + i); g.only = (0, 1, 2, 14)
        if i < 7:
            wn = (i % 5) // 2
            if wn != win:
                for k in range(4): g.e("v_add_u32 v%d, 0x%x, v%d" % (vXRD + k, ((wn - win) * 65536) & 0xffffffff, vXRD + k))
                win = wn
            for ks in range(4): g.e("ds_read_b128 %s, v%d offset:%d" % (vr(vXF + 16 * i + 4 * ks, 4), vXRD + ks, (i % 5 % 2) * SLOT))
            lg.add(("x", i), 4)
        while nxt <= 8 and nxt <= i + dist:
            if nxt >= 5:
                spin(g, nxt - 4, vFA, 512, vFV); lg.clear()
            if nxt == 8 and g.late8: break
            issue_item(g, vm, nxt); nxt += 1
        if i == g.ps1:
            early_dbg(g)
            wrd_addr(g, vWRD, 0); g.e("v_add_u32 v%d, %d, v%d" % (vWRD, L_WQ, vWRD)); wrd_addr(g, vQW, 56); g.e("v_add_u32 v%d, %d, v%d" % (vQW, L_WQ, vQW))
            for grp in g.capture(lambda cut: setup_scalars(g, cut)): g.l += grp
        if i == g.ps2: masks(g, isA)
        if i == 7:
            bump(g, vGW, F_XD); lg.add("f")
            g.e("buffer_load_dwordx2 %s, v%d, %s, 0 offen sc1" % (vr(vNON, 2), vZ, sDBG)); vm.add("non")
            g.stamp(3)
            q_phase_begin = True
            break
    late = g.capture(lambda cut: setup_vec(g, isA, cut))
    aQ = vACC; WB = 64
    def rd(j, hds=(0, 1)):
        c, ks = divmod(j, 4)
        b = WB + (j % 3) * 8
        for hd in hds:
            for h in range(2):
                g.e("ds_read_b64_tr_b16 %s, v%d offset:%d" % (vr(b + 4*hd + 2*h, 2), vQW if hd else vWRD, c * 8192 + ks * 2048 + h * 512))
            lg.add((j, hd), 2)
    spin(g, 8, vFA, 0, vFV); lg.clear()
    if g.late8 == 1:
        spin(g, 4, vGR, F_ST, vFV); issue_item(g, vm, 8)
    if g.qprio: g.e("s_setprio %d" % g.qprio)
    g.stamp(5)
    rd(0); rd(1)
    for j in range(28):
        b = WB + (j % 3) * 8
        if j == g.late8 and g.late8 > 1: issue_item(g, vm, 8)
        if j == 12 - 0 * g.late8 + (0 if g.late8 else -2):
            g.wv(vm.wait(8)); bump(g, vFB); lg.add("f")
        for hd in range(2):
            g.wl(lg.wait((j, hd)))
            g.mfma(aQ + 16 * hd, b + 4 * hd, vXF + 4 * j, None if j == 0 else aQ + 16 * hd)
            if hd == 0:
                if j == 13: g.e("ds_read_b32 v%d, v%d" % (vFV, vFA)); lg.add("flag")
                if j == 14:
                    g.wl(lg.wait("flag")); check(g, 9, vFA, 0, vFV); g.stamp(6)
            if j + 2 < 28: rd(j + 2, (hd,))
            if late and j >= 16: g.l += late.pop(0)
    for grp in late: g.l += grp
    g.e("v_mov_b32 v%d, %s" % (vT + 1, sC))
    g.e("v_cndmask_b32 v%d, v%d, 0, %s" % (vT + 2, vT + 1, sUP))
    g.e("s_lshl_b32 %s, %s, 11" % (sT0, sP)); g.e("s_add_u32 %s, %s, %d" % (sT0, sT0, L_QA)); g.e("v_add_u32 v%d, %s, v%d" % (vT, sT0, vL16))
    g.e("s_nop 5")
    for hd in range(2):
        a = aQ + 16 * hd; p = a if hd == 0 else vQF
        for r in range(16): g.e("v_mul_f32 v%d, v%d, v%d" % (a + r, vT + (2 if r >= 12 else 1), a + r))
        for i in range(8): g.e("v_cvt_pk_bf16_f32 v%d, v%d, v%d" % (p + i, a + 2*i, a + 2*i + 1))
        if hd == 0:
            for f in range(2): g.e("ds_write_b128 v%d, %s offset:%d" % (vT, vr(p + 4*f, 4), f * 1024))
            g.e("s_waitcnt lgkmcnt(0)")
            bump(g, vGW, F_QRDY)
    if g.qprio: g.e("s_setprio %d" % g.aprio)
    g.e("s_waitcnt vmcnt(0)")
    get_nonce(g)
    if g.wotouch:
        nt = g.newlab("L_nwt")
        g.e("s_cmp_gt_u32 %s, 5" % sWV); g.e("s_cbranch_scc1 %s" % nt)
        nsh = 8 if g.map == 0 else 16
        g.e("s_and_b32 %s, %s, %d" % (sT0, sRB, nsh - 1)); g.e("s_mul_i32 %s, %s, %d" % (sT0, sT0, (448 // nsh) * 896))
        g.e("s_lshl_b32 %s, %s, 8" % (sT1, sCB)); g.e("s_add_u32 %s, %s, %s" % (sT0, sT0, sT1))
        g.e("s_and_b32 %s, %s, 1" % (sT1, sWV)); g.e("s_lshl_b32 %s, %s, 7" % (sT1, sT1)); g.e("s_add_u32 %s, %s, %s" % (sT0, sT0, sT1))
        g.e("v_mul_u32_u24 v%d, 896, v%d" % (vT, vLANE))
        mm = (1 << (448 // nsh)) - 1
        g.mask(mm); g.e("s_mov_b64 exec, %s" % sTM)
        g.e("buffer_load_dword v%d, v%d, %s, %s offen" % (vGX + 1, vT, sWO, sT0))
        g.e("s_mov_b64 exec, -1")
        g.lab(nt)
    g.stamp(4)
    spin(g, 4, vGR, F_OWN, vFV)

def consumer(g, isA):
    t0, t1, t2 = vT, vT + 1, vT + 2
    early_dbg(g)
    skip = g.newlab("L_non")
    g.e("s_or_b32 %s, s2, %s" % (sT0, sWV)); g.e("s_cmp_lg_u32 %s, 0" % sT0); g.e("s_cbranch_scc1 %s" % skip)
    g.e("s_memrealtime %s" % sNON); g.e("s_waitcnt lgkmcnt(0)"); g.e("s_or_b32 s60, s60, 1")
    g.e("v_mov_b32 v%d, s60" % vNON); g.e("v_mov_b32 v%d, s61" % (vNON + 1))
    g.e("s_mov_b64 exec, 1")
    g.e("buffer_store_dwordx2 %s, v%d, %s, 0 offen sc1" % (vr(vNON, 2), vZ, sDBG))
    g.e("s_mov_b64 exec, -1")
    g.lab(skip)
    if g.ctouch:
        ct = g.newlab("L_ct")
        g.e("s_cmp_lg_u32 %s, 1" % sWV); g.e("s_cbranch_scc1 %s" % ct)
        pc = g.newlab("L_pc")
        g.e("s_getpc_b64 s[16:17]")
        g.lab(pc)
        g.e("s_sub_u32 s16, s16, %s-%s_kernel" % (pc, NAME)); g.e("s_subb_u32 s17, s17, 0")
        g.e("s_mov_b32 s18, L_codeend-%s_kernel" % NAME); g.e("s_mov_b32 s19, 0x20000")
        g.e("s_lshr_b32 %s, s2, 3" % sT0); g.e("s_mul_i32 %s, %s, %d" % (sT0, sT0, 16 * 128))
        g.e("v_lshlrev_b32 v%d, 7, v%d" % (vT, vLANE))
        g.e("s_mov_b64 exec, 0xffff")
        g.e("buffer_load_dword v192, v%d, s[16:19], %s offen" % (vT, sT0))
        g.e("s_mov_b64 exec, -1")
        g.lab(ct)
    if g.touch and not isA: touch(g)
    g.e("s_and_b32 %s, %s, 1" % (sT2, sWV)); g.e("s_lshl_b32 %s, %s, 13" % (sT2, sT2))
    xrd_addr(g, vXRD, sT2)
    g.e("s_lshr_b32 %s, %s, 1" % (sT3, sWV)); g.e("s_mul_i32 %s, %s, 56" % (sT1, sT3))
    wrd_addr(g, vWRD, sT1)
    sa = lambda wn, k: vQF + 5 * wn + k
    for wn in range(3):
        for k in range(4): g.e("v_add_u32 v%d, 0x%x, v%d" % (sa(wn, k), wn * 65536, vXRD + k))
        g.e("v_add_u32 v%d, 0x%x, v%d" % (sa(wn, 4), wn * 65536, vWRD))
    g.e("s_lshl_b32 %s, %s, 13" % (sT4, sWV))
    g.e("s_add_u32 %s, %s, %d" % (sT0, sT4, L_OWN)); g.e("v_add_u32 v%d, %s, v%d" % (vKVW, sT0, vL16))
    for grp in g.capture(lambda cut: setup_scalars(g, cut)): g.l += grp
    g.stamp(1)
    lg = Q()
    def rd_ops(j):
        i, ks = divmod(j, 4)
        xb, wb = vXB + (j % 3) * 8, vWB + (j % 3) * 8
        sl = i % 5; ax = sa(sl // 2, ks); aw = sa(sl // 2, 4); base = (sl % 2) * SLOT
        tr = lambda t, h: "ds_read_b64_tr_b16 %s, v%d offset:%d" % (vr(wb + 4*t + 2*h, 2), aw, base + 16384 + ks * 4096 + t * 2048 + h * 512)
        return [((j, "x0"), "ds_read_b128 %s, v%d offset:%d" % (vr(xb, 4), ax, base)), ((j, "k"), tr(0, 0)), ((j, "k"), tr(0, 1)),
                ((j, "x1"), "ds_read_b128 %s, v%d offset:%d" % (vr(xb + 4, 4), ax, base + 4096)), ((j, "v"), tr(1, 0)), ((j, "v"), tr(1, 1))]
    def emit(op):
        g.e(op[1]); lg.add(op[0])
    spin(g, 1, vFA, 0, vFV)
    g.stamp(2)
    for j in range(2):
        for op in rd_ops(j): emit(op)
    aK, aV = vACC, vACC + 32
    dist = [2, 1, 2, 1]
    for j in range(28):
        xb, wb = vXB + (j % 3) * 8, vWB + (j % 3) * 8
        nx = rd_ops(j + 2) if j + 2 < 28 else []
        mms = [((j, "k"), aK, wb, xb), ((j, "x1"), aK + 16, wb, xb + 4), ((j, "v"), aV, xb, wb + 4), (None, aV + 16, xb + 4, wb + 4)]
        for n, (dep, d, a, b) in enumerate(mms):
            if dep is not None: g.wl(lg.wait(dep))
            g.mfma(d, a, b, None if j == 0 else d)
            if n == 0 and nx and (j + 2) % 4 == 0:
                g.wl(lg.wait(("flag", (j + 2) // 4))); check(g, (j + 2) // 4 + 1, vFA, 0, vFV)
                if "pit" in g.exp: g.only = None; g.stamp(2 + (j + 2) // 4); g.only = (0, 1, 2, 14)
            for _ in range(dist[n]):
                if nx: emit(nx.pop(0))
            if n == 1 and (j + 3) % 4 == 0 and j + 3 < 28:
                g.e("ds_read_b32 v%d, v%d" % (vFV, vFA)); lg.add(("flag", (j + 3) // 4))
            if n == 3 and j % 4 == 3:
                bump(g, vFB); lg.add("done")
            if n == 1 and j == 26:
                g.e("ds_read_b32 v%d, v%d offset:512" % (vFV, vFA)); lg.add("alldone")
            if j == 18 and n == 3: g.e("buffer_load_dwordx2 %s, v%d, %s, 0 offen sc1" % (vr(vNON, 2), vZ, sDBG))
    g.stamp(3)
    g.e("v_mov_b32 v%d, 0x3f803f80" % vT)
    g.mask(lane_mask(lambda l: (l & 31) == 28))
    g.e("s_add_u32 %s, %s, %s" % (sT1, sT4, sKVO)); g.e("s_add_u32 %s, %s, 4096" % (sT0, sT1))
    g.wl(lg.wait("alldone")); check(g, 5, vFA, 512, vFV)
    g.e("s_nop 1")
    def pub(t, f, p):
        if isA: g.e("buffer_store_dwordx4 %s, v%d, %s, %s offen offset:%d%s" % (vr(p, 4), vL16, sWS, sT0 if t else sT1, f * 1024, g.stf))
    for t in range(2):
        p = aK + 16 * t
        for i in range(8): g.e("v_cvt_pk_bf16_f32 v%d, v%d, v%d" % (p + i, p + 2*i, p + 2*i + 1))
        g.e("v_cndmask_b32 v%d, v%d, v%d, %s" % (p + 6, p + 6, vT, sUP))
        for f in range(2): pub(t, f, p + 4*f)
    for t in range(2):
        p = aV + 16 * t
        for f in range(2):
            for i in range(4*f, 4*f + 4): g.e("v_cvt_pk_bf16_f32 v%d, v%d, v%d" % (p + i, p + 2*i, p + 2*i + 1))
            for i in range(4*f, 4*f + 4): g.e("v_cndmask_b32 v%d, v%d, v%d, %s" % (p + i, p + i, vT, sTM))
            pub(t, 2 + f, p + 4*f)
    if not isA:
        sk = g.newlab("L_bpub")
        g.e("s_bitcmp0_b32 %s, 0" % sWV); g.e("s_cbranch_scc1 %s" % sk)
        for f in range(4):
            p = (aK + 16 + 4*f) if f < 2 else (aV + 16 + 4*(f - 2))
            g.e("buffer_store_dwordx4 %s, v%d, %s, %s offen offset:%d%s" % (vr(p, 4), vL16, sWS, sT0, f * 1024, g.stf))
        g.lab(sk)
    bump(g, vGW, F_ST)
    for t in range(2):
        for f in range(4):
            p = (aK + 16*t + 4*f) if f < 2 else (aV + 16*t + 4*(f - 2))
            g.e("ds_write_b128 v%d, %s offset:%d" % (vKVW, vr(p, 4), t * 4096 + f * 1024))
    for grp in g.capture(lambda cut: setup_vec(g, isA, cut)): g.l += grp
    g.e("s_waitcnt lgkmcnt(0)")
    bump(g, vGW, F_OWN)
    g.e("s_lshr_b32 %s, %s, 8" % (sT1, sKVO)); g.e("s_lshl_b32 %s, %s, 3" % (sT2, sWV))
    g.e("s_add_u32 %s, %s, %s" % (sT1, sT1, sT2)); g.e("s_add_u32 %s, %s, 0x%x" % (sT1, sT1, WS_KVFLAG))
    g.e("s_waitcnt vmcnt(0)")
    get_nonce(g)
    store_flag(g, sT1)
    g.stamp(4)
    done = g.newlab("L_ldd")
    if not isA or g.r2late:
        g.e("s_cmp_lt_u32 %s, 2" % sWV); g.e("s_cbranch_scc1 %s" % done)
    fetch_remote(g, isA)
    if not isA:
        g.e("s_waitcnt vmcnt(0)")
        bump(g, vFB)
    g.lab(done)
    g.stamp(6)
    masks(g, isA)
    g.e("s_lshl_b32 %s, %s, 11" % (sT0, sRT)); g.e("s_add_u32 %s, %s, %d" % (sT0, sT0, L_QA)); g.e("v_add_u32 v%d, %s, v%d" % (vT, sT0, vL16))
    spin(g, 4, vGR, F_OWN, vFV); spin(g, 4, vGR, F_QRDY, vFV)
    for f in range(2): g.e("ds_read_b128 %s, v%d offset:%d" % (vr(vQF + 4*f, 4), vT, f * 1024))

def fetch_remote(g, isA):
    nopoll = g.newlab("L_nopoll")
    g.e("s_lshr_b32 %s, %s, 1" % (sT3, sRT))
    spin(g, 7, vFA, 512, vFV); spin(g, 4, vGR, F_XD, vFV)
    g.e("s_and_b32 %s, %s, 1" % (sT2, sRT)); g.e("s_add_u32 %s, %s, 1" % (sT4, sT3))
    g.e("s_lshl_b32 %s, %s, 15" % (sT0, sT4)); g.e("s_sub_u32 %s, %s, %s" % (sXS, sKVO, sT0))
    g.e("s_cmp_lt_u32 %s, %s" % (sR, sT4)); g.e("s_cselect_b32 %s, 0x%x, %s" % (sWSO, OOB, sXS))
    g.e("s_cbranch_scc1 %s" % nopoll)
    g.e("s_lshr_b32 %s, %s, 8" % (sT0, sXS)); g.e("s_lshl_b32 %s, %s, 4" % (sT1, sT2)); g.e("s_add_u32 %s, %s, %s" % (sT0, sT0, sT1))
    g.e("s_add_u32 %s, %s, 0x%x" % (sT0, sT0, WS_KVFLAG))
    g.e("v_lshlrev_b32 v%d, 3, v%d" % (vT, vLANE)); g.e("v_add_u32 v%d, %s, v%d" % (vT, sT0, vT))
    poll(g, vT, "3" if isA else "2")
    g.lab(nopoll)
    g.stamp(5)
    g.e("s_lshl_b32 %s, %s, 14" % (sT2, sT2)); g.e("s_add_u32 %s, %s, %s" % (sWSO, sWSO, sT2))
    g.e("s_lshl_b32 %s, %s, 15" % (sT0, sT3)); g.e("s_sub_u32 %s, %d, %s" % (sT0, L_R1, sT0)); g.e("s_add_u32 %s, %s, %s" % (sT2, sT2, sT0))
    for t in ((3, 2, 1, 0) if isA else (3,)):
        g.e("s_add_u32 m0, %s, %d" % (sT2, t * 4096))
        g.e("s_add_u32 %s, %s, %d" % (sT0, sWSO, t * 4096))
        for f in range(4): g.e("buffer_load_dwordx4 v%d, %s, %s offen offset:%d sc1 lds" % (vL16, sWS, sT0, f * 1024))
    g.e("s_lshl_b32 %s, %s, 7" % (sT0, sRT)); g.e("s_lshl_b32 %s, %s, 6" % (sT1, sT3)); g.e("s_sub_u32 %s, %s, %s" % (sT0, sT0, sT1))
    g.e("s_add_u32 %s, %s, 124" % (sT0, sT0)); g.e("v_add_u32 v%d, %s, v%d" % (vFB, sT0, vGW))

def touch(g):
    if g.touch == 1: return touch1(g)
    t0, t1, t2, t3 = vT, vT + 1, vT + 2, vT + 3
    isw = g.newlab("L_tw"); end = g.newlab("L_te")
    g.e("s_bfe_u32 %s, s2, 0x40003" % sT0); g.e("s_lshl_b32 %s, %s, 7" % (sT0, sT0))
    g.e("v_and_b32 v%d, 127, v0" % t0); g.e("v_add_u32 v%d, %s, v%d" % (t0, sT0, t0))
    g.e("v_mov_b32 v%d, 0x%x" % (t3, OOB))
    g.e("s_mov_b32 s19, 0x20000"); g.e("s_mov_b32 s23, 0x20000")
    g.e("s_cmp_ge_u32 %s, 2" % sWV); g.e("s_cbranch_scc1 %s" % isw)
    g.e("s_mov_b32 s16, s32"); g.e("s_mov_b32 s17, s33"); g.e("s_mov_b32 s18, 0x%x" % X_BYTES)
    g.e("s_mov_b32 s20, s4"); g.e("s_mov_b32 s21, s5"); g.e("s_mov_b32 s22, 0x%x" % X_BYTES)
    g.e("v_and_b32 v%d, 511, v%d" % (t1, t0)); g.e("v_mul_u32_u24 v%d, 896, v%d" % (t1, t1))
    g.e("v_lshrrev_b32 v%d, 9, v%d" % (t2, t0)); g.e("v_cmp_gt_u32 vcc, 3, v%d" % t2)
    g.e("v_lshl_add_u32 v%d, v%d, 7, v%d" % (t1, t2, t1))
    g.e("s_bfe_u32 %s, s2, 0x20001" % sT0); g.e("s_mul_i32 %s, %s, %d" % (sT0, sT0, 512 * 896))
    g.e("v_cndmask_b32 v%d, v%d, v%d, vcc" % (t1, t3, t1))
    n = 0
    for srd in ("s[16:19]", "s[20:23]"):
        for c0 in (1, 4):
            g.e("buffer_load_dword v%d, v%d, %s, %s offen offset:%d" % (186 + n, t1, srd, sT0, c0 * 128)); n += 1
    g.e("s_branch %s" % end)
    g.lab(isw)
    g.e("s_mov_b32 s16, s34"); g.e("s_mov_b32 s17, s35"); g.e("s_mov_b32 s18, 0x%x" % W_BYTES)
    g.e("s_mov_b32 s20, s40"); g.e("s_mov_b32 s21, s41"); g.e("s_mov_b32 s22, 0x%x" % W_BYTES)
    g.e("v_lshrrev_b32 v%d, 3, v%d" % (t2, t0)); g.e("v_cmp_gt_u32 vcc, 192, v%d" % t2)
    g.e("v_mul_u32_u24 v%d, 2688, v%d" % (t1, t2))
    g.e("v_bfe_u32 v%d, v%d, 2, 1" % (t2, t0)); g.e("v_mul_u32_u24 v%d, 896, v%d" % (t2, t2)); g.e("v_add_u32 v%d, v%d, v%d" % (t1, t1, t2))
    g.e("v_and_b32 v%d, 3, v%d" % (t2, t0)); g.e("v_lshlrev_b32 v%d, 7, v%d" % (t2, t2)); g.e("v_add_u32 v%d, v%d, v%d" % (t1, t1, t2))
    g.e("v_cndmask_b32 v%d, v%d, v%d, vcc" % (t1, t3, t1))
    g.e("v_lshrrev_b32 v%d, 2, v%d" % (t0, t0)); g.e("v_mul_u32_u24 v%d, 2688, v%d" % (t0, t0)); g.e("v_add_u32 v%d, v%d, v%d" % (t0, t0, t2))
    g.e("s_and_b32 %s, s2, 1" % sT0); g.e("s_mul_i32 %s, %s, 384" % (sT0, sT0))
    g.e("s_add_u32 %s, %s, %d" % (sT1, sT0, 64 * 2688 + 896)); g.e("s_add_u32 %s, %s, %d" % (sT2, sT0, 4 * 64 * 2688 + 896))
    n = 0
    for srd in ("s[16:19]", "s[20:23]"):
        for so in (sT1, sT2):
            g.e("buffer_load_dword v%d, v%d, %s, %s offen" % (186 + n, t1, srd, so)); n += 1
        g.e("buffer_load_dword v%d, v%d, %s, %s offen" % (186 + n, t0, srd, sT0)); n += 1
    g.lab(end)

def touch1(g):
    t0, t1, t2 = vT, vT + 1, vT + 2
    for tb in ([0, 1] if g.map == 0 else [1]):
        px, pw = (32, 34) if tb == 0 else (4, None)
        if tb == 0:
            g.e("s_mov_b32 s16, s32"); g.e("s_mov_b32 s17, s33"); g.e("s_mov_b32 s20, s34"); g.e("s_mov_b32 s21, s35")
        else:
            g.e("s_mov_b32 s16, s4"); g.e("s_mov_b32 s17, s5"); g.e("s_mov_b32 s20, s40"); g.e("s_mov_b32 s21, s41")
        g.e("s_mov_b32 s18, 0x%x" % X_BYTES); g.e("s_mov_b32 s19, 0x20000"); g.e("s_mov_b32 s22, 0x%x" % W_BYTES); g.e("s_mov_b32 s23, 0x20000")
        g.e("s_bfe_u32 %s, s2, 0x40003" % sT0); g.e("s_lshl_b32 %s, %s, 8" % (sT0, sT0))
        g.e("v_add_u32 v%d, %s, v0" % (t0, sT0))
        g.e("v_and_b32 v%d, 511, v%d" % (t1, t0)); g.e("v_mul_u32_u24 v%d, 896, v%d" % (t1, t1))
        g.e("v_lshrrev_b32 v%d, 9, v%d" % (t2, t0)); g.e("v_add_u32 v%d, %d, v%d" % (t2, g.tfirst, t2))
        g.e("v_cmp_gt_u32 vcc, 7, v%d" % t2)
        g.e("v_lshl_add_u32 v%d, v%d, 7, v%d" % (t1, t2, t1))
        g.e("v_mov_b32 v%d, 0x%x" % (t2, OOB))
        g.e("v_cndmask_b32 v%d, v%d, v%d, vcc" % (t1, t2, t1))
        g.e("s_bfe_u32 %s, s2, 0x20001" % sT0); g.e("s_mul_i32 %s, %s, %d" % (sT0, sT0, 512 * 896))
        g.e("v_lshrrev_b32 v%d, 2, v%d" % (t2, t0))
        g.e("buffer_load_dword v%d, v%d, s[16:19], %s offen%s" % (188 + 2*tb, t1, sT0, g.tf))
        g.e("v_mul_u32_u24 v%d, 896, v%d" % (t2, t2))
        g.e("v_and_b32 v%d, 3, v%d" % (t0, t0)); g.e("v_lshl_add_u32 v%d, v%d, 7, v%d" % (t2, t0, t2))
        g.e("s_and_b32 %s, s2, 1" % sT0); g.e("s_mul_i32 %s, %s, 384" % (sT0, sT0)); g.e("s_add_u32 %s, %s, %d" % (sT0, sT0, g.tfirst * 64 * 2688))
        g.e("buffer_load_dword v%d, v%d, s[20:23], %s offen%s" % (189 + 2*tb, t2, sT0, g.tf))

def max16(g, s, dst, first=True):
    if first:
        g.e("v_max3_f32 v%d, v%d, v%d, v%d" % (dst, s, s + 1, s + 2)); rest = list(range(3, 16))
    else: rest = list(range(16))
    while len(rest) >= 2:
        a, b = rest.pop(0), rest.pop(0)
        g.e("v_max3_f32 v%d, v%d, v%d, v%d" % (dst, dst, s + a, s + b))
    if rest: g.e("v_max_f32 v%d, v%d, v%d" % (dst, dst, s + rest[0]))
def xhalf_max(g):
    g.e("v_mov_b32 v%d, v%d" % (vM2, vM)); g.e("s_nop 1")
    g.e("v_permlane32_swap_b32 v%d, v%d" % (vM, vM2)); g.e("s_nop 1")
    g.e("v_max_f32 v%d, v%d, v%d" % (vM, vM, vM2))
def set_shift(g):
    g.e("v_cvt_pk_bf16_f32 v%d, -v%d, 0" % (vM2, vM))
    g.e("v_lshlrev_b32 v%d, 16, v%d" % (vNM, vM2))
    g.e("v_cndmask_b32 v%d, v%d, v%d, %s" % (vQF + 6, vQF + 6, vM2, sUP))
def bcast_l(g):
    g.e("v_mov_b32 v%d, v%d" % (vM, vO + 12)); g.e("v_mov_b32 v%d, v%d" % (vM2, vO + 12)); g.e("s_nop 1")
    g.e("v_permlane32_swap_b32 v%d, v%d" % (vM, vM2)); g.e("s_nop 1")
def finish_o(g):
    g.e("v_rcp_f32 v%d, v%d" % (vM, vM2))
    g.e("s_lshl_b32 %s, %s, 6" % (sT0, sBR)); g.e("s_lshl_b32 %s, %s, 2" % (sT1, sR)); g.e("s_add_u32 %s, %s, %s" % (sT0, sT0, sT1))
    g.e("v_cndmask_b32 v%d, v%d, 0, %s" % (vM2, vM, sUP))
    g.e("s_add_u32 %s, %s, %s" % (sT0, sT0, sRT)); g.e("s_lshl_b32 %s, %s, 4" % (sT0, sT0))
    g.e("s_lshl_b32 %s, %s, 1" % (sT1, sHP)); g.e("s_add_u32 %s, %s, %s" % (sT0, sT0, sT1)); g.e("s_add_u32 %s, %s, %s" % (sT0, sT0, sHH))
    g.e("s_lshl_b32 %s, %s, 11" % (sT0, sT0)); g.e("s_add_u32 %s, %s, 0x%x" % (sT0, sT0, WS_OF))
    for f in range(2):
        for r in range(8*f, 8*f + 8): g.e("v_mul_f32 v%d, v%d, v%d" % (vO + r, vM2 if r >= 12 else vM, vO + r))
        for i in range(4*f, 4*f + 4): g.e("v_cvt_pk_bf16_f32 v%d, v%d, v%d" % (vP + i, vO + 2*i, vO + 2*i + 1))
        g.e("buffer_store_dwordx4 %s, v%d, %s, %s offen offset:%d%s" % (vr(vP + 4*f, 4), vL16, sWS, sT0, f * 1024, g.stf))
def dbg_q(g):
    if not g.dbgq: return
    g.e("s_lshl_b32 %s, %s, 2" % (sT0, sHH)); g.e("s_add_u32 %s, %s, %s" % (sT0, sT0, sRT)); g.e("s_lshl_b32 %s, %s, 11" % (sT0, sT0))
    g.e("s_lshr_b32 %s, %s, 1" % (sT1, sKVO)); g.e("s_add_u32 %s, %s, %s" % (sT0, sT0, sT1)); g.e("s_add_u32 %s, %s, 0x%x" % (sT0, sT0, WS_QDBG))
    g.e("s_waitcnt lgkmcnt(0)")
    for f in range(2): g.e("buffer_store_dwordx4 %s, v%d, %s, %s offen offset:%d" % (vr(vQF + 4*f, 4), vL16, sWS, sT0, f * 1024))
    g.e("s_waitcnt vmcnt(0)")

def wo_dma(g, m, ldsbase, row0, last=False):
    sk = g.newlab("L_wsk")
    if last:
        g.e("s_cmp_eq_u32 %s, 7" % sWV); g.e("s_cbranch_scc1 %s" % sk)
    g.e("s_add_u32 m0, %s, %d" % (sW1K, ldsbase + m * 8192))
    g.e("s_add_u32 %s, %s, %d" % (sT3, sWOS, row0 * 896 + m * 8 * 3584))
    g.e("buffer_load_dwordx4 v%d, %s, %s offen lds" % (vWOO, sWO, sT3))
    if last: g.lab(sk)
def wo1(g, n):
    if n < 4: wo_dma(g, n, L_W1A, 0, last=(n == 3))
    else: wo_dma(g, n - 4, L_W1B, 120)

def attn_A(g):
    lg = Q(); lg.add("q", 2)
    nwo = [0]; nwo0 = [0]
    def site(u):
        for (cond, b) in ((u - 1, 0), (u - 5, 1)):
            if 0 <= cond <= 3:
                sk = g.newlab("L_site")
                g.e("s_cmp_lg_u32 %s, %d" % (sRT, cond)); g.e("s_cbranch_scc1 %s" % sk)
                check(g, 1, vG1, F_KV(b, 0), vGV + b)
                g.lab(sk)
    def rdF(): g.e("ds_read2_b32 %s, v%d offset0:%d offset1:%d" % (vr(vGV, 2), vG1, F_KV(0, 0) // 4, F_KV(1, 0) // 4)); lg.add("x")
    def rdK(u):
        for j in range(2): g.e("ds_read_b128 %s, v%d offset:%d" % (vr(vKB + (u % 2) * 8 + 4*j, 4), vAD + u, j * 1024))
        lg.add(("K", u), 2)
    def rdV(u):
        for j in range(2): g.e("ds_read_b128 %s, v%d offset:%d" % (vr(vVB + (u % 2) * 8 + 4*j, 4), vAD + u, 2048 + j * 1024))
        lg.add(("V", u), 2)
    def qk(u, j):
        s = vS + (u % 3) * 16
        g.mfma(s, vKB + (u % 2) * 8 + 4*j, vQF + 4*j, s if j else (vC1 if u == 0 else vC2 if u == 8 else None))
    def pv(u, j):
        g.mfma(vO, vVB + (u % 2) * 8 + 4*j, vS + (u % 3) * 16 + 4*j, None if (u == 0 and j == 0) else vO)
    rdF(); rdK(0)
    g.wl(lg.wait(("K", 0))); qk(0, 0); qk(0, 1)
    bump(g, vGW, F_CQ); lg.add("x")
    g.e("s_nop 10")
    max16(g, vS, vM); xhalf_max(g); set_shift(g)
    for r in range(16): g.e("v_add_f32 v%d, v%d, v%d" % (vS + r, vNM, vS + r))
    for u in range(9):
        s = vS + (u % 3) * 16
        ex = lambda a, b: [g.e("v_exp_f32 v%d, v%d" % (s + r, s + r)) for r in range(a, b)]
        if g.r2late and u == g.r2fetch:
            sk = g.newlab("L_r2f")
            g.e("s_cmp_ge_u32 %s, 2" % sWV); g.e("s_cbranch_scc1 %s" % sk)
            fetch_remote(g, True)
            g.lab(sk)
            nwo0[0] = nwo[0]
        if u in (0, g.r2step):
            sk = g.newlab("L_ld")
            g.e("s_cmp_%s_u32 %s, 2" % ("lt" if u == 0 else "ge", sWV)); g.e("s_cbranch_scc1 %s" % sk)
            if u == 0:
                g.e("s_cmp_ge_u32 %s, 4" % sWV); g.e("s_cbranch_scc1 %s" % sk)
            g.e("s_waitcnt vmcnt(%d)" % (nwo[0] - nwo0[0])); bump(g, vFB)
            g.lab(sk)
        if u < 8: site(u + 1)
        if u < 7: rdF()
        if u == g.wostep - 1: g.e("ds_read_b32 v%d, v%d offset:%d" % (vGX, vGR, F_CQ)); lg.add("x")
        if u < 8: rdK(u + 1)
        rdV(u)
        if u > 0: g.wl(lg.wait(("V", u - 1))); pv(u - 1, 0)
        ex(0, 5)
        if u > 0: pv(u - 1, 1)
        if g.wostep <= u < g.wostep + 4:
            if u == g.wostep: check(g, 8, vGR, F_CQ, vGX)
            for _ in range(2): wo1(g, nwo[0]); nwo[0] += 1
        ex(5, 10)
        if u < 8: g.wl(lg.wait(("K", u + 1))); qk(u + 1, 0)
        ex(10, 16)
        if u < 8: qk(u + 1, 1)
        else: g.e("s_nop 0")
        for i in range(8): g.e("v_cvt_pk_bf16_f32 v%d, v%d, v%d" % (s + i, s + 2*i, s + 2*i + 1))
    g.wl(lg.wait(("V", 8))); g.e("s_nop 0"); pv(8, 0); pv(8, 1)
    g.e("s_nop 11")
    bcast_l(g)
    fb = g.newlab("L_fb"); ok = g.newlab("L_aok")
    g.e("s_mov_b32 %s, 0x%08x" % (sT0, LBIG))
    g.e("v_cmp_ngt_f32 vcc, %s, v%d" % (sT0, vM2))
    g.e("s_cbranch_vccnz %s" % fb)
    g.lab(ok)
    g.fb = (fb, ok)
    g.stamp(8)
    finish_o(g)

def fallback_A(g):
    fb, ok = g.fb
    g.lab(fb)
    g.e("s_lshl_b32 %s, %s, 2" % (sT1, sR)); g.e("s_add_u32 %s, %s, %s" % (sT1, sT1, sRT))
    g.e("v_mov_b32 v%d, 0" % vM2)
    g.e("v_cndmask_b32 v%d, v%d, v%d, %s" % (vQF + 6, vQF + 6, vM2, sUP))
    g.e("v_mov_b32 v%d, 0x%08x" % (vM, NEG))
    for r in range(16): g.e("v_mov_b32 v%d, 0" % (vO + r))
    for pas in range(2):
        lp = g.newlab("L_fbl"); l0 = g.newlab("L_fb0"); l8 = g.newlab("L_fb8"); lj = g.newlab("L_fbj")
        g.e("s_mov_b32 %s, 0" % sT4)
        g.lab(lp)
        g.e("s_add_u32 %s, %s, 8" % (sT0, sRT)); g.e("s_sub_u32 %s, %s, %s" % (sT0, sT0, sT4))
        g.e("s_lshr_b32 %s, %s, 2" % (sT2, sT0)); g.e("s_lshl_b32 %s, %s, 15" % (sT2, sT2))
        g.e("s_and_b32 %s, %s, 3" % (sT0, sT0)); g.e("s_lshl_b32 %s, %s, 12" % (sT0, sT0)); g.e("s_add_u32 %s, %s, %s" % (sT0, sT0, sT2))
        g.e("s_lshl_b32 %s, %s, 14" % (sT2, sHH)); g.e("s_add_u32 %s, %s, %s" % (sT0, sT0, sT2))
        g.e("s_add_u32 %s, %s, %s" % (sT0, sT0, sKVO)); g.e("s_sub_u32 %s, %s, 65536" % (sT0, sT0))
        for j in range(4): g.e("buffer_load_dwordx4 %s, v%d, %s, %s offen offset:%d sc1" % (vr(vKB + 4*j, 4), vL16, sWS, sT0, j * 1024))
        g.e("s_waitcnt vmcnt(0)")
        g.e("s_cmp_eq_u32 %s, 0" % sT4); g.e("s_cbranch_scc1 %s" % l0)
        g.e("s_cmp_eq_u32 %s, 8" % sT4); g.e("s_cbranch_scc1 %s" % l8)
        g.mfma(vS, vKB, vQF, None); g.e("s_branch %s" % lj)
        g.lab(l0); g.mfma(vS, vKB, vQF, vC1); g.e("s_branch %s" % lj)
        g.lab(l8); g.mfma(vS, vKB, vQF, vC2)
        g.lab(lj)
        g.mfma(vS, vKB + 4, vQF + 4, vS)
        g.e("s_nop 11")
        if pas == 0: max16(g, vS, vM, first=False)
        else:
            for r in range(16): g.e("v_exp_f32 v%d, v%d" % (vS + r, vS + r))
            g.e("s_nop 0")
            for i in range(8): g.e("v_cvt_pk_bf16_f32 v%d, v%d, v%d" % (vS + i, vS + 2*i, vS + 2*i + 1))
            g.e("s_nop 1")
            g.mfma(vO, vKB + 8, vS, vO); g.mfma(vO, vKB + 12, vS + 4, vO)
            g.e("s_nop 11")
        g.e("s_add_u32 %s, %s, 1" % (sT4, sT4))
        g.e("s_min_u32 %s, %s, 8" % (sT0, sT1))
        g.e("s_cmp_le_u32 %s, %s" % (sT4, sT0)); g.e("s_cbranch_scc1 %s" % lp)
        if pas == 0:
            xhalf_max(g); set_shift(g); g.e("s_nop 1")
    bcast_l(g)
    g.e("s_branch %s" % ok)

def attn_B(g):
    for j in range(2): g.e("ds_read_b128 %s, v%d offset:%d" % (vr(vKB + 4*j, 4), vAD, j * 1024))
    for j in range(2): g.e("ds_read_b128 %s, v%d offset:%d" % (vr(vVB + 4*j, 4), vAD, 2048 + j * 1024))
    g.e("s_waitcnt lgkmcnt(2)")
    g.mfma(vS, vKB, vQF, vC1); g.mfma(vS, vKB + 4, vQF + 4, vS)
    bump(g, vGW, F_CQ)
    sk = g.newlab("L_bs")
    g.e("s_cmp_lg_u32 %s, 0" % sRT); g.e("s_cbranch_scc1 %s" % sk)
    spin(g, 1, vG1, F_KV(0, 0), vGV)
    g.lab(sk)
    for j in range(2): g.e("ds_read_b128 %s, v%d offset:%d" % (vr(vKB + 8 + 4*j, 4), vAD + 1, j * 1024))
    for j in range(2): g.e("ds_read_b128 %s, v%d offset:%d" % (vr(vVB + 8 + 4*j, 4), vAD + 1, 2048 + j * 1024))
    g.e("s_waitcnt lgkmcnt(2)")
    g.mfma(vS + 16, vKB + 8, vQF, vC2); g.mfma(vS + 16, vKB + 12, vQF + 4, vS + 16)
    g.e("s_nop 4")
    max16(g, vS, vM); g.e("s_nop 0"); max16(g, vS + 16, vM, first=False); xhalf_max(g)
    for r in range(32): g.e("v_sub_f32 v%d, v%d, v%d" % (vS + r, vS + r, vM))
    for t in range(2):
        s = vS + 16 * t
        for r in range(16): g.e("v_exp_f32 v%d, v%d" % (s + r, s + r))
        g.e("s_nop 0")
        for i in range(8): g.e("v_cvt_pk_bf16_f32 v%d, v%d, v%d" % (s + i, s + 2*i, s + 2*i + 1))
        g.e("s_waitcnt lgkmcnt(0)"); g.e("s_nop 0")
        g.mfma(vO, vVB + 8*t, s, None if t == 0 else vO); g.mfma(vO, vVB + 8*t + 4, s + 4, vO)
    g.e("s_nop 11")
    bcast_l(g)
    g.stamp(8)
    finish_o(g)
    if g.bpre:
        spin(g, 8, vGR, F_CQ, vGX)
        for n in range(8): wo1(g, n)

def p3(g):
    t0, t1, t2 = vT, vT + 1, vT + 2
    sCT, sRT2 = sKC, sXB
    A1, A2, A3 = 4, 5, 6
    vFL = 3; vB0, vB1 = 13, 14; vOA = 56
    g.e("s_lshr_b32 %s, %s, 1" % (sCT, sWV)); g.e("s_and_b32 %s, %s, 1" % (sRT2, sWV))
    g.e("v_bfe_u32 v%d, v%d, 2, 2" % (t0, vLANE)); g.e("v_lshrrev_b32 v%d, 5, v%d" % (t1, vLANE))
    g.e("v_lshl_add_u32 v%d, v%d, 2, v%d" % (t1, t1, t0)); g.e("v_lshlrev_b32 v%d, 8, v%d" % (t1, t1))
    g.e("v_lshlrev_b32 v%d, 6, v%d" % (t0, t0))
    g.e("v_and_b32 v%d, 3, v%d" % (t2, vLANE)); g.e("v_lshlrev_b32 v%d, 3, v%d" % (t2, t2))
    g.e("v_and_b32 v%d, 16, v%d" % (A3, vLANE)); g.e("v_lshl_add_u32 v%d, v%d, 1, v%d" % (t2, A3, t2))
    g.e("s_lshl_b32 %s, %s, 6" % (sT0, sCT)); g.e("v_add_u32 v%d, %s, v%d" % (t2, sT0, t2))
    g.e("v_xor_b32 v%d, v%d, v%d" % (t2, t2, t0)); g.e("v_add_u32 v%d, v%d, v%d" % (A3, t1, t2))
    g.e("v_add_u32 v%d, 0x%x, v%d" % (A1, L_W1A, A3)); g.e("v_add_u32 v%d, 0x%x, v%d" % (A2, L_W1B, A3))
    g.e("s_lshr_b32 %s, %s, 1" % (sT0, sRB)); g.e("s_lshl_b32 %s, %s, 4" % (sT1, sBR)); g.e("s_add_u32 %s, %s, %s" % (sT0, sT0, sT1))
    g.e("s_lshl_b32 %s, %s, 10" % (sT0, sT0)); g.e("s_add_u32 %s, %s, 0x%x" % (sT0, sT0, WS_OFLAG))
    g.e("v_lshlrev_b32 v%d, 7, v%d" % (vFL, vLANE)); g.e("v_add_u32 v%d, %s, v%d" % (vFL, sT0, vFL))
    g.e("s_add_u32 %s, %s, %s" % (sT1, sT1, sR)); g.e("s_lshl_b32 %s, %s, 3" % (sT1, sT1)); g.e("s_add_u32 %s, %s, %s" % (sT1, sT1, sHP))
    g.e("s_lshl_b32 %s, %s, 7" % (sT1, sT1)); g.e("s_add_u32 s36, %s, 0x%x" % (sT1, WS_OFLAG))
    g.e("s_lshr_b32 %s, %s, 2" % (sT2, sWV))
    sOS, sOL = sXS, sWSO
    g.e("s_and_b32 %s, %s, 3" % (sT0, sWV)); g.e("s_lshl_b32 %s, %s, 11" % (sT0, sT0))
    g.e("s_lshl_b32 %s, %s, 13" % (sOL, sT2)); g.e("s_add_u32 %s, %s, %s" % (sOL, sOL, sT0))
    g.e("s_lshl_b32 %s, %s, 15" % (sOS, sT2)); g.e("s_add_u32 %s, %s, %s" % (sOS, sOS, sT0))
    g.e("s_lshl_b32 %s, %s, 21" % (sT0, sBR)); g.e("s_add_u32 %s, %s, %s" % (sOS, sOS, sT0))
    g.e("s_lshl_b32 %s, %s, 16" % (sT0, sRB)); g.e("s_add_u32 %s, %s, %s" % (sOS, sOS, sT0)); g.e("s_add_u32 %s, %s, 0x%x" % (sOS, sOS, WS_OF))
    g.e("s_lshl_b32 %s, %s, 13" % (sT0, sRT2)); g.e("v_add_u32 v%d, %s, v%d" % (vB0, sT0, vL16))
    g.e("v_add_u32 v%d, 0x%x, v%d" % (vB1, L_O, vB0)); g.e("v_add_u32 v%d, 0x%x, v%d" % (vB0, L_W1A, vB0))
    g.e("v_and_b32 v%d, 31, v%d" % (t0, vLANE)); g.e("v_mul_u32_u24 v%d, 1792, v%d" % (t0, t0))
    g.e("v_lshrrev_b32 v%d, 5, v%d" % (t1, vLANE)); g.e("v_lshl_add_u32 v%d, v%d, 4, v%d" % (vOA, t1, t0))
    g.e("s_lshl_b32 %s, %s, 1" % (sT0, sRB)); g.e("s_add_u32 %s, %s, %s" % (sT0, sT0, sRT2)); g.e("s_mul_i32 %s, %s, %d" % (sT4, sT0, 32 * 1792))
    g.e("s_mul_i32 %s, %s, 896" % (sT0, sBR)); g.e("s_add_u32 %s, %s, %s" % (sT4, sT4, sT0))
    g.e("s_lshl_b32 %s, %s, 8" % (sT0, sCB)); g.e("s_add_u32 %s, %s, %s" % (sT4, sT4, sT0))
    g.e("s_lshl_b32 %s, %s, 6" % (sT0, sCT)); g.e("s_add_u32 %s, %s, %s" % (sT4, sT4, sT0))
    if g.bpre:
        wa = g.newlab("L_wa"); wb = g.newlab("L_wb")
        g.e("s_cmp_eq_u32 %s, 0" % sBR); g.e("s_cbranch_scc1 %s" % wa)
        g.e("s_waitcnt vmcnt(7)"); g.e("s_branch %s" % wb)
        g.lab(wa); g.e("s_waitcnt vmcnt(0)"); g.lab(wb)
    else: g.e("s_waitcnt vmcnt(0)")
    g.e("s_barrier")
    nf = g.newlab("L_nof")
    g.e("s_cmp_lg_u32 %s, 0" % sWV); g.e("s_cbranch_scc1 %s" % nf)
    store_flag(g, "s36")
    g.lab(nf)
    g.stamp(9)
    if not g.bpre:
        early = g.newlab("L_early")
        g.e("s_cmp_eq_u32 %s, 0" % sBR); g.e("s_cbranch_scc1 %s" % early)
        for n in range(8): wo1(g, n)
        g.lab(early)
    for m in range(7): wo_dma(g, m, L_W2, 248)
    early2 = g.newlab("L_early2")
    g.e("s_cmp_eq_u32 %s, 0" % sBR); g.e("s_cbranch_scc1 %s" % early2)
    g.e("s_waitcnt vmcnt(7)"); g.e("s_barrier")
    g.lab(early2)
    WFR = 96
    def trs(sel):
        for h in range(16):
            for j in range(2):
                for i in range(2):
                    row = 28 * h + 16 * j + 8 * i
                    if not sel(row): continue
                    a, off = (A1, row * 256) if row < 120 else (A2, (row - 120) * 256) if row < 248 else (A3, (row - 248) * 256)
                    g.e("ds_read_b64_tr_b16 %s, v%d offset:%d" % (vr(WFR + (h * 2 + j) * 4 + 2 * i, 2), a, off))
    trs(lambda row: row < 248)
    g.stamp(10)
    np_ = g.newlab("L_np3")
    g.e("s_cmp_lg_u32 %s, 7" % sWV); g.e("s_cbranch_scc1 %s" % np_)
    poll(g, vFL, "0xff")
    g.lab(np_)
    g.e("s_waitcnt vmcnt(0) lgkmcnt(0)")
    g.e("s_barrier")
    g.stamp(11)
    for a in range(4):
        g.e("s_add_u32 m0, %s, %d" % (sOL, L_O + a * 16384 if a < 2 else L_W1A + (a - 2) * 16384))
        g.e("s_add_u32 %s, %s, %d" % (sT2, sOS, a * 8192))
        for f in range(2): g.e("buffer_load_dwordx4 v%d, %s, %s offen offset:%d sc1 lds" % (vL16, sWS, sT2, f * 1024))
    trs(lambda row: row >= 248)
    OB = 16
    lg = Q()
    def rd(k):
        a = k // 8
        if k % 8 == 0:
            g.e("s_waitcnt vmcnt(%d)" % (6 - 2 * a)); g.e("s_barrier")
            if a == 0: g.stamp(12)
        g.e("ds_read_b128 %s, v%d offset:%d" % (vr(OB + (k % 4) * 4, 4), vB1 if a < 2 else vB0, (a % 2) * 16384 + (k % 8) * 1024))
        lg.add(k)
    for k in range(3): rd(k)
    for k in range(32):
        g.wl(lg.wait(k))
        g.mfma(vO, WFR + 4 * k, OB + (k % 4) * 4, None if k == 0 else vO)
        if k + 3 < 32: rd(k + 3)
    g.stamp(13)
    done = g.newlab("L_nostore")
    g.e("s_cmp_lt_u32 %s, 3" % sCB); g.e("s_cselect_b32 %s, 4, 2" % sT0)
    g.e("s_cmp_ge_u32 %s, %s" % (sCT, sT0)); g.e("s_cbranch_scc1 %s" % done)
    g.e("s_nop 8")
    PK = 48
    for i in range(8): g.e("v_cvt_pk_bf16_f32 v%d, v%d, v%d" % (PK + i, vO + 2*i, vO + 2*i + 1))
    g.e("s_nop 1")
    for b in (0, 4):
        g.e("v_permlane32_swap_b32 v%d, v%d" % (PK + b, PK + b + 2)); g.e("v_permlane32_swap_b32 v%d, v%d" % (PK + b + 1, PK + b + 3))
    g.e("s_nop 1")
    for b in range(2): g.e("buffer_store_dwordx4 %s, v%d, %s, %s offen offset:%d%s" % (vr(PK + 4*b, 4), vOA, sOUT, sT4, 32 * b, g.outflag))
    g.lab(done)

def write_stamps(g):
    if not g.stamps: return
    g.e("s_waitcnt vmcnt(0)")
    g.stamp(14)
    g.e("s_waitcnt lgkmcnt(0)")
    g.e("s_getreg_b32 s100, hwreg(HW_REG_XCC_ID)"); g.e("s_getreg_b32 s101, hwreg(HW_REG_HW_ID)")
    g.e("s_lshl_b32 %s, s2, 3" % sT0); g.e("s_add_u32 %s, %s, %s" % (sT0, sT0, sWV)); g.e("s_lshl_b32 %s, %s, 7" % (sT0, sT0))
    g.e("s_add_u32 %s, %s, 0x%x" % (sT0, sT0, WS_STAMP))
    g.e("s_mov_b64 exec, 1")
    for i in range(16):
        g.e("v_mov_b32 v20, s%d" % (70 + 2*i)); g.e("v_mov_b32 v21, s%d" % (71 + 2*i))
        g.e("buffer_store_dwordx2 v[20:21], v%d, %s, %s offen offset:%d" % (vZ, sWS, sT0, 8 * i))
        g.e("s_nop 1")

def branch(g, isA):
    n = "A" if isA else "B"
    g.e("s_cmp_lt_u32 %s, 4" % sWV); g.e("s_cbranch_scc1 L_cons%s" % n)
    producer(g, isA)
    g.e("s_branch L_x%s" % n)
    g.lab("L_cons%s" % n)
    consumer(g, isA)
    g.lab("L_x%s" % n)
    g.stamp(7)
    if g.cprio:
        sk = g.newlab("L_cp")
        g.e("s_cmp_ge_u32 %s, 4" % sWV); g.e("s_cbranch_scc1 %s" % sk); g.e("s_setprio %d" % g.cprio); g.lab(sk)
    dbg_q(g)
    if isA: attn_A(g)
    else: attn_B(g)

def build(**kw):
    g = G(**kw)
    K = NAME + "_kernel"
    hdr = open("cdna_kernels/%s.s.ref" % NAME).read().split("; Override launch")[0]
    g.l.append(hdr.rstrip())
    g.l.append("; @launch grid=(256,1,1) block=(512,1,1) lds=163840")
    g.l += ['.amdgcn_target "amdgcn-amd-amdhsa--gfx950"', ".text", ".globl " + K, ".p2align 8", ".type %s,@function" % K, K + ":"]
    g.e("s_cmp_ge_u32 s2, 256"); g.e("s_cbranch_scc1 L_end")
    g.e("s_load_dwordx16 s[32:47], s[0:1], 0"); g.e("s_load_dwordx2 s[48:49], s[0:1], 64")
    if "probe" in g.exp: g.e("s_memrealtime s[70:71]")
    if g.stamps:
        for i in range(15): g.e("s_mov_b64 s[%d:%d], 0" % (70 + 2*i, 71 + 2*i))
    g.stamp(0)
    if "pit" in g.exp: g.only = (0, 1, 2, 14)
    g.e("v_lshrrev_b32 v%d, 6, v0" % vT)
    g.e("v_and_b32 v%d, 63, v0" % vLANE)
    g.e("v_readfirstlane_b32 %s, v%d" % (sWV, vT))
    if g.map == 0:
        g.e("s_lshr_b32 %s, s2, 7" % sBR)
        g.e("s_bfe_u32 %s, s2, 0x20003" % sT2); g.e("s_bfe_u32 %s, s2, 0x20005" % sT3)
        g.e("s_and_b32 %s, s2, 1" % sHP); g.e("s_lshl_b32 %s, %s, 2" % (sHP, sHP)); g.e("s_add_u32 %s, %s, %s" % (sHP, sHP, sT2))
        g.e("s_bfe_u32 %s, s2, 0x20001" % sR); g.e("s_lshl_b32 %s, %s, 2" % (sR, sR)); g.e("s_add_u32 %s, %s, %s" % (sR, sR, sT3))
    else:
        g.e("s_bfe_u32 %s, s2, 0x10002" % sBR)
        g.e("s_bfe_u32 %s, s2, 0x20003" % sT2); g.e("s_lshr_b32 %s, s2, 5" % sT3)
        g.e("s_and_b32 %s, s2, 1" % sHP); g.e("s_lshl_b32 %s, %s, 2" % (sHP, sHP)); g.e("s_add_u32 %s, %s, %s" % (sHP, sHP, sT2))
        g.e("s_bfe_u32 %s, s2, 0x10001" % sR); g.e("s_lshl_b32 %s, %s, 3" % (sR, sR)); g.e("s_add_u32 %s, %s, %s" % (sR, sR, sT3))
    g.e("s_and_b32 %s, %s, 3" % (sP, sWV))
    t0, t1 = vT, vT + 1
    nz = g.newlab("L_nz")
    g.e("s_cmp_lg_u32 %s, 0" % sWV); g.e("s_cbranch_scc1 %s" % nz)
    g.e("v_and_b32 v%d, 7, v%d" % (t0, vLANE)); g.e("v_and_b32 v%d, 2, v%d" % (t1, t0)); g.e("v_lshlrev_b32 v%d, 5, v%d" % (t1, t1))
    g.e("v_lshlrev_b32 v%d, 7, v%d" % (t0, t0)); g.e("v_sub_u32 v%d, v%d, v%d" % (t0, t0, t1))
    g.e("v_add_u32 v%d, %d, v%d" % (t0, FBASE + 112, t0))
    for k in range(4): g.e("v_mov_b32 v%d, 0" % (vACC + k))
    g.e("s_mov_b64 exec, 0xff")
    g.e("ds_write_b128 v%d, %s" % (t0, vr(vACC, 4)))
    g.e("s_mov_b64 exec, -1")
    g.lab(nz)
    producer_prep(g)
    flag_regs(g, True)
    xrd_addr(g, vXRD, sXB)
    g.e("s_mov_b32 s6, 0x%x" % X_BYTES); g.e("s_mov_b32 s7, 0x20000"); g.e("s_mov_b32 s10, 0x%x" % (W_BYTES + WBIAS)); g.e("s_mov_b32 s11, 0x20000")
    g.e("s_cmp_eq_u32 %s, 0" % sBR)
    if "st0" in g.exp: g.stamp(3)
    g.e("s_waitcnt lgkmcnt(0)")
    if "st0" in g.exp: g.stamp(4)
    g.e("s_cselect_b32 s4, s32, s38"); g.e("s_cselect_b32 s5, s33, s39"); g.e("s_cselect_b32 s8, s34, s40"); g.e("s_cselect_b32 s9, s35, s41")
    g.e("s_sub_u32 s8, s8, %d" % WBIAS); g.e("s_subb_u32 s9, s9, 0")
    g.e("s_cmp_lt_u32 %s, 4" % sWV); g.e("s_cbranch_scc1 L_noiss0")
    issue_item(g, Q(), 0)
    g.lab("L_noiss0")
    g.e("s_barrier")
    g.e("s_cmp_lt_u32 %s, 4" % sWV); g.e("s_cbranch_scc1 L_noiss")
    if "st0" in g.exp: g.stamp(5)
    issue_item(g, Q(), 1)
    if "st0" in g.exp: g.stamp(6)
    g.lab("L_noiss")
    if "st0" in g.exp: g.stamps_save = g.stamps; g.only = (1, 2, 14)
    g.e("s_cmp_eq_u32 %s, 0" % sBR)
    g.e("s_cbranch_scc1 L_A")
    branch(g, False)
    g.e("s_branch L_p3")
    g.lab("L_A")
    branch(g, True)
    g.lab("L_p3")
    p3(g)
    write_stamps(g)
    if "probe" in g.exp:
        g.e("s_cmp_lg_u32 s2, 26"); g.e("s_cbranch_scc1 L_end")
        g.e("s_waitcnt vmcnt(0)")
        g.e("s_memrealtime s[72:73]"); g.e("s_waitcnt lgkmcnt(0)")
        g.e("s_sub_u32 s74, s72, s70"); g.e("s_lshl_b32 s74, s74, 2")
        g.lab("L_probe")
        g.e("s_memrealtime s[76:77]"); g.e("s_waitcnt lgkmcnt(0)")
        g.e("s_sub_u32 s75, s76, s72"); g.e("s_cmp_lt_u32 s75, s74"); g.e("s_cbranch_scc1 L_probe")
    g.lab("L_end"); g.e("s_endpgm")
    for (sl, back, need, areg, off, vsrc) in g.slow:
        g.lab(sl); spin(g, need, areg, off, vsrc); g.e("s_branch %s" % back)
    fallback_A(g)
    g.lab("L_codeend")
    g.l += ['.section .rodata,"a"', ".p2align 6", ".amdhsa_kernel " + K, "  .amdhsa_next_free_vgpr 256", "  .amdhsa_next_free_sgpr 102",
            "  .amdhsa_accum_offset 256", "  .amdhsa_group_segment_fixed_size 0", "  .amdhsa_kernarg_size 72", "  .amdhsa_user_sgpr_count 2",
            "  .amdhsa_user_sgpr_kernarg_segment_ptr 1", "  .amdhsa_system_sgpr_workgroup_id_x 1", ".end_amdhsa_kernel"]
    return "\n".join(g.l) + "\n"

if __name__ == "__main__":
    ap = argparse.ArgumentParser()
    ap.add_argument("-o", default="k.s"); ap.add_argument("--stamps", action="store_true"); ap.add_argument("--dbgq", action="store_true")
    ap.add_argument("--exp", default=""); ap.add_argument("--dA", type=int, default=2); ap.add_argument("--dB", type=int, default=2)
    ap.add_argument("--wotouch", type=int, default=1); ap.add_argument("--touch", type=int, default=1); ap.add_argument("--tfirst", type=int, default=2)
    ap.add_argument("--map", type=int, default=0); ap.add_argument("--r2late", type=int, default=1); ap.add_argument("--r2fetch", type=int, default=2); ap.add_argument("--ctouch", type=int, default=0); ap.add_argument("--cprio", type=int, default=0); ap.add_argument("--inl", type=int, default=1); ap.add_argument("--ps1", type=int, default=2); ap.add_argument("--ps2", type=int, default=3); ap.add_argument("--ldf", default=""); ap.add_argument("--tf", default=""); ap.add_argument("--late8", type=int, default=0); ap.add_argument("--bpre", type=int, default=1); ap.add_argument("--qprio", type=int, default=2); ap.add_argument("--aprio", type=int, default=0); ap.add_argument("--stf", default=" sc1"); ap.add_argument("--qst", type=int, default=0); ap.add_argument("--r2step", type=int, default=4); ap.add_argument("--wostep", type=int, default=2); ap.add_argument("--outflag", default=" nt")
    a = ap.parse_args()
    o = a.o; d = vars(a); d.pop("o")
    open(o, "w").write(build(**d))
```

```python
import sys, math, struct, argparse
NAME = "concat_heads__sliding_block__sliding_local_dilated__prompt"
def f32bits(x): return struct.unpack("<I", struct.pack("<f", x))[0]

X_BYTES = 2048*896; W_BYTES = 448*2688; WO_BYTES = 448*896; OUT_BYTES = 2048*1792
WS_OF = 8 << 20; WS_KVFLAG = 16 << 20; WS_OFLAG = (16 << 20) + 65536; WS_GFLAG = (16 << 20) + 131072; WS_QDBG = 20 << 20; WS_STAMP = 32 << 20
WS_RECORDS = 64 << 20
NEG = f32bits(-1.0e30); CSCALE = f32bits((28 ** -0.5) * math.log2(math.e)); LBIG = f32bits(2.0 ** 64)
OOB = 0x7FF00000; SPIN_MAX = 1 << 20; WBIAS = 4096

def vr(a, n): return "v[%d:%d]" % (a, a + n - 1)
sX, sW, sWO, sWS, sOUT, sDBG = "s[4:7]", "s[8:11]", "s[12:15]", "s[16:19]", "s[20:23]", "s[24:27]"
sBR, sHP, sR, sWV = "s28", "s29", "s30", "s31"
sRT, sHH, sW1K, sKC, sXS, sP, sWSO, sXB, sWB, sKVO = "s50", "s51", "s52", "s53", "s54", "s55", "s56", "s57", "s58", "s59"
sNON = "s[60:61]"; sT0, sT1, sT2, sT3 = "s62", "s63", "s64", "s65"; sTM = "s[64:65]"; sC = "s66"; sT4 = "s67"; sUP = "s[68:69]"
sCB, sRB, sWOS, sSPN = "s32", "s33", "s34", "s35"
sHM = "s[38:39]"
vLANE = 1; vKVW = 2; vQW = 3; vXRD = 4; vWRD = 8; vL16 = 9; vT = 10; vZ = 15
vQF = 16
vACC = 32
vC1, vC2 = 96, 112
vXB = 128; vWB = 152
vXF = 128
vAD = 176
vNON = 240; vFA = 244; vFB = 245; vFV = 246; vONE = 247; vWOO = 248; vGR = 249; vGW = 250; vG1 = 251; vGV = 252; vGX = 254
vXO = 16; vWO = 20; vWQ = 24
vO = 32; vS = 128; vKB = 48; vVB = 64; vM = 80; vM2 = 81; vNM = 82; vP = 84
SLOT = 32768
L_R1 = 32768; L_R2 = 0; L_OWN = 131072; L_QA = 122880; L_WQ = 65536
L_W1A = 65536; L_W1B = 98304; L_W2 = 0; L_O = 131072
FBASE = 98304 - 1024
def fw(r, hi): return r * 128 + (112 if ((r >> 1) & 1) == 0 else 48) + 8 + 4 * hi
F_KV = lambda b, h: fw(2 * b + h, 1)
F_OWN, F_QRDY, F_CQ, F_XD = fw(4, 1), fw(5, 1), fw(6, 1), fw(7, 1)
F_ST = fw(0, 0) - 4

def lane_mask(fn):
    m = 0
    for l in range(64):
        if fn(l): m |= 1 << l
    return m
def key_of(r, l): return (r & 3) + 8 * (r >> 2) + 4 * (l >> 5)

class Q:
    def __init__(self): self.q = []
    def add(self, tag, n=1): self.q += [tag] * n
    def wait(self, tag):
        idx = [i for i, t in enumerate(self.q) if t == tag]
        if not idx: return None
        n = len(self.q) - 1 - idx[-1]
        self.q = self.q[idx[-1] + 1:]
        return n
    def clear(self): self.q = []

class G:
    def __init__(self, **kw):
        self.l = []; self.nlab = 0; self.slow = []
        self.__dict__.update(kw)
    def e(self, s): self.l.append("    " + s)
    def lab(self, s): self.l.append(s + ":")
    def newlab(self, p="L"):
        self.nlab += 1; return "%s_%d" % (p, self.nlab)
    def stamp(self, i):
        if getattr(self, "only", None) and i not in self.only: return
        if self.stamps: self.e("%s s[%d:%d]" % ("s_memtime" if "cyc" in self.exp else "s_memrealtime", 70 + 2*i, 71 + 2*i))
    def mask(self, m):
        self.e("s_mov_b32 s64, 0x%08x" % (m & 0xffffffff)); self.e("s_mov_b32 s65, 0x%08x" % (m >> 32))
    def mfma(self, d, a, b, c):
        self.e("v_mfma_f32_32x32x16_bf16 %s, %s, %s, %s" % (vr(d, 16), vr(a, 4), vr(b, 4), "0" if c is None else vr(c, 16)))
    def wl(self, n):
        if n is not None: self.e("s_waitcnt lgkmcnt(%d)" % min(n, 15))
    def wv(self, n):
        if n is not None: self.e("s_waitcnt vmcnt(%d)" % min(n, 63))
    def capture(self, fn):
        save = self.l; self.l = []; groups = []
        def cut():
            if self.l: groups.append(self.l)
            self.l = []
        fn(cut); cut(); self.l = save
        return groups

def spin(g, need, areg, off, vdst):
    lp = g.newlab("L_spin"); ok = g.newlab("L_spok")
    g.e("s_mov_b32 %s, 0" % sSPN)
    g.lab(lp)
    g.e("ds_read_b32 v%d, v%d offset:%d" % (vdst, areg, off))
    g.e("s_add_u32 %s, %s, 1" % (sSPN, sSPN))
    g.e("s_waitcnt lgkmcnt(0)")
    g.e("v_cmp_gt_u32 vcc, %d, v%d" % (need, vdst))
    g.e("s_cmp_gt_u32 %s, %d" % (sSPN, SPIN_MAX * 8)); g.e("s_cbranch_scc1 %s" % ok)
    g.e("s_cbranch_vccnz %s" % lp)
    g.lab(ok)
def check(g, need, areg, off, vsrc):
    if g.inl:
        lp = g.newlab("L_cl"); ok = g.newlab("L_cok")
        g.e("s_mov_b32 %s, %d" % (sSPN, -(SPIN_MAX * 8) & 0xffffffff))
        g.lab(lp)
        g.e("v_cmp_gt_u32 vcc, %d, v%d" % (need, vsrc)); g.e("s_cbranch_vccz %s" % ok)
        if g.slp: g.e("s_sleep %d" % g.slp)
        g.e("ds_read_b32 v%d, v%d offset:%d" % (vsrc, areg, off))
        g.e("s_add_u32 %s, %s, 1" % (sSPN, sSPN))
        g.e("s_waitcnt lgkmcnt(0)")
        g.e("s_cbranch_scc0 %s" % lp)
        g.lab(ok)
        return
    sl = g.newlab("L_slow"); back = g.newlab("L_back")
    g.e("v_cmp_gt_u32 vcc, %d, v%d" % (need, vsrc)); g.e("s_cbranch_vccnz %s" % sl); g.lab(back)
    g.slow.append((sl, back, need, areg, off, vsrc))
def bump(g, areg, off=0): g.e("ds_add_u32 v%d, v%d offset:%d" % (areg, vONE, off))

def flag_regs(g, prod):
    t0 = vT
    g.e("v_and_b32 v%d, 3, v%d" % (t0, vLANE)); g.e("v_and_b32 v%d, 2, v%d" % (vFA, t0)); g.e("v_lshlrev_b32 v%d, 5, v%d" % (vFA, vFA))
    g.e("v_lshlrev_b32 v%d, 7, v%d" % (t0, t0)); g.e("v_sub_u32 v%d, v%d, v%d" % (vFA, t0, vFA))
    g.e("v_add_u32 v%d, %d, v%d" % (vFA, FBASE + 120, vFA))
    g.e("v_mov_b32 v%d, %d" % (vGR, FBASE)); g.e("v_mov_b32 v%d, 0x7ffffff0" % vGW); g.e("v_mov_b32 v%d, 1" % vONE)
    g.e("v_cmp_eq_u32 vcc, 0, v%d" % vLANE)
    g.e("s_lshl_b32 %s, %s, 7" % (sT0, sP)); g.e("s_and_b32 %s, %s, 2" % (sT1, sP)); g.e("s_lshl_b32 %s, %s, 5" % (sT1, sT1))
    g.e("s_sub_u32 %s, %s, %s" % (sT0, sT0, sT1))
    g.e("s_cmp_lt_u32 %s, 4" % sWV); g.e("s_cselect_b32 %s, 512, 0" % sT1); g.e("s_add_u32 %s, %s, %s" % (sT0, sT0, sT1)); g.e("s_add_u32 %s, %s, 120" % (sT0, sT0))
    g.e("v_cndmask_b32 v%d, v%d, v%d, vcc" % (vGW, vGW, vGR))
    g.e("v_add_u32 v%d, %s, v%d" % (vFB, sT0, vGW))

def get_nonce(g):
    lp = g.newlab("L_nlp"); ok = g.newlab("L_nok")
    g.e("s_mov_b32 %s, 0" % sSPN)
    g.lab(lp)
    g.e("v_readfirstlane_b32 s60, v%d" % vNON); g.e("v_readfirstlane_b32 s61, v%d" % (vNON + 1))
    g.e("s_add_u32 %s, %s, 1" % (sSPN, sSPN))
    g.e("s_cmp_lg_u32 s60, 0"); g.e("s_cbranch_scc1 %s" % ok)
    g.e("s_cmp_gt_u32 %s, %d" % (sSPN, SPIN_MAX)); g.e("s_cbranch_scc1 %s" % ok)
    g.e("buffer_load_dwordx2 %s, v%d, %s, 0 offen sc1" % (vr(vNON, 2), vZ, sDBG))
    g.e("s_waitcnt vmcnt(0)")
    g.e("s_branch %s" % lp)
    g.lab(ok)
def store_flag(g, soff):
    g.e("s_mov_b64 exec, 1")
    g.e("buffer_store_dwordx2 %s, v%d, %s, %s offen sc1" % (vr(vNON, 2), vZ, sWS, soff))
    g.e("s_mov_b64 exec, -1")
def poll(g, vaddr, mask):
    lp = g.newlab("L_poll"); ok = g.newlab("L_pok")
    g.e("s_mov_b64 exec, %s" % mask)
    g.e("s_mov_b32 %s, 0" % sSPN)
    g.lab(lp)
    g.e("buffer_load_dwordx2 %s, v%d, %s, 0 offen sc1" % (vr(vNON + 2, 2), vaddr, sWS))
    g.e("s_add_u32 %s, %s, 1" % (sSPN, sSPN))
    g.e("s_waitcnt vmcnt(0)")
    g.e("v_cmp_ne_u64 vcc, %s, %s" % (sNON, vr(vNON + 2, 2)))
    g.e("s_cmp_gt_u32 %s, %d" % (sSPN, SPIN_MAX)); g.e("s_cbranch_scc1 %s" % ok)
    if g.pslp:
        g.e("s_cbranch_vccz %s" % ok); g.e("s_sleep %d" % g.pslp); g.e("s_branch %s" % lp)
    else: g.e("s_cbranch_vccnz %s" % lp)
    g.lab(ok)
    g.e("s_mov_b64 exec, -1")

def setup_scalars(g, cut):
    g.e("s_cmp_eq_u32 %s, 0" % sBR)
    g.e("s_cselect_b32 s12, s36, s42"); g.e("s_cselect_b32 s13, s37, s43"); cut()
    g.e("s_mov_b32 s14, 0x%x" % WO_BYTES); g.e("s_mov_b32 s15, 0x20000"); cut()
    for (srd, a, n) in ((16, 48, WS_RECORDS), (20, 44, OUT_BYTES)):
        g.e("s_mov_b32 s%d, s%d" % (srd, a)); g.e("s_mov_b32 s%d, s%d" % (srd + 1, a + 1)); cut()
        g.e("s_mov_b32 s%d, 0x%x" % (srd + 2, n)); g.e("s_mov_b32 s%d, 0x20000" % (srd + 3)); cut()
    g.e("s_mov_b32 s68, 0"); g.e("s_mov_b32 s69, -1"); cut()
    g.e("s_mov_b32 %s, 0x%08x" % (sC, CSCALE)); g.e("s_lshl_b32 %s, %s, 10" % (sW1K, sWV)); cut()
    g.e("s_lshr_b32 %s, %s, 2" % (sHH, sWV)); g.e("s_sub_u32 %s, 3, %s" % (sT1, sP)); cut()
    g.e("s_cmp_lt_u32 %s, 4" % sWV); g.e("s_cselect_b32 %s, %s, %s" % (sRT, sT1, sP)); cut()
    g.e("s_lshl_b32 %s, %s, 3" % (sKVO, sBR)); g.e("s_add_u32 %s, %s, %s" % (sKVO, sKVO, sHP)); cut()
    g.e("s_lshl_b32 %s, %s, 4" % (sKVO, sKVO)); g.e("s_add_u32 %s, %s, %s" % (sKVO, sKVO, sR)); g.e("s_lshl_b32 %s, %s, 15" % (sKVO, sKVO)); cut()
    if g.map == 0:
        g.e("s_and_b32 %s, s2, 1" % sCB); g.e("s_lshl_b32 %s, %s, 1" % (sCB, sCB)); cut()
        g.e("s_bfe_u32 %s, s2, 0x10003" % sT0); g.e("s_add_u32 %s, %s, %s" % (sCB, sCB, sT0)); cut()
        g.e("s_bfe_u32 %s, s2, 0x20001" % sRB); g.e("s_lshl_b32 %s, %s, 3" % (sRB, sRB)); cut()
        g.e("s_bfe_u32 %s, s2, 0x30004" % sT0); g.e("s_add_u32 %s, %s, %s" % (sRB, sRB, sT0)); cut()
    else:
        g.e("s_and_b32 %s, s2, 1" % sCB); g.e("s_lshl_b32 %s, %s, 1" % (sCB, sCB)); cut()
        g.e("s_bfe_u32 %s, s2, 0x10003" % sT0); g.e("s_add_u32 %s, %s, %s" % (sCB, sCB, sT0)); cut()
        g.e("s_bfe_u32 %s, s2, 0x10001" % sRB); g.e("s_lshl_b32 %s, %s, 4" % (sRB, sRB)); cut()
        g.e("s_lshr_b32 %s, s2, 4" % sT0); g.e("s_add_u32 %s, %s, %s" % (sRB, sRB, sT0)); cut()
    g.e("s_mul_i32 %s, %s, 3584" % (sWOS, sWV)); g.e("s_lshl_b32 %s, %s, 8" % (sT0, sCB)); g.e("s_add_u32 %s, %s, %s" % (sWOS, sWOS, sT0)); cut()

def setup_vec(g, isA, cut):
    t0, t1, t2 = vT, vT + 1, vT + 2
    g.e("s_lshl_b32 %s, %s, 14" % (sT0, sHH)); g.e("s_lshl_b32 %s, %s, 12" % (sT1, sRT)); cut()
    g.e("s_add_u32 %s, %s, %s" % (sT0, sT0, sT1)); g.e("s_add_u32 %s, %s, %d" % (sT0, sT0, L_OWN)); g.e("v_add_u32 v%d, %s, v%d" % (vAD, sT0, vL16)); cut()
    for u in range(1, 9 if isA else 2):
        cross = ((L_R1 - L_OWN) if u <= 4 else (L_R2 - L_R1)) + 12288
        g.e("s_mov_b32 %s, 0x%x" % (sT1, cross & 0xffffffff))
        g.e("s_cmp_eq_u32 %s, %d" % (sRT, (u - 1) % 4))
        g.e("s_cselect_b32 %s, %s, 0x%x" % (sT0, sT1, (-4096) & 0xffffffff))
        g.e("v_add_u32 v%d, %s, v%d" % (vAD + u, sT0, vAD + u - 1)); cut()
    g.e("v_lshrrev_b32 v%d, 4, v%d" % (t0, vLANE)); g.e("v_lshlrev_b32 v%d, 2, v%d" % (t1, t0)); cut()
    g.e("v_and_b32 v%d, 15, v%d" % (t2, vLANE)); g.e("v_xor_b32 v%d, v%d, v%d" % (t1, t1, t2)); cut()
    g.e("v_mul_u32_u24 v%d, 896, v%d" % (vWOO, t0)); g.e("v_lshl_add_u32 v%d, v%d, 4, v%d" % (vWOO, t1, vWOO)); cut()
    g.e("s_cmp_eq_u32 %s, 3" % sCB); g.e("s_cselect_b32 %s, 8, 64" % sT0)
    g.e("v_mov_b32 v%d, 0x%x" % (t2, OOB)); cut()
    g.e("v_cmp_le_u32 vcc, %s, v%d" % (sT0, t1))
    g.e("s_lshl_b32 %s, %s, 7" % (sT1, sHH)); g.e("v_add_u32 v%d, %s, v%d" % (vG1, sT1, vGR))
    g.e("v_cndmask_b32 v%d, v%d, v%d, vcc" % (vWOO, vWOO, t2)); cut()

def masks(g, isA):
    g.e("v_mov_b32 v%d, 0x%08x" % (vT, NEG))
    for r in range(16):
        if isA:
            g.mask(lane_mask(lambda l: key_of(r, l) <= (l & 31)))
            g.e("v_cndmask_b32 v%d, v%d, 0, %s" % (vC1 + r, vT, sTM))
            g.e("v_cndmask_b32 v%d, 0, v%d, %s" % (vC2 + r, vT, sTM))
        else:
            g.mask(lane_mask(lambda l: ((l & 31) - key_of(r, l)) in range(0, 16, 2)))
            g.e("v_cndmask_b32 v%d, v%d, 0, %s" % (vC1 + r, vT, sTM))
            g.mask(lane_mask(lambda l: (32 + (l & 31) - key_of(r, l)) in range(0, 16, 2)))
            g.e("v_cndmask_b32 v%d, v%d, 0, %s" % (vC2 + r, vT, sTM))
    if not isA:
        skip = g.newlab("L_c2")
        g.e("s_or_b32 %s, %s, %s" % (sT0, sR, sRT)); g.e("s_cmp_lg_u32 %s, 0" % sT0); g.e("s_cbranch_scc1 %s" % skip)
        for r in range(16): g.e("v_mov_b32 v%d, v%d" % (vC2 + r, vT))
        g.lab(skip)

def xrd_addr(g, dst, srow_shift_reg):
    t0, t1, t2 = vT, vT + 1, vT + 2
    g.e("v_and_b32 v%d, 31, v%d" % (t0, vLANE)); g.e("v_bfe_u32 v%d, v%d, 1, 3" % (t1, vLANE))
    g.e("v_lshrrev_b32 v%d, 5, v%d" % (t2, vLANE)); g.e("v_xor_b32 v%d, v%d, v%d" % (t1, t1, t2))
    g.e("v_lshlrev_b32 v%d, 7, v%d" % (t0, t0)); g.e("v_add_u32 v%d, %s, v%d" % (t0, srow_shift_reg, t0))
    g.e("v_lshl_add_u32 v%d, v%d, 4, v%d" % (dst, t1, t0))
    for k in range(1, 4): g.e("v_xor_b32 v%d, %d, v%d" % (dst + k, k << 5, dst))
def wrd_addr(g, dst, colbyte):
    t0, t1, t2 = vT, vT + 1, vT + 2
    g.e("v_bfe_u32 v%d, v%d, 2, 2" % (t0, vLANE)); g.e("v_lshrrev_b32 v%d, 5, v%d" % (t2, vLANE))
    g.e("v_lshl_add_u32 v%d, v%d, 3, v%d" % (t1, t2, t0)); g.e("v_lshlrev_b32 v%d, 7, v%d" % (t1, t1))
    g.e("v_lshrrev_b32 v%d, 1, v%d" % (t0, t0)); g.e("v_lshlrev_b32 v%d, 6, v%d" % (t0, t0))
    g.e("v_and_b32 v%d, 3, v%d" % (t2, vLANE)); g.e("v_lshlrev_b32 v%d, 3, v%d" % (t2, t2))
    g.e("v_and_b32 v%d, 16, v%d" % (dst, vLANE)); g.e("v_lshl_add_u32 v%d, v%d, 1, v%d" % (t2, dst, t2))
    g.e("v_add_u32 v%d, %s, v%d" % (t2, colbyte, t2))
    g.e("v_xor_b32 v%d, v%d, v%d" % (t2, t2, t0)); g.e("v_add_u32 v%d, v%d, v%d" % (dst, t1, t2))

def producer_prep(g):
    t0, t1, t2, t3 = vT, vT + 1, vT + 2, vT + 3
    g.e("v_lshrrev_b32 v%d, 3, v%d" % (t0, vLANE)); g.e("v_lshrrev_b32 v%d, 4, v%d" % (t1, vLANE))
    g.e("v_xor_b32 v%d, v%d, v%d" % (t1, t1, vLANE)); g.e("v_and_b32 v%d, 7, v%d" % (t1, t1))
    g.e("v_mul_u32_u24 v%d, 896, v%d" % (t2, t0))
    g.e("v_lshl_add_u32 v%d, v%d, 4, v%d" % (vXO, t1, t2))
    g.e("v_xor_b32 v%d, 64, v%d" % (t3, vXO))
    g.e("v_add_u32 v%d, %d, v%d" % (vXO + 1, 7168 - 1024, t3))
    g.e("v_add_u32 v%d, %d, v%d" % (vXO + 2, 2 * (7168 - 1024), vXO))
    g.e("v_add_u32 v%d, %d, v%d" % (vXO + 3, 3 * (7168 - 1024), t3))
    g.e("v_lshrrev_b32 v%d, 2, v%d" % (t1, vLANE)); g.e("v_and_b32 v%d, 4, v%d" % (t1, t1))
    g.e("v_and_b32 v%d, 7, v%d" % (t2, vLANE)); g.e("v_xor_b32 v%d, v%d, v%d" % (t1, t1, t2)); g.e("v_min_u32 v%d, 6, v%d" % (t1, t1))
    g.e("v_mul_u32_u24 v%d, 2688, v%d" % (t2, t0)); g.e("v_lshl_add_u32 v%d, v%d, 4, v%d" % (t2, t1, t2))
    for q in range(4):
        t, h = divmod(q, 2)
        g.e("v_add_u32 v%d, %d, v%d" % (vWO + q, WBIAS + h * 8 * 2688 + (t + 1) * 896 - q * 1024, t2))
    for h in range(2): g.e("v_add_u32 v%d, %d, v%d" % (vWQ + h, WBIAS + h * 8 * 2688 - h * 1024, t2))
    g.e("s_mul_i32 %s, %s, %d" % (sXS, sR, 128 * 896)); g.e("s_mul_i32 %s, %s, %d" % (sT1, sP, 32 * 896)); g.e("s_add_u32 %s, %s, %s" % (sXS, sXS, sT1))
    g.e("s_mul_i32 %s, %s, 112" % (sWSO, sHP)); g.e("s_mul_i32 %s, %s, %d" % (sT1, sP, 16 * 2688)); g.e("s_add_u32 %s, %s, %s" % (sWSO, sWSO, sT1))
    g.e("s_lshl_b32 %s, %s, 12" % (sXB, sP)); g.e("s_lshl_b32 %s, %s, 11" % (sWB, sP))

def issue_item(g, vm, i):
    if i < 7:
        slot = (i % 5) * SLOT
        g.e("s_add_u32 m0, %s, %d" % (sXB, slot))
        if i: g.e("s_add_u32 %s, %s, 128" % (sXS, sXS))
        else: g.e("s_nop 0")
        for m in range(4): g.e("buffer_load_dwordx4 v%d, %s, %s offen%s%s lds" % (vXO + m, sX, sXS, " offset:%d" % (m * 1024) if m else "", g.ldf))
        g.e("s_add_u32 m0, %s, %d" % (sXB, slot + 16384))
        if i: g.e("s_add_u32 %s, %s, %d" % (sWSO, sWSO, 64 * 2688))
        else: g.e("s_mov_b32 %s, %s" % (sKC, sWSO))
        for q in range(4):
            if i == 2 and q == 3: g.e("s_mov_b64 exec, %s" % sHM)
            g.e("buffer_load_dwordx4 v%d, %s, %s offen%s%s lds" % (vWO + q, sW, sWSO, " offset:%d" % (q * 1024) if q else "", g.ldf))
        if i == 2: g.e("s_mov_b64 exec, -1")
        vm.add(i, 8)
    else:
        cs = range(4) if i == 7 else range(4, 7)
        for c in cs:
            g.e("s_add_u32 m0, %s, %d" % (sWB, L_WQ + c * 8192))
            if c: g.e("s_add_u32 %s, %s, %d" % (sKC, sKC, 64 * 2688))
            else: g.e("s_nop 0")
            g.e("buffer_load_dwordx4 v%d, %s, %s offen lds" % (vWQ, sW, sKC))
            if c == 3: g.e("s_mov_b64 exec, %s" % sHM)
            g.e("buffer_load_dwordx4 v%d, %s, %s offen offset:1024 lds" % (vWQ + 1, sW, sKC))
            if c == 3: g.e("s_mov_b64 exec, -1")
        vm.add(i, 2 * len(cs))

def early_dbg(g):
    g.e("s_mov_b32 s24, s46"); g.e("s_mov_b32 s25, s47"); g.e("s_mov_b32 s26, 256"); g.e("s_mov_b32 s27, 0x20000")
    g.e("v_mov_b32 v%d, 0" % vZ); g.e("v_lshlrev_b32 v%d, 4, v%d" % (vL16, vLANE))

def producer(g, isA):
    dist = g.dA if isA else g.dB
    assert dist >= 2
    vm = Q(); lg = Q()
    vm.add(0, 8)
    if g.pprio: g.e("s_setprio %d" % g.pprio)
    m = lane_mask(lambda l: ((l & 7) ^ (4 * ((l >> 4) & 1))) != 7)
    g.e("s_mov_b32 s38, 0x%08x" % (m & 0xffffffff)); g.e("s_mov_b32 s39, 0x%08x" % (m >> 32))
    g.e("s_cmp_eq_u32 %s, 7" % sWV); g.e("s_cselect_b64 %s, %s, -1" % (sHM, sHM))
    XW = lambda wn, k: (vXRD + k) if wn == 0 else (64 + 4 * (wn - 1) + k)
    vm.add(1, 8)
    g.stamp(1)
    nxt = 2
    for i in range(9):
        g.wv(vm.wait(i))
        if i >= 1: g.wl(lg.wait(("x", i - 1)))
        def pst(k):
            if "pdet" in g.exp and i in (3, 4, 5): g.only = None; g.stamp(1 + (i - 3) * 4 + k); g.only = (0, 14)
        pst(0)
        bump(g, vFB); lg.add("f")
        if i == 0: g.stamp(2)
        if "pit" in g.exp and i >= 1: g.only = None; g.stamp(2 + i); g.only = (0, 1, 2, 14)
        if i < 7:
            if i + dist >= 5 and i + dist <= 8:
                g.e("ds_read_b32 v%d, v%d offset:512" % (vFV, vFA)); lg.add("dn")
            if "nopx" not in g.exp:
                for ks in range(4): g.e("ds_read_b128 %s, v%d offset:%d" % (vr(vXF + 16 * i + 4 * ks, 4), XW((i % 5) // 2, ks), (i % 5 % 2) * SLOT))
                lg.add(("x", i), 4)
        if g.gate and isA and i == g.gsig:
            sk = g.newlab("L_gs")
            g.e("s_cmp_lg_u32 %s, 4" % sWV); g.e("s_cbranch_scc1 %s" % sk)
            get_nonce(g)
            g.e("s_lshl_b32 %s, s2, 7" % sT0); g.e("s_add_u32 %s, %s, 0x%x" % (sT0, sT0, WS_GFLAG))
            store_flag(g, sT0)
            g.lab(sk)
        while nxt <= 8 and nxt <= i + dist:
            if g.gate and not isA and nxt == g.gitem:
                g.e("s_waitcnt vmcnt(0)"); vm.clear()
                get_nonce(g)
                g.e("s_sub_u32 %s, s2, 128" % sT0); g.e("s_lshl_b32 %s, %s, 7" % (sT0, sT0)); g.e("s_add_u32 %s, %s, 0x%x" % (sT0, sT0, WS_GFLAG))
                g.e("v_mov_b32 v%d, %s" % (vT, sT0))
                poll(g, vT, "1")
                if g.touch == 3: touch_own(g, g.gitem + 1); vm.add("t", 2)
            pst(1)
            if nxt >= 5:
                n = lg.wait("dn")
                if n is None: spin(g, nxt - 4, vFA, 512, vFV); lg.clear()
                else:
                    g.wl(n); check(g, nxt - 4, vFA, 512, vFV)
            pst(2)
            if nxt == 8 and g.late8: break
            issue_item(g, vm, nxt); nxt += 1
            pst(3)
        if i == 0 and g.gate:
            early_dbg(g)
            g.e("s_mov_b32 s16, s48"); g.e("s_mov_b32 s17, s49"); g.e("s_mov_b32 s18, 0x%x" % WS_RECORDS); g.e("s_mov_b32 s19, 0x20000")
            g.e("buffer_load_dwordx2 %s, v%d, %s, 0 offen sc1" % (vr(vNON, 2), vZ, sDBG)); vm.add("non0")
        if i == g.ps1:
            for wn in (1, 2):
                for k in range(4): g.e("v_add_u32 v%d, 0x%x, v%d" % (XW(wn, k), wn * 65536, vXRD + k))
            early_dbg(g)
            for grp in g.capture(lambda cut: setup_scalars(g, cut)): g.l += grp
        if i == g.ps2:
            wrd_addr(g, vWRD, 0); g.e("v_add_u32 v%d, %d, v%d" % (vWRD, L_WQ, vWRD)); wrd_addr(g, vQW, 56); g.e("v_add_u32 v%d, %d, v%d" % (vQW, L_WQ, vQW))
            masks(g, isA)
        if i == 7:
            bump(g, vGW, F_XD); lg.add("f")
            g.e("buffer_load_dwordx2 %s, v%d, %s, 0 offen sc1" % (vr(vNON, 2), vZ, sDBG)); vm.add("non")
            g.stamp(3)
            q_phase_begin = True
            break
    late = g.capture(lambda cut: setup_vec(g, isA, cut))
    aQ = vACC; WB = 64
    def rd(j, hds=(0, 1)):
        c, ks = divmod(j, 4)
        b = WB + (j % 3) * 8
        for hd in hds:
            for h in range(2):
                g.e("ds_read_b64_tr_b16 %s, v%d offset:%d" % (vr(b + 4*hd + 2*h, 2), vQW if hd else vWRD, c * 8192 + ks * 2048 + h * 512))
            lg.add((j, hd), 2)
    spin(g, 8, vFA, 0, vFV); lg.clear()
    if g.late8 == 1:
        spin(g, 4, vGR, F_ST, vFV); issue_item(g, vm, 8)
    if g.qwait: spin(g, 7, vFA, 512, vFV)
    g.stamp(5)
    rd(0); rd(1)
    for j in range(28):
        b = WB + (j % 3) * 8
        if j == g.qpj and g.qprio: g.e("s_setprio %d" % g.qprio)
        if j == g.late8 and g.late8 > 1: issue_item(g, vm, 8)
        if j == 12 - 0 * g.late8 + (0 if g.late8 else -2):
            g.wv(vm.wait(8)); bump(g, vFB); lg.add("f")
        for hd in range(2):
            g.wl(lg.wait((j, hd)))
            g.mfma(aQ + 16 * hd, b + 4 * hd, vXF + 4 * j, None if j == 0 else aQ + 16 * hd)
            if hd == 0:
                if j == 13: g.e("ds_read_b32 v%d, v%d" % (vFV, vFA)); lg.add("flag")
                if j == 14:
                    g.wl(lg.wait("flag")); check(g, 9, vFA, 0, vFV); g.stamp(6)
            if j + 2 < 28: rd(j + 2, (hd,))
            if late and j >= 16: g.l += late.pop(0)
    for grp in late: g.l += grp
    g.e("v_mov_b32 v%d, %s" % (vT + 1, sC))
    g.e("v_cndmask_b32 v%d, v%d, 0, %s" % (vT + 2, vT + 1, sUP))
    g.e("s_lshl_b32 %s, %s, 11" % (sT0, sP)); g.e("s_add_u32 %s, %s, %d" % (sT0, sT0, L_QA)); g.e("v_add_u32 v%d, %s, v%d" % (vT, sT0, vL16))
    g.e("s_nop 5")
    for hd in range(2):
        a = aQ + 16 * hd; p = a if hd == 0 else vQF
        if g.qround:
            for i in range(8):
                g.e("v_cvt_pk_bf16_f32 v%d, v%d, v%d" % (a + 2*i + 1, a + 2*i, a + 2*i + 1))
                g.e("v_lshlrev_b32 v%d, 16, v%d" % (a + 2*i, a + 2*i + 1))
                g.e("v_and_b32 v%d, 0xffff0000, v%d" % (a + 2*i + 1, a + 2*i + 1))
        for r in range(16): g.e("v_mul_f32 v%d, v%d, v%d" % (a + r, vT + (2 if r >= 12 else 1), a + r))
        for i in range(8): g.e("v_cvt_pk_bf16_f32 v%d, v%d, v%d" % (p + i, a + 2*i, a + 2*i + 1))
        if hd == 0:
            for f in range(2): g.e("ds_write_b128 v%d, %s offset:%d" % (vT, vr(p + 4*f, 4), f * 1024))
            g.e("s_waitcnt lgkmcnt(0)")
            bump(g, vGW, F_QRDY)
    if g.qprio: g.e("s_setprio %d" % g.aprio)
    g.e("s_waitcnt vmcnt(0)")
    get_nonce(g)
    if g.wotouch:
        nt = g.newlab("L_nwt")
        g.e("s_cmp_gt_u32 %s, 5" % sWV); g.e("s_cbranch_scc1 %s" % nt)
        nsh = 8 if g.map == 0 else 16
        g.e("s_and_b32 %s, %s, %d" % (sT0, sRB, nsh - 1)); g.e("s_mul_i32 %s, %s, %d" % (sT0, sT0, (448 // nsh) * 896))
        g.e("s_lshl_b32 %s, %s, 8" % (sT1, sCB)); g.e("s_add_u32 %s, %s, %s" % (sT0, sT0, sT1))
        g.e("s_and_b32 %s, %s, 1" % (sT1, sWV)); g.e("s_lshl_b32 %s, %s, 7" % (sT1, sT1)); g.e("s_add_u32 %s, %s, %s" % (sT0, sT0, sT1))
        g.e("v_mul_u32_u24 v%d, 896, v%d" % (vT, vLANE))
        mm = (1 << (448 // nsh)) - 1
        g.mask(mm); g.e("s_mov_b64 exec, %s" % sTM)
        g.e("buffer_load_dword v%d, v%d, %s, %s offen" % (vGX + 1, vT, sWO, sT0))
        g.e("s_mov_b64 exec, -1")
        g.lab(nt)
    g.stamp(4)
    spin(g, 4, vGR, F_OWN, vFV)

def consumer(g, isA):
    t0, t1, t2 = vT, vT + 1, vT + 2
    early_dbg(g)
    skip = g.newlab("L_non")
    g.e("s_or_b32 %s, s2, %s" % (sT0, sWV)); g.e("s_cmp_lg_u32 %s, 0" % sT0); g.e("s_cbranch_scc1 %s" % skip)
    g.e("s_memrealtime %s" % sNON); g.e("s_waitcnt lgkmcnt(0)"); g.e("s_or_b32 s60, s60, 1")
    g.e("v_mov_b32 v%d, s60" % vNON); g.e("v_mov_b32 v%d, s61" % (vNON + 1))
    g.e("s_mov_b64 exec, 1")
    g.e("buffer_store_dwordx2 %s, v%d, %s, 0 offen sc1" % (vr(vNON, 2), vZ, sDBG))
    g.e("s_mov_b64 exec, -1")
    g.lab(skip)
    if g.ctouch:
        ct = g.newlab("L_ct")
        g.e("s_cmp_lg_u32 %s, 1" % sWV); g.e("s_cbranch_scc1 %s" % ct)
        pc = g.newlab("L_pc")
        g.e("s_getpc_b64 s[16:17]")
        g.lab(pc)
        g.e("s_sub_u32 s16, s16, %s-%s_kernel" % (pc, NAME)); g.e("s_subb_u32 s17, s17, 0")
        g.e("s_mov_b32 s18, L_codeend-%s_kernel" % NAME); g.e("s_mov_b32 s19, 0x20000")
        g.e("s_lshr_b32 %s, s2, 3" % sT0); g.e("s_mul_i32 %s, %s, %d" % (sT0, sT0, 16 * 128))
        g.e("v_lshlrev_b32 v%d, 7, v%d" % (vT, vLANE))
        g.e("s_mov_b64 exec, 0xffff")
        g.e("buffer_load_dword v192, v%d, s[16:19], %s offen" % (vT, sT0))
        g.e("s_mov_b64 exec, -1")
        g.lab(ct)
    if g.touch and not isA: touch(g)
    g.e("s_and_b32 %s, %s, 1" % (sT2, sWV)); g.e("s_lshl_b32 %s, %s, 13" % (sT2, sT2))
    xrd_addr(g, vXRD, sT2)
    g.e("s_lshr_b32 %s, %s, 1" % (sT3, sWV)); g.e("s_mul_i32 %s, %s, 56" % (sT1, sT3))
    wrd_addr(g, vWRD, sT1)
    sa = lambda wn, k: vQF + 5 * wn + k
    for wn in range(3):
        for k in range(4): g.e("v_add_u32 v%d, 0x%x, v%d" % (sa(wn, k), wn * 65536, vXRD + k))
        g.e("v_add_u32 v%d, 0x%x, v%d" % (sa(wn, 4), wn * 65536, vWRD))
    g.e("s_lshl_b32 %s, %s, 13" % (sT4, sWV))
    g.e("s_add_u32 %s, %s, %d" % (sT0, sT4, L_OWN)); g.e("v_add_u32 v%d, %s, v%d" % (vKVW, sT0, vL16))
    for grp in g.capture(lambda cut: setup_scalars(g, cut)): g.l += grp
    g.stamp(1)
    lg = Q()
    def rd_ops(j):
        i, ks = divmod(j, 4)
        xb, wb = vXB + (j % 3) * 8, vWB + (j % 3) * 8
        sl = i % 5; ax = sa(sl // 2, ks); aw = sa(sl // 2, 4); base = (sl % 2) * SLOT
        tr = lambda t, h: "ds_read_b64_tr_b16 %s, v%d offset:%d" % (vr(wb + 4*t + 2*h, 2), aw, base + 16384 + ks * 4096 + t * 2048 + h * 512)
        return [((j, "x0"), "ds_read_b128 %s, v%d offset:%d" % (vr(xb, 4), ax, base)), ((j, "k"), tr(0, 0)), ((j, "k"), tr(0, 1)),
                ((j, "x1"), "ds_read_b128 %s, v%d offset:%d" % (vr(xb + 4, 4), ax, base + 4096)), ((j, "v"), tr(1, 0)), ((j, "v"), tr(1, 1))]
    def emit(op):
        if "nocr" in g.exp: return
        g.e(op[1]); lg.add(op[0])
    spin(g, 1, vFA, 0, vFV)
    if g.c1prio: g.e("s_setprio %d" % g.c1prio)
    g.stamp(2)
    for j in range(2):
        for op in rd_ops(j): emit(op)
    aK, aV = vACC, vACC + 32
    dist = eval(g.cdist)
    for j in range(28):
        xb, wb = vXB + (j % 3) * 8, vWB + (j % 3) * 8
        nx = rd_ops(j + 2) if j + 2 < 28 else []
        mms = [((j, "k"), aK, wb, xb), ((j, "x1"), aK + 16, wb, xb + 4), ((j, "v"), aV, xb, wb + 4), (None, aV + 16, xb + 4, wb + 4)]
        for n, (dep, d, a, b) in enumerate(mms):
            if dep is not None: g.wl(lg.wait(dep))
            g.mfma(d, a, b, None if j == 0 else d)
            if n == 0 and nx and (j + 2) % 4 == 0:
                g.wl(lg.wait(("flag", (j + 2) // 4))); check(g, (j + 2) // 4 + 1, vFA, 0, vFV)
                if "pit" in g.exp: g.only = None; g.stamp(2 + (j + 2) // 4); g.only = (0, 1, 2, 14)
            for _ in range(dist[n]):
                if nx: emit(nx.pop(0))
            if n == 1 and (j + 3) % 4 == 0 and j + 3 < 28:
                g.e("ds_read_b32 v%d, v%d" % (vFV, vFA)); lg.add(("flag", (j + 3) // 4))
            if n == 3 and j % 4 == 3:
                bump(g, vFB); lg.add("done")
            if n == 1 and j == 26:
                g.e("ds_read_b32 v%d, v%d offset:512" % (vFV, vFA)); lg.add("alldone")
            if j == 18 and n == 3: g.e("buffer_load_dwordx2 %s, v%d, %s, 0 offen sc1" % (vr(vNON, 2), vZ, sDBG))
    g.stamp(3)
    g.e("v_mov_b32 v%d, 0x3f803f80" % vT)
    g.mask(lane_mask(lambda l: (l & 31) == 28))
    g.e("s_add_u32 %s, %s, %s" % (sT1, sT4, sKVO)); g.e("s_add_u32 %s, %s, 4096" % (sT0, sT1))
    g.wl(lg.wait("alldone")); check(g, 5, vFA, 512, vFV)
    g.e("s_nop 1")
    if not isA:
        g.e("s_bitcmp1_b32 %s, 0" % sWV); g.e("s_cselect_b32 %s, %s, 0x%x" % (sT0, sT0, OOB))
    def pub(t, f, p):
        if isA or t == 1: g.e("buffer_store_dwordx4 %s, v%d, %s, %s offen offset:%d%s" % (vr(p, 4), vL16, sWS, sT0 if t else sT1, f * 1024, g.stf))
    def packK(t):
        p = aK + 16 * t
        for i in range(8): g.e("v_cvt_pk_bf16_f32 v%d, v%d, v%d" % (p + i, p + 2*i, p + 2*i + 1))
        g.e("v_cndmask_b32 v%d, v%d, v%d, %s" % (p + 6, p + 6, vT, sUP))
        for f in range(2): pub(t, f, p + 4*f)
    def packV(t):
        p = aV + 16 * t
        for f in range(2):
            for i in range(4*f, 4*f + 4): g.e("v_cvt_pk_bf16_f32 v%d, v%d, v%d" % (p + i, p + 2*i, p + 2*i + 1))
            for i in range(4*f, 4*f + 4): g.e("v_cndmask_b32 v%d, v%d, v%d, %s" % (p + i, p + i, vT, sTM))
            pub(t, 2 + f, p + 4*f)
    if isA: packK(0); packK(1); packV(0); packV(1)
    else: packK(1); packV(1); packK(0); packV(0)
    if g.c1prio: g.e("s_setprio 0")
    bump(g, vGW, F_ST)
    for t in range(2):
        for f in range(4):
            p = (aK + 16*t + 4*f) if f < 2 else (aV + 16*t + 4*(f - 2))
            g.e("ds_write_b128 v%d, %s offset:%d" % (vKVW, vr(p, 4), t * 4096 + f * 1024))
    for grp in g.capture(lambda cut: setup_vec(g, isA, cut)): g.l += grp
    g.e("s_waitcnt lgkmcnt(0)")
    bump(g, vGW, F_OWN)
    g.e("s_lshr_b32 %s, %s, 8" % (sT1, sKVO)); g.e("s_lshl_b32 %s, %s, 3" % (sT2, sWV))
    g.e("s_add_u32 %s, %s, %s" % (sT1, sT1, sT2)); g.e("s_add_u32 %s, %s, 0x%x" % (sT1, sT1, WS_KVFLAG))
    g.e("s_waitcnt vmcnt(0)")
    get_nonce(g)
    store_flag(g, sT1)
    g.stamp(4)
    done = g.newlab("L_ldd")
    if g.mfirst: masks(g, isA)
    if not isA or g.r2late:
        g.e("s_cmp_lt_u32 %s, 2" % sWV); g.e("s_cbranch_scc1 %s" % done)
    fetch_remote(g, isA)
    if not isA:
        g.e("s_waitcnt vmcnt(0)")
        bump(g, vFB)
    g.lab(done)
    g.stamp(6)
    if not g.mfirst: masks(g, isA)
    g.e("s_lshl_b32 %s, %s, 11" % (sT0, sRT)); g.e("s_add_u32 %s, %s, %d" % (sT0, sT0, L_QA)); g.e("v_add_u32 v%d, %s, v%d" % (vT, sT0, vL16))
    spin(g, 4, vGR, F_OWN, vFV); spin(g, 4, vGR, F_QRDY, vFV)
    for f in range(2): g.e("ds_read_b128 %s, v%d offset:%d" % (vr(vQF + 4*f, 4), vT, f * 1024))

def fetch_remote(g, isA):
    nopoll = g.newlab("L_nopoll")
    g.e("s_lshr_b32 %s, %s, 1" % (sT3, sRT))
    spin(g, 7, vFA, 512, vFV); spin(g, 4, vGR, F_XD, vFV)
    g.e("s_and_b32 %s, %s, 1" % (sT2, sRT)); g.e("s_add_u32 %s, %s, 1" % (sT4, sT3))
    g.e("s_lshl_b32 %s, %s, 15" % (sT0, sT4)); g.e("s_sub_u32 %s, %s, %s" % (sXS, sKVO, sT0))
    g.e("s_cmp_lt_u32 %s, %s" % (sR, sT4)); g.e("s_cselect_b32 %s, 0x%x, %s" % (sWSO, OOB, sXS))
    g.e("s_cbranch_scc1 %s" % nopoll)
    g.e("s_lshr_b32 %s, %s, 8" % (sT0, sXS)); g.e("s_lshl_b32 %s, %s, 4" % (sT1, sT2)); g.e("s_add_u32 %s, %s, %s" % (sT0, sT0, sT1))
    g.e("s_add_u32 %s, %s, 0x%x" % (sT0, sT0, WS_KVFLAG))
    g.e("v_lshlrev_b32 v%d, 3, v%d" % (vT, vLANE)); g.e("v_add_u32 v%d, %s, v%d" % (vT, sT0, vT))
    poll(g, vT, "3" if isA else "2")
    g.lab(nopoll)
    g.stamp(5)
    g.e("s_lshl_b32 %s, %s, 14" % (sT2, sT2)); g.e("s_add_u32 %s, %s, %s" % (sWSO, sWSO, sT2))
    g.e("s_lshl_b32 %s, %s, 15" % (sT0, sT3)); g.e("s_sub_u32 %s, %d, %s" % (sT0, L_R1, sT0)); g.e("s_add_u32 %s, %s, %s" % (sT2, sT2, sT0))
    for t in ((3, 2, 1, 0) if isA else (3,)):
        g.e("s_add_u32 m0, %s, %d" % (sT2, t * 4096))
        g.e("s_add_u32 %s, %s, %d" % (sT0, sWSO, t * 4096))
        for f in range(4): g.e("buffer_load_dwordx4 v%d, %s, %s offen offset:%d sc1 lds" % (vL16, sWS, sT0, f * 1024))
    g.e("s_lshl_b32 %s, %s, 7" % (sT0, sRT)); g.e("s_lshl_b32 %s, %s, 6" % (sT1, sT3)); g.e("s_sub_u32 %s, %s, %s" % (sT0, sT0, sT1))
    g.e("s_add_u32 %s, %s, 124" % (sT0, sT0)); g.e("v_add_u32 v%d, %s, v%d" % (vFB, sT0, vGW))

def touch(g):
    if g.touch in (1, 3): return touch1(g)
    t0, t1, t2, t3 = vT, vT + 1, vT + 2, vT + 3
    isw = g.newlab("L_tw"); end = g.newlab("L_te")
    g.e("s_bfe_u32 %s, s2, 0x40003" % sT0); g.e("s_lshl_b32 %s, %s, 7" % (sT0, sT0))
    g.e("v_and_b32 v%d, 127, v0" % t0); g.e("v_add_u32 v%d, %s, v%d" % (t0, sT0, t0))
    g.e("v_mov_b32 v%d, 0x%x" % (t3, OOB))
    g.e("s_mov_b32 s19, 0x20000"); g.e("s_mov_b32 s23, 0x20000")
    g.e("s_cmp_ge_u32 %s, 2" % sWV); g.e("s_cbranch_scc1 %s" % isw)
    g.e("s_mov_b32 s16, s32"); g.e("s_mov_b32 s17, s33"); g.e("s_mov_b32 s18, 0x%x" % X_BYTES)
    g.e("s_mov_b32 s20, s4"); g.e("s_mov_b32 s21, s5"); g.e("s_mov_b32 s22, 0x%x" % X_BYTES)
    g.e("v_and_b32 v%d, 511, v%d" % (t1, t0)); g.e("v_mul_u32_u24 v%d, 896, v%d" % (t1, t1))
    g.e("v_lshrrev_b32 v%d, 9, v%d" % (t2, t0)); g.e("v_cmp_gt_u32 vcc, 3, v%d" % t2)
    g.e("v_lshl_add_u32 v%d, v%d, 7, v%d" % (t1, t2, t1))
    g.e("s_bfe_u32 %s, s2, 0x20001" % sT0); g.e("s_mul_i32 %s, %s, %d" % (sT0, sT0, 512 * 896))
    g.e("v_cndmask_b32 v%d, v%d, v%d, vcc" % (t1, t3, t1))
    n = 0
    for srd in ("s[16:19]", "s[20:23]"):
        for c0 in (1, 4):
            g.e("buffer_load_dword v%d, v%d, %s, %s offen offset:%d" % (186 + n, t1, srd, sT0, c0 * 128)); n += 1
    g.e("s_branch %s" % end)
    g.lab(isw)
    g.e("s_mov_b32 s16, s34"); g.e("s_mov_b32 s17, s35"); g.e("s_mov_b32 s18, 0x%x" % W_BYTES)
    g.e("s_mov_b32 s20, s40"); g.e("s_mov_b32 s21, s41"); g.e("s_mov_b32 s22, 0x%x" % W_BYTES)
    g.e("v_lshrrev_b32 v%d, 3, v%d" % (t2, t0)); g.e("v_cmp_gt_u32 vcc, 192, v%d" % t2)
    g.e("v_mul_u32_u24 v%d, 2688, v%d" % (t1, t2))
    g.e("v_bfe_u32 v%d, v%d, 2, 1" % (t2, t0)); g.e("v_mul_u32_u24 v%d, 896, v%d" % (t2, t2)); g.e("v_add_u32 v%d, v%d, v%d" % (t1, t1, t2))
    g.e("v_and_b32 v%d, 3, v%d" % (t2, t0)); g.e("v_lshlrev_b32 v%d, 7, v%d" % (t2, t2)); g.e("v_add_u32 v%d, v%d, v%d" % (t1, t1, t2))
    g.e("v_cndmask_b32 v%d, v%d, v%d, vcc" % (t1, t3, t1))
    g.e("v_lshrrev_b32 v%d, 2, v%d" % (t0, t0)); g.e("v_mul_u32_u24 v%d, 2688, v%d" % (t0, t0)); g.e("v_add_u32 v%d, v%d, v%d" % (t0, t0, t2))
    g.e("s_and_b32 %s, s2, 1" % sT0); g.e("s_mul_i32 %s, %s, 384" % (sT0, sT0))
    g.e("s_add_u32 %s, %s, %d" % (sT1, sT0, 64 * 2688 + 896)); g.e("s_add_u32 %s, %s, %d" % (sT2, sT0, 4 * 64 * 2688 + 896))
    n = 0
    for srd in ("s[16:19]", "s[20:23]"):
        for so in (sT1, sT2):
            g.e("buffer_load_dword v%d, v%d, %s, %s offen" % (186 + n, t1, srd, so)); n += 1
        g.e("buffer_load_dword v%d, v%d, %s, %s offen" % (186 + n, t0, srd, sT0)); n += 1
    g.lab(end)

def touch_own(g, first):
    t0, t1, t2 = vT, vT + 1, vT + 2
    g.e("s_bfe_u32 %s, s2, 0x40003" % sT0); g.e("s_lshl_b32 %s, %s, 8" % (sT0, sT0))
    g.e("v_and_b32 v%d, 255, v0" % t0); g.e("v_add_u32 v%d, %s, v%d" % (t0, sT0, t0))
    g.e("v_and_b32 v%d, 511, v%d" % (t1, t0)); g.e("v_mul_u32_u24 v%d, 896, v%d" % (t1, t1))
    g.e("v_lshrrev_b32 v%d, 9, v%d" % (t2, t0)); g.e("v_add_u32 v%d, %d, v%d" % (t2, first, t2))
    g.e("v_cmp_gt_u32 vcc, 7, v%d" % t2)
    g.e("v_lshl_add_u32 v%d, v%d, 7, v%d" % (t1, t2, t1))
    g.e("v_mov_b32 v%d, 0x%x" % (t2, OOB))
    g.e("v_cndmask_b32 v%d, v%d, v%d, vcc" % (t1, t2, t1))
    g.e("s_bfe_u32 %s, s2, 0x20001" % sT0); g.e("s_mul_i32 %s, %s, %d" % (sT0, sT0, 512 * 896))
    g.e("v_lshrrev_b32 v%d, 2, v%d" % (t2, t0))
    g.e("buffer_load_dword v88, v%d, %s, %s offen" % (t1, sX, sT0))
    g.e("v_mul_u32_u24 v%d, 896, v%d" % (t2, t2))
    g.e("v_and_b32 v%d, 3, v%d" % (t0, t0)); g.e("v_lshl_add_u32 v%d, v%d, 7, v%d" % (t2, t0, t2))
    g.e("s_and_b32 %s, s2, 1" % sT0); g.e("s_mul_i32 %s, %s, 384" % (sT0, sT0)); g.e("s_add_u32 %s, %s, %d" % (sT0, sT0, first * 64 * 2688 + WBIAS))
    g.e("buffer_load_dword v89, v%d, %s, %s offen" % (t2, sW, sT0))

def touch1(g):
    t0, t1, t2 = vT, vT + 1, vT + 2
    for tb in ([0] if g.touch == 3 else [0, 1] if g.map == 0 else [1]):
        px, pw = (32, 34) if tb == 0 else (4, None)
        if tb == 0:
            g.e("s_mov_b32 s16, s32"); g.e("s_mov_b32 s17, s33"); g.e("s_mov_b32 s20, s34"); g.e("s_mov_b32 s21, s35")
        else:
            g.e("s_mov_b32 s16, s4"); g.e("s_mov_b32 s17, s5"); g.e("s_mov_b32 s20, s40"); g.e("s_mov_b32 s21, s41")
        g.e("s_mov_b32 s18, 0x%x" % X_BYTES); g.e("s_mov_b32 s19, 0x20000"); g.e("s_mov_b32 s22, 0x%x" % W_BYTES); g.e("s_mov_b32 s23, 0x20000")
        g.e("s_bfe_u32 %s, s2, 0x40003" % sT0); g.e("s_lshl_b32 %s, %s, 8" % (sT0, sT0))
        g.e("v_add_u32 v%d, %s, v0" % (t0, sT0))
        g.e("v_and_b32 v%d, 511, v%d" % (t1, t0)); g.e("v_mul_u32_u24 v%d, 896, v%d" % (t1, t1))
        g.e("v_lshrrev_b32 v%d, 9, v%d" % (t2, t0)); g.e("v_add_u32 v%d, %d, v%d" % (t2, g.tfirst, t2))
        g.e("v_cmp_gt_u32 vcc, 7, v%d" % t2)
        g.e("v_lshl_add_u32 v%d, v%d, 7, v%d" % (t1, t2, t1))
        g.e("v_mov_b32 v%d, 0x%x" % (t2, OOB))
        g.e("v_cndmask_b32 v%d, v%d, v%d, vcc" % (t1, t2, t1))
        g.e("s_bfe_u32 %s, s2, 0x20001" % sT0); g.e("s_mul_i32 %s, %s, %d" % (sT0, sT0, 512 * 896))
        g.e("v_lshrrev_b32 v%d, 2, v%d" % (t2, t0))
        g.e("buffer_load_dword v%d, v%d, s[16:19], %s offen%s" % (188 + 2*tb, t1, sT0, g.tf))
        g.e("v_mul_u32_u24 v%d, 896, v%d" % (t2, t2))
        g.e("v_and_b32 v%d, 3, v%d" % (t0, t0)); g.e("v_lshl_add_u32 v%d, v%d, 7, v%d" % (t2, t0, t2))
        g.e("s_and_b32 %s, s2, 1" % sT0); g.e("s_mul_i32 %s, %s, 384" % (sT0, sT0)); g.e("s_add_u32 %s, %s, %d" % (sT0, sT0, g.tfirst * 64 * 2688))
        g.e("buffer_load_dword v%d, v%d, s[20:23], %s offen%s" % (189 + 2*tb, t2, sT0, g.tf))

def max16(g, s, dst, first=True):
    if first:
        g.e("v_max3_f32 v%d, v%d, v%d, v%d" % (dst, s, s + 1, s + 2)); rest = list(range(3, 16))
    else: rest = list(range(16))
    while len(rest) >= 2:
        a, b = rest.pop(0), rest.pop(0)
        g.e("v_max3_f32 v%d, v%d, v%d, v%d" % (dst, dst, s + a, s + b))
    if rest: g.e("v_max_f32 v%d, v%d, v%d" % (dst, dst, s + rest[0]))
def xhalf_max(g):
    g.e("v_mov_b32 v%d, v%d" % (vM2, vM)); g.e("s_nop 1")
    g.e("v_permlane32_swap_b32 v%d, v%d" % (vM, vM2)); g.e("s_nop 1")
    g.e("v_max_f32 v%d, v%d, v%d" % (vM, vM, vM2))
def set_shift(g):
    g.e("v_cvt_pk_bf16_f32 v%d, -v%d, 0" % (vM2, vM))
    g.e("v_lshlrev_b32 v%d, 16, v%d" % (vNM, vM2))
    g.e("v_cndmask_b32 v%d, v%d, v%d, %s" % (vQF + 6, vQF + 6, vM2, sUP))
def bcast_l(g):
    g.e("v_mov_b32 v%d, v%d" % (vM, vO + 12)); g.e("v_mov_b32 v%d, v%d" % (vM2, vO + 12)); g.e("s_nop 1")
    g.e("v_permlane32_swap_b32 v%d, v%d" % (vM, vM2)); g.e("s_nop 1")
def finish_o(g):
    g.e("v_rcp_f32 v%d, v%d" % (vM, vM2))
    g.e("s_lshl_b32 %s, %s, 6" % (sT0, sBR)); g.e("s_lshl_b32 %s, %s, 2" % (sT1, sR)); g.e("s_add_u32 %s, %s, %s" % (sT0, sT0, sT1))
    g.e("v_cndmask_b32 v%d, v%d, 0, %s" % (vM2, vM, sUP))
    g.e("s_add_u32 %s, %s, %s" % (sT0, sT0, sRT)); g.e("s_lshl_b32 %s, %s, 4" % (sT0, sT0))
    g.e("s_lshl_b32 %s, %s, 1" % (sT1, sHP)); g.e("s_add_u32 %s, %s, %s" % (sT0, sT0, sT1)); g.e("s_add_u32 %s, %s, %s" % (sT0, sT0, sHH))
    g.e("s_lshl_b32 %s, %s, 11" % (sT0, sT0)); g.e("s_add_u32 %s, %s, 0x%x" % (sT0, sT0, WS_OF))
    for f in range(2):
        for r in range(8*f, 8*f + 8): g.e("v_mul_f32 v%d, v%d, v%d" % (vO + r, vM2 if r >= 12 else vM, vO + r))
        for i in range(4*f, 4*f + 4): g.e("v_cvt_pk_bf16_f32 v%d, v%d, v%d" % (vP + i, vO + 2*i, vO + 2*i + 1))
        g.e("buffer_store_dwordx4 %s, v%d, %s, %s offen offset:%d%s" % (vr(vP + 4*f, 4), vL16, sWS, sT0, f * 1024, g.stf))
def dbg_q(g):
    if not g.dbgq: return
    g.e("s_lshl_b32 %s, %s, 2" % (sT0, sHH)); g.e("s_add_u32 %s, %s, %s" % (sT0, sT0, sRT)); g.e("s_lshl_b32 %s, %s, 11" % (sT0, sT0))
    g.e("s_lshr_b32 %s, %s, 1" % (sT1, sKVO)); g.e("s_add_u32 %s, %s, %s" % (sT0, sT0, sT1)); g.e("s_add_u32 %s, %s, 0x%x" % (sT0, sT0, WS_QDBG))
    g.e("s_waitcnt lgkmcnt(0)")
    for f in range(2): g.e("buffer_store_dwordx4 %s, v%d, %s, %s offen offset:%d" % (vr(vQF + 4*f, 4), vL16, sWS, sT0, f * 1024))
    g.e("s_waitcnt vmcnt(0)")

def wo_dma(g, m, ldsbase, row0, last=False):
    sk = g.newlab("L_wsk")
    if last:
        g.e("s_cmp_eq_u32 %s, 7" % sWV); g.e("s_cbranch_scc1 %s" % sk)
    g.e("s_add_u32 m0, %s, %d" % (sW1K, ldsbase + m * 8192))
    g.e("s_add_u32 %s, %s, %d" % (sT3, sWOS, row0 * 896 + m * 8 * 3584))
    g.e("buffer_load_dwordx4 v%d, %s, %s offen lds" % (vWOO, sWO, sT3))
    if last: g.lab(sk)
def wo1(g, n):
    if n < 4: wo_dma(g, n, L_W1A, 0, last=(n == 3))
    else: wo_dma(g, n - 4, L_W1B, 120)

def attn_A(g):
    lg = Q(); lg.add("q", 2)
    nwo = [0]; nwo0 = [0]; nwoS = {}
    def site(u):
        for (cond, b) in ((u - 1, 0), (u - 5, 1)):
            if 0 <= cond <= 3:
                sk = g.newlab("L_site")
                g.e("s_cmp_lg_u32 %s, %d" % (sRT, cond)); g.e("s_cbranch_scc1 %s" % sk)
                check(g, 1, vG1, F_KV(b, 0), vGV + b)
                if g.r2late == 2 and b == 0 and cond >= 2:
                    g.e("s_cmp_ge_u32 %s, 4" % sWV); g.e("s_cbranch_scc1 %s" % sk)
                    fetch_remote(g, True)
                    nwoS[cond] = nwo[0]
                g.lab(sk)
    def rdF(): g.e("ds_read2_b32 %s, v%d offset0:%d offset1:%d" % (vr(vGV, 2), vG1, F_KV(0, 0) // 4, F_KV(1, 0) // 4)); lg.add("x")
    def rdK(u):
        for j in range(2): g.e("ds_read_b128 %s, v%d offset:%d" % (vr(vKB + (u % 2) * 8 + 4*j, 4), vAD + u, j * 1024))
        lg.add(("K", u), 2)
    def rdV(u):
        for j in range(2): g.e("ds_read_b128 %s, v%d offset:%d" % (vr(vVB + (u % 2) * 8 + 4*j, 4), vAD + u, 2048 + j * 1024))
        lg.add(("V", u), 2)
    def qk(u, j):
        s = vS + (u % 3) * 16
        g.mfma(s, vKB + (u % 2) * 8 + 4*j, vQF + 4*j, s if j else (vC1 if u == 0 else vC2 if u == 8 else None))
    def pv(u, j):
        g.mfma(vO, vVB + (u % 2) * 8 + 4*j, vS + (u % 3) * 16 + 4*j, None if (u == 0 and j == 0) else vO)
    if "ast" in g.exp: g.only = None; g.stamp(1); g.only = (0, 14)
    rdF(); rdK(0)
    g.wl(lg.wait(("K", 0))); qk(0, 0); qk(0, 1)
    bump(g, vGW, F_CQ); lg.add("x")
    g.e("s_nop 10")
    max16(g, vS, vM); xhalf_max(g); set_shift(g)
    for r in range(16): g.e("v_add_f32 v%d, v%d, v%d" % (vS + r, vNM, vS + r))
    for u in range(9):
        s = vS + (u % 3) * 16
        ex = lambda a, b: [g.e("v_exp_f32 v%d, v%d" % (s + r, s + r)) for r in range(a, b)]
        if g.r2late == 1 and u == g.r2fetch:
            sk = g.newlab("L_r2f")
            g.e("s_cmp_ge_u32 %s, 2" % sWV); g.e("s_cbranch_scc1 %s" % sk)
            fetch_remote(g, True)
            g.lab(sk)
            nwo0[0] = nwo[0]
        if g.r2late == 2 and u in (g.r2step, g.r2step + 1):
            sk = g.newlab("L_ld2")
            g.e("s_cmp_lg_u32 %s, %d" % (sWV, 1 if u == g.r2step else 0)); g.e("s_cbranch_scc1 %s" % sk)
            g.e("s_waitcnt vmcnt(%d)" % (nwo[0] - nwoS[2 if u == g.r2step else 3])); bump(g, vFB)
            g.lab(sk)
        if u in ((0,) if g.r2late == 2 else (0, g.r2step)):
            sk = g.newlab("L_ld")
            g.e("s_cmp_%s_u32 %s, 2" % ("lt" if u == 0 else "ge", sWV)); g.e("s_cbranch_scc1 %s" % sk)
            if u == 0:
                g.e("s_cmp_ge_u32 %s, 4" % sWV); g.e("s_cbranch_scc1 %s" % sk)
            g.e("s_waitcnt vmcnt(%d)" % (nwo[0] - nwo0[0])); bump(g, vFB)
            g.lab(sk)
        if u < 8: site(u + 1)
        if "ast" in g.exp: g.only = None; g.stamp(2 + u); g.only = (0, 14)
        if u < 7: rdF()
        if u == g.wostep - 1: g.e("ds_read_b32 v%d, v%d offset:%d" % (vGX, vGR, F_CQ)); lg.add("x")
        if u < 8: rdK(u + 1)
        rdV(u)
        if u > 0: g.wl(lg.wait(("V", u - 1))); pv(u - 1, 0)
        ex(0, 5)
        if u > 0: pv(u - 1, 1)
        if g.wostep <= u < g.wostep + 4:
            if u == g.wostep: check(g, 8, vGR, F_CQ, vGX)
            for _ in range(2): wo1(g, nwo[0]); nwo[0] += 1
        ex(5, 10)
        if u < 8: g.wl(lg.wait(("K", u + 1))); qk(u + 1, 0)
        ex(10, 16)
        if u < 8: qk(u + 1, 1)
        else: g.e("s_nop 0")
        for i in range(8): g.e("v_cvt_pk_bf16_f32 v%d, v%d, v%d" % (s + i, s + 2*i, s + 2*i + 1))
    g.wl(lg.wait(("V", 8))); g.e("s_nop 0"); pv(8, 0); pv(8, 1)
    g.e("s_nop 11")
    bcast_l(g)
    fb = g.newlab("L_fb"); ok = g.newlab("L_aok")
    g.e("s_mov_b32 %s, 0x%08x" % (sT0, LBIG))
    g.e("v_cmp_ngt_f32 vcc, %s, v%d" % (sT0, vM2))
    g.e("s_cbranch_vccnz %s" % fb)
    g.lab(ok)
    g.fb = (fb, ok)
    if "ast" in g.exp: g.only = None; g.stamp(11); g.only = (0, 14)
    g.stamp(8)
    finish_o(g)

def fallback_A(g):
    fb, ok = g.fb
    g.lab(fb)
    g.e("s_lshl_b32 %s, %s, 2" % (sT1, sR)); g.e("s_add_u32 %s, %s, %s" % (sT1, sT1, sRT))
    g.e("v_mov_b32 v%d, 0" % vM2)
    g.e("v_cndmask_b32 v%d, v%d, v%d, %s" % (vQF + 6, vQF + 6, vM2, sUP))
    g.e("v_mov_b32 v%d, 0x%08x" % (vM, NEG))
    for r in range(16): g.e("v_mov_b32 v%d, 0" % (vO + r))
    for pas in range(2):
        lp = g.newlab("L_fbl"); l0 = g.newlab("L_fb0"); l8 = g.newlab("L_fb8"); lj = g.newlab("L_fbj")
        g.e("s_mov_b32 %s, 0" % sT4)
        g.lab(lp)
        g.e("s_add_u32 %s, %s, 8" % (sT0, sRT)); g.e("s_sub_u32 %s, %s, %s" % (sT0, sT0, sT4))
        g.e("s_lshr_b32 %s, %s, 2" % (sT2, sT0)); g.e("s_lshl_b32 %s, %s, 15" % (sT2, sT2))
        g.e("s_and_b32 %s, %s, 3" % (sT0, sT0)); g.e("s_lshl_b32 %s, %s, 12" % (sT0, sT0)); g.e("s_add_u32 %s, %s, %s" % (sT0, sT0, sT2))
        g.e("s_lshl_b32 %s, %s, 14" % (sT2, sHH)); g.e("s_add_u32 %s, %s, %s" % (sT0, sT0, sT2))
        g.e("s_add_u32 %s, %s, %s" % (sT0, sT0, sKVO)); g.e("s_sub_u32 %s, %s, 65536" % (sT0, sT0))
        for j in range(4): g.e("buffer_load_dwordx4 %s, v%d, %s, %s offen offset:%d sc1" % (vr(vKB + 4*j, 4), vL16, sWS, sT0, j * 1024))
        g.e("s_waitcnt vmcnt(0)")
        g.e("s_cmp_eq_u32 %s, 0" % sT4); g.e("s_cbranch_scc1 %s" % l0)
        g.e("s_cmp_eq_u32 %s, 8" % sT4); g.e("s_cbranch_scc1 %s" % l8)
        g.mfma(vS, vKB, vQF, None); g.e("s_branch %s" % lj)
        g.lab(l0); g.mfma(vS, vKB, vQF, vC1); g.e("s_branch %s" % lj)
        g.lab(l8); g.mfma(vS, vKB, vQF, vC2)
        g.lab(lj)
        g.mfma(vS, vKB + 4, vQF + 4, vS)
        g.e("s_nop 11")
        if pas == 0: max16(g, vS, vM, first=False)
        else:
            for r in range(16): g.e("v_exp_f32 v%d, v%d" % (vS + r, vS + r))
            g.e("s_nop 0")
            for i in range(8): g.e("v_cvt_pk_bf16_f32 v%d, v%d, v%d" % (vS + i, vS + 2*i, vS + 2*i + 1))
            g.e("s_nop 1")
            g.mfma(vO, vKB + 8, vS, vO); g.mfma(vO, vKB + 12, vS + 4, vO)
            g.e("s_nop 11")
        g.e("s_add_u32 %s, %s, 1" % (sT4, sT4))
        g.e("s_min_u32 %s, %s, 8" % (sT0, sT1))
        g.e("s_cmp_le_u32 %s, %s" % (sT4, sT0)); g.e("s_cbranch_scc1 %s" % lp)
        if pas == 0:
            xhalf_max(g); set_shift(g); g.e("s_nop 1")
    bcast_l(g)
    g.e("s_branch %s" % ok)

def attn_B(g):
    for j in range(2): g.e("ds_read_b128 %s, v%d offset:%d" % (vr(vKB + 4*j, 4), vAD, j * 1024))
    for j in range(2): g.e("ds_read_b128 %s, v%d offset:%d" % (vr(vVB + 4*j, 4), vAD, 2048 + j * 1024))
    g.e("s_waitcnt lgkmcnt(2)")
    g.mfma(vS, vKB, vQF, vC1); g.mfma(vS, vKB + 4, vQF + 4, vS)
    bump(g, vGW, F_CQ)
    sk = g.newlab("L_bs")
    g.e("s_cmp_lg_u32 %s, 0" % sRT); g.e("s_cbranch_scc1 %s" % sk)
    spin(g, 1, vG1, F_KV(0, 0), vGV)
    g.lab(sk)
    for j in range(2): g.e("ds_read_b128 %s, v%d offset:%d" % (vr(vKB + 8 + 4*j, 4), vAD + 1, j * 1024))
    for j in range(2): g.e("ds_read_b128 %s, v%d offset:%d" % (vr(vVB + 8 + 4*j, 4), vAD + 1, 2048 + j * 1024))
    g.e("s_waitcnt lgkmcnt(2)")
    g.mfma(vS + 16, vKB + 8, vQF, vC2); g.mfma(vS + 16, vKB + 12, vQF + 4, vS + 16)
    g.e("s_nop 4")
    max16(g, vS, vM); g.e("s_nop 0"); max16(g, vS + 16, vM, first=False); xhalf_max(g)
    for r in range(32): g.e("v_sub_f32 v%d, v%d, v%d" % (vS + r, vS + r, vM))
    for t in range(2):
        s = vS + 16 * t
        for r in range(16): g.e("v_exp_f32 v%d, v%d" % (s + r, s + r))
        g.e("s_nop 0")
        for i in range(8): g.e("v_cvt_pk_bf16_f32 v%d, v%d, v%d" % (s + i, s + 2*i, s + 2*i + 1))
        g.e("s_waitcnt lgkmcnt(0)"); g.e("s_nop 0")
        g.mfma(vO, vVB + 8*t, s, None if t == 0 else vO); g.mfma(vO, vVB + 8*t + 4, s + 4, vO)
    g.e("s_nop 11")
    bcast_l(g)
    g.stamp(8)
    finish_o(g)
    if g.bpre:
        spin(g, 8, vGR, F_CQ, vGX)
        for n in range(8): wo1(g, n)

def p3(g):
    t0, t1, t2 = vT, vT + 1, vT + 2
    sCT, sRT2 = sKC, sXB
    A1, A2, A3 = 4, 5, 6
    vFL = 3; vB0, vB1 = 13, 14; vOA = 56
    g.e("s_lshr_b32 %s, %s, 1" % (sCT, sWV)); g.e("s_and_b32 %s, %s, 1" % (sRT2, sWV))
    g.e("v_bfe_u32 v%d, v%d, 2, 2" % (t0, vLANE)); g.e("v_lshrrev_b32 v%d, 5, v%d" % (t1, vLANE))
    g.e("v_lshl_add_u32 v%d, v%d, 2, v%d" % (t1, t1, t0)); g.e("v_lshlrev_b32 v%d, 8, v%d" % (t1, t1))
    g.e("v_lshlrev_b32 v%d, 6, v%d" % (t0, t0))
    g.e("v_and_b32 v%d, 3, v%d" % (t2, vLANE)); g.e("v_lshlrev_b32 v%d, 3, v%d" % (t2, t2))
    g.e("v_and_b32 v%d, 16, v%d" % (A3, vLANE)); g.e("v_lshl_add_u32 v%d, v%d, 1, v%d" % (t2, A3, t2))
    g.e("s_lshl_b32 %s, %s, 6" % (sT0, sCT)); g.e("v_add_u32 v%d, %s, v%d" % (t2, sT0, t2))
    g.e("v_xor_b32 v%d, v%d, v%d" % (t2, t2, t0)); g.e("v_add_u32 v%d, v%d, v%d" % (A3, t1, t2))
    g.e("v_add_u32 v%d, 0x%x, v%d" % (A1, L_W1A, A3)); g.e("v_add_u32 v%d, 0x%x, v%d" % (A2, L_W1B, A3))
    g.e("s_lshr_b32 %s, %s, 1" % (sT0, sRB)); g.e("s_lshl_b32 %s, %s, 4" % (sT1, sBR)); g.e("s_add_u32 %s, %s, %s" % (sT0, sT0, sT1))
    g.e("s_lshl_b32 %s, %s, 10" % (sT0, sT0)); g.e("s_add_u32 %s, %s, 0x%x" % (sT0, sT0, WS_OFLAG))
    g.e("v_lshlrev_b32 v%d, 7, v%d" % (vFL, vLANE)); g.e("v_add_u32 v%d, %s, v%d" % (vFL, sT0, vFL))
    g.e("s_add_u32 %s, %s, %s" % (sT1, sT1, sR)); g.e("s_lshl_b32 %s, %s, 3" % (sT1, sT1)); g.e("s_add_u32 %s, %s, %s" % (sT1, sT1, sHP))
    g.e("s_lshl_b32 %s, %s, 7" % (sT1, sT1)); g.e("s_add_u32 s36, %s, 0x%x" % (sT1, WS_OFLAG))
    g.e("s_lshr_b32 %s, %s, 2" % (sT2, sWV))
    sOS, sOL = sXS, sWSO
    g.e("s_and_b32 %s, %s, 3" % (sT0, sWV)); g.e("s_lshl_b32 %s, %s, 11" % (sT0, sT0))
    g.e("s_lshl_b32 %s, %s, 13" % (sOL, sT2)); g.e("s_add_u32 %s, %s, %s" % (sOL, sOL, sT0))
    g.e("s_lshl_b32 %s, %s, 15" % (sOS, sT2)); g.e("s_add_u32 %s, %s, %s" % (sOS, sOS, sT0))
    g.e("s_lshl_b32 %s, %s, 21" % (sT0, sBR)); g.e("s_add_u32 %s, %s, %s" % (sOS, sOS, sT0))
    g.e("s_lshl_b32 %s, %s, 16" % (sT0, sRB)); g.e("s_add_u32 %s, %s, %s" % (sOS, sOS, sT0)); g.e("s_add_u32 %s, %s, 0x%x" % (sOS, sOS, WS_OF))
    g.e("s_lshl_b32 %s, %s, 13" % (sT0, sRT2)); g.e("v_add_u32 v%d, %s, v%d" % (vB0, sT0, vL16))
    g.e("v_add_u32 v%d, 0x%x, v%d" % (vB1, L_O, vB0)); g.e("v_add_u32 v%d, 0x%x, v%d" % (vB0, L_W1A, vB0))
    vSW, vSR = 58, 59
    if g.ostage:
        STG = 0
        g.e("v_and_b32 v%d, 31, v%d" % (t0, vLANE)); g.e("v_mul_u32_u24 v%d, 272, v%d" % (t0, t0))
        g.e("v_lshrrev_b32 v%d, 5, v%d" % (t1, vLANE)); g.e("v_lshl_add_u32 v%d, v%d, 4, v%d" % (t0, t1, t0))
        g.e("s_mul_i32 %s, %s, %d" % (sT0, sRT2, 32 * 272)); g.e("s_lshl_b32 %s, %s, 6" % (sT1, sCT)); g.e("s_add_u32 %s, %s, %s" % (sT0, sT0, sT1))
        g.e("v_add_u32 v%d, %s, v%d" % (vSW, sT0, t0))
        g.e("v_lshrrev_b32 v%d, 4, v%d" % (t0, vLANE)); g.e("v_and_b32 v%d, 15, v%d" % (t1, vLANE))
        g.e("v_mul_u32_u24 v%d, 272, v%d" % (t2, t0)); g.e("v_lshl_add_u32 v%d, v%d, 4, v%d" % (t2, t1, t2))
        g.e("s_mul_i32 %s, %s, %d" % (sT0, sWV, 8 * 272)); g.e("v_add_u32 v%d, %s, v%d" % (vSR, sT0, t2))
        g.e("v_mul_u32_u24 v%d, 1792, v%d" % (t2, t0)); g.e("v_lshl_add_u32 v%d, v%d, 4, v%d" % (t2, t1, t2))
        g.e("s_cmp_eq_u32 %s, 3" % sCB); g.e("s_cselect_b32 %s, 8, 64" % sT0)
        g.e("v_mov_b32 v%d, 0x%x" % (t0, OOB))
        g.e("v_cmp_le_u32 vcc, %s, v%d" % (sT0, t1))
        g.e("s_lshl_b32 %s, %s, 3" % (sT0, sRB)); g.e("s_add_u32 %s, %s, %s" % (sT0, sT0, sWV)); g.e("s_mul_i32 %s, %s, %d" % (sT4, sT0, 8 * 1792))
        g.e("v_cndmask_b32 v%d, v%d, v%d, vcc" % (vOA, t2, t0))
        g.e("v_add_u32 v%d, %d, v%d" % (vOA + 1, 4 * 1792, vOA))
        g.e("s_mul_i32 %s, %s, 896" % (sT0, sBR)); g.e("s_add_u32 %s, %s, %s" % (sT4, sT4, sT0))
        g.e("s_lshl_b32 %s, %s, 8" % (sT0, sCB)); g.e("s_add_u32 %s, %s, %s" % (sT4, sT4, sT0))
    else:
        g.e("v_and_b32 v%d, 31, v%d" % (t0, vLANE)); g.e("v_mul_u32_u24 v%d, 1792, v%d" % (t0, t0))
        g.e("v_lshrrev_b32 v%d, 5, v%d" % (t1, vLANE)); g.e("v_lshl_add_u32 v%d, v%d, 4, v%d" % (vOA, t1, t0))
        g.e("s_lshl_b32 %s, %s, 1" % (sT0, sRB)); g.e("s_add_u32 %s, %s, %s" % (sT0, sT0, sRT2)); g.e("s_mul_i32 %s, %s, %d" % (sT4, sT0, 32 * 1792))
        g.e("s_mul_i32 %s, %s, 896" % (sT0, sBR)); g.e("s_add_u32 %s, %s, %s" % (sT4, sT4, sT0))
        g.e("s_lshl_b32 %s, %s, 8" % (sT0, sCB)); g.e("s_add_u32 %s, %s, %s" % (sT4, sT4, sT0))
        g.e("s_lshl_b32 %s, %s, 6" % (sT0, sCT)); g.e("s_add_u32 %s, %s, %s" % (sT4, sT4, sT0))
    if g.bpre:
        wa = g.newlab("L_wa"); wb = g.newlab("L_wb")
        g.e("s_cmp_eq_u32 %s, 0" % sBR); g.e("s_cbranch_scc1 %s" % wa)
        g.e("s_waitcnt vmcnt(7)"); g.e("s_branch %s" % wb)
        g.lab(wa); g.e("s_waitcnt vmcnt(0)"); g.lab(wb)
    else: g.e("s_waitcnt vmcnt(0)")
    g.e("s_barrier")
    nf = g.newlab("L_nof")
    g.e("s_cmp_lg_u32 %s, 0" % sWV); g.e("s_cbranch_scc1 %s" % nf)
    store_flag(g, "s36")
    g.lab(nf)
    g.stamp(9)
    if not g.bpre:
        early = g.newlab("L_early")
        g.e("s_cmp_eq_u32 %s, 0" % sBR); g.e("s_cbranch_scc1 %s" % early)
        for n in range(8): wo1(g, n)
        g.lab(early)
    for m in range(7): wo_dma(g, m, L_W2, 248)
    early2 = g.newlab("L_early2")
    g.e("s_cmp_eq_u32 %s, 0" % sBR); g.e("s_cbranch_scc1 %s" % early2)
    g.e("s_waitcnt vmcnt(7)"); g.e("s_barrier")
    g.lab(early2)
    WFR = 96
    def trs(sel):
        for h in range(16):
            for j in range(2):
                for i in range(2):
                    row = 28 * h + 16 * j + 8 * i
                    if not sel(row): continue
                    a, off = (A1, row * 256) if row < 120 else (A2, (row - 120) * 256) if row < 248 else (A3, (row - 248) * 256)
                    g.e("ds_read_b64_tr_b16 %s, v%d offset:%d" % (vr(WFR + (h * 2 + j) * 4 + 2 * i, 2), a, off))
    trs(lambda row: row < 248)
    g.stamp(10)
    np_ = g.newlab("L_np3")
    g.e("s_cmp_lg_u32 %s, 7" % sWV); g.e("s_cbranch_scc1 %s" % np_)
    poll(g, vFL, "0xff")
    g.lab(np_)
    g.e("s_waitcnt vmcnt(0) lgkmcnt(0)")
    g.e("s_barrier")
    g.stamp(11)
    for a in range(4):
        g.e("s_add_u32 m0, %s, %d" % (sOL, L_O + a * 16384 if a < 2 else L_W1A + (a - 2) * 16384))
        g.e("s_add_u32 %s, %s, %d" % (sT2, sOS, a * 8192))
        for f in range(2): g.e("buffer_load_dwordx4 v%d, %s, %s offen offset:%d sc1 lds" % (vL16, sWS, sT2, f * 1024))
    trs(lambda row: row >= 248)
    OB = 16
    lg = Q()
    def rd(k):
        a = k // 8
        bars = eval(g.obars)
        if k % 8 == 0 and a in bars:
            nxtb = min([x for x in bars if x > a] + [4])
            g.e("s_waitcnt vmcnt(%d)" % (8 - 2 * nxtb)); g.e("s_barrier")
            if a == 0: g.stamp(12)
        g.e("ds_read_b128 %s, v%d offset:%d" % (vr(OB + (k % 4) * 4, 4), vB1 if a < 2 else vB0, (a % 2) * 16384 + (k % 8) * 1024))
        lg.add(k)
    for k in range(3): rd(k)
    for k in range(32):
        g.wl(lg.wait(k))
        g.mfma(vO, WFR + 4 * k, OB + (k % 4) * 4, None if k == 0 else vO)
        if k + 3 < 32: rd(k + 3)
    g.stamp(13)
    if not g.ostage:
        done = g.newlab("L_nostore")
        g.e("s_cmp_lt_u32 %s, 3" % sCB); g.e("s_cselect_b32 %s, 4, 2" % sT0)
        g.e("s_cmp_ge_u32 %s, %s" % (sCT, sT0)); g.e("s_cbranch_scc1 %s" % done)
        g.e("s_nop 8")
        PK = 48
        for i in range(8): g.e("v_cvt_pk_bf16_f32 v%d, v%d, v%d" % (PK + i, vO + 2*i, vO + 2*i + 1))
        g.e("s_nop 1")
        for b in (0, 4):
            g.e("v_permlane32_swap_b32 v%d, v%d" % (PK + b, PK + b + 2)); g.e("v_permlane32_swap_b32 v%d, v%d" % (PK + b + 1, PK + b + 3))
        g.e("s_nop 1")
        for b in range(2): g.e("buffer_store_dwordx4 %s, v%d, %s, %s offen offset:%d%s" % (vr(PK + 4*b, 4), vOA, sOUT, sT4, 32 * b, g.outflag))
        g.lab(done)
        return
    PK = 48
    g.e("s_nop 11")
    for i in range(8): g.e("v_cvt_pk_bf16_f32 v%d, v%d, v%d" % (PK + i, vO + 2*i, vO + 2*i + 1))
    g.e("s_nop 1")
    for b in (0, 4):
        g.e("v_permlane32_swap_b32 v%d, v%d" % (PK + b, PK + b + 2)); g.e("v_permlane32_swap_b32 v%d, v%d" % (PK + b + 1, PK + b + 3))
    g.e("s_nop 1")
    for b in range(2): g.e("ds_write_b128 v%d, %s offset:%d" % (vSW, vr(PK + 4*b, 4), 32 * b))
    g.e("s_waitcnt lgkmcnt(0)")
    g.e("s_barrier")
    for b in range(2): g.e("ds_read_b128 %s, v%d offset:%d" % (vr(PK + 4*b, 4), vSR, 4 * 272 * b))
    for b in range(2):
        g.e("s_waitcnt lgkmcnt(%d)" % (1 - b))
        g.e("buffer_store_dwordx4 %s, v%d, %s, %s offen%s" % (vr(PK + 4*b, 4), vOA + b, sOUT, sT4, g.outflag))

def write_stamps(g):
    if not g.stamps: return
    g.e("s_waitcnt vmcnt(0)")
    g.stamp(14)
    g.e("s_waitcnt lgkmcnt(0)")
    g.e("s_getreg_b32 s100, hwreg(HW_REG_XCC_ID)"); g.e("s_getreg_b32 s101, hwreg(HW_REG_HW_ID)")
    g.e("s_lshl_b32 %s, s2, 3" % sT0); g.e("s_add_u32 %s, %s, %s" % (sT0, sT0, sWV)); g.e("s_lshl_b32 %s, %s, 7" % (sT0, sT0))
    g.e("s_add_u32 %s, %s, 0x%x" % (sT0, sT0, WS_STAMP))
    g.e("s_mov_b64 exec, 1")
    for i in range(16):
        g.e("v_mov_b32 v20, s%d" % (70 + 2*i)); g.e("v_mov_b32 v21, s%d" % (71 + 2*i))
        g.e("buffer_store_dwordx2 v[20:21], v%d, %s, %s offen offset:%d" % (vZ, sWS, sT0, 8 * i))
        g.e("s_nop 1")

def branch(g, isA):
    n = "A" if isA else "B"
    g.e("s_cmp_lt_u32 %s, 4" % sWV); g.e("s_cbranch_scc1 L_cons%s" % n)
    producer(g, isA)
    g.e("s_branch L_x%s" % n)
    g.lab("L_cons%s" % n)
    consumer(g, isA)
    g.lab("L_x%s" % n)
    g.stamp(7)
    if g.cprio:
        sk = g.newlab("L_cp")
        g.e("s_cmp_ge_u32 %s, 4" % sWV); g.e("s_cbranch_scc1 %s" % sk); g.e("s_setprio %d" % g.cprio); g.lab(sk)
    dbg_q(g)
    if isA: attn_A(g)
    else: attn_B(g)

def build(**kw):
    g = G(**kw)
    K = NAME + "_kernel"
    hdr = open("cdna_kernels/%s.s.ref" % NAME).read().split("; Override launch")[0]
    g.l.append(hdr.rstrip())
    g.l.append("; @launch grid=(256,1,1) block=(512,1,1) lds=163840")
    g.l += ['.amdgcn_target "amdgcn-amd-amdhsa--gfx950"', ".text", ".globl " + K, ".p2align 8", ".type %s,@function" % K, K + ":"]
    g.e("s_cmp_ge_u32 s2, 256"); g.e("s_cbranch_scc1 L_end")
    g.e("s_load_dwordx16 s[32:47], s[0:1], 0"); g.e("s_load_dwordx2 s[48:49], s[0:1], 64")
    if "probe" in g.exp: g.e("s_memrealtime s[70:71]")
    if g.stamps:
        for i in range(15): g.e("s_mov_b64 s[%d:%d], 0" % (70 + 2*i, 71 + 2*i))
    g.stamp(0)
    if "pit" in g.exp: g.only = (0, 1, 2, 14)
    if "pdet" in g.exp or "ast" in g.exp: g.only = (0, 14)
    g.e("v_lshrrev_b32 v%d, 6, v0" % vT)
    g.e("v_and_b32 v%d, 63, v0" % vLANE)
    g.e("v_readfirstlane_b32 %s, v%d" % (sWV, vT))
    if g.map == 0:
        g.e("s_lshr_b32 %s, s2, 7" % sBR)
        g.e("s_bfe_u32 %s, s2, 0x20003" % sT2); g.e("s_bfe_u32 %s, s2, 0x20005" % sT3)
        g.e("s_and_b32 %s, s2, 1" % sHP); g.e("s_lshl_b32 %s, %s, 2" % (sHP, sHP)); g.e("s_add_u32 %s, %s, %s" % (sHP, sHP, sT2))
        g.e("s_bfe_u32 %s, s2, 0x20001" % sR); g.e("s_lshl_b32 %s, %s, 2" % (sR, sR)); g.e("s_add_u32 %s, %s, %s" % (sR, sR, sT3))
    else:
        g.e("s_bfe_u32 %s, s2, 0x10002" % sBR)
        g.e("s_bfe_u32 %s, s2, 0x20003" % sT2); g.e("s_lshr_b32 %s, s2, 5" % sT3)
        g.e("s_and_b32 %s, s2, 1" % sHP); g.e("s_lshl_b32 %s, %s, 2" % (sHP, sHP)); g.e("s_add_u32 %s, %s, %s" % (sHP, sHP, sT2))
        g.e("s_bfe_u32 %s, s2, 0x10001" % sR); g.e("s_lshl_b32 %s, %s, 3" % (sR, sR)); g.e("s_add_u32 %s, %s, %s" % (sR, sR, sT3))
    g.e("s_and_b32 %s, %s, 3" % (sP, sWV))
    t0, t1 = vT, vT + 1
    nz = g.newlab("L_nz")
    g.e("s_cmp_lg_u32 %s, 0" % sWV); g.e("s_cbranch_scc1 %s" % nz)
    g.e("v_and_b32 v%d, 7, v%d" % (t0, vLANE)); g.e("v_and_b32 v%d, 2, v%d" % (t1, t0)); g.e("v_lshlrev_b32 v%d, 5, v%d" % (t1, t1))
    g.e("v_lshlrev_b32 v%d, 7, v%d" % (t0, t0)); g.e("v_sub_u32 v%d, v%d, v%d" % (t0, t0, t1))
    g.e("v_add_u32 v%d, %d, v%d" % (t0, FBASE + 112, t0))
    for k in range(4): g.e("v_mov_b32 v%d, 0" % (vACC + k))
    g.e("s_mov_b64 exec, 0xff")
    g.e("ds_write_b128 v%d, %s" % (t0, vr(vACC, 4)))
    g.e("s_mov_b64 exec, -1")
    g.lab(nz)
    producer_prep(g)
    flag_regs(g, True)
    xrd_addr(g, vXRD, sXB)
    g.e("s_mov_b32 s6, 0x%x" % X_BYTES); g.e("s_mov_b32 s7, 0x20000"); g.e("s_mov_b32 s10, 0x%x" % (W_BYTES + WBIAS)); g.e("s_mov_b32 s11, 0x20000")
    g.e("s_cmp_eq_u32 %s, 0" % sBR)
    if "st0" in g.exp: g.stamp(3)
    g.e("s_waitcnt lgkmcnt(0)")
    if "st0" in g.exp: g.stamp(4)
    g.e("s_cselect_b32 s4, s32, s38"); g.e("s_cselect_b32 s5, s33, s39"); g.e("s_cselect_b32 s8, s34, s40"); g.e("s_cselect_b32 s9, s35, s41")
    g.e("s_sub_u32 s8, s8, %d" % WBIAS); g.e("s_subb_u32 s9, s9, 0")
    g.e("s_cmp_lt_u32 %s, 4" % sWV); g.e("s_cbranch_scc1 L_noiss0")
    issue_item(g, Q(), 0)
    g.lab("L_noiss0")
    g.e("s_barrier")
    g.e("s_cmp_lt_u32 %s, 4" % sWV); g.e("s_cbranch_scc1 L_noiss")
    issue_item(g, Q(), 1)
    g.lab("L_noiss")
    g.e("s_cmp_eq_u32 %s, 0" % sBR)
    g.e("s_cbranch_scc1 L_A")
    branch(g, False)
    g.e("s_branch L_p3")
    g.lab("L_A")
    branch(g, True)
    g.lab("L_p3")
    p3(g)
    write_stamps(g)
    if "probe" in g.exp:
        g.e("s_cmp_lg_u32 s2, 26"); g.e("s_cbranch_scc1 L_end")
        g.e("s_waitcnt vmcnt(0)")
        g.e("s_memrealtime s[72:73]"); g.e("s_waitcnt lgkmcnt(0)")
        g.e("s_sub_u32 s74, s72, s70"); g.e("s_lshl_b32 s74, s74, 2")
        g.lab("L_probe")
        g.e("s_memrealtime s[76:77]"); g.e("s_waitcnt lgkmcnt(0)")
        g.e("s_sub_u32 s75, s76, s72"); g.e("s_cmp_lt_u32 s75, s74"); g.e("s_cbranch_scc1 L_probe")
    g.lab("L_end"); g.e("s_endpgm")
    for (sl, back, need, areg, off, vsrc) in g.slow:
        g.lab(sl); spin(g, need, areg, off, vsrc); g.e("s_branch %s" % back)
    fallback_A(g)
    g.lab("L_codeend")
    g.l += ['.section .rodata,"a"', ".p2align 6", ".amdhsa_kernel " + K, "  .amdhsa_next_free_vgpr 256", "  .amdhsa_next_free_sgpr 102",
            "  .amdhsa_accum_offset 256", "  .amdhsa_group_segment_fixed_size 0", "  .amdhsa_kernarg_size 72", "  .amdhsa_user_sgpr_count 2",
            "  .amdhsa_user_sgpr_kernarg_segment_ptr 1", "  .amdhsa_system_sgpr_workgroup_id_x 1", ".end_amdhsa_kernel"]
    return "\n".join(g.l) + "\n"

if __name__ == "__main__":
    ap = argparse.ArgumentParser()
    ap.add_argument("-o", default="k.s"); ap.add_argument("--stamps", action="store_true"); ap.add_argument("--dbgq", action="store_true")
    ap.add_argument("--exp", default=""); ap.add_argument("--dA", type=int, default=2); ap.add_argument("--dB", type=int, default=2)
    ap.add_argument("--wotouch", type=int, default=1); ap.add_argument("--touch", type=int, default=1); ap.add_argument("--tfirst", type=int, default=2)
    ap.add_argument("--map", type=int, default=0); ap.add_argument("--obars", default="[0,1,2,3]"); ap.add_argument("--ostage", type=int, default=1); ap.add_argument("--qpj", type=int, default=0); ap.add_argument("--qwait", type=int, default=0); ap.add_argument("--c1prio", type=int, default=0); ap.add_argument("--slp", type=int, default=0); ap.add_argument("--pslp", type=int, default=0); ap.add_argument("--mfirst", type=int, default=1); ap.add_argument("--qround", type=int, default=1); ap.add_argument("--cdist", default="[2,1,2,1]"); ap.add_argument("--pprio", type=int, default=0); ap.add_argument("--gate", type=int, default=0); ap.add_argument("--gsig", type=int, default=4); ap.add_argument("--gitem", type=int, default=3); ap.add_argument("--r2late", type=int, default=1); ap.add_argument("--r2fetch", type=int, default=2); ap.add_argument("--ctouch", type=int, default=0); ap.add_argument("--cprio", type=int, default=0); ap.add_argument("--inl", type=int, default=1); ap.add_argument("--ps1", type=int, default=0); ap.add_argument("--ps2", type=int, default=1); ap.add_argument("--ldf", default=""); ap.add_argument("--tf", default=""); ap.add_argument("--late8", type=int, default=0); ap.add_argument("--bpre", type=int, default=1); ap.add_argument("--qprio", type=int, default=0); ap.add_argument("--aprio", type=int, default=0); ap.add_argument("--stf", default=" sc1"); ap.add_argument("--qst", type=int, default=0); ap.add_argument("--r2step", type=int, default=4); ap.add_argument("--wostep", type=int, default=2); ap.add_argument("--outflag", default=" sc1")
    a = ap.parse_args()
    o = a.o; d = vars(a); d.pop("o")
    open(o, "w").write(build(**d))
```

```python
import sys, math, struct, argparse
NAME = "concat_heads__sliding_block__sliding_local_dilated__prompt"
def f32bits(x): return struct.unpack("<I", struct.pack("<f", x))[0]

X_BYTES = 2048*896; W_BYTES = 448*2688; WO_BYTES = 448*896; OUT_BYTES = 2048*1792
WS_OF = 10 << 20; WS_KVFLAG = 16 << 20; WS_OFLAG = (16 << 20) + 65536; WS_GFLAG = (16 << 20) + 131072; WS_QDBG = 20 << 20; WS_STAMP = 32 << 20
WS_RECORDS = 36 << 20
NEG = f32bits(-1.0e30); CSCALE = f32bits((28 ** -0.5) * math.log2(math.e)); LBIG = f32bits(2.0 ** 64)
OOB = 0x7FF00000; SPIN_MAX = 1 << 20; WBIAS = 4096

def vr(a, n): return "v[%d:%d]" % (a, a + n - 1)
sX, sW, sWO, sWS, sOUT, sDBG = "s[4:7]", "s[8:11]", "s[12:15]", "s[16:19]", "s[20:23]", "s[24:27]"
sBR, sHP, sR, sWV = "s28", "s29", "s30", "s31"
sRT, sHH, sW1K, sKC, sXS, sP, sWSO, sXB, sWB, sKVO = "s50", "s51", "s52", "s53", "s54", "s55", "s56", "s57", "s58", "s59"
sNON = "s[60:61]"; sT0, sT1, sT2, sT3 = "s62", "s63", "s64", "s65"; sTM = "s[64:65]"; sC = "s66"; sT4 = "s67"; sUP = "s[68:69]"
sCB, sRB, sWOS, sSPN = "s32", "s33", "s34", "s35"
sHM = "s[38:39]"
vLANE = 1; vKVW = 2; vQW = 3; vXRD = 4; vWRD = 8; vL16 = 9; vT = 10; vZ = 15
vQF = 16
vACC = 32
vC1, vC2 = 96, 112
vXB = 128; vWB = 152
vXF = 128
vAD = 176
vNON = 240; vFA = 244; vFB = 245; vFV = 246; vONE = 247; vWOO = 248; vGR = 249; vGW = 250; vG1 = 251; vGV = 252; vGX = 254
vXO = 16; vWO = 20; vWQ = 24
vO = 32; vS = 128; vKB = 48; vVB = 64; vM = 80; vM2 = 81; vNM = 82; vP = 84
SLOT = 32768
L_R1 = 32768; L_R2 = 0; L_OWN = 131072; L_QA = 122880; L_WQ = 65536
L_W1A = 65536; L_W1B = 98304; L_W2 = 0; L_O = 131072
FBASE = 98304 - 1024
def fw(r, hi): return r * 128 + (112 if ((r >> 1) & 1) == 0 else 48) + 8 + 4 * hi
F_KV = lambda b, h: fw(2 * b + h, 1)
F_OWN, F_QRDY, F_CQ, F_XD = fw(4, 1), fw(5, 1), fw(6, 1), fw(7, 1)
F_ST = fw(0, 0) - 4

DOC = """
Generated by dev/gen3.py (own generator).  One persistent workgroup per CU: (branch, head pair, 128-row block).
 phase 1  waves 4-7 stream x / wqkv through an LDS ring (LDS-DMA) and keep their x fragments; waves 0-3 compute K,V
          (MFMA 32x32x16, results already in attention operand layout); then waves 4-7 compute Q.
 hand-off K/V and attention outputs go through d_ws with sc1 stores + tagged flags (tag = per-launch value in d_debug).
 phase 2  attention per wave (head, 32 queries); row sum via a ones column of V; shift = max of the diagonal tile with
          a run-time guard that falls back to the exact two-pass softmax (true row max).
 phase 3  output projection, 64x128 tile per workgroup.
"""
def lane_mask(fn):
    m = 0
    for l in range(64):
        if fn(l): m |= 1 << l
    return m
def key_of(r, l): return (r & 3) + 8 * (r >> 2) + 4 * (l >> 5)

class Q:
    def __init__(self): self.q = []
    def add(self, tag, n=1): self.q += [tag] * n
    def wait(self, tag):
        idx = [i for i, t in enumerate(self.q) if t == tag]
        if not idx: return None
        n = len(self.q) - 1 - idx[-1]
        self.q = self.q[idx[-1] + 1:]
        return n
    def clear(self): self.q = []

class G:
    def __init__(self, **kw):
        self.l = []; self.nlab = 0; self.slow = []
        self.__dict__.update(kw)
    def e(self, s): self.l.append("    " + s)
    def lab(self, s): self.l.append(s + ":")
    def newlab(self, p="L"):
        self.nlab += 1; return "%s_%d" % (p, self.nlab)
    def stamp(self, i):
        if self.pk is not None:
            if i == self.pk: self.e("s_memrealtime s[72:73]")
            return
        if getattr(self, "only", None) and i not in self.only: return
        if self.stamps: self.e("%s s[%d:%d]" % ("s_memtime" if "cyc" in self.exp else "s_memrealtime", 70 + 2*i, 71 + 2*i))
    def mask(self, m):
        self.e("s_mov_b32 s64, 0x%08x" % (m & 0xffffffff)); self.e("s_mov_b32 s65, 0x%08x" % (m >> 32))
    def mfma(self, d, a, b, c):
        self.e("v_mfma_f32_32x32x16_bf16 %s, %s, %s, %s" % (vr(d, 16), vr(a, 4), vr(b, 4), "0" if c is None else vr(c, 16)))
    def wl(self, n):
        if n is not None: self.e("s_waitcnt lgkmcnt(%d)" % min(n, 15))
    def wv(self, n):
        if n is not None: self.e("s_waitcnt vmcnt(%d)" % min(n, 63))
    def capture(self, fn):
        save = self.l; self.l = []; groups = []
        def cut():
            if self.l: groups.append(self.l)
            self.l = []
        fn(cut); cut(); self.l = save
        return groups

def spin(g, need, areg, off, vdst):
    lp = g.newlab("L_spin"); ok = g.newlab("L_spok")
    g.e("s_mov_b32 %s, 0" % sSPN)
    g.lab(lp)
    g.e("ds_read_b32 v%d, v%d offset:%d" % (vdst, areg, off))
    g.e("s_add_u32 %s, %s, 1" % (sSPN, sSPN))
    g.e("s_waitcnt lgkmcnt(0)")
    g.e("v_cmp_gt_u32 vcc, %d, v%d" % (need, vdst))
    g.e("s_cmp_gt_u32 %s, %d" % (sSPN, SPIN_MAX * 8)); g.e("s_cbranch_scc1 %s" % ok)
    g.e("s_cbranch_vccnz %s" % lp)
    g.lab(ok)
def check(g, need, areg, off, vsrc):
    if g.inl:
        lp = g.newlab("L_cl"); ok = g.newlab("L_cok")
        g.e("s_mov_b32 %s, %d" % (sSPN, -(SPIN_MAX * 8) & 0xffffffff))
        g.lab(lp)
        g.e("v_cmp_gt_u32 vcc, %d, v%d" % (need, vsrc)); g.e("s_cbranch_vccz %s" % ok)
        if g.slp: g.e("s_sleep %d" % g.slp)
        g.e("ds_read_b32 v%d, v%d offset:%d" % (vsrc, areg, off))
        g.e("s_add_u32 %s, %s, 1" % (sSPN, sSPN))
        g.e("s_waitcnt lgkmcnt(0)")
        g.e("s_cbranch_scc0 %s" % lp)
        g.lab(ok)
        return
    sl = g.newlab("L_slow"); back = g.newlab("L_back")
    g.e("v_cmp_gt_u32 vcc, %d, v%d" % (need, vsrc)); g.e("s_cbranch_vccnz %s" % sl); g.lab(back)
    g.slow.append((sl, back, need, areg, off, vsrc))
def bump(g, areg, off=0): g.e("ds_add_u32 v%d, v%d offset:%d" % (areg, vONE, off))

def flag_regs(g, prod):
    t0 = vT
    g.e("v_and_b32 v%d, 3, v%d" % (t0, vLANE)); g.e("v_and_b32 v%d, 2, v%d" % (vFA, t0)); g.e("v_lshlrev_b32 v%d, 5, v%d" % (vFA, vFA))
    g.e("v_lshlrev_b32 v%d, 7, v%d" % (t0, t0)); g.e("v_sub_u32 v%d, v%d, v%d" % (vFA, t0, vFA))
    g.e("v_add_u32 v%d, %d, v%d" % (vFA, FBASE + 120, vFA))
    g.e("v_mov_b32 v%d, %d" % (vGR, FBASE)); g.e("v_mov_b32 v%d, 0x7ffffff0" % vGW); g.e("v_mov_b32 v%d, 1" % vONE)
    g.e("v_cmp_eq_u32 vcc, 0, v%d" % vLANE)
    g.e("s_lshl_b32 %s, %s, 7" % (sT0, sP)); g.e("s_and_b32 %s, %s, 2" % (sT1, sP)); g.e("s_lshl_b32 %s, %s, 5" % (sT1, sT1))
    g.e("s_sub_u32 %s, %s, %s" % (sT0, sT0, sT1))
    g.e("s_cmp_lt_u32 %s, 4" % sWV); g.e("s_cselect_b32 %s, 512, 0" % sT1); g.e("s_add_u32 %s, %s, %s" % (sT0, sT0, sT1)); g.e("s_add_u32 %s, %s, 120" % (sT0, sT0))
    g.e("v_cndmask_b32 v%d, v%d, v%d, vcc" % (vGW, vGW, vGR))
    g.e("v_add_u32 v%d, %s, v%d" % (vFB, sT0, vGW))

def get_nonce(g):
    lp = g.newlab("L_nlp"); ok = g.newlab("L_nok")
    g.e("s_mov_b32 %s, 0" % sSPN)
    g.lab(lp)
    g.e("v_readfirstlane_b32 s60, v%d" % vNON); g.e("v_readfirstlane_b32 s61, v%d" % (vNON + 1))
    g.e("s_add_u32 %s, %s, 1" % (sSPN, sSPN))
    g.e("s_cmp_lg_u32 s60, 0"); g.e("s_cbranch_scc1 %s" % ok)
    g.e("s_cmp_gt_u32 %s, %d" % (sSPN, SPIN_MAX)); g.e("s_cbranch_scc1 %s" % ok)
    g.e("buffer_load_dwordx2 %s, v%d, %s, 0 offen sc1" % (vr(vNON, 2), vZ, sDBG))
    g.e("s_waitcnt vmcnt(0)")
    g.e("s_branch %s" % lp)
    g.lab(ok)
def store_flag(g, soff):
    g.e("s_mov_b64 exec, 1")
    g.e("buffer_store_dwordx2 %s, v%d, %s, %s offen sc1" % (vr(vNON, 2), vZ, sWS, soff))
    g.e("s_mov_b64 exec, -1")
def poll(g, vaddr, mask):
    lp = g.newlab("L_poll"); ok = g.newlab("L_pok")
    g.e("s_mov_b64 exec, %s" % mask)
    g.e("s_mov_b32 %s, 0" % sSPN)
    g.lab(lp)
    g.e("buffer_load_dwordx2 %s, v%d, %s, 0 offen sc1" % (vr(vNON + 2, 2), vaddr, sWS))
    g.e("s_add_u32 %s, %s, 1" % (sSPN, sSPN))
    g.e("s_waitcnt vmcnt(0)")
    g.e("v_cmp_ne_u64 vcc, %s, %s" % (sNON, vr(vNON + 2, 2)))
    g.e("s_cmp_gt_u32 %s, %d" % (sSPN, SPIN_MAX)); g.e("s_cbranch_scc1 %s" % ok)
    if g.pslp:
        g.e("s_cbranch_vccz %s" % ok); g.e("s_sleep %d" % g.pslp); g.e("s_branch %s" % lp)
    else: g.e("s_cbranch_vccnz %s" % lp)
    g.lab(ok)
    g.e("s_mov_b64 exec, -1")

def poll2(g, vaddr, mask):
    lp = g.newlab("L_poll"); ok = g.newlab("L_pok")
    A, B = vNON + 2, 60
    g.e("s_mov_b64 exec, %s" % mask)
    g.e("s_mov_b32 %s, 0" % sSPN)
    g.e("s_waitcnt vmcnt(0)")
    g.e("buffer_load_dwordx2 %s, v%d, %s, 0 offen sc1" % (vr(A, 2), vaddr, sWS))
    g.e("s_nop 15"); g.e("s_nop 15"); g.e("s_nop 15"); g.e("s_nop 15")
    g.lab(lp)
    g.e("buffer_load_dwordx2 %s, v%d, %s, 0 offen sc1" % (vr(B, 2), vaddr, sWS))
    g.e("s_waitcnt vmcnt(1)")
    g.e("v_cmp_ne_u64 vcc, %s, %s" % (sNON, vr(A, 2)))
    g.e("s_cbranch_vccz %s" % ok)
    g.e("buffer_load_dwordx2 %s, v%d, %s, 0 offen sc1" % (vr(A, 2), vaddr, sWS))
    g.e("s_add_u32 %s, %s, 1" % (sSPN, sSPN))
    g.e("s_waitcnt vmcnt(1)")
    g.e("v_cmp_ne_u64 vcc, %s, %s" % (sNON, vr(B, 2)))
    g.e("s_cmp_gt_u32 %s, %d" % (sSPN, SPIN_MAX)); g.e("s_cbranch_scc1 %s" % ok)
    g.e("s_cbranch_vccnz %s" % lp)
    g.lab(ok)
    g.e("s_mov_b64 exec, -1")

def setup_scalars(g, cut):
    g.e("s_cmp_eq_u32 %s, 0" % sBR)
    g.e("s_cselect_b32 s12, s36, s42"); g.e("s_cselect_b32 s13, s37, s43"); cut()
    g.e("s_mov_b32 s14, 0x%x" % WO_BYTES); g.e("s_mov_b32 s15, 0x20000"); cut()
    for (srd, a, n) in ((16, 48, WS_RECORDS), (20, 44, OUT_BYTES)):
        if srd == 16 and g.wsoff:
            g.e("s_add_u32 s16, s48, 0x%x" % (g.wsoff << 20)); g.e("s_addc_u32 s17, s49, 0"); cut()
        else:
            g.e("s_mov_b32 s%d, s%d" % (srd, a)); g.e("s_mov_b32 s%d, s%d" % (srd + 1, a + 1)); cut()
        g.e("s_mov_b32 s%d, 0x%x" % (srd + 2, n)); g.e("s_mov_b32 s%d, 0x20000" % (srd + 3)); cut()
    g.e("s_mov_b32 s68, 0"); g.e("s_mov_b32 s69, -1"); cut()
    g.e("s_mov_b32 %s, 0x%08x" % (sC, CSCALE)); g.e("s_lshl_b32 %s, %s, 10" % (sW1K, sWV)); cut()
    g.e("s_lshr_b32 %s, %s, 2" % (sHH, sWV)); g.e("s_sub_u32 %s, 3, %s" % (sT1, sP)); cut()
    g.e("s_cmp_lt_u32 %s, 4" % sWV); g.e("s_cselect_b32 %s, %s, %s" % (sRT, sT1, sP)); cut()
    g.e("s_lshl_b32 %s, %s, 3" % (sKVO, sBR)); g.e("s_add_u32 %s, %s, %s" % (sKVO, sKVO, sHP)); cut()
    g.e("s_lshl_b32 %s, %s, 4" % (sKVO, sKVO)); g.e("s_add_u32 %s, %s, %s" % (sKVO, sKVO, sR)); g.e("s_mul_i32 s37, %s, %d" % (sKVO, g.kvs)); g.e("s_lshl_b32 %s, %s, 15" % (sKVO, sKVO)); cut()
    if g.map == 0:
        g.e("s_and_b32 %s, s2, 1" % sCB); g.e("s_lshl_b32 %s, %s, 1" % (sCB, sCB)); cut()
        g.e("s_bfe_u32 %s, s2, 0x10003" % sT0); g.e("s_add_u32 %s, %s, %s" % (sCB, sCB, sT0)); cut()
        g.e("s_bfe_u32 %s, s2, 0x20001" % sRB); g.e("s_lshl_b32 %s, %s, 3" % (sRB, sRB)); cut()
        g.e("s_bfe_u32 %s, s2, 0x30004" % sT0); g.e("s_add_u32 %s, %s, %s" % (sRB, sRB, sT0)); cut()
    else:
        g.e("s_and_b32 %s, s2, 1" % sCB); g.e("s_lshl_b32 %s, %s, 1" % (sCB, sCB)); cut()
        g.e("s_bfe_u32 %s, s2, 0x10003" % sT0); g.e("s_add_u32 %s, %s, %s" % (sCB, sCB, sT0)); cut()
        g.e("s_bfe_u32 %s, s2, 0x10001" % sRB); g.e("s_lshl_b32 %s, %s, 4" % (sRB, sRB)); cut()
        g.e("s_lshr_b32 %s, s2, 4" % sT0); g.e("s_add_u32 %s, %s, %s" % (sRB, sRB, sT0)); cut()
    g.e("s_mul_i32 %s, %s, 3584" % (sWOS, sWV)); g.e("s_lshl_b32 %s, %s, 8" % (sT0, sCB)); g.e("s_add_u32 %s, %s, %s" % (sWOS, sWOS, sT0)); cut()

def setup_vec(g, isA, cut):
    t0, t1, t2 = vT, vT + 1, vT + 2
    g.e("s_lshl_b32 %s, %s, 14" % (sT0, sHH)); g.e("s_lshl_b32 %s, %s, 12" % (sT1, sRT)); cut()
    g.e("s_add_u32 %s, %s, %s" % (sT0, sT0, sT1)); g.e("s_add_u32 %s, %s, %d" % (sT0, sT0, L_OWN)); g.e("v_add_u32 v%d, %s, v%d" % (vAD, sT0, vL16)); cut()
    for u in range(1, 9 if isA else 2):
        cross = ((L_R1 - L_OWN) if u <= 4 else (L_R2 - L_R1)) + 12288
        g.e("s_mov_b32 %s, 0x%x" % (sT1, cross & 0xffffffff))
        g.e("s_cmp_eq_u32 %s, %d" % (sRT, (u - 1) % 4))
        g.e("s_cselect_b32 %s, %s, 0x%x" % (sT0, sT1, (-4096) & 0xffffffff))
        g.e("v_add_u32 v%d, %s, v%d" % (vAD + u, sT0, vAD + u - 1)); cut()
    g.e("v_lshrrev_b32 v%d, 4, v%d" % (t0, vLANE)); g.e("v_lshlrev_b32 v%d, 2, v%d" % (t1, t0)); cut()
    g.e("v_and_b32 v%d, 15, v%d" % (t2, vLANE)); g.e("v_xor_b32 v%d, v%d, v%d" % (t1, t1, t2)); cut()
    g.e("v_mul_u32_u24 v%d, 896, v%d" % (vWOO, t0)); g.e("v_lshl_add_u32 v%d, v%d, 4, v%d" % (vWOO, t1, vWOO)); cut()
    g.e("s_cmp_eq_u32 %s, 3" % sCB); g.e("s_cselect_b32 %s, 8, 64" % sT0)
    g.e("v_mov_b32 v%d, 0x%x" % (t2, OOB)); cut()
    g.e("v_cmp_le_u32 vcc, %s, v%d" % (sT0, t1))
    g.e("s_lshl_b32 %s, %s, 7" % (sT1, sHH)); g.e("v_add_u32 v%d, %s, v%d" % (vG1, sT1, vGR))
    g.e("v_cndmask_b32 v%d, v%d, v%d, vcc" % (vWOO, vWOO, t2)); cut()

def masks(g, isA):
    g.e("v_mov_b32 v%d, 0x%08x" % (vT, NEG))
    for r in range(16):
        if isA:
            g.mask(lane_mask(lambda l: key_of(r, l) <= (l & 31)))
            g.e("v_cndmask_b32 v%d, v%d, 0, %s" % (vC1 + r, vT, sTM))
            g.e("v_cndmask_b32 v%d, 0, v%d, %s" % (vC2 + r, vT, sTM))
        else:
            g.mask(lane_mask(lambda l: ((l & 31) - key_of(r, l)) in range(0, 16, 2)))
            g.e("v_cndmask_b32 v%d, v%d, 0, %s" % (vC1 + r, vT, sTM))
            g.mask(lane_mask(lambda l: (32 + (l & 31) - key_of(r, l)) in range(0, 16, 2)))
            g.e("v_cndmask_b32 v%d, v%d, 0, %s" % (vC2 + r, vT, sTM))
    if not isA:
        skip = g.newlab("L_c2")
        g.e("s_or_b32 %s, %s, %s" % (sT0, sR, sRT)); g.e("s_cmp_lg_u32 %s, 0" % sT0); g.e("s_cbranch_scc1 %s" % skip)
        for r in range(16): g.e("v_mov_b32 v%d, v%d" % (vC2 + r, vT))
        g.lab(skip)

def xrd_addr(g, dst, srow_shift_reg):
    t0, t1, t2 = vT, vT + 1, vT + 2
    g.e("v_and_b32 v%d, 31, v%d" % (t0, vLANE)); g.e("v_bfe_u32 v%d, v%d, 1, 3" % (t1, vLANE))
    g.e("v_lshrrev_b32 v%d, 5, v%d" % (t2, vLANE)); g.e("v_xor_b32 v%d, v%d, v%d" % (t1, t1, t2))
    g.e("v_lshlrev_b32 v%d, 7, v%d" % (t0, t0)); g.e("v_add_u32 v%d, %s, v%d" % (t0, srow_shift_reg, t0))
    g.e("v_lshl_add_u32 v%d, v%d, 4, v%d" % (dst, t1, t0))
    for k in range(1, 4): g.e("v_xor_b32 v%d, %d, v%d" % (dst + k, k << 5, dst))
def wrd_addr(g, dst, colbyte):
    t0, t1, t2 = vT, vT + 1, vT + 2
    g.e("v_bfe_u32 v%d, v%d, 2, 2" % (t0, vLANE)); g.e("v_lshrrev_b32 v%d, 5, v%d" % (t2, vLANE))
    g.e("v_lshl_add_u32 v%d, v%d, 3, v%d" % (t1, t2, t0)); g.e("v_lshlrev_b32 v%d, 7, v%d" % (t1, t1))
    g.e("v_lshrrev_b32 v%d, 1, v%d" % (t0, t0)); g.e("v_lshlrev_b32 v%d, 6, v%d" % (t0, t0))
    g.e("v_and_b32 v%d, 3, v%d" % (t2, vLANE)); g.e("v_lshlrev_b32 v%d, 3, v%d" % (t2, t2))
    g.e("v_and_b32 v%d, 16, v%d" % (dst, vLANE)); g.e("v_lshl_add_u32 v%d, v%d, 1, v%d" % (t2, dst, t2))
    g.e("v_add_u32 v%d, %s, v%d" % (t2, colbyte, t2))
    g.e("v_xor_b32 v%d, v%d, v%d" % (t2, t2, t0)); g.e("v_add_u32 v%d, v%d, v%d" % (dst, t1, t2))

def producer_prep(g):
    t0, t1, t2, t3 = vT, vT + 1, vT + 2, vT + 3
    g.e("v_lshrrev_b32 v%d, 3, v%d" % (t0, vLANE)); g.e("v_lshrrev_b32 v%d, 4, v%d" % (t1, vLANE))
    g.e("v_xor_b32 v%d, v%d, v%d" % (t1, t1, vLANE)); g.e("v_and_b32 v%d, 7, v%d" % (t1, t1))
    g.e("v_mul_u32_u24 v%d, 896, v%d" % (t2, t0))
    g.e("v_lshl_add_u32 v%d, v%d, 4, v%d" % (vXO, t1, t2))
    g.e("v_xor_b32 v%d, 64, v%d" % (t3, vXO))
    g.e("v_add_u32 v%d, %d, v%d" % (vXO + 1, 7168 - 1024, t3))
    g.e("v_add_u32 v%d, %d, v%d" % (vXO + 2, 2 * (7168 - 1024), vXO))
    g.e("v_add_u32 v%d, %d, v%d" % (vXO + 3, 3 * (7168 - 1024), t3))
    g.e("v_lshrrev_b32 v%d, 2, v%d" % (t1, vLANE)); g.e("v_and_b32 v%d, 4, v%d" % (t1, t1))
    g.e("v_and_b32 v%d, 7, v%d" % (t2, vLANE)); g.e("v_xor_b32 v%d, v%d, v%d" % (t1, t1, t2)); g.e("v_min_u32 v%d, 6, v%d" % (t1, t1))
    g.e("v_mul_u32_u24 v%d, 2688, v%d" % (t2, t0)); g.e("v_lshl_add_u32 v%d, v%d, 4, v%d" % (t2, t1, t2))
    for q in range(4):
        t, h = divmod(q, 2)
        g.e("v_add_u32 v%d, %d, v%d" % (vWO + q, WBIAS + h * 8 * 2688 + (t + 1) * 896 - q * 1024, t2))
    for h in range(2): g.e("v_add_u32 v%d, %d, v%d" % (vWQ + h, WBIAS + h * 8 * 2688 - h * 1024, t2))
    g.e("s_mul_i32 %s, %s, %d" % (sXS, sR, 128 * 896)); g.e("s_mul_i32 %s, %s, %d" % (sT1, sP, 32 * 896)); g.e("s_add_u32 %s, %s, %s" % (sXS, sXS, sT1))
    g.e("s_mul_i32 %s, %s, 112" % (sWSO, sHP)); g.e("s_mul_i32 %s, %s, %d" % (sT1, sP, 16 * 2688)); g.e("s_add_u32 %s, %s, %s" % (sWSO, sWSO, sT1))
    g.e("s_lshl_b32 %s, %s, 12" % (sXB, sP)); g.e("s_lshl_b32 %s, %s, 11" % (sWB, sP))

def issue_item(g, vm, i):
    if i < 7:
        slot = (i % 5) * SLOT
        g.e("s_add_u32 m0, %s, %d" % (sXB, slot))
        if i: g.e("s_add_u32 %s, %s, 128" % (sXS, sXS))
        else: g.e("s_nop 0")
        for m in range(4): g.e("buffer_load_dwordx4 v%d, %s, %s offen%s%s lds" % (vXO + m, sX, sXS, " offset:%d" % (m * 1024) if m else "", g.ldf))
        g.e("s_add_u32 m0, %s, %d" % (sXB, slot + 16384))
        if i: g.e("s_add_u32 %s, %s, %d" % (sWSO, sWSO, 64 * 2688))
        else: g.e("s_mov_b32 %s, %s" % (sKC, sWSO))
        for q in range(4):
            if i == 2 and q == 3: g.e("s_mov_b64 exec, %s" % sHM)
            g.e("buffer_load_dwordx4 v%d, %s, %s offen%s%s lds" % (vWO + q, sW, sWSO, " offset:%d" % (q * 1024) if q else "", g.ldf))
        if i == 2: g.e("s_mov_b64 exec, -1")
        vm.add(i, 8)
    else:
        cs = range(4) if i == 7 else range(4, 7)
        for c in cs:
            g.e("s_add_u32 m0, %s, %d" % (sWB, L_WQ + c * 8192))
            if c: g.e("s_add_u32 %s, %s, %d" % (sKC, sKC, 64 * 2688))
            else: g.e("s_nop 0")
            g.e("buffer_load_dwordx4 v%d, %s, %s offen lds" % (vWQ, sW, sKC))
            if c == 3: g.e("s_mov_b64 exec, %s" % sHM)
            g.e("buffer_load_dwordx4 v%d, %s, %s offen offset:1024 lds" % (vWQ + 1, sW, sKC))
            if c == 3: g.e("s_mov_b64 exec, -1")
        vm.add(i, 2 * len(cs))

def early_dbg(g):
    g.e("s_mov_b32 s24, s46"); g.e("s_mov_b32 s25, s47"); g.e("s_mov_b32 s26, 256"); g.e("s_mov_b32 s27, 0x20000")
    g.e("v_mov_b32 v%d, 0" % vZ); g.e("v_lshlrev_b32 v%d, 4, v%d" % (vL16, vLANE))

def producer(g, isA):
    dist = g.dA if isA else g.dB
    assert dist >= 2
    vm = Q(); lg = Q()
    vm.add(0, 8)
    if g.pprio: g.e("s_setprio %d" % g.pprio)
    m = lane_mask(lambda l: ((l & 7) ^ (4 * ((l >> 4) & 1))) != 7)
    g.e("s_mov_b32 s38, 0x%08x" % (m & 0xffffffff)); g.e("s_mov_b32 s39, 0x%08x" % (m >> 32))
    g.e("s_cmp_eq_u32 %s, 7" % sWV); g.e("s_cselect_b64 %s, %s, -1" % (sHM, sHM))
    XW = lambda wn, k: (vXRD + k) if wn == 0 else (64 + 4 * (wn - 1) + k)
    vm.add(1, 8)
    g.stamp(1)
    nxt = 2
    for i in range(9):
        g.wv(vm.wait(i))
        if i >= 1: g.wl(lg.wait(("x", i - 1)))
        def pst(k):
            if "pdet" in g.exp and i in (3, 4, 5): g.only = None; g.stamp(1 + (i - 3) * 4 + k); g.only = (0, 14)
        pst(0)
        bump(g, vFB); lg.add("f")
        if i == 0: g.stamp(2)
        if "pit" in g.exp and i >= 1: g.only = None; g.stamp(2 + i); g.only = (0, 1, 2, 14)
        if i < 7:
            if i + dist >= 5 and i + dist <= 8:
                g.e("ds_read_b32 v%d, v%d offset:512" % (vFV, vFA)); lg.add("dn")
            if "nopx" not in g.exp:
                for ks in range(4): g.e("ds_read_b128 %s, v%d offset:%d" % (vr(vXF + 16 * i + 4 * ks, 4), XW((i % 5) // 2, ks), (i % 5 % 2) * SLOT))
                lg.add(("x", i), 4)
        if g.gate and isA and i == g.gsig:
            sk = g.newlab("L_gs")
            g.e("s_cmp_lg_u32 %s, 4" % sWV); g.e("s_cbranch_scc1 %s" % sk)
            get_nonce(g)
            g.e("s_lshl_b32 %s, s2, 7" % sT0); g.e("s_add_u32 %s, %s, 0x%x" % (sT0, sT0, WS_GFLAG))
            store_flag(g, sT0)
            g.lab(sk)
        while nxt <= 8 and nxt <= i + dist:
            if g.gate and not isA and nxt == g.gitem:
                g.e("s_waitcnt vmcnt(0)"); vm.clear()
                get_nonce(g)
                g.e("s_sub_u32 %s, s2, 128" % sT0); g.e("s_lshl_b32 %s, %s, 7" % (sT0, sT0)); g.e("s_add_u32 %s, %s, 0x%x" % (sT0, sT0, WS_GFLAG))
                g.e("v_mov_b32 v%d, %s" % (vT, sT0))
                poll(g, vT, "1")
                if g.touch == 3: touch_own(g, g.gitem + 1); vm.add("t", 2)
            pst(1)
            if nxt >= 5:
                n = lg.wait("dn")
                if n is None: spin(g, nxt - 4, vFA, 512, vFV); lg.clear()
                else:
                    g.wl(n); check(g, nxt - 4, vFA, 512, vFV)
            pst(2)
            if nxt == 8 and g.late8: break
            if nxt == 7 and g.late7: break
            issue_item(g, vm, nxt); nxt += 1
            pst(3)
        if i == 0 and g.gate:
            early_dbg(g)
            g.e("s_mov_b32 s16, s48"); g.e("s_mov_b32 s17, s49"); g.e("s_mov_b32 s18, 0x%x" % WS_RECORDS); g.e("s_mov_b32 s19, 0x20000")
            g.e("buffer_load_dwordx2 %s, v%d, %s, 0 offen sc1" % (vr(vNON, 2), vZ, sDBG)); vm.add("non0")
        if i == g.ps1:
            for wn in (1, 2):
                for k in range(4): g.e("v_add_u32 v%d, 0x%x, v%d" % (XW(wn, k), wn * 65536, vXRD + k))
            early_dbg(g)
            for grp in g.capture(lambda cut: setup_scalars(g, cut)): g.l += grp
        if i == g.ps2:
            wrd_addr(g, vWRD, 0); g.e("v_add_u32 v%d, %d, v%d" % (vWRD, L_WQ, vWRD)); wrd_addr(g, vQW, 56); g.e("v_add_u32 v%d, %d, v%d" % (vQW, L_WQ, vQW))
            masks(g, isA)
        if i == 6 and g.late7:
            spin(g, 4, vGR, F_ST, vFV); lg.clear()
            bump(g, vGW, F_XD); lg.add("f")
            issue_item(g, vm, 7); issue_item(g, vm, 8); nxt = 9
        if i == 7:
            if not g.late7: bump(g, vGW, F_XD); lg.add("f")
            g.e("buffer_load_dwordx2 %s, v%d, %s, 0 offen sc1" % (vr(vNON, 2), vZ, sDBG)); vm.add("non")
            g.stamp(3)
            q_phase_begin = True
            break
    late = g.capture(lambda cut: setup_vec(g, isA, cut))
    aQ = vACC; WB = 64
    def rd(j, hds=(0, 1)):
        c, ks = divmod(j, 4)
        b = WB + (j % 3) * 8
        for hd in hds:
            for h in range(2):
                g.e("ds_read_b64_tr_b16 %s, v%d offset:%d" % (vr(b + 4*hd + 2*h, 2), vQW if hd else vWRD, c * 8192 + ks * 2048 + h * 512))
            lg.add((j, hd), 2)
    spin(g, 8, vFA, 0, vFV); lg.clear()
    if g.late8 == 1:
        spin(g, 4, vGR, F_ST, vFV); issue_item(g, vm, 8)
    if g.qwait: spin(g, 7, vFA, 512, vFV)
    g.stamp(5)
    rd(0); rd(1)
    for j in range(28):
        b = WB + (j % 3) * 8
        if j == g.qpj and g.qprio: g.e("s_setprio %d" % g.qprio)
        if j == g.late8 and g.late8 > 1: issue_item(g, vm, 8)
        if j == 12 - 0 * g.late8 + (0 if g.late8 else -2):
            g.wv(vm.wait(8)); bump(g, vFB); lg.add("f")
        for hd in range(2):
            g.wl(lg.wait((j, hd)))
            g.mfma(aQ + 16 * hd, b + 4 * hd, vXF + 4 * j, None if j == 0 else aQ + 16 * hd)
            if hd == 0:
                if j == 13: g.e("ds_read_b32 v%d, v%d" % (vFV, vFA)); lg.add("flag")
                if j == 14:
                    g.wl(lg.wait("flag")); check(g, 9, vFA, 0, vFV); g.stamp(6)
            if j + 2 < 28: rd(j + 2, (hd,))
            if late and j >= 16: g.l += late.pop(0)
    for grp in late: g.l += grp
    g.e("v_mov_b32 v%d, %s" % (vT + 1, sC))
    g.e("v_cndmask_b32 v%d, v%d, 0, %s" % (vT + 2, vT + 1, sUP))
    g.e("s_lshl_b32 %s, %s, 11" % (sT0, sP)); g.e("s_add_u32 %s, %s, %d" % (sT0, sT0, L_QA)); g.e("v_add_u32 v%d, %s, v%d" % (vT, sT0, vL16))
    g.e("s_nop 5")
    for hd in range(2):
        a = aQ + 16 * hd; p = a if hd == 0 else vQF
        if g.qround:
            for i in range(8):
                g.e("v_cvt_pk_bf16_f32 v%d, v%d, v%d" % (a + 2*i + 1, a + 2*i, a + 2*i + 1))
                g.e("v_lshlrev_b32 v%d, 16, v%d" % (a + 2*i, a + 2*i + 1))
                g.e("v_and_b32 v%d, 0xffff0000, v%d" % (a + 2*i + 1, a + 2*i + 1))
        for r in range(16): g.e("v_mul_f32 v%d, v%d, v%d" % (a + r, vT + (2 if r >= 12 else 1), a + r))
        for i in range(8): g.e("v_cvt_pk_bf16_f32 v%d, v%d, v%d" % (p + i, a + 2*i, a + 2*i + 1))
        if hd == 0:
            for f in range(2): g.e("ds_write_b128 v%d, %s offset:%d" % (vT, vr(p + 4*f, 4), f * 1024))
            g.e("s_waitcnt lgkmcnt(0)")
            bump(g, vGW, F_QRDY)
    if g.qprio: g.e("s_setprio %d" % g.aprio)
    g.e("s_waitcnt vmcnt(0)")
    get_nonce(g)
    if g.wotouch:
        nt = g.newlab("L_nwt")
        g.e("s_cmp_gt_u32 %s, 5" % sWV); g.e("s_cbranch_scc1 %s" % nt)
        nsh = 8 if g.map == 0 else 16
        g.e("s_and_b32 %s, %s, %d" % (sT0, sRB, nsh - 1)); g.e("s_mul_i32 %s, %s, %d" % (sT0, sT0, (448 // nsh) * 896))
        g.e("s_lshl_b32 %s, %s, 8" % (sT1, sCB)); g.e("s_add_u32 %s, %s, %s" % (sT0, sT0, sT1))
        g.e("s_and_b32 %s, %s, 1" % (sT1, sWV)); g.e("s_lshl_b32 %s, %s, 7" % (sT1, sT1)); g.e("s_add_u32 %s, %s, %s" % (sT0, sT0, sT1))
        g.e("v_mul_u32_u24 v%d, 896, v%d" % (vT, vLANE))
        mm = (1 << (448 // nsh)) - 1
        g.mask(mm); g.e("s_mov_b64 exec, %s" % sTM)
        g.e("buffer_load_dword v%d, v%d, %s, %s offen" % (vGX + 1, vT, sWO, sT0))
        g.e("s_mov_b64 exec, -1")
        g.lab(nt)
    g.stamp(4)
    spin(g, 4, vGR, F_OWN, vFV)

def consumer(g, isA):
    t0, t1, t2 = vT, vT + 1, vT + 2
    early_dbg(g)
    skip = g.newlab("L_non")
    g.e("s_or_b32 %s, s2, %s" % (sT0, sWV)); g.e("s_cmp_lg_u32 %s, 0" % sT0); g.e("s_cbranch_scc1 %s" % skip)
    g.e("s_memrealtime %s" % sNON); g.e("s_waitcnt lgkmcnt(0)"); g.e("s_or_b32 s60, s60, 1")
    g.e("v_mov_b32 v%d, s60" % vNON); g.e("v_mov_b32 v%d, s61" % (vNON + 1))
    g.e("s_mov_b64 exec, 1")
    g.e("buffer_store_dwordx2 %s, v%d, %s, 0 offen sc1" % (vr(vNON, 2), vZ, sDBG))
    g.e("s_mov_b64 exec, -1")
    g.lab(skip)
    if g.ctouch:
        ct = g.newlab("L_ct")
        g.e("s_cmp_lg_u32 %s, 1" % sWV); g.e("s_cbranch_scc1 %s" % ct)
        pc = g.newlab("L_pc")
        g.e("s_getpc_b64 s[16:17]")
        g.lab(pc)
        g.e("s_sub_u32 s16, s16, %s-%s_kernel" % (pc, NAME)); g.e("s_subb_u32 s17, s17, 0")
        g.e("s_mov_b32 s18, L_codeend-%s_kernel" % NAME); g.e("s_mov_b32 s19, 0x20000")
        g.e("s_lshr_b32 %s, s2, 3" % sT0); g.e("s_mul_i32 %s, %s, %d" % (sT0, sT0, 16 * 128))
        g.e("v_lshlrev_b32 v%d, 7, v%d" % (vT, vLANE))
        g.e("s_mov_b64 exec, 0xffff")
        g.e("buffer_load_dword v192, v%d, s[16:19], %s offen" % (vT, sT0))
        g.e("s_mov_b64 exec, -1")
        g.lab(ct)
    if g.touch and not isA: touch(g)
    g.e("s_and_b32 %s, %s, 1" % (sT2, sWV)); g.e("s_lshl_b32 %s, %s, 13" % (sT2, sT2))
    xrd_addr(g, vXRD, sT2)
    g.e("s_lshr_b32 %s, %s, 1" % (sT3, sWV)); g.e("s_mul_i32 %s, %s, 56" % (sT1, sT3))
    wrd_addr(g, vWRD, sT1)
    sa = lambda wn, k: vQF + 5 * wn + k
    for wn in range(3):
        for k in range(4): g.e("v_add_u32 v%d, 0x%x, v%d" % (sa(wn, k), wn * 65536, vXRD + k))
        g.e("v_add_u32 v%d, 0x%x, v%d" % (sa(wn, 4), wn * 65536, vWRD))
    g.e("s_lshl_b32 %s, %s, 13" % (sT4, sWV))
    g.e("s_add_u32 %s, %s, %d" % (sT0, sT4, L_OWN)); g.e("v_add_u32 v%d, %s, v%d" % (vKVW, sT0, vL16))
    for grp in g.capture(lambda cut: setup_scalars(g, cut)): g.l += grp
    if g.ptouch:
        pt = g.newlab("L_pt")
        g.e("s_cmp_lg_u32 %s, 1" % sWV); g.e("s_cbranch_scc1 %s" % pt)
        g.e("v_lshlrev_b32 v%d, 21, v%d" % (vT, vLANE))
        g.e("s_lshl_b32 %s, s2, 7" % sT0); g.e("s_add_u32 %s, %s, 0x100000" % (sT0, sT0))
        g.e("s_mov_b64 exec, 0x1ff")
        g.e("buffer_load_dword v193, v%d, %s, %s offen" % (vT, sWS, sT0))
        g.e("s_mov_b64 exec, 3")
        g.e("buffer_load_dword v194, v%d, %s, %s offen" % (vT, sOUT, sT0))
        g.e("s_mov_b64 exec, 1")
        g.e("s_lshl_b32 %s, s2, 7" % sT0)
        g.e("buffer_load_dword v195, v%d, %s, %s offen" % (vT, sWO, sT0))
        g.e("s_mov_b64 exec, -1")
        g.lab(pt)
    g.stamp(1)
    lg = Q()
    def rd_ops(j):
        i, ks = divmod(j, 4)
        xb, wb = vXB + (j % 3) * 8, vWB + (j % 3) * 8
        sl = i % 5; ax = sa(sl // 2, ks); aw = sa(sl // 2, 4); base = (sl % 2) * SLOT
        tr = lambda t, h: "ds_read_b64_tr_b16 %s, v%d offset:%d" % (vr(wb + 4*t + 2*h, 2), aw, base + 16384 + ks * 4096 + t * 2048 + h * 512)
        return [((j, "x0"), "ds_read_b128 %s, v%d offset:%d" % (vr(xb, 4), ax, base)), ((j, "k"), tr(0, 0)), ((j, "k"), tr(0, 1)),
                ((j, "x1"), "ds_read_b128 %s, v%d offset:%d" % (vr(xb + 4, 4), ax, base + 4096)), ((j, "v"), tr(1, 0)), ((j, "v"), tr(1, 1))]
    def emit(op):
        if "nocr" in g.exp: return
        g.e(op[1]); lg.add(op[0])
    spin(g, 1, vFA, 0, vFV)
    if g.c1prio: g.e("s_setprio %d" % g.c1prio)
    g.stamp(2)
    for j in range(2):
        for op in rd_ops(j): emit(op)
    aK, aV = vACC, vACC + 32
    dist = eval(g.cdist)
    for j in range(28):
        xb, wb = vXB + (j % 3) * 8, vWB + (j % 3) * 8
        nx = rd_ops(j + 2) if j + 2 < 28 else []
        mms = [((j, "k"), aK, wb, xb), ((j, "x1"), aK + 16, wb, xb + 4), ((j, "v"), aV, xb, wb + 4), (None, aV + 16, xb + 4, wb + 4)]
        for n, (dep, d, a, b) in enumerate(mms):
            if dep is not None: g.wl(lg.wait(dep))
            g.mfma(d, a, b, None if j == 0 else d)
            if n == 0 and nx and (j + 2) % 4 == 0:
                g.wl(lg.wait(("flag", (j + 2) // 4))); check(g, (j + 2) // 4 + 1, vFA, 0, vFV)
                if "pit" in g.exp: g.only = None; g.stamp(2 + (j + 2) // 4); g.only = (0, 1, 2, 14)
            for _ in range(dist[n]):
                if nx: emit(nx.pop(0))
            if n == 1 and (j + 3) % 4 == 0 and j + 3 < 28:
                g.e("ds_read_b32 v%d, v%d" % (vFV, vFA)); lg.add(("flag", (j + 3) // 4))
            if n == 3 and j % 4 == 3:
                bump(g, vFB); lg.add("done")
            if n == 1 and j == 26:
                g.e("ds_read_b32 v%d, v%d offset:512" % (vFV, vFA)); lg.add("alldone")
            if j == 18 and n == 3: g.e("buffer_load_dwordx2 %s, v%d, %s, 0 offen sc1" % (vr(vNON, 2), vZ, sDBG))
    g.stamp(3)
    g.e("v_mov_b32 v%d, 0x3f803f80" % vT)
    g.mask(lane_mask(lambda l: (l & 31) == 28))
    g.e("s_add_u32 %s, %s, s37" % (sT1, sT4)); g.e("s_add_u32 %s, %s, 4096" % (sT0, sT1))
    g.wl(lg.wait("alldone")); check(g, 5, vFA, 512, vFV)
    g.e("s_nop 1")
    if not isA:
        g.e("s_bitcmp1_b32 %s, 0" % sWV); g.e("s_cselect_b32 %s, %s, 0x%x" % (sT0, sT0, OOB))
    def pub(t, f, p):
        if isA or t == 1: g.e("buffer_store_dwordx4 %s, v%d, %s, %s offen offset:%d%s" % (vr(p, 4), vL16, sWS, sT0 if t else sT1, f * 1024, g.stf))
    def packK(t):
        p = aK + 16 * t
        for i in range(8): g.e("v_cvt_pk_bf16_f32 v%d, v%d, v%d" % (p + i, p + 2*i, p + 2*i + 1))
        g.e("v_cndmask_b32 v%d, v%d, v%d, %s" % (p + 6, p + 6, vT, sUP))
        for f in range(2): pub(t, f, p + 4*f)
    def packV(t):
        p = aV + 16 * t
        for f in range(2):
            for i in range(4*f, 4*f + 4): g.e("v_cvt_pk_bf16_f32 v%d, v%d, v%d" % (p + i, p + 2*i, p + 2*i + 1))
            for i in range(4*f, 4*f + 4): g.e("v_cndmask_b32 v%d, v%d, v%d, %s" % (p + i, p + i, vT, sTM))
            pub(t, 2 + f, p + 4*f)
    if isA: packK(0); packK(1); packV(0); packV(1)
    else: packK(1); packV(1); packK(0); packV(0)
    if g.c1prio: g.e("s_setprio 0")
    bump(g, vGW, F_ST)
    for t in range(2):
        for f in range(4):
            p = (aK + 16*t + 4*f) if f < 2 else (aV + 16*t + 4*(f - 2))
            g.e("ds_write_b128 v%d, %s offset:%d" % (vKVW, vr(p, 4), t * 4096 + f * 1024))
    for grp in g.capture(lambda cut: setup_vec(g, isA, cut)): g.l += grp
    g.e("s_waitcnt lgkmcnt(0)")
    bump(g, vGW, F_OWN)
    g.e("s_lshr_b32 %s, %s, 8" % (sT1, sKVO)); g.e("s_lshl_b32 %s, %s, 3" % (sT2, sWV))
    g.e("s_add_u32 %s, %s, %s" % (sT1, sT1, sT2)); g.e("s_add_u32 %s, %s, 0x%x" % (sT1, sT1, WS_KVFLAG))
    g.e("s_waitcnt vmcnt(0)")
    get_nonce(g)
    store_flag(g, sT1)
    g.stamp(4)
    done = g.newlab("L_ldd")
    if g.mfirst: masks(g, isA)
    if not isA or g.r2late:
        g.e("s_cmp_lt_u32 %s, 2" % sWV); g.e("s_cbranch_scc1 %s" % done)
    fetch_remote(g, isA)
    if not isA:
        g.e("s_waitcnt vmcnt(0)")
        bump(g, vFB)
    g.lab(done)
    g.stamp(6)
    if not g.mfirst: masks(g, isA)
    g.e("s_lshl_b32 %s, %s, 11" % (sT0, sRT)); g.e("s_add_u32 %s, %s, %d" % (sT0, sT0, L_QA)); g.e("v_add_u32 v%d, %s, v%d" % (vT, sT0, vL16))
    spin(g, 4, vGR, F_OWN, vFV); spin(g, 4, vGR, F_QRDY, vFV)
    for f in range(2): g.e("ds_read_b128 %s, v%d offset:%d" % (vr(vQF + 4*f, 4), vT, f * 1024))

def fetch_remote(g, isA):
    nopoll = g.newlab("L_nopoll")
    g.e("s_lshr_b32 %s, %s, 1" % (sT3, sRT))
    spin(g, 7, vFA, 512, vFV); spin(g, 4, vGR, F_XD, vFV)
    g.e("s_and_b32 %s, %s, 1" % (sT2, sRT)); g.e("s_add_u32 %s, %s, 1" % (sT4, sT3))
    g.e("s_lshl_b32 %s, %s, 15" % (sT0, sT4)); g.e("s_sub_u32 %s, %s, %s" % (sXS, sKVO, sT0))
    g.e("s_mul_i32 %s, %s, %d" % (sT0, sT4, g.kvs)); g.e("s_sub_u32 %s, s37, %s" % (sT0, sT0))
    g.e("s_cmp_lt_u32 %s, %s" % (sR, sT4)); g.e("s_cselect_b32 %s, 0x%x, %s" % (sWSO, OOB, sT0))
    g.e("s_cbranch_scc1 %s" % nopoll)
    g.e("s_lshr_b32 %s, %s, 8" % (sT0, sXS)); g.e("s_lshl_b32 %s, %s, 4" % (sT1, sT2)); g.e("s_add_u32 %s, %s, %s" % (sT0, sT0, sT1))
    g.e("s_add_u32 %s, %s, 0x%x" % (sT0, sT0, WS_KVFLAG))
    g.e("v_lshlrev_b32 v%d, 3, v%d" % (vT, vLANE)); g.e("v_add_u32 v%d, %s, v%d" % (vT, sT0, vT))
    poll(g, vT, "3" if isA else "2")
    g.lab(nopoll)
    g.stamp(5)
    g.e("s_lshl_b32 %s, %s, 14" % (sT2, sT2)); g.e("s_add_u32 %s, %s, %s" % (sWSO, sWSO, sT2))
    g.e("s_lshl_b32 %s, %s, 15" % (sT0, sT3)); g.e("s_sub_u32 %s, %d, %s" % (sT0, L_R1, sT0)); g.e("s_add_u32 %s, %s, %s" % (sT2, sT2, sT0))
    for t in ((3, 2, 1, 0) if isA else (3,)):
        g.e("s_add_u32 m0, %s, %d" % (sT2, t * 4096))
        g.e("s_add_u32 %s, %s, %d" % (sT0, sWSO, t * 4096))
        for f in range(4): g.e("buffer_load_dwordx4 v%d, %s, %s offen offset:%d sc1 lds" % (vL16, sWS, sT0, f * 1024))
    g.e("s_lshl_b32 %s, %s, 7" % (sT0, sRT)); g.e("s_lshl_b32 %s, %s, 6" % (sT1, sT3)); g.e("s_sub_u32 %s, %s, %s" % (sT0, sT0, sT1))
    g.e("s_add_u32 %s, %s, 124" % (sT0, sT0)); g.e("v_add_u32 v%d, %s, v%d" % (vFB, sT0, vGW))

def touch(g):
    if g.touch in (1, 3): return touch1(g)
    t0, t1, t2, t3 = vT, vT + 1, vT + 2, vT + 3
    isw = g.newlab("L_tw"); end = g.newlab("L_te")
    g.e("s_bfe_u32 %s, s2, 0x40003" % sT0); g.e("s_lshl_b32 %s, %s, 7" % (sT0, sT0))
    g.e("v_and_b32 v%d, 127, v0" % t0); g.e("v_add_u32 v%d, %s, v%d" % (t0, sT0, t0))
    g.e("v_mov_b32 v%d, 0x%x" % (t3, OOB))
    g.e("s_mov_b32 s19, 0x20000"); g.e("s_mov_b32 s23, 0x20000")
    g.e("s_cmp_ge_u32 %s, 2" % sWV); g.e("s_cbranch_scc1 %s" % isw)
    g.e("s_mov_b32 s16, s32"); g.e("s_mov_b32 s17, s33"); g.e("s_mov_b32 s18, 0x%x" % X_BYTES)
    g.e("s_mov_b32 s20, s4"); g.e("s_mov_b32 s21, s5"); g.e("s_mov_b32 s22, 0x%x" % X_BYTES)
    g.e("v_and_b32 v%d, 511, v%d" % (t1, t0)); g.e("v_mul_u32_u24 v%d, 896, v%d" % (t1, t1))
    g.e("v_lshrrev_b32 v%d, 9, v%d" % (t2, t0)); g.e("v_cmp_gt_u32 vcc, 3, v%d" % t2)
    g.e("v_lshl_add_u32 v%d, v%d, 7, v%d" % (t1, t2, t1))
    g.e("s_bfe_u32 %s, s2, 0x20001" % sT0); g.e("s_mul_i32 %s, %s, %d" % (sT0, sT0, 512 * 896))
    g.e("v_cndmask_b32 v%d, v%d, v%d, vcc" % (t1, t3, t1))
    n = 0
    for srd in ("s[16:19]", "s[20:23]"):
        for c0 in (1, 4):
            g.e("buffer_load_dword v%d, v%d, %s, %s offen offset:%d" % (186 + n, t1, srd, sT0, c0 * 128)); n += 1
    g.e("s_branch %s" % end)
    g.lab(isw)
    g.e("s_mov_b32 s16, s34"); g.e("s_mov_b32 s17, s35"); g.e("s_mov_b32 s18, 0x%x" % W_BYTES)
    g.e("s_mov_b32 s20, s40"); g.e("s_mov_b32 s21, s41"); g.e("s_mov_b32 s22, 0x%x" % W_BYTES)
    g.e("v_lshrrev_b32 v%d, 3, v%d" % (t2, t0)); g.e("v_cmp_gt_u32 vcc, 192, v%d" % t2)
    g.e("v_mul_u32_u24 v%d, 2688, v%d" % (t1, t2))
    g.e("v_bfe_u32 v%d, v%d, 2, 1" % (t2, t0)); g.e("v_mul_u32_u24 v%d, 896, v%d" % (t2, t2)); g.e("v_add_u32 v%d, v%d, v%d" % (t1, t1, t2))
    g.e("v_and_b32 v%d, 3, v%d" % (t2, t0)); g.e("v_lshlrev_b32 v%d, 7, v%d" % (t2, t2)); g.e("v_add_u32 v%d, v%d, v%d" % (t1, t1, t2))
    g.e("v_cndmask_b32 v%d, v%d, v%d, vcc" % (t1, t3, t1))
    g.e("v_lshrrev_b32 v%d, 2, v%d" % (t0, t0)); g.e("v_mul_u32_u24 v%d, 2688, v%d" % (t0, t0)); g.e("v_add_u32 v%d, v%d, v%d" % (t0, t0, t2))
    g.e("s_and_b32 %s, s2, 1" % sT0); g.e("s_mul_i32 %s, %s, 384" % (sT0, sT0))
    g.e("s_add_u32 %s, %s, %d" % (sT1, sT0, 64 * 2688 + 896)); g.e("s_add_u32 %s, %s, %d" % (sT2, sT0, 4 * 64 * 2688 + 896))
    n = 0
    for srd in ("s[16:19]", "s[20:23]"):
        for so in (sT1, sT2):
            g.e("buffer_load_dword v%d, v%d, %s, %s offen" % (186 + n, t1, srd, so)); n += 1
        g.e("buffer_load_dword v%d, v%d, %s, %s offen" % (186 + n, t0, srd, sT0)); n += 1
    g.lab(end)

def touch_own(g, first):
    t0, t1, t2 = vT, vT + 1, vT + 2
    g.e("s_bfe_u32 %s, s2, 0x40003" % sT0); g.e("s_lshl_b32 %s, %s, 8" % (sT0, sT0))
    g.e("v_and_b32 v%d, 255, v0" % t0); g.e("v_add_u32 v%d, %s, v%d" % (t0, sT0, t0))
    g.e("v_and_b32 v%d, 511, v%d" % (t1, t0)); g.e("v_mul_u32_u24 v%d, 896, v%d" % (t1, t1))
    g.e("v_lshrrev_b32 v%d, 9, v%d" % (t2, t0)); g.e("v_add_u32 v%d, %d, v%d" % (t2, first, t2))
    g.e("v_cmp_gt_u32 vcc, 7, v%d" % t2)
    g.e("v_lshl_add_u32 v%d, v%d, 7, v%d" % (t1, t2, t1))
    g.e("v_mov_b32 v%d, 0x%x" % (t2, OOB))
    g.e("v_cndmask_b32 v%d, v%d, v%d, vcc" % (t1, t2, t1))
    g.e("s_bfe_u32 %s, s2, 0x20001" % sT0); g.e("s_mul_i32 %s, %s, %d" % (sT0, sT0, 512 * 896))
    g.e("v_lshrrev_b32 v%d, 2, v%d" % (t2, t0))
    g.e("buffer_load_dword v88, v%d, %s, %s offen" % (t1, sX, sT0))
    g.e("v_mul_u32_u24 v%d, 896, v%d" % (t2, t2))
    g.e("v_and_b32 v%d, 3, v%d" % (t0, t0)); g.e("v_lshl_add_u32 v%d, v%d, 7, v%d" % (t2, t0, t2))
    g.e("s_and_b32 %s, s2, 1" % sT0); g.e("s_mul_i32 %s, %s, 384" % (sT0, sT0)); g.e("s_add_u32 %s, %s, %d" % (sT0, sT0, first * 64 * 2688 + WBIAS))
    g.e("buffer_load_dword v89, v%d, %s, %s offen" % (t2, sW, sT0))

def touch1(g):
    t0, t1, t2 = vT, vT + 1, vT + 2
    for tb in ([0] if g.touch == 3 else [0, 1] if g.map == 0 else [1]):
        px, pw = (32, 34) if tb == 0 else (4, None)
        if tb == 0:
            g.e("s_mov_b32 s16, s32"); g.e("s_mov_b32 s17, s33"); g.e("s_mov_b32 s20, s34"); g.e("s_mov_b32 s21, s35")
        else:
            g.e("s_mov_b32 s16, s4"); g.e("s_mov_b32 s17, s5"); g.e("s_mov_b32 s20, s40"); g.e("s_mov_b32 s21, s41")
        g.e("s_mov_b32 s18, 0x%x" % X_BYTES); g.e("s_mov_b32 s19, 0x20000"); g.e("s_mov_b32 s22, 0x%x" % W_BYTES); g.e("s_mov_b32 s23, 0x20000")
        g.e("s_bfe_u32 %s, s2, 0x40003" % sT0); g.e("s_lshl_b32 %s, %s, 8" % (sT0, sT0))
        g.e("v_add_u32 v%d, %s, v0" % (t0, sT0))
        g.e("v_and_b32 v%d, 511, v%d" % (t1, t0)); g.e("v_mul_u32_u24 v%d, 896, v%d" % (t1, t1))
        g.e("v_lshrrev_b32 v%d, 9, v%d" % (t2, t0)); g.e("v_add_u32 v%d, %d, v%d" % (t2, g.tfirst, t2))
        g.e("v_cmp_gt_u32 vcc, 7, v%d" % t2)
        g.e("v_lshl_add_u32 v%d, v%d, 7, v%d" % (t1, t2, t1))
        g.e("v_mov_b32 v%d, 0x%x" % (t2, OOB))
        g.e("v_cndmask_b32 v%d, v%d, v%d, vcc" % (t1, t2, t1))
        g.e("s_bfe_u32 %s, s2, 0x20001" % sT0); g.e("s_mul_i32 %s, %s, %d" % (sT0, sT0, 512 * 896))
        g.e("v_lshrrev_b32 v%d, 2, v%d" % (t2, t0))
        g.e("buffer_load_dword v%d, v%d, s[16:19], %s offen%s" % (188 + 2*tb, t1, sT0, g.tf))
        g.e("v_mul_u32_u24 v%d, 896, v%d" % (t2, t2))
        g.e("v_and_b32 v%d, 3, v%d" % (t0, t0)); g.e("v_lshl_add_u32 v%d, v%d, 7, v%d" % (t2, t0, t2))
        g.e("s_and_b32 %s, s2, 1" % sT0); g.e("s_mul_i32 %s, %s, 384" % (sT0, sT0)); g.e("s_add_u32 %s, %s, %d" % (sT0, sT0, g.tfirst * 64 * 2688))
        g.e("buffer_load_dword v%d, v%d, s[20:23], %s offen%s" % (189 + 2*tb, t2, sT0, g.tf))

def max16(g, s, dst, first=True):
    if first:
        g.e("v_max3_f32 v%d, v%d, v%d, v%d" % (dst, s, s + 1, s + 2)); rest = list(range(3, 16))
    else: rest = list(range(16))
    while len(rest) >= 2:
        a, b = rest.pop(0), rest.pop(0)
        g.e("v_max3_f32 v%d, v%d, v%d, v%d" % (dst, dst, s + a, s + b))
    if rest: g.e("v_max_f32 v%d, v%d, v%d" % (dst, dst, s + rest[0]))
def xhalf_max(g):
    g.e("v_mov_b32 v%d, v%d" % (vM2, vM)); g.e("s_nop 1")
    g.e("v_permlane32_swap_b32 v%d, v%d" % (vM, vM2)); g.e("s_nop 1")
    g.e("v_max_f32 v%d, v%d, v%d" % (vM, vM, vM2))
def set_shift(g):
    g.e("v_cvt_pk_bf16_f32 v%d, -v%d, 0" % (vM2, vM))
    g.e("v_lshlrev_b32 v%d, 16, v%d" % (vNM, vM2))
    g.e("v_cndmask_b32 v%d, v%d, v%d, %s" % (vQF + 6, vQF + 6, vM2, sUP))
def bcast_l(g):
    g.e("v_mov_b32 v%d, v%d" % (vM, vO + 12)); g.e("v_mov_b32 v%d, v%d" % (vM2, vO + 12)); g.e("s_nop 1")
    g.e("v_permlane32_swap_b32 v%d, v%d" % (vM, vM2)); g.e("s_nop 1")
def finish_o(g):
    g.e("v_rcp_f32 v%d, v%d" % (vM, vM2))
    g.e("s_lshl_b32 %s, %s, 6" % (sT0, sBR)); g.e("s_lshl_b32 %s, %s, 2" % (sT1, sR)); g.e("s_add_u32 %s, %s, %s" % (sT0, sT0, sT1))
    g.e("v_cndmask_b32 v%d, v%d, 0, %s" % (vM2, vM, sUP))
    g.e("s_add_u32 %s, %s, %s" % (sT0, sT0, sRT)); g.e("s_mul_i32 %s, %s, %d" % (sT0, sT0, g.ofs))
    g.e("s_lshl_b32 %s, %s, 1" % (sT1, sHP)); g.e("s_add_u32 %s, %s, %s" % (sT1, sT1, sHH))
    g.e("s_lshl_b32 %s, %s, 11" % (sT1, sT1)); g.e("s_add_u32 %s, %s, %s" % (sT0, sT0, sT1)); g.e("s_add_u32 %s, %s, 0x%x" % (sT0, sT0, WS_OF))
    for f in range(2):
        for r in range(8*f, 8*f + 8): g.e("v_mul_f32 v%d, v%d, v%d" % (vO + r, vM2 if r >= 12 else vM, vO + r))
        for i in range(4*f, 4*f + 4): g.e("v_cvt_pk_bf16_f32 v%d, v%d, v%d" % (vP + i, vO + 2*i, vO + 2*i + 1))
        g.e("buffer_store_dwordx4 %s, v%d, %s, %s offen offset:%d%s" % (vr(vP + 4*f, 4), vL16, sWS, sT0, f * 1024, g.stf))
def dbg_q(g):
    if not g.dbgq: return
    g.e("s_lshl_b32 %s, %s, 2" % (sT0, sHH)); g.e("s_add_u32 %s, %s, %s" % (sT0, sT0, sRT)); g.e("s_lshl_b32 %s, %s, 11" % (sT0, sT0))
    g.e("s_lshr_b32 %s, %s, 1" % (sT1, sKVO)); g.e("s_add_u32 %s, %s, %s" % (sT0, sT0, sT1)); g.e("s_add_u32 %s, %s, 0x%x" % (sT0, sT0, WS_QDBG))
    g.e("s_waitcnt lgkmcnt(0)")
    for f in range(2): g.e("buffer_store_dwordx4 %s, v%d, %s, %s offen offset:%d" % (vr(vQF + 4*f, 4), vL16, sWS, sT0, f * 1024))
    g.e("s_waitcnt vmcnt(0)")

def wo_dma(g, m, ldsbase, row0, last=False):
    sk = g.newlab("L_wsk")
    if last:
        g.e("s_cmp_eq_u32 %s, 7" % sWV); g.e("s_cbranch_scc1 %s" % sk)
    g.e("s_add_u32 m0, %s, %d" % (sW1K, ldsbase + m * 8192))
    g.e("s_add_u32 %s, %s, %d" % (sT3, sWOS, row0 * 896 + m * 8 * 3584))
    g.e("buffer_load_dwordx4 v%d, %s, %s offen lds" % (vWOO, sWO, sT3))
    if last: g.lab(sk)
def wo1(g, n):
    if n < 4: wo_dma(g, n, L_W1A, 0, last=(n == 3))
    else: wo_dma(g, n - 4, L_W1B, 120)

def attn_A(g):
    lg = Q(); lg.add("q", 2)
    nwo = [0]; nwo0 = [0]; nwoS = {}
    def site(u):
        for (cond, b) in ((u - 1, 0), (u - 5, 1)):
            if 0 <= cond <= 3:
                sk = g.newlab("L_site")
                g.e("s_cmp_lg_u32 %s, %d" % (sRT, cond)); g.e("s_cbranch_scc1 %s" % sk)
                check(g, 1, vG1, F_KV(b, 0), vGV + b)
                if g.r2late == 2 and b == 0 and cond >= 2:
                    g.e("s_cmp_ge_u32 %s, 4" % sWV); g.e("s_cbranch_scc1 %s" % sk)
                    fetch_remote(g, True)
                    nwoS[cond] = nwo[0]
                g.lab(sk)
    def rdF(): g.e("ds_read2_b32 %s, v%d offset0:%d offset1:%d" % (vr(vGV, 2), vG1, F_KV(0, 0) // 4, F_KV(1, 0) // 4)); lg.add("x")
    def rdK(u):
        for j in range(2): g.e("ds_read_b128 %s, v%d offset:%d" % (vr(vKB + (u % 2) * 8 + 4*j, 4), vAD + u, j * 1024))
        lg.add(("K", u), 2)
    def rdV(u):
        for j in range(2): g.e("ds_read_b128 %s, v%d offset:%d" % (vr(vVB + (u % 2) * 8 + 4*j, 4), vAD + u, 2048 + j * 1024))
        lg.add(("V", u), 2)
    def qk(u, j):
        s = vS + (u % 3) * 16
        g.mfma(s, vKB + (u % 2) * 8 + 4*j, vQF + 4*j, s if j else (vC1 if u == 0 else vC2 if u == 8 else None))
    def pv(u, j):
        g.mfma(vO, vVB + (u % 2) * 8 + 4*j, vS + (u % 3) * 16 + 4*j, None if (u == 0 and j == 0) else vO)
    if "ast" in g.exp: g.only = None; g.stamp(1); g.only = (0, 14)
    rdF(); rdK(0)
    g.wl(lg.wait(("K", 0))); qk(0, 0); qk(0, 1)
    bump(g, vGW, F_CQ); lg.add("x")
    g.e("s_nop 10")
    max16(g, vS, vM); xhalf_max(g); set_shift(g)
    for r in range(16): g.e("v_add_f32 v%d, v%d, v%d" % (vS + r, vNM, vS + r))
    for u in range(9):
        s = vS + (u % 3) * 16
        ex = lambda a, b: [g.e("v_exp_f32 v%d, v%d" % (s + r, s + r)) for r in range(a, b)]
        if g.r2late == 1 and u == g.r2fetch:
            sk = g.newlab("L_r2f")
            g.e("s_cmp_ge_u32 %s, 2" % sWV); g.e("s_cbranch_scc1 %s" % sk)
            fetch_remote(g, True)
            g.lab(sk)
            nwo0[0] = nwo[0]
        if g.r2late == 2 and u in (g.r2step, g.r2step + 1):
            sk = g.newlab("L_ld2")
            g.e("s_cmp_lg_u32 %s, %d" % (sWV, 1 if u == g.r2step else 0)); g.e("s_cbranch_scc1 %s" % sk)
            g.e("s_waitcnt vmcnt(%d)" % (nwo[0] - nwoS[2 if u == g.r2step else 3])); bump(g, vFB)
            g.lab(sk)
        if u in ((0,) if g.r2late == 2 else (0, g.r2step)):
            sk = g.newlab("L_ld")
            g.e("s_cmp_%s_u32 %s, 2" % ("lt" if u == 0 else "ge", sWV)); g.e("s_cbranch_scc1 %s" % sk)
            if u == 0:
                g.e("s_cmp_ge_u32 %s, 4" % sWV); g.e("s_cbranch_scc1 %s" % sk)
            g.e("s_waitcnt vmcnt(%d)" % (nwo[0] - nwo0[0])); bump(g, vFB)
            g.lab(sk)
        if u < 8: site(u + 1)
        if "ast" in g.exp: g.only = None; g.stamp(2 + u); g.only = (0, 14)
        if u < 7: rdF()
        if u == g.wostep - 1: g.e("ds_read_b32 v%d, v%d offset:%d" % (vGX, vGR, F_CQ)); lg.add("x")
        if u < 8: rdK(u + 1)
        rdV(u)
        if u > 0: g.wl(lg.wait(("V", u - 1))); pv(u - 1, 0)
        ex(0, 5)
        if u > 0: pv(u - 1, 1)
        if g.wostep <= u < g.wostep + 4:
            if u == g.wostep: check(g, 8, vGR, F_CQ, vGX)
            for _ in range(2): wo1(g, nwo[0]); nwo[0] += 1
        ex(5, 10)
        if u < 8: g.wl(lg.wait(("K", u + 1))); qk(u + 1, 0)
        ex(10, 16)
        if u < 8: qk(u + 1, 1)
        else: g.e("s_nop 0")
        for i in range(8): g.e("v_cvt_pk_bf16_f32 v%d, v%d, v%d" % (s + i, s + 2*i, s + 2*i + 1))
    g.wl(lg.wait(("V", 8))); g.e("s_nop 0"); pv(8, 0); pv(8, 1)
    g.e("s_nop 11")
    bcast_l(g)
    fb = g.newlab("L_fb"); ok = g.newlab("L_aok")
    g.e("s_mov_b32 %s, 0x%08x" % (sT0, LBIG))
    g.e("v_cmp_ngt_f32 vcc, %s, v%d" % (sT0, vM2))
    g.e("s_cbranch_vccnz %s" % fb)
    g.lab(ok)
    g.fb = (fb, ok)
    if "ast" in g.exp: g.only = None; g.stamp(11); g.only = (0, 14)
    g.stamp(8)
    finish_o(g)

def fallback_A(g):
    fb, ok = g.fb
    g.lab(fb)
    g.e("s_lshl_b32 %s, %s, 2" % (sT1, sR)); g.e("s_add_u32 %s, %s, %s" % (sT1, sT1, sRT))
    g.e("v_mov_b32 v%d, 0" % vM2)
    g.e("v_cndmask_b32 v%d, v%d, v%d, %s" % (vQF + 6, vQF + 6, vM2, sUP))
    g.e("v_mov_b32 v%d, 0x%08x" % (vM, NEG))
    for r in range(16): g.e("v_mov_b32 v%d, 0" % (vO + r))
    for pas in range(2):
        lp = g.newlab("L_fbl"); l0 = g.newlab("L_fb0"); l8 = g.newlab("L_fb8"); lj = g.newlab("L_fbj")
        g.e("s_mov_b32 %s, 0" % sT4)
        g.lab(lp)
        g.e("s_add_u32 %s, %s, 8" % (sT0, sRT)); g.e("s_sub_u32 %s, %s, %s" % (sT0, sT0, sT4))
        g.e("s_lshr_b32 %s, %s, 2" % (sT2, sT0)); g.e("s_mul_i32 %s, %s, %d" % (sT2, sT2, g.kvs))
        g.e("s_and_b32 %s, %s, 3" % (sT0, sT0)); g.e("s_lshl_b32 %s, %s, 12" % (sT0, sT0)); g.e("s_add_u32 %s, %s, %s" % (sT0, sT0, sT2))
        g.e("s_lshl_b32 %s, %s, 14" % (sT2, sHH)); g.e("s_add_u32 %s, %s, %s" % (sT0, sT0, sT2))
        g.e("s_add_u32 %s, %s, s37" % (sT0, sT0)); g.e("s_sub_u32 %s, %s, %d" % (sT0, sT0, 2 * g.kvs))
        for j in range(4): g.e("buffer_load_dwordx4 %s, v%d, %s, %s offen offset:%d sc1" % (vr(vKB + 4*j, 4), vL16, sWS, sT0, j * 1024))
        g.e("s_waitcnt vmcnt(0)")
        g.e("s_cmp_eq_u32 %s, 0" % sT4); g.e("s_cbranch_scc1 %s" % l0)
        g.e("s_cmp_eq_u32 %s, 8" % sT4); g.e("s_cbranch_scc1 %s" % l8)
        g.mfma(vS, vKB, vQF, None); g.e("s_branch %s" % lj)
        g.lab(l0); g.mfma(vS, vKB, vQF, vC1); g.e("s_branch %s" % lj)
        g.lab(l8); g.mfma(vS, vKB, vQF, vC2)
        g.lab(lj)
        g.mfma(vS, vKB + 4, vQF + 4, vS)
        g.e("s_nop 11")
        if pas == 0: max16(g, vS, vM, first=False)
        else:
            for r in range(16): g.e("v_exp_f32 v%d, v%d" % (vS + r, vS + r))
            g.e("s_nop 0")
            for i in range(8): g.e("v_cvt_pk_bf16_f32 v%d, v%d, v%d" % (vS + i, vS + 2*i, vS + 2*i + 1))
            g.e("s_nop 1")
            g.mfma(vO, vKB + 8, vS, vO); g.mfma(vO, vKB + 12, vS + 4, vO)
            g.e("s_nop 11")
        g.e("s_add_u32 %s, %s, 1" % (sT4, sT4))
        g.e("s_min_u32 %s, %s, 8" % (sT0, sT1))
        g.e("s_cmp_le_u32 %s, %s" % (sT4, sT0)); g.e("s_cbranch_scc1 %s" % lp)
        if pas == 0:
            xhalf_max(g); set_shift(g); g.e("s_nop 1")
    bcast_l(g)
    g.e("s_branch %s" % ok)

def attn_B(g):
    for j in range(2): g.e("ds_read_b128 %s, v%d offset:%d" % (vr(vKB + 4*j, 4), vAD, j * 1024))
    for j in range(2): g.e("ds_read_b128 %s, v%d offset:%d" % (vr(vVB + 4*j, 4), vAD, 2048 + j * 1024))
    g.e("s_waitcnt lgkmcnt(2)")
    g.mfma(vS, vKB, vQF, vC1); g.mfma(vS, vKB + 4, vQF + 4, vS)
    bump(g, vGW, F_CQ)
    sk = g.newlab("L_bs")
    g.e("s_cmp_lg_u32 %s, 0" % sRT); g.e("s_cbranch_scc1 %s" % sk)
    spin(g, 1, vG1, F_KV(0, 0), vGV)
    g.lab(sk)
    for j in range(2): g.e("ds_read_b128 %s, v%d offset:%d" % (vr(vKB + 8 + 4*j, 4), vAD + 1, j * 1024))
    for j in range(2): g.e("ds_read_b128 %s, v%d offset:%d" % (vr(vVB + 8 + 4*j, 4), vAD + 1, 2048 + j * 1024))
    g.e("s_waitcnt lgkmcnt(2)")
    g.mfma(vS + 16, vKB + 8, vQF, vC2); g.mfma(vS + 16, vKB + 12, vQF + 4, vS + 16)
    g.e("s_nop 4")
    max16(g, vS, vM); g.e("s_nop 0"); max16(g, vS + 16, vM, first=False); xhalf_max(g)
    for r in range(32): g.e("v_sub_f32 v%d, v%d, v%d" % (vS + r, vS + r, vM))
    for t in range(2):
        s = vS + 16 * t
        for r in range(16): g.e("v_exp_f32 v%d, v%d" % (s + r, s + r))
        g.e("s_nop 0")
        for i in range(8): g.e("v_cvt_pk_bf16_f32 v%d, v%d, v%d" % (s + i, s + 2*i, s + 2*i + 1))
        g.e("s_waitcnt lgkmcnt(0)"); g.e("s_nop 0")
        g.mfma(vO, vVB + 8*t, s, None if t == 0 else vO); g.mfma(vO, vVB + 8*t + 4, s + 4, vO)
    g.e("s_nop 11")
    bcast_l(g)
    g.stamp(8)
    finish_o(g)
    if g.bpre:
        spin(g, 8, vGR, F_CQ, vGX)
        for n in range(8): wo1(g, n)

def p3(g):
    t0, t1, t2 = vT, vT + 1, vT + 2
    sCT, sRT2 = sKC, sXB
    A1, A2, A3 = 4, 5, 6
    vFL = 3; vB0, vB1 = 13, 14; vOA = 56
    g.e("s_lshr_b32 %s, %s, 1" % (sCT, sWV)); g.e("s_and_b32 %s, %s, 1" % (sRT2, sWV))
    g.e("v_bfe_u32 v%d, v%d, 2, 2" % (t0, vLANE)); g.e("v_lshrrev_b32 v%d, 5, v%d" % (t1, vLANE))
    g.e("v_lshl_add_u32 v%d, v%d, 2, v%d" % (t1, t1, t0)); g.e("v_lshlrev_b32 v%d, 8, v%d" % (t1, t1))
    g.e("v_lshlrev_b32 v%d, 6, v%d" % (t0, t0))
    g.e("v_and_b32 v%d, 3, v%d" % (t2, vLANE)); g.e("v_lshlrev_b32 v%d, 3, v%d" % (t2, t2))
    g.e("v_and_b32 v%d, 16, v%d" % (A3, vLANE)); g.e("v_lshl_add_u32 v%d, v%d, 1, v%d" % (t2, A3, t2))
    g.e("s_lshl_b32 %s, %s, 6" % (sT0, sCT)); g.e("v_add_u32 v%d, %s, v%d" % (t2, sT0, t2))
    g.e("v_xor_b32 v%d, v%d, v%d" % (t2, t2, t0)); g.e("v_add_u32 v%d, v%d, v%d" % (A3, t1, t2))
    g.e("v_add_u32 v%d, 0x%x, v%d" % (A1, L_W1A, A3)); g.e("v_add_u32 v%d, 0x%x, v%d" % (A2, L_W1B, A3))
    g.e("s_lshr_b32 %s, %s, 1" % (sT0, sRB)); g.e("s_lshl_b32 %s, %s, 4" % (sT1, sBR)); g.e("s_add_u32 %s, %s, %s" % (sT0, sT0, sT1))
    g.e("s_lshl_b32 %s, %s, 10" % (sT0, sT0)); g.e("s_add_u32 %s, %s, 0x%x" % (sT0, sT0, WS_OFLAG))
    g.e("v_lshlrev_b32 v%d, 7, v%d" % (vFL, vLANE)); g.e("v_add_u32 v%d, %s, v%d" % (vFL, sT0, vFL))
    g.e("s_add_u32 %s, %s, %s" % (sT1, sT1, sR)); g.e("s_lshl_b32 %s, %s, 3" % (sT1, sT1)); g.e("s_add_u32 %s, %s, %s" % (sT1, sT1, sHP))
    g.e("s_lshl_b32 %s, %s, 7" % (sT1, sT1)); g.e("s_add_u32 s36, %s, 0x%x" % (sT1, WS_OFLAG))
    g.e("s_lshr_b32 %s, %s, 2" % (sT2, sWV))
    sOS, sOL = sXS, sWSO
    g.e("s_and_b32 %s, %s, 3" % (sT0, sWV)); g.e("s_lshl_b32 %s, %s, 11" % (sT0, sT0))
    g.e("s_lshl_b32 %s, %s, 13" % (sOL, sT2)); g.e("s_add_u32 %s, %s, %s" % (sOL, sOL, sT0))
    g.e("s_lshl_b32 %s, %s, 6" % (sOS, sBR)); g.e("s_lshl_b32 %s, %s, 1" % (sT1, sRB)); g.e("s_add_u32 %s, %s, %s" % (sOS, sOS, sT1))
    g.e("s_add_u32 %s, %s, %s" % (sOS, sOS, sT2)); g.e("s_mul_i32 %s, %s, %d" % (sOS, sOS, g.ofs))
    g.e("s_add_u32 %s, %s, %s" % (sOS, sOS, sT0)); g.e("s_add_u32 %s, %s, 0x%x" % (sOS, sOS, WS_OF))
    g.e("s_lshl_b32 %s, %s, 13" % (sT0, sRT2)); g.e("v_add_u32 v%d, %s, v%d" % (vB0, sT0, vL16))
    g.e("v_add_u32 v%d, 0x%x, v%d" % (vB1, L_O, vB0)); g.e("v_add_u32 v%d, 0x%x, v%d" % (vB0, L_W1A, vB0))
    vSW, vSR = 58, 59
    if g.ostage:
        STG = 0
        g.e("v_and_b32 v%d, 31, v%d" % (t0, vLANE)); g.e("v_mul_u32_u24 v%d, 272, v%d" % (t0, t0))
        g.e("v_lshrrev_b32 v%d, 5, v%d" % (t1, vLANE)); g.e("v_lshl_add_u32 v%d, v%d, 4, v%d" % (t0, t1, t0))
        g.e("s_mul_i32 %s, %s, %d" % (sT0, sRT2, 32 * 272)); g.e("s_lshl_b32 %s, %s, 6" % (sT1, sCT)); g.e("s_add_u32 %s, %s, %s" % (sT0, sT0, sT1))
        g.e("v_add_u32 v%d, %s, v%d" % (vSW, sT0, t0))
        g.e("v_lshrrev_b32 v%d, 4, v%d" % (t0, vLANE)); g.e("v_and_b32 v%d, 15, v%d" % (t1, vLANE))
        g.e("v_mul_u32_u24 v%d, 272, v%d" % (t2, t0)); g.e("v_lshl_add_u32 v%d, v%d, 4, v%d" % (t2, t1, t2))
        g.e("s_mul_i32 %s, %s, %d" % (sT0, sWV, 8 * 272)); g.e("v_add_u32 v%d, %s, v%d" % (vSR, sT0, t2))
        g.e("v_mul_u32_u24 v%d, 1792, v%d" % (t2, t0)); g.e("v_lshl_add_u32 v%d, v%d, 4, v%d" % (t2, t1, t2))
        g.e("s_cmp_eq_u32 %s, 3" % sCB); g.e("s_cselect_b32 %s, 8, 64" % sT0)
        g.e("v_mov_b32 v%d, 0x%x" % (t0, OOB))
        g.e("v_cmp_le_u32 vcc, %s, v%d" % (sT0, t1))
        g.e("s_lshl_b32 %s, %s, 3" % (sT0, sRB)); g.e("s_add_u32 %s, %s, %s" % (sT0, sT0, sWV)); g.e("s_mul_i32 %s, %s, %d" % (sT4, sT0, 8 * 1792))
        g.e("v_cndmask_b32 v%d, v%d, v%d, vcc" % (vOA, t2, t0))
        g.e("v_add_u32 v%d, %d, v%d" % (vOA + 1, 4 * 1792, vOA))
        g.e("s_mul_i32 %s, %s, 896" % (sT0, sBR)); g.e("s_add_u32 %s, %s, %s" % (sT4, sT4, sT0))
        g.e("s_lshl_b32 %s, %s, 8" % (sT0, sCB)); g.e("s_add_u32 %s, %s, %s" % (sT4, sT4, sT0))
    else:
        g.e("v_and_b32 v%d, 31, v%d" % (t0, vLANE)); g.e("v_mul_u32_u24 v%d, 1792, v%d" % (t0, t0))
        g.e("v_lshrrev_b32 v%d, 5, v%d" % (t1, vLANE)); g.e("v_lshl_add_u32 v%d, v%d, 4, v%d" % (vOA, t1, t0))
        g.e("s_lshl_b32 %s, %s, 1" % (sT0, sRB)); g.e("s_add_u32 %s, %s, %s" % (sT0, sT0, sRT2)); g.e("s_mul_i32 %s, %s, %d" % (sT4, sT0, 32 * 1792))
        g.e("s_mul_i32 %s, %s, 896" % (sT0, sBR)); g.e("s_add_u32 %s, %s, %s" % (sT4, sT4, sT0))
        g.e("s_lshl_b32 %s, %s, 8" % (sT0, sCB)); g.e("s_add_u32 %s, %s, %s" % (sT4, sT4, sT0))
        g.e("s_lshl_b32 %s, %s, 6" % (sT0, sCT)); g.e("s_add_u32 %s, %s, %s" % (sT4, sT4, sT0))
    if g.bpre:
        wa = g.newlab("L_wa"); wb = g.newlab("L_wb")
        g.e("s_cmp_eq_u32 %s, 0" % sBR); g.e("s_cbranch_scc1 %s" % wa)
        g.e("s_waitcnt vmcnt(7)"); g.e("s_branch %s" % wb)
        g.lab(wa); g.e("s_waitcnt vmcnt(0)"); g.lab(wb)
    else: g.e("s_waitcnt vmcnt(0)")
    g.e("s_barrier")
    nf = g.newlab("L_nof")
    g.e("s_cmp_lg_u32 %s, 0" % sWV); g.e("s_cbranch_scc1 %s" % nf)
    store_flag(g, "s36")
    g.lab(nf)
    g.stamp(9)
    if not g.bpre:
        early = g.newlab("L_early")
        g.e("s_cmp_eq_u32 %s, 0" % sBR); g.e("s_cbranch_scc1 %s" % early)
        for n in range(8): wo1(g, n)
        g.lab(early)
    for m in range(7): wo_dma(g, m, L_W2, 248)
    early2 = g.newlab("L_early2")
    g.e("s_cmp_eq_u32 %s, 0" % sBR); g.e("s_cbranch_scc1 %s" % early2)
    g.e("s_waitcnt vmcnt(7)"); g.e("s_barrier")
    g.lab(early2)
    WFR = 96
    def trs(sel):
        for h in range(16):
            for j in range(2):
                for i in range(2):
                    row = 28 * h + 16 * j + 8 * i
                    if not sel(row): continue
                    a, off = (A1, row * 256) if row < 120 else (A2, (row - 120) * 256) if row < 248 else (A3, (row - 248) * 256)
                    g.e("ds_read_b64_tr_b16 %s, v%d offset:%d" % (vr(WFR + (h * 2 + j) * 4 + 2 * i, 2), a, off))
    trs(lambda row: row < 248)
    g.stamp(10)
    np_ = g.newlab("L_np3")
    g.e("s_cmp_lg_u32 %s, 7" % sWV); g.e("s_cbranch_scc1 %s" % np_)
    if g.poll2: poll2(g, vFL, "0xff")
    else: poll(g, vFL, "0xff")
    g.lab(np_)
    g.e("s_waitcnt vmcnt(0) lgkmcnt(0)")
    g.e("s_barrier")
    g.stamp(11)
    for a in range(4):
        g.e("s_add_u32 m0, %s, %d" % (sOL, L_O + a * 16384 if a < 2 else L_W1A + (a - 2) * 16384))
        g.e("s_add_u32 %s, %s, %d" % (sT2, sOS, a * 8192))
        for f in range(2): g.e("buffer_load_dwordx4 v%d, %s, %s offen offset:%d sc1 lds" % (vL16, sWS, sT2, f * 1024))
    trs(lambda row: row >= 248)
    OB = 16
    lg = Q()
    def rd(k):
        a = k // 8
        bars = eval(g.obars)
        if k % 8 == 0 and a in bars:
            nxtb = min([x for x in bars if x > a] + [4])
            g.e("s_waitcnt vmcnt(%d)" % (8 - 2 * nxtb)); g.e("s_barrier")
            if a == 0: g.stamp(12)
        g.e("ds_read_b128 %s, v%d offset:%d" % (vr(OB + (k % 4) * 4, 4), vB1 if a < 2 else vB0, (a % 2) * 16384 + (k % 8) * 1024))
        lg.add(k)
    for k in range(3): rd(k)
    for k in range(32):
        g.wl(lg.wait(k))
        g.mfma(vO, WFR + 4 * k, OB + (k % 4) * 4, None if k == 0 else vO)
        if k + 3 < 32: rd(k + 3)
    g.stamp(13)
    if not g.ostage:
        done = g.newlab("L_nostore")
        g.e("s_cmp_lt_u32 %s, 3" % sCB); g.e("s_cselect_b32 %s, 4, 2" % sT0)
        g.e("s_cmp_ge_u32 %s, %s" % (sCT, sT0)); g.e("s_cbranch_scc1 %s" % done)
        g.e("s_nop 8")
        PK = 48
        for i in range(8): g.e("v_cvt_pk_bf16_f32 v%d, v%d, v%d" % (PK + i, vO + 2*i, vO + 2*i + 1))
        g.e("s_nop 1")
        for b in (0, 4):
            g.e("v_permlane32_swap_b32 v%d, v%d" % (PK + b, PK + b + 2)); g.e("v_permlane32_swap_b32 v%d, v%d" % (PK + b + 1, PK + b + 3))
        g.e("s_nop 1")
        for b in range(2): g.e("buffer_store_dwordx4 %s, v%d, %s, %s offen offset:%d%s" % (vr(PK + 4*b, 4), vOA, sOUT, sT4, 32 * b, g.outflag))
        g.lab(done)
        return
    PK = 48
    g.e("s_nop 11")
    for i in range(8): g.e("v_cvt_pk_bf16_f32 v%d, v%d, v%d" % (PK + i, vO + 2*i, vO + 2*i + 1))
    g.e("s_nop 1")
    for b in (0, 4):
        g.e("v_permlane32_swap_b32 v%d, v%d" % (PK + b, PK + b + 2)); g.e("v_permlane32_swap_b32 v%d, v%d" % (PK + b + 1, PK + b + 3))
    g.e("s_nop 1")
    for b in range(2): g.e("ds_write_b128 v%d, %s offset:%d" % (vSW, vr(PK + 4*b, 4), 32 * b))
    g.e("s_waitcnt lgkmcnt(0)")
    g.e("s_barrier")
    for b in range(2): g.e("ds_read_b128 %s, v%d offset:%d" % (vr(PK + 4*b, 4), vSR, 4 * 272 * b))
    for b in range(2):
        g.e("s_waitcnt lgkmcnt(%d)" % (1 - b))
        g.e("buffer_store_dwordx4 %s, v%d, %s, %s offen%s" % (vr(PK + 4*b, 4), vOA + b, sOUT, sT4, g.outflag))

def write_stamps(g):
    if not g.stamps: return
    g.e("s_waitcnt vmcnt(0)")
    g.stamp(14)
    g.e("s_waitcnt lgkmcnt(0)")
    g.e("s_getreg_b32 s100, hwreg(HW_REG_XCC_ID)"); g.e("s_getreg_b32 s101, hwreg(HW_REG_HW_ID)")
    g.e("s_lshl_b32 %s, s2, 3" % sT0); g.e("s_add_u32 %s, %s, %s" % (sT0, sT0, sWV)); g.e("s_lshl_b32 %s, %s, 7" % (sT0, sT0))
    g.e("s_add_u32 %s, %s, 0x%x" % (sT0, sT0, WS_STAMP))
    g.e("s_mov_b64 exec, 1")
    for i in range(16):
        g.e("v_mov_b32 v20, s%d" % (70 + 2*i)); g.e("v_mov_b32 v21, s%d" % (71 + 2*i))
        g.e("buffer_store_dwordx2 v[20:21], v%d, %s, %s offen offset:%d" % (vZ, sWS, sT0, 8 * i))
        g.e("s_nop 1")

def branch(g, isA):
    n = "A" if isA else "B"
    g.e("s_cmp_lt_u32 %s, 4" % sWV); g.e("s_cbranch_scc1 L_cons%s" % n)
    producer(g, isA)
    g.e("s_branch L_x%s" % n)
    g.lab("L_cons%s" % n)
    consumer(g, isA)
    g.lab("L_x%s" % n)
    g.stamp(7)
    if g.cprio:
        sk = g.newlab("L_cp")
        g.e("s_cmp_ge_u32 %s, 4" % sWV); g.e("s_cbranch_scc1 %s" % sk); g.e("s_setprio %d" % g.cprio); g.lab(sk)
    dbg_q(g)
    if isA: attn_A(g)
    else: attn_B(g)

def build(**kw):
    g = G(**kw)
    K = NAME + "_kernel"
    hdr = open("cdna_kernels/%s.s.ref" % NAME).read().split("; Override launch")[0]
    g.l.append(hdr.rstrip())
    g.l.append("; @launch grid=(256,1,1) block=(512,1,1) lds=163840")
    g.l += ["; " + x for x in DOC.strip().split("\n")]
    g.l += ['.amdgcn_target "amdgcn-amd-amdhsa--gfx950"', ".text", ".globl " + K, ".p2align 8", ".type %s,@function" % K, K + ":"]
    g.e("s_cmp_ge_u32 s2, 256"); g.e("s_cbranch_scc1 L_end")
    g.e("s_load_dwordx16 s[32:47], s[0:1], 0"); g.e("s_load_dwordx2 s[48:49], s[0:1], 64")
    if "probe" in g.exp: g.e("s_memrealtime s[70:71]")
    if g.stamps:
        for i in range(15): g.e("s_mov_b64 s[%d:%d], 0" % (70 + 2*i, 71 + 2*i))
    g.stamp(0)
    if "pit" in g.exp: g.only = (0, 1, 2, 14)
    if "pdet" in g.exp or "ast" in g.exp: g.only = (0, 14)
    g.e("v_lshrrev_b32 v%d, 6, v0" % vT)
    g.e("v_and_b32 v%d, 63, v0" % vLANE)
    g.e("v_readfirstlane_b32 %s, v%d" % (sWV, vT))
    if g.map == 0:
        g.e("s_lshr_b32 %s, s2, 7" % sBR)
        g.e("s_bfe_u32 %s, s2, 0x20003" % sT2); g.e("s_bfe_u32 %s, s2, 0x20005" % sT3)
        g.e("s_and_b32 %s, s2, 1" % sHP); g.e("s_lshl_b32 %s, %s, 2" % (sHP, sHP)); g.e("s_add_u32 %s, %s, %s" % (sHP, sHP, sT2))
        g.e("s_bfe_u32 %s, s2, 0x20001" % sR); g.e("s_lshl_b32 %s, %s, 2" % (sR, sR)); g.e("s_add_u32 %s, %s, %s" % (sR, sR, sT3))
    else:
        g.e("s_bfe_u32 %s, s2, 0x10002" % sBR)
        g.e("s_bfe_u32 %s, s2, 0x20003" % sT2); g.e("s_lshr_b32 %s, s2, 5" % sT3)
        g.e("s_and_b32 %s, s2, 1" % sHP); g.e("s_lshl_b32 %s, %s, 2" % (sHP, sHP)); g.e("s_add_u32 %s, %s, %s" % (sHP, sHP, sT2))
        g.e("s_bfe_u32 %s, s2, 0x10001" % sR); g.e("s_lshl_b32 %s, %s, 3" % (sR, sR)); g.e("s_add_u32 %s, %s, %s" % (sR, sR, sT3))
    g.e("s_and_b32 %s, %s, 3" % (sP, sWV))
    t0, t1 = vT, vT + 1
    nz = g.newlab("L_nz")
    g.e("s_cmp_lg_u32 %s, 0" % sWV); g.e("s_cbranch_scc1 %s" % nz)
    g.e("v_and_b32 v%d, 7, v%d" % (t0, vLANE)); g.e("v_and_b32 v%d, 2, v%d" % (t1, t0)); g.e("v_lshlrev_b32 v%d, 5, v%d" % (t1, t1))
    g.e("v_lshlrev_b32 v%d, 7, v%d" % (t0, t0)); g.e("v_sub_u32 v%d, v%d, v%d" % (t0, t0, t1))
    g.e("v_add_u32 v%d, %d, v%d" % (t0, FBASE + 112, t0))
    for k in range(4): g.e("v_mov_b32 v%d, 0" % (vACC + k))
    g.e("s_mov_b64 exec, 0xff")
    g.e("ds_write_b128 v%d, %s" % (t0, vr(vACC, 4)))
    g.e("s_mov_b64 exec, -1")
    g.lab(nz)
    producer_prep(g)
    flag_regs(g, True)
    xrd_addr(g, vXRD, sXB)
    g.e("s_mov_b32 s6, 0x%x" % X_BYTES); g.e("s_mov_b32 s7, 0x20000"); g.e("s_mov_b32 s10, 0x%x" % (W_BYTES + WBIAS)); g.e("s_mov_b32 s11, 0x20000")
    g.e("s_cmp_eq_u32 %s, 0" % sBR)
    if "st0" in g.exp: g.stamp(3)
    g.e("s_waitcnt lgkmcnt(0)")
    if "st0" in g.exp: g.stamp(4)
    g.e("s_cselect_b32 s4, s32, s38"); g.e("s_cselect_b32 s5, s33, s39"); g.e("s_cselect_b32 s8, s34, s40"); g.e("s_cselect_b32 s9, s35, s41")
    g.e("s_sub_u32 s8, s8, %d" % WBIAS); g.e("s_subb_u32 s9, s9, 0")
    g.e("s_cmp_lt_u32 %s, 4" % sWV); g.e("s_cbranch_scc1 L_noiss0")
    issue_item(g, Q(), 0)
    g.lab("L_noiss0")
    g.e("s_barrier")
    g.e("s_cmp_lt_u32 %s, 4" % sWV); g.e("s_cbranch_scc1 L_noiss")
    issue_item(g, Q(), 1)
    g.lab("L_noiss")
    g.e("s_cmp_eq_u32 %s, 0" % sBR)
    g.e("s_cbranch_scc1 L_A")
    branch(g, False)
    g.e("s_branch L_p3")
    g.lab("L_A")
    branch(g, True)
    g.lab("L_p3")
    p3(g)
    write_stamps(g)
    if "probe" in g.exp:
        g.e("s_cmp_lg_u32 s2, %d" % g.pwg); g.e("s_cbranch_scc1 L_end")
        g.e("s_cmp_lg_u32 %s, %d" % (sWV, g.pw)); g.e("s_cbranch_scc1 L_end")
        g.e("s_waitcnt vmcnt(0) lgkmcnt(0)")
        if g.pk is None: g.e("s_memrealtime s[72:73]"); g.e("s_waitcnt lgkmcnt(0)")
        g.e("s_sub_u32 s74, s72, s70"); g.e("s_lshl_b32 s74, s74, 2")
        g.e("s_memrealtime s[72:73]"); g.e("s_waitcnt lgkmcnt(0)")
        g.lab("L_probe")
        g.e("s_memrealtime s[76:77]"); g.e("s_waitcnt lgkmcnt(0)")
        g.e("s_sub_u32 s75, s76, s72"); g.e("s_cmp_lt_u32 s75, s74"); g.e("s_cbranch_scc1 L_probe")
    g.lab("L_end"); g.e("s_endpgm")
    for (sl, back, need, areg, off, vsrc) in g.slow:
        g.lab(sl); spin(g, need, areg, off, vsrc); g.e("s_branch %s" % back)
    fallback_A(g)
    g.lab("L_codeend")
    g.l += ['.section .rodata,"a"', ".p2align 6", ".amdhsa_kernel " + K, "  .amdhsa_next_free_vgpr 256", "  .amdhsa_next_free_sgpr 102",
            "  .amdhsa_accum_offset 256", "  .amdhsa_group_segment_fixed_size 0", "  .amdhsa_kernarg_size 72", "  .amdhsa_user_sgpr_count 2",
            "  .amdhsa_user_sgpr_kernarg_segment_ptr 1", "  .amdhsa_system_sgpr_workgroup_id_x 1", ".end_amdhsa_kernel"]
    return "\n".join(g.l) + "\n"

if __name__ == "__main__":
    ap = argparse.ArgumentParser()
    ap.add_argument("-o", default="k.s"); ap.add_argument("--stamps", action="store_true"); ap.add_argument("--dbgq", action="store_true")
    ap.add_argument("--exp", default=""); ap.add_argument("--dA", type=int, default=2); ap.add_argument("--dB", type=int, default=2)
    ap.add_argument("--wotouch", type=int, default=1); ap.add_argument("--touch", type=int, default=1); ap.add_argument("--tfirst", type=int, default=2)
    ap.add_argument("--map", type=int, default=0); ap.add_argument("--pk", type=int, default=None); ap.add_argument("--pw", type=int, default=0); ap.add_argument("--pwg", type=int, default=26); ap.add_argument("--kvs", type=int, default=33280); ap.add_argument("--ofs", type=int, default=33280); ap.add_argument("--wsoff", type=int, default=0); ap.add_argument("--late7", type=int, default=0); ap.add_argument("--ptouch", type=int, default=0); ap.add_argument("--poll2", type=int, default=0); ap.add_argument("--obars", default="[0,1,2,3]"); ap.add_argument("--ostage", type=int, default=1); ap.add_argument("--qpj", type=int, default=0); ap.add_argument("--qwait", type=int, default=0); ap.add_argument("--c1prio", type=int, default=0); ap.add_argument("--slp", type=int, default=0); ap.add_argument("--pslp", type=int, default=0); ap.add_argument("--mfirst", type=int, default=1); ap.add_argument("--qround", type=int, default=1); ap.add_argument("--cdist", default="[2,1,2,1]"); ap.add_argument("--pprio", type=int, default=0); ap.add_argument("--gate", type=int, default=0); ap.add_argument("--gsig", type=int, default=4); ap.add_argument("--gitem", type=int, default=3); ap.add_argument("--r2late", type=int, default=1); ap.add_argument("--r2fetch", type=int, default=2); ap.add_argument("--ctouch", type=int, default=0); ap.add_argument("--cprio", type=int, default=0); ap.add_argument("--inl", type=int, default=1); ap.add_argument("--ps1", type=int, default=0); ap.add_argument("--ps2", type=int, default=1); ap.add_argument("--ldf", default=""); ap.add_argument("--tf", default=""); ap.add_argument("--late8", type=int, default=0); ap.add_argument("--bpre", type=int, default=1); ap.add_argument("--qprio", type=int, default=0); ap.add_argument("--aprio", type=int, default=0); ap.add_argument("--stf", default=" sc1"); ap.add_argument("--qst", type=int, default=0); ap.add_argument("--r2step", type=int, default=4); ap.add_argument("--wostep", type=int, default=2); ap.add_argument("--outflag", default=" sc1")
    a = ap.parse_args()
    o = a.o; d = vars(a); d.pop("o")
    open(o, "w").write(build(**d))
```

```python
import sys, math, struct, argparse
NAME = "concat_heads__sliding_block__sliding_local_dilated__prompt"
def f32bits(x): return struct.unpack("<I", struct.pack("<f", x))[0]

X_BYTES = 2048*896; W_BYTES = 448*2688; WO_BYTES = 448*896; OUT_BYTES = 2048*1792
WS_OF = 10 << 20; WS_KVFLAG = 16 << 20; WS_OFLAG = (16 << 20) + 65536; WS_GFLAG = (16 << 20) + 131072; WS_QDBG = 20 << 20; WS_STAMP = 32 << 20
WS_RECORDS = 36 << 20
NEG = f32bits(-1.0e30); CSCALE = f32bits((28 ** -0.5) * math.log2(math.e)); LBIG = f32bits(2.0 ** 64)
OOB = 0x7FF00000; SPIN_MAX = 1 << 20; WBIAS = 4096

def vr(a, n): return "v[%d:%d]" % (a, a + n - 1)
sX, sW, sWO, sWS, sOUT, sDBG = "s[4:7]", "s[8:11]", "s[12:15]", "s[16:19]", "s[20:23]", "s[24:27]"
sBR, sHP, sR, sWV = "s28", "s29", "s30", "s31"
sRT, sHH, sW1K, sKC, sXS, sP, sWSO, sXB, sWB, sKVO = "s50", "s51", "s52", "s53", "s54", "s55", "s56", "s57", "s58", "s59"
sNON = "s[60:61]"; sT0, sT1, sT2, sT3 = "s62", "s63", "s64", "s65"; sTM = "s[64:65]"; sC = "s66"; sT4 = "s67"; sUP = "s[68:69]"
sCB, sRB, sWOS, sSPN = "s32", "s33", "s34", "s35"
sHM = "s[38:39]"
vLANE = 1; vKVW = 2; vQW = 3; vXRD = 4; vWRD = 8; vL16 = 9; vT = 10; vZ = 15
vQF = 16
vACC = 32
vC1, vC2 = 96, 112
vXB = 128; vWB = 152
vXF = 128
vAD = 176
vNON = 240; vFA = 244; vFB = 245; vFV = 246; vONE = 247; vWOO = 248; vGR = 249; vGW = 250; vG1 = 251; vGV = 252; vGX = 254
vXO = 16; vWO = 20; vWQ = 24
vO = 32; vS = 128; vKB = 48; vVB = 64; vM = 80; vM2 = 81; vNM = 82; vP = 84
SLOT = 32768
L_R1 = 32768; L_R2 = 0; L_OWN = 131072; L_QA = 122880; L_WQ = 65536
L_W1A = 65536; L_W1B = 98304; L_W2 = 0; L_O = 131072
FBASE = 98304 - 1024
def fw(r, hi): return r * 128 + (112 if ((r >> 1) & 1) == 0 else 48) + 8 + 4 * hi
F_KV = lambda b, h: fw(2 * b + h, 1)
F_OWN, F_QRDY, F_CQ, F_XD = fw(4, 1), fw(5, 1), fw(6, 1), fw(7, 1)
F_ST = fw(0, 0) - 4

DOC = """
Generated by dev/gen3.py (own generator).  One persistent workgroup per CU: (branch, head pair, 128-row block).
 phase 1  waves 4-7 stream x / wqkv through an LDS ring (LDS-DMA) and keep their x fragments; waves 0-3 compute K,V
          (MFMA 32x32x16, results already in attention operand layout); then waves 4-7 compute Q.
 hand-off K/V and attention outputs go through d_ws with sc1 stores + tagged flags (tag = per-launch value in d_debug).
 phase 2  attention per wave (head, 32 queries); row sum via a ones column of V; shift = max of the diagonal tile with
          a run-time guard that falls back to the exact two-pass softmax (true row max).
 phase 3  output projection, 64x128 tile per workgroup.
"""
def lane_mask(fn):
    m = 0
    for l in range(64):
        if fn(l): m |= 1 << l
    return m
def key_of(r, l): return (r & 3) + 8 * (r >> 2) + 4 * (l >> 5)

class Q:
    def __init__(self): self.q = []
    def add(self, tag, n=1): self.q += [tag] * n
    def wait(self, tag):
        idx = [i for i, t in enumerate(self.q) if t == tag]
        if not idx: return None
        n = len(self.q) - 1 - idx[-1]
        self.q = self.q[idx[-1] + 1:]
        return n
    def clear(self): self.q = []

class G:
    def __init__(self, **kw):
        self.l = []; self.nlab = 0; self.slow = []
        self.__dict__.update(kw)
    def e(self, s): self.l.append("    " + s)
    def lab(self, s): self.l.append(s + ":")
    def newlab(self, p="L"):
        self.nlab += 1; return "%s_%d" % (p, self.nlab)
    def stamp(self, i):
        if self.pk is not None:
            if i == self.pk: self.e("%s s[72:73]" % ("s_memtime" if self.pcyc else "s_memrealtime"))
            if i == self.pk0: self.e("%s s[70:71]" % ("s_memtime" if self.pcyc else "s_memrealtime"))
            return
        if getattr(self, "only", None) and i not in self.only: return
        if self.stamps: self.e("%s s[%d:%d]" % ("s_memtime" if "cyc" in self.exp else "s_memrealtime", 70 + 2*i, 71 + 2*i))
    def mask(self, m):
        self.e("s_mov_b32 s64, 0x%08x" % (m & 0xffffffff)); self.e("s_mov_b32 s65, 0x%08x" % (m >> 32))
    def mfma(self, d, a, b, c):
        self.e("v_mfma_f32_32x32x16_bf16 %s, %s, %s, %s" % (vr(d, 16), vr(a, 4), vr(b, 4), "0" if c is None else vr(c, 16)))
    def wl(self, n):
        if n is not None: self.e("s_waitcnt lgkmcnt(%d)" % min(n, 15))
    def wv(self, n):
        if n is not None: self.e("s_waitcnt vmcnt(%d)" % min(n, 63))
    def capture(self, fn):
        save = self.l; self.l = []; groups = []
        def cut():
            if self.l: groups.append(self.l)
            self.l = []
        fn(cut); cut(); self.l = save
        return groups

def spin(g, need, areg, off, vdst):
    lp = g.newlab("L_spin"); ok = g.newlab("L_spok")
    g.e("s_mov_b32 %s, 0" % sSPN)
    g.lab(lp)
    g.e("ds_read_b32 v%d, v%d offset:%d" % (vdst, areg, off))
    g.e("s_add_u32 %s, %s, 1" % (sSPN, sSPN))
    g.e("s_waitcnt lgkmcnt(0)")
    g.e("v_cmp_gt_u32 vcc, %d, v%d" % (need, vdst))
    g.e("s_cmp_gt_u32 %s, %d" % (sSPN, SPIN_MAX * 8)); g.e("s_cbranch_scc1 %s" % ok)
    g.e("s_cbranch_vccnz %s" % lp)
    g.lab(ok)
def check(g, need, areg, off, vsrc):
    if g.inl:
        lp = g.newlab("L_cl"); ok = g.newlab("L_cok")
        g.e("s_mov_b32 %s, %d" % (sSPN, -(SPIN_MAX * 8) & 0xffffffff))
        g.lab(lp)
        g.e("v_cmp_gt_u32 vcc, %d, v%d" % (need, vsrc)); g.e("s_cbranch_vccz %s" % ok)
        if g.slp: g.e("s_sleep %d" % g.slp)
        g.e("ds_read_b32 v%d, v%d offset:%d" % (vsrc, areg, off))
        g.e("s_add_u32 %s, %s, 1" % (sSPN, sSPN))
        g.e("s_waitcnt lgkmcnt(0)")
        g.e("s_cbranch_scc0 %s" % lp)
        g.lab(ok)
        return
    sl = g.newlab("L_slow"); back = g.newlab("L_back")
    g.e("v_cmp_gt_u32 vcc, %d, v%d" % (need, vsrc)); g.e("s_cbranch_vccnz %s" % sl); g.lab(back)
    g.slow.append((sl, back, need, areg, off, vsrc))
def bump(g, areg, off=0): g.e("ds_add_u32 v%d, v%d offset:%d" % (areg, vONE, off))

def flag_regs(g, prod):
    t0 = vT
    g.e("v_and_b32 v%d, 3, v%d" % (t0, vLANE)); g.e("v_and_b32 v%d, 2, v%d" % (vFA, t0)); g.e("v_lshlrev_b32 v%d, 5, v%d" % (vFA, vFA))
    g.e("v_lshlrev_b32 v%d, 7, v%d" % (t0, t0)); g.e("v_sub_u32 v%d, v%d, v%d" % (vFA, t0, vFA))
    g.e("v_add_u32 v%d, %d, v%d" % (vFA, FBASE + 120, vFA))
    g.e("v_mov_b32 v%d, %d" % (vGR, FBASE)); g.e("v_mov_b32 v%d, 0x7ffffff0" % vGW); g.e("v_mov_b32 v%d, 1" % vONE)
    g.e("v_cmp_eq_u32 vcc, 0, v%d" % vLANE)
    g.e("s_lshl_b32 %s, %s, 7" % (sT0, sP)); g.e("s_and_b32 %s, %s, 2" % (sT1, sP)); g.e("s_lshl_b32 %s, %s, 5" % (sT1, sT1))
    g.e("s_sub_u32 %s, %s, %s" % (sT0, sT0, sT1))
    g.e("s_cmp_lt_u32 %s, 4" % sWV); g.e("s_cselect_b32 %s, 512, 0" % sT1); g.e("s_add_u32 %s, %s, %s" % (sT0, sT0, sT1)); g.e("s_add_u32 %s, %s, 120" % (sT0, sT0))
    g.e("v_cndmask_b32 v%d, v%d, v%d, vcc" % (vGW, vGW, vGR))
    g.e("v_add_u32 v%d, %s, v%d" % (vFB, sT0, vGW))

def get_nonce(g):
    lp = g.newlab("L_nlp"); ok = g.newlab("L_nok")
    g.e("s_mov_b32 %s, 0" % sSPN)
    g.lab(lp)
    g.e("v_readfirstlane_b32 s60, v%d" % vNON); g.e("v_readfirstlane_b32 s61, v%d" % (vNON + 1))
    g.e("s_add_u32 %s, %s, 1" % (sSPN, sSPN))
    g.e("s_cmp_lg_u32 s60, 0"); g.e("s_cbranch_scc1 %s" % ok)
    g.e("s_cmp_gt_u32 %s, %d" % (sSPN, SPIN_MAX)); g.e("s_cbranch_scc1 %s" % ok)
    g.e("buffer_load_dwordx2 %s, v%d, %s, 0 offen sc1" % (vr(vNON, 2), vZ, sDBG))
    g.e("s_waitcnt vmcnt(0)")
    g.e("s_branch %s" % lp)
    g.lab(ok)
def store_flag(g, soff):
    g.e("s_mov_b64 exec, 1")
    g.e("buffer_store_dwordx2 %s, v%d, %s, %s offen sc1" % (vr(vNON, 2), vZ, sWS, soff))
    g.e("s_mov_b64 exec, -1")
def poll(g, vaddr, mask):
    lp = g.newlab("L_poll"); ok = g.newlab("L_pok")
    g.e("s_mov_b64 exec, %s" % mask)
    g.e("s_mov_b32 %s, 0" % sSPN)
    g.lab(lp)
    g.e("buffer_load_dwordx2 %s, v%d, %s, 0 offen sc1" % (vr(vNON + 2, 2), vaddr, sWS))
    g.e("s_add_u32 %s, %s, 1" % (sSPN, sSPN))
    g.e("s_waitcnt vmcnt(0)")
    g.e("v_cmp_ne_u64 vcc, %s, %s" % (sNON, vr(vNON + 2, 2)))
    g.e("s_cmp_gt_u32 %s, %d" % (sSPN, SPIN_MAX)); g.e("s_cbranch_scc1 %s" % ok)
    if g.pslp:
        g.e("s_cbranch_vccz %s" % ok); g.e("s_sleep %d" % g.pslp); g.e("s_branch %s" % lp)
    else: g.e("s_cbranch_vccnz %s" % lp)
    g.lab(ok)
    g.e("s_mov_b64 exec, -1")

def poll2(g, vaddr, mask):
    lp = g.newlab("L_poll"); ok = g.newlab("L_pok")
    A, B = vNON + 2, 60
    g.e("s_mov_b64 exec, %s" % mask)
    g.e("s_mov_b32 %s, 0" % sSPN)
    g.e("s_waitcnt vmcnt(0)")
    g.e("buffer_load_dwordx2 %s, v%d, %s, 0 offen sc1" % (vr(A, 2), vaddr, sWS))
    g.e("s_nop 15"); g.e("s_nop 15"); g.e("s_nop 15"); g.e("s_nop 15")
    g.lab(lp)
    g.e("buffer_load_dwordx2 %s, v%d, %s, 0 offen sc1" % (vr(B, 2), vaddr, sWS))
    g.e("s_waitcnt vmcnt(1)")
    g.e("v_cmp_ne_u64 vcc, %s, %s" % (sNON, vr(A, 2)))
    g.e("s_cbranch_vccz %s" % ok)
    g.e("buffer_load_dwordx2 %s, v%d, %s, 0 offen sc1" % (vr(A, 2), vaddr, sWS))
    g.e("s_add_u32 %s, %s, 1" % (sSPN, sSPN))
    g.e("s_waitcnt vmcnt(1)")
    g.e("v_cmp_ne_u64 vcc, %s, %s" % (sNON, vr(B, 2)))
    g.e("s_cmp_gt_u32 %s, %d" % (sSPN, SPIN_MAX)); g.e("s_cbranch_scc1 %s" % ok)
    g.e("s_cbranch_vccnz %s" % lp)
    g.lab(ok)
    g.e("s_mov_b64 exec, -1")

def setup_scalars(g, cut):
    g.e("s_cmp_eq_u32 %s, 0" % sBR)
    g.e("s_cselect_b32 s12, s36, s42"); g.e("s_cselect_b32 s13, s37, s43"); cut()
    g.e("s_mov_b32 s14, 0x%x" % WO_BYTES); g.e("s_mov_b32 s15, 0x20000"); cut()
    for (srd, a, n) in ((16, 48, WS_RECORDS), (20, 44, OUT_BYTES)):
        if srd == 16 and g.wsoff:
            g.e("s_add_u32 s16, s48, 0x%x" % (g.wsoff << 20)); g.e("s_addc_u32 s17, s49, 0"); cut()
        else:
            g.e("s_mov_b32 s%d, s%d" % (srd, a)); g.e("s_mov_b32 s%d, s%d" % (srd + 1, a + 1)); cut()
        g.e("s_mov_b32 s%d, 0x%x" % (srd + 2, n)); g.e("s_mov_b32 s%d, 0x20000" % (srd + 3)); cut()
    g.e("s_mov_b32 s68, 0"); g.e("s_mov_b32 s69, -1"); cut()
    g.e("s_mov_b32 %s, 0x%08x" % (sC, CSCALE)); g.e("s_lshl_b32 %s, %s, 10" % (sW1K, sWV)); cut()
    g.e("s_lshr_b32 %s, %s, 2" % (sHH, sWV)); g.e("s_sub_u32 %s, 3, %s" % (sT1, sP)); cut()
    g.e("s_cmp_lt_u32 %s, 4" % sWV); g.e("s_cselect_b32 %s, %s, %s" % (sRT, sT1, sP)); cut()
    g.e("s_lshl_b32 %s, %s, 3" % (sKVO, sBR)); g.e("s_add_u32 %s, %s, %s" % (sKVO, sKVO, sHP)); cut()
    g.e("s_lshl_b32 %s, %s, 4" % (sKVO, sKVO)); g.e("s_add_u32 %s, %s, %s" % (sKVO, sKVO, sR)); g.e("s_mul_i32 s37, %s, %d" % (sKVO, g.kvs)); g.e("s_lshl_b32 %s, %s, 15" % (sKVO, sKVO)); cut()
    if g.map == 0:
        g.e("s_and_b32 %s, s2, 1" % sCB); g.e("s_lshl_b32 %s, %s, 1" % (sCB, sCB)); cut()
        g.e("s_bfe_u32 %s, s2, 0x10003" % sT0); g.e("s_add_u32 %s, %s, %s" % (sCB, sCB, sT0)); cut()
        g.e("s_bfe_u32 %s, s2, 0x20001" % sRB); g.e("s_lshl_b32 %s, %s, 3" % (sRB, sRB)); cut()
        g.e("s_bfe_u32 %s, s2, 0x30004" % sT0); g.e("s_add_u32 %s, %s, %s" % (sRB, sRB, sT0)); cut()
    else:
        g.e("s_and_b32 %s, s2, 1" % sCB); g.e("s_lshl_b32 %s, %s, 1" % (sCB, sCB)); cut()
        g.e("s_bfe_u32 %s, s2, 0x10003" % sT0); g.e("s_add_u32 %s, %s, %s" % (sCB, sCB, sT0)); cut()
        g.e("s_bfe_u32 %s, s2, 0x10001" % sRB); g.e("s_lshl_b32 %s, %s, 4" % (sRB, sRB)); cut()
        g.e("s_lshr_b32 %s, s2, 4" % sT0); g.e("s_add_u32 %s, %s, %s" % (sRB, sRB, sT0)); cut()
    g.e("s_mul_i32 %s, %s, 3584" % (sWOS, sWV)); g.e("s_lshl_b32 %s, %s, 8" % (sT0, sCB)); g.e("s_add_u32 %s, %s, %s" % (sWOS, sWOS, sT0)); cut()

def setup_vec(g, isA, cut):
    t0, t1, t2 = vT, vT + 1, vT + 2
    g.e("s_lshl_b32 %s, %s, 14" % (sT0, sHH)); g.e("s_lshl_b32 %s, %s, 12" % (sT1, sRT)); cut()
    g.e("s_add_u32 %s, %s, %s" % (sT0, sT0, sT1)); g.e("s_add_u32 %s, %s, %d" % (sT0, sT0, L_OWN)); g.e("v_add_u32 v%d, %s, v%d" % (vAD, sT0, vL16)); cut()
    for u in range(1, 9 if isA else 2):
        cross = ((L_R1 - L_OWN) if u <= 4 else (L_R2 - L_R1)) + 12288
        g.e("s_mov_b32 %s, 0x%x" % (sT1, cross & 0xffffffff))
        g.e("s_cmp_eq_u32 %s, %d" % (sRT, (u - 1) % 4))
        g.e("s_cselect_b32 %s, %s, 0x%x" % (sT0, sT1, (-4096) & 0xffffffff))
        g.e("v_add_u32 v%d, %s, v%d" % (vAD + u, sT0, vAD + u - 1)); cut()
    g.e("v_lshrrev_b32 v%d, 4, v%d" % (t0, vLANE)); g.e("v_lshlrev_b32 v%d, 2, v%d" % (t1, t0)); cut()
    g.e("v_and_b32 v%d, 15, v%d" % (t2, vLANE)); g.e("v_xor_b32 v%d, v%d, v%d" % (t1, t1, t2)); cut()
    g.e("v_mul_u32_u24 v%d, 896, v%d" % (vWOO, t0)); g.e("v_lshl_add_u32 v%d, v%d, 4, v%d" % (vWOO, t1, vWOO)); cut()
    g.e("s_cmp_eq_u32 %s, 3" % sCB); g.e("s_cselect_b32 %s, 8, 64" % sT0)
    g.e("v_mov_b32 v%d, 0x%x" % (t2, OOB)); cut()
    g.e("v_cmp_le_u32 vcc, %s, v%d" % (sT0, t1))
    g.e("s_lshl_b32 %s, %s, 7" % (sT1, sHH)); g.e("v_add_u32 v%d, %s, v%d" % (vG1, sT1, vGR))
    g.e("v_cndmask_b32 v%d, v%d, v%d, vcc" % (vWOO, vWOO, t2)); cut()

def masks(g, isA):
    g.e("v_mov_b32 v%d, 0x%08x" % (vT, NEG))
    for r in range(16):
        if isA:
            g.mask(lane_mask(lambda l: key_of(r, l) <= (l & 31)))
            g.e("v_cndmask_b32 v%d, v%d, 0, %s" % (vC1 + r, vT, sTM))
            g.e("v_cndmask_b32 v%d, 0, v%d, %s" % (vC2 + r, vT, sTM))
        else:
            g.mask(lane_mask(lambda l: ((l & 31) - key_of(r, l)) in range(0, 16, 2)))
            g.e("v_cndmask_b32 v%d, v%d, 0, %s" % (vC1 + r, vT, sTM))
            g.mask(lane_mask(lambda l: (32 + (l & 31) - key_of(r, l)) in range(0, 16, 2)))
            g.e("v_cndmask_b32 v%d, v%d, 0, %s" % (vC2 + r, vT, sTM))
    if not isA:
        skip = g.newlab("L_c2")
        g.e("s_or_b32 %s, %s, %s" % (sT0, sR, sRT)); g.e("s_cmp_lg_u32 %s, 0" % sT0); g.e("s_cbranch_scc1 %s" % skip)
        for r in range(16): g.e("v_mov_b32 v%d, v%d" % (vC2 + r, vT))
        g.lab(skip)

def xrd_addr(g, dst, srow_shift_reg):
    t0, t1, t2 = vT, vT + 1, vT + 2
    g.e("v_and_b32 v%d, 31, v%d" % (t0, vLANE)); g.e("v_bfe_u32 v%d, v%d, 1, 3" % (t1, vLANE))
    g.e("v_lshrrev_b32 v%d, 5, v%d" % (t2, vLANE)); g.e("v_xor_b32 v%d, v%d, v%d" % (t1, t1, t2))
    g.e("v_lshlrev_b32 v%d, 7, v%d" % (t0, t0)); g.e("v_add_u32 v%d, %s, v%d" % (t0, srow_shift_reg, t0))
    g.e("v_lshl_add_u32 v%d, v%d, 4, v%d" % (dst, t1, t0))
    for k in range(1, 4): g.e("v_xor_b32 v%d, %d, v%d" % (dst + k, k << 5, dst))
def wrd_addr(g, dst, colbyte):
    t0, t1, t2 = vT, vT + 1, vT + 2
    g.e("v_bfe_u32 v%d, v%d, 2, 2" % (t0, vLANE)); g.e("v_lshrrev_b32 v%d, 5, v%d" % (t2, vLANE))
    g.e("v_lshl_add_u32 v%d, v%d, 3, v%d" % (t1, t2, t0)); g.e("v_lshlrev_b32 v%d, 7, v%d" % (t1, t1))
    g.e("v_lshrrev_b32 v%d, 1, v%d" % (t0, t0)); g.e("v_lshlrev_b32 v%d, 6, v%d" % (t0, t0))
    g.e("v_and_b32 v%d, 3, v%d" % (t2, vLANE)); g.e("v_lshlrev_b32 v%d, 3, v%d" % (t2, t2))
    g.e("v_and_b32 v%d, 16, v%d" % (dst, vLANE)); g.e("v_lshl_add_u32 v%d, v%d, 1, v%d" % (t2, dst, t2))
    g.e("v_add_u32 v%d, %s, v%d" % (t2, colbyte, t2))
    g.e("v_xor_b32 v%d, v%d, v%d" % (t2, t2, t0)); g.e("v_add_u32 v%d, v%d, v%d" % (dst, t1, t2))

def producer_prep(g):
    t0, t1, t2, t3 = vT, vT + 1, vT + 2, vT + 3
    g.e("v_lshrrev_b32 v%d, 3, v%d" % (t0, vLANE)); g.e("v_lshrrev_b32 v%d, 4, v%d" % (t1, vLANE))
    g.e("v_xor_b32 v%d, v%d, v%d" % (t1, t1, vLANE)); g.e("v_and_b32 v%d, 7, v%d" % (t1, t1))
    g.e("v_mul_u32_u24 v%d, 896, v%d" % (t2, t0))
    g.e("v_lshl_add_u32 v%d, v%d, 4, v%d" % (vXO, t1, t2))
    g.e("v_xor_b32 v%d, 64, v%d" % (t3, vXO))
    g.e("v_add_u32 v%d, %d, v%d" % (vXO + 1, 7168 - 1024, t3))
    g.e("v_add_u32 v%d, %d, v%d" % (vXO + 2, 2 * (7168 - 1024), vXO))
    g.e("v_add_u32 v%d, %d, v%d" % (vXO + 3, 3 * (7168 - 1024), t3))
    g.e("v_lshrrev_b32 v%d, 2, v%d" % (t1, vLANE)); g.e("v_and_b32 v%d, 4, v%d" % (t1, t1))
    g.e("v_and_b32 v%d, 7, v%d" % (t2, vLANE)); g.e("v_xor_b32 v%d, v%d, v%d" % (t1, t1, t2)); g.e("v_min_u32 v%d, 6, v%d" % (t1, t1))
    g.e("v_mul_u32_u24 v%d, 2688, v%d" % (t2, t0)); g.e("v_lshl_add_u32 v%d, v%d, 4, v%d" % (t2, t1, t2))
    for q in range(4):
        t, h = divmod(q, 2)
        g.e("v_add_u32 v%d, %d, v%d" % (vWO + q, WBIAS + h * 8 * 2688 + (t + 1) * 896 - q * 1024, t2))
    for h in range(2): g.e("v_add_u32 v%d, %d, v%d" % (vWQ + h, WBIAS + h * 8 * 2688 - h * 1024, t2))
    g.e("s_mul_i32 %s, %s, %d" % (sXS, sR, 128 * 896)); g.e("s_mul_i32 %s, %s, %d" % (sT1, sP, 32 * 896)); g.e("s_add_u32 %s, %s, %s" % (sXS, sXS, sT1))
    g.e("s_mul_i32 %s, %s, 112" % (sWSO, sHP)); g.e("s_mul_i32 %s, %s, %d" % (sT1, sP, 16 * 2688)); g.e("s_add_u32 %s, %s, %s" % (sWSO, sWSO, sT1))
    g.e("s_lshl_b32 %s, %s, 12" % (sXB, sP)); g.e("s_lshl_b32 %s, %s, 11" % (sWB, sP))

def issue_item(g, vm, i):
    if i < 7:
        slot = (i % 5) * SLOT
        g.e("s_add_u32 m0, %s, %d" % (sXB, slot))
        if i: g.e("s_add_u32 %s, %s, 128" % (sXS, sXS))
        else: g.e("s_nop 0")
        for m in range(4): g.e("buffer_load_dwordx4 v%d, %s, %s offen%s%s lds" % (vXO + m, sX, sXS, " offset:%d" % (m * 1024) if m else "", g.ldf))
        g.e("s_add_u32 m0, %s, %d" % (sXB, slot + 16384))
        if i: g.e("s_add_u32 %s, %s, %d" % (sWSO, sWSO, 64 * 2688))
        else: g.e("s_mov_b32 %s, %s" % (sKC, sWSO))
        for q in range(4):
            if i == 2 and q == 3: g.e("s_mov_b64 exec, %s" % sHM)
            g.e("buffer_load_dwordx4 v%d, %s, %s offen%s%s lds" % (vWO + q, sW, sWSO, " offset:%d" % (q * 1024) if q else "", g.ldf))
        if i == 2: g.e("s_mov_b64 exec, -1")
        vm.add(i, 8)
    else:
        cs = range(4) if i == 7 else range(4, 7)
        for c in cs:
            g.e("s_add_u32 m0, %s, %d" % (sWB, L_WQ + c * 8192))
            if c: g.e("s_add_u32 %s, %s, %d" % (sKC, sKC, 64 * 2688))
            else: g.e("s_nop 0")
            g.e("buffer_load_dwordx4 v%d, %s, %s offen lds" % (vWQ, sW, sKC))
            if c == 3: g.e("s_mov_b64 exec, %s" % sHM)
            g.e("buffer_load_dwordx4 v%d, %s, %s offen offset:1024 lds" % (vWQ + 1, sW, sKC))
            if c == 3: g.e("s_mov_b64 exec, -1")
        vm.add(i, 2 * len(cs))

def early_dbg(g):
    g.e("s_mov_b32 s24, s46"); g.e("s_mov_b32 s25, s47"); g.e("s_mov_b32 s26, 256"); g.e("s_mov_b32 s27, 0x20000")
    g.e("v_mov_b32 v%d, 0" % vZ); g.e("v_lshlrev_b32 v%d, 4, v%d" % (vL16, vLANE))

def producer(g, isA):
    dist = g.dA if isA else g.dB
    assert dist >= 2
    vm = Q(); lg = Q()
    vm.add(0, 8)
    if g.pprio: g.e("s_setprio %d" % g.pprio)
    m = lane_mask(lambda l: ((l & 7) ^ (4 * ((l >> 4) & 1))) != 7)
    g.e("s_mov_b32 s38, 0x%08x" % (m & 0xffffffff)); g.e("s_mov_b32 s39, 0x%08x" % (m >> 32))
    g.e("s_cmp_eq_u32 %s, 7" % sWV); g.e("s_cselect_b64 %s, %s, -1" % (sHM, sHM))
    XW = lambda wn, k: (vXRD + k) if wn == 0 else (64 + 4 * (wn - 1) + k)
    vm.add(1, 8)
    g.stamp(1)
    nxt = 2
    for i in range(9):
        g.wv(vm.wait(i))
        if i >= 1: g.wl(lg.wait(("x", i - 1)))
        def pst(k):
            if "pdet" in g.exp and i in (3, 4, 5): g.only = None; g.stamp(1 + (i - 3) * 4 + k); g.only = (0, 14)
        pst(0)
        bump(g, vFB); lg.add("f")
        if i == 0: g.stamp(2)
        if "pit" in g.exp and i >= 1: g.only = None; g.stamp(2 + i); g.only = (0, 1, 2, 14)
        if i < 7:
            if i + dist >= 5 and i + dist <= 8:
                g.e("ds_read_b32 v%d, v%d offset:512" % (vFV, vFA)); lg.add("dn")
            if "nopx" not in g.exp:
                for ks in range(4): g.e("ds_read_b128 %s, v%d offset:%d" % (vr(vXF + 16 * i + 4 * ks, 4), XW((i % 5) // 2, ks), (i % 5 % 2) * SLOT))
                lg.add(("x", i), 4)
        if g.gate and isA and i == g.gsig:
            sk = g.newlab("L_gs")
            g.e("s_cmp_lg_u32 %s, 4" % sWV); g.e("s_cbranch_scc1 %s" % sk)
            get_nonce(g)
            g.e("s_lshl_b32 %s, s2, 7" % sT0); g.e("s_add_u32 %s, %s, 0x%x" % (sT0, sT0, WS_GFLAG))
            store_flag(g, sT0)
            g.lab(sk)
        while nxt <= 8 and nxt <= i + dist:
            if g.gate and not isA and nxt == g.gitem:
                g.e("s_waitcnt vmcnt(0)"); vm.clear()
                get_nonce(g)
                g.e("s_sub_u32 %s, s2, 128" % sT0); g.e("s_lshl_b32 %s, %s, 7" % (sT0, sT0)); g.e("s_add_u32 %s, %s, 0x%x" % (sT0, sT0, WS_GFLAG))
                g.e("v_mov_b32 v%d, %s" % (vT, sT0))
                poll(g, vT, "1")
                if g.touch == 3: touch_own(g, g.gitem + 1); vm.add("t", 2)
            pst(1)
            if nxt >= 5:
                n = lg.wait("dn")
                if n is None: spin(g, nxt - 4, vFA, 512, vFV); lg.clear()
                else:
                    g.wl(n); check(g, nxt - 4, vFA, 512, vFV)
            pst(2)
            if nxt == 8 and g.late8: break
            if nxt == 7 and g.late7: break
            issue_item(g, vm, nxt); nxt += 1
            pst(3)
        if i == 0 and g.gate:
            early_dbg(g)
            g.e("s_mov_b32 s16, s48"); g.e("s_mov_b32 s17, s49"); g.e("s_mov_b32 s18, 0x%x" % WS_RECORDS); g.e("s_mov_b32 s19, 0x20000")
            g.e("buffer_load_dwordx2 %s, v%d, %s, 0 offen sc1" % (vr(vNON, 2), vZ, sDBG)); vm.add("non0")
        if i == g.ps1:
            for wn in (1, 2):
                for k in range(4): g.e("v_add_u32 v%d, 0x%x, v%d" % (XW(wn, k), wn * 65536, vXRD + k))
            early_dbg(g)
            for grp in g.capture(lambda cut: setup_scalars(g, cut)): g.l += grp
        if i == g.ps2:
            wrd_addr(g, vWRD, 0); g.e("v_add_u32 v%d, %d, v%d" % (vWRD, L_WQ, vWRD)); wrd_addr(g, vQW, 56); g.e("v_add_u32 v%d, %d, v%d" % (vQW, L_WQ, vQW))
            masks(g, isA)
        if i == 6 and g.late7:
            spin(g, 4, vGR, F_ST, vFV); lg.clear()
            bump(g, vGW, F_XD); lg.add("f")
            issue_item(g, vm, 7); issue_item(g, vm, 8); nxt = 9
        if i == 7:
            if not g.late7: bump(g, vGW, F_XD); lg.add("f")
            g.e("buffer_load_dwordx2 %s, v%d, %s, 0 offen sc1" % (vr(vNON, 2), vZ, sDBG)); vm.add("non")
            g.stamp(3)
            q_phase_begin = True
            break
    late = g.capture(lambda cut: setup_vec(g, isA, cut))
    aQ = vACC; WB = 64
    def rd(j, hds=(0, 1)):
        c, ks = divmod(j, 4)
        b = WB + (j % 3) * 8
        for hd in hds:
            for h in range(2):
                g.e("ds_read_b64_tr_b16 %s, v%d offset:%d" % (vr(b + 4*hd + 2*h, 2), vQW if hd else vWRD, c * 8192 + ks * 2048 + h * 512))
            lg.add((j, hd), 2)
    spin(g, 8, vFA, 0, vFV); lg.clear()
    if g.late8 == 1:
        spin(g, 4, vGR, F_ST, vFV); issue_item(g, vm, 8)
    if g.qwait: spin(g, 7, vFA, 512, vFV)
    g.stamp(5)
    rd(0); rd(1)
    for j in range(28):
        b = WB + (j % 3) * 8
        if j == g.qpj and g.qprio: g.e("s_setprio %d" % g.qprio)
        if j == g.late8 and g.late8 > 1: issue_item(g, vm, 8)
        if j == 12 - 0 * g.late8 + (0 if g.late8 else -2):
            g.wv(vm.wait(8)); bump(g, vFB); lg.add("f")
        for hd in range(2):
            g.wl(lg.wait((j, hd)))
            g.mfma(aQ + 16 * hd, b + 4 * hd, vXF + 4 * j, None if j == 0 else aQ + 16 * hd)
            if hd == 0:
                if j == 13: g.e("ds_read_b32 v%d, v%d" % (vFV, vFA)); lg.add("flag")
                if j == 14:
                    g.wl(lg.wait("flag")); check(g, 9, vFA, 0, vFV); g.stamp(6)
            if j + 2 < 28: rd(j + 2, (hd,))
            if late and j >= 16: g.l += late.pop(0)
    for grp in late: g.l += grp
    g.e("v_mov_b32 v%d, %s" % (vT + 1, sC))
    g.e("v_cndmask_b32 v%d, v%d, 0, %s" % (vT + 2, vT + 1, sUP))
    g.e("s_lshl_b32 %s, %s, 11" % (sT0, sP)); g.e("s_add_u32 %s, %s, %d" % (sT0, sT0, L_QA)); g.e("v_add_u32 v%d, %s, v%d" % (vT, sT0, vL16))
    g.e("s_nop 5")
    for hd in range(2):
        a = aQ + 16 * hd; p = a if hd == 0 else vQF
        if g.qround:
            for i in range(8):
                g.e("v_cvt_pk_bf16_f32 v%d, v%d, v%d" % (a + 2*i + 1, a + 2*i, a + 2*i + 1))
                g.e("v_lshlrev_b32 v%d, 16, v%d" % (a + 2*i, a + 2*i + 1))
                g.e("v_and_b32 v%d, 0xffff0000, v%d" % (a + 2*i + 1, a + 2*i + 1))
        for r in range(16): g.e("v_mul_f32 v%d, v%d, v%d" % (a + r, vT + (2 if r >= 12 else 1), a + r))
        for i in range(8): g.e("v_cvt_pk_bf16_f32 v%d, v%d, v%d" % (p + i, a + 2*i, a + 2*i + 1))
        if hd == 0:
            for f in range(2): g.e("ds_write_b128 v%d, %s offset:%d" % (vT, vr(p + 4*f, 4), f * 1024))
            g.e("s_waitcnt lgkmcnt(0)")
            bump(g, vGW, F_QRDY)
    if g.qprio: g.e("s_setprio %d" % g.aprio)
    g.e("s_waitcnt vmcnt(0)")
    get_nonce(g)
    if g.wotouch:
        nt = g.newlab("L_nwt")
        g.e("s_cmp_gt_u32 %s, 5" % sWV); g.e("s_cbranch_scc1 %s" % nt)
        nsh = 8 if g.map == 0 else 16
        g.e("s_and_b32 %s, %s, %d" % (sT0, sRB, nsh - 1)); g.e("s_mul_i32 %s, %s, %d" % (sT0, sT0, (448 // nsh) * 896))
        g.e("s_lshl_b32 %s, %s, 8" % (sT1, sCB)); g.e("s_add_u32 %s, %s, %s" % (sT0, sT0, sT1))
        g.e("s_and_b32 %s, %s, 1" % (sT1, sWV)); g.e("s_lshl_b32 %s, %s, 7" % (sT1, sT1)); g.e("s_add_u32 %s, %s, %s" % (sT0, sT0, sT1))
        g.e("v_mul_u32_u24 v%d, 896, v%d" % (vT, vLANE))
        mm = (1 << (448 // nsh)) - 1
        g.mask(mm); g.e("s_mov_b64 exec, %s" % sTM)
        g.e("buffer_load_dword v%d, v%d, %s, %s offen" % (vGX + 1, vT, sWO, sT0))
        g.e("s_mov_b64 exec, -1")
        g.lab(nt)
    g.stamp(4)
    spin(g, 4, vGR, F_OWN, vFV)

def consumer(g, isA):
    t0, t1, t2 = vT, vT + 1, vT + 2
    early_dbg(g)
    skip = g.newlab("L_non")
    g.e("s_or_b32 %s, s2, %s" % (sT0, sWV)); g.e("s_cmp_lg_u32 %s, 0" % sT0); g.e("s_cbranch_scc1 %s" % skip)
    g.e("s_memrealtime %s" % sNON); g.e("s_waitcnt lgkmcnt(0)"); g.e("s_or_b32 s60, s60, 1")
    g.e("v_mov_b32 v%d, s60" % vNON); g.e("v_mov_b32 v%d, s61" % (vNON + 1))
    g.e("s_mov_b64 exec, 1")
    g.e("buffer_store_dwordx2 %s, v%d, %s, 0 offen sc1" % (vr(vNON, 2), vZ, sDBG))
    g.e("s_mov_b64 exec, -1")
    g.lab(skip)
    if g.ctouch:
        ct = g.newlab("L_ct")
        g.e("s_cmp_lg_u32 %s, 1" % sWV); g.e("s_cbranch_scc1 %s" % ct)
        pc = g.newlab("L_pc")
        g.e("s_getpc_b64 s[16:17]")
        g.lab(pc)
        g.e("s_sub_u32 s16, s16, %s-%s_kernel" % (pc, NAME)); g.e("s_subb_u32 s17, s17, 0")
        g.e("s_mov_b32 s18, L_codeend-%s_kernel" % NAME); g.e("s_mov_b32 s19, 0x20000")
        g.e("s_lshr_b32 %s, s2, 3" % sT0); g.e("s_mul_i32 %s, %s, %d" % (sT0, sT0, 16 * 128))
        g.e("v_lshlrev_b32 v%d, 7, v%d" % (vT, vLANE))
        g.e("s_mov_b64 exec, 0xffff")
        g.e("buffer_load_dword v192, v%d, s[16:19], %s offen" % (vT, sT0))
        g.e("s_mov_b64 exec, -1")
        g.lab(ct)
    if g.touch and not isA: touch(g)
    g.e("s_and_b32 %s, %s, 1" % (sT2, sWV)); g.e("s_lshl_b32 %s, %s, 13" % (sT2, sT2))
    xrd_addr(g, vXRD, sT2)
    g.e("s_lshr_b32 %s, %s, 1" % (sT3, sWV)); g.e("s_mul_i32 %s, %s, 56" % (sT1, sT3))
    wrd_addr(g, vWRD, sT1)
    sa = lambda wn, k: vQF + 5 * wn + k
    for wn in range(3):
        for k in range(4): g.e("v_add_u32 v%d, 0x%x, v%d" % (sa(wn, k), wn * 65536, vXRD + k))
        g.e("v_add_u32 v%d, 0x%x, v%d" % (sa(wn, 4), wn * 65536, vWRD))
    g.e("s_lshl_b32 %s, %s, 13" % (sT4, sWV))
    g.e("s_add_u32 %s, %s, %d" % (sT0, sT4, L_OWN)); g.e("v_add_u32 v%d, %s, v%d" % (vKVW, sT0, vL16))
    for grp in g.capture(lambda cut: setup_scalars(g, cut)): g.l += grp
    if g.ptouch:
        pt = g.newlab("L_pt")
        g.e("s_cmp_lg_u32 %s, 1" % sWV); g.e("s_cbranch_scc1 %s" % pt)
        g.e("v_lshlrev_b32 v%d, 21, v%d" % (vT, vLANE))
        g.e("s_lshl_b32 %s, s2, 7" % sT0); g.e("s_add_u32 %s, %s, 0x100000" % (sT0, sT0))
        g.e("s_mov_b64 exec, 0x1ff")
        g.e("buffer_load_dword v193, v%d, %s, %s offen" % (vT, sWS, sT0))
        g.e("s_mov_b64 exec, 3")
        g.e("buffer_load_dword v194, v%d, %s, %s offen" % (vT, sOUT, sT0))
        g.e("s_mov_b64 exec, 1")
        g.e("s_lshl_b32 %s, s2, 7" % sT0)
        g.e("buffer_load_dword v195, v%d, %s, %s offen" % (vT, sWO, sT0))
        g.e("s_mov_b64 exec, -1")
        g.lab(pt)
    g.stamp(1)
    lg = Q()
    def rd_ops(j):
        i, ks = divmod(j, 4)
        xb, wb = vXB + (j % 3) * 8, vWB + (j % 3) * 8
        sl = i % 5; ax = sa(sl // 2, ks); aw = sa(sl // 2, 4); base = (sl % 2) * SLOT
        tr = lambda t, h: "ds_read_b64_tr_b16 %s, v%d offset:%d" % (vr(wb + 4*t + 2*h, 2), aw, base + 16384 + ks * 4096 + t * 2048 + h * 512)
        return [((j, "x0"), "ds_read_b128 %s, v%d offset:%d" % (vr(xb, 4), ax, base)), ((j, "k"), tr(0, 0)), ((j, "k"), tr(0, 1)),
                ((j, "x1"), "ds_read_b128 %s, v%d offset:%d" % (vr(xb + 4, 4), ax, base + 4096)), ((j, "v"), tr(1, 0)), ((j, "v"), tr(1, 1))]
    def emit(op):
        if "nocr" in g.exp: return
        g.e(op[1]); lg.add(op[0])
    spin(g, 1, vFA, 0, vFV)
    if g.c1prio: g.e("s_setprio %d" % g.c1prio)
    g.stamp(2)
    for j in range(2):
        for op in rd_ops(j): emit(op)
    aK, aV = vACC, vACC + 32
    dist = eval(g.cdist)
    for j in range(28):
        xb, wb = vXB + (j % 3) * 8, vWB + (j % 3) * 8
        nx = rd_ops(j + 2) if j + 2 < 28 else []
        mms = [((j, "k"), aK, wb, xb), ((j, "x1"), aK + 16, wb, xb + 4), ((j, "v"), aV, xb, wb + 4), (None, aV + 16, xb + 4, wb + 4)]
        for n, (dep, d, a, b) in enumerate(mms):
            if dep is not None: g.wl(lg.wait(dep))
            g.mfma(d, a, b, None if j == 0 else d)
            if n == 0 and nx and (j + 2) % 4 == 0:
                g.wl(lg.wait(("flag", (j + 2) // 4))); check(g, (j + 2) // 4 + 1, vFA, 0, vFV)
                if "pit" in g.exp: g.only = None; g.stamp(2 + (j + 2) // 4); g.only = (0, 1, 2, 14)
            for _ in range(dist[n]):
                if nx: emit(nx.pop(0))
            if n == 1 and (j + 3) % 4 == 0 and j + 3 < 28:
                g.e("ds_read_b32 v%d, v%d" % (vFV, vFA)); lg.add(("flag", (j + 3) // 4))
            if n == 3 and j % 4 == 3:
                bump(g, vFB); lg.add("done")
            if n == 1 and j == 26:
                g.e("ds_read_b32 v%d, v%d offset:512" % (vFV, vFA)); lg.add("alldone")
            if j == 18 and n == 3: g.e("buffer_load_dwordx2 %s, v%d, %s, 0 offen sc1" % (vr(vNON, 2), vZ, sDBG))
    g.stamp(3)
    g.e("v_mov_b32 v%d, 0x3f803f80" % vT)
    g.mask(lane_mask(lambda l: (l & 31) == 28))
    g.e("s_add_u32 %s, %s, s37" % (sT1, sT4)); g.e("s_add_u32 %s, %s, 4096" % (sT0, sT1))
    g.wl(lg.wait("alldone")); check(g, 5, vFA, 512, vFV)
    g.e("s_nop 1")
    if not isA:
        g.e("s_bitcmp1_b32 %s, 0" % sWV); g.e("s_cselect_b32 %s, %s, 0x%x" % (sT0, sT0, OOB))
    def pub(t, f, p):
        if isA or t == 1: g.e("buffer_store_dwordx4 %s, v%d, %s, %s offen offset:%d%s" % (vr(p, 4), vL16, sWS, sT0 if t else sT1, f * 1024, g.stf))
    def packK(t):
        p = aK + 16 * t
        for i in range(8): g.e("v_cvt_pk_bf16_f32 v%d, v%d, v%d" % (p + i, p + 2*i, p + 2*i + 1))
        g.e("v_cndmask_b32 v%d, v%d, v%d, %s" % (p + 6, p + 6, vT, sUP))
        for f in range(2): pub(t, f, p + 4*f)
    def packV(t):
        p = aV + 16 * t
        for f in range(2):
            for i in range(4*f, 4*f + 4): g.e("v_cvt_pk_bf16_f32 v%d, v%d, v%d" % (p + i, p + 2*i, p + 2*i + 1))
            for i in range(4*f, 4*f + 4): g.e("v_cndmask_b32 v%d, v%d, v%d, %s" % (p + i, p + i, vT, sTM))
            pub(t, 2 + f, p + 4*f)
    if isA: packK(0); packK(1); packV(0); packV(1)
    else: packK(1); packV(1); packK(0); packV(0)
    if g.c1prio: g.e("s_setprio 0")
    bump(g, vGW, F_ST)
    for t in range(2):
        for f in range(4):
            p = (aK + 16*t + 4*f) if f < 2 else (aV + 16*t + 4*(f - 2))
            g.e("ds_write_b128 v%d, %s offset:%d" % (vKVW, vr(p, 4), t * 4096 + f * 1024))
    for grp in g.capture(lambda cut: setup_vec(g, isA, cut)): g.l += grp
    g.e("s_waitcnt lgkmcnt(0)")
    bump(g, vGW, F_OWN)
    g.e("s_lshr_b32 %s, %s, 8" % (sT1, sKVO)); g.e("s_lshl_b32 %s, %s, 3" % (sT2, sWV))
    g.e("s_add_u32 %s, %s, %s" % (sT1, sT1, sT2)); g.e("s_add_u32 %s, %s, 0x%x" % (sT1, sT1, WS_KVFLAG))
    g.e("s_waitcnt vmcnt(0)")
    get_nonce(g)
    store_flag(g, sT1)
    g.stamp(4)
    done = g.newlab("L_ldd")
    if g.mfirst: masks(g, isA)
    if not isA or g.r2late:
        g.e("s_cmp_lt_u32 %s, 2" % sWV); g.e("s_cbranch_scc1 %s" % done)
    fetch_remote(g, isA)
    if not isA:
        g.e("s_waitcnt vmcnt(0)")
        bump(g, vFB)
    g.lab(done)
    g.stamp(6)
    if not g.mfirst: masks(g, isA)
    g.e("s_lshl_b32 %s, %s, 11" % (sT0, sRT)); g.e("s_add_u32 %s, %s, %d" % (sT0, sT0, L_QA)); g.e("v_add_u32 v%d, %s, v%d" % (vT, sT0, vL16))
    spin(g, 4, vGR, F_OWN, vFV); spin(g, 4, vGR, F_QRDY, vFV)
    for f in range(2): g.e("ds_read_b128 %s, v%d offset:%d" % (vr(vQF + 4*f, 4), vT, f * 1024))

def fetch_remote(g, isA):
    nopoll = g.newlab("L_nopoll")
    g.e("s_lshr_b32 %s, %s, 1" % (sT3, sRT))
    spin(g, 7, vFA, 512, vFV); spin(g, 4, vGR, F_XD, vFV)
    g.e("s_and_b32 %s, %s, 1" % (sT2, sRT)); g.e("s_add_u32 %s, %s, 1" % (sT4, sT3))
    g.e("s_lshl_b32 %s, %s, 15" % (sT0, sT4)); g.e("s_sub_u32 %s, %s, %s" % (sXS, sKVO, sT0))
    g.e("s_mul_i32 %s, %s, %d" % (sT0, sT4, g.kvs)); g.e("s_sub_u32 %s, s37, %s" % (sT0, sT0))
    g.e("s_cmp_lt_u32 %s, %s" % (sR, sT4)); g.e("s_cselect_b32 %s, 0x%x, %s" % (sWSO, OOB, sT0))
    g.e("s_cbranch_scc1 %s" % nopoll)
    g.e("s_lshr_b32 %s, %s, 8" % (sT0, sXS)); g.e("s_lshl_b32 %s, %s, 4" % (sT1, sT2)); g.e("s_add_u32 %s, %s, %s" % (sT0, sT0, sT1))
    g.e("s_add_u32 %s, %s, 0x%x" % (sT0, sT0, WS_KVFLAG))
    g.e("v_lshlrev_b32 v%d, 3, v%d" % (vT, vLANE)); g.e("v_add_u32 v%d, %s, v%d" % (vT, sT0, vT))
    poll(g, vT, "3" if isA else "2")
    g.lab(nopoll)
    g.stamp(5)
    g.e("s_lshl_b32 %s, %s, 14" % (sT2, sT2)); g.e("s_add_u32 %s, %s, %s" % (sWSO, sWSO, sT2))
    g.e("s_lshl_b32 %s, %s, 15" % (sT0, sT3)); g.e("s_sub_u32 %s, %d, %s" % (sT0, L_R1, sT0)); g.e("s_add_u32 %s, %s, %s" % (sT2, sT2, sT0))
    for t in ((3, 2, 1, 0) if isA else (3,)):
        g.e("s_add_u32 m0, %s, %d" % (sT2, t * 4096))
        g.e("s_add_u32 %s, %s, %d" % (sT0, sWSO, t * 4096))
        for f in range(4): g.e("buffer_load_dwordx4 v%d, %s, %s offen offset:%d sc1 lds" % (vL16, sWS, sT0, f * 1024))
    g.e("s_lshl_b32 %s, %s, 7" % (sT0, sRT)); g.e("s_lshl_b32 %s, %s, 6" % (sT1, sT3)); g.e("s_sub_u32 %s, %s, %s" % (sT0, sT0, sT1))
    g.e("s_add_u32 %s, %s, 124" % (sT0, sT0)); g.e("v_add_u32 v%d, %s, v%d" % (vFB, sT0, vGW))

def touch(g):
    if g.touch in (1, 3): return touch1(g)
    t0, t1, t2, t3 = vT, vT + 1, vT + 2, vT + 3
    isw = g.newlab("L_tw"); end = g.newlab("L_te")
    g.e("s_bfe_u32 %s, s2, 0x40003" % sT0); g.e("s_lshl_b32 %s, %s, 7" % (sT0, sT0))
    g.e("v_and_b32 v%d, 127, v0" % t0); g.e("v_add_u32 v%d, %s, v%d" % (t0, sT0, t0))
    g.e("v_mov_b32 v%d, 0x%x" % (t3, OOB))
    g.e("s_mov_b32 s19, 0x20000"); g.e("s_mov_b32 s23, 0x20000")
    g.e("s_cmp_ge_u32 %s, 2" % sWV); g.e("s_cbranch_scc1 %s" % isw)
    g.e("s_mov_b32 s16, s32"); g.e("s_mov_b32 s17, s33"); g.e("s_mov_b32 s18, 0x%x" % X_BYTES)
    g.e("s_mov_b32 s20, s4"); g.e("s_mov_b32 s21, s5"); g.e("s_mov_b32 s22, 0x%x" % X_BYTES)
    g.e("v_and_b32 v%d, 511, v%d" % (t1, t0)); g.e("v_mul_u32_u24 v%d, 896, v%d" % (t1, t1))
    g.e("v_lshrrev_b32 v%d, 9, v%d" % (t2, t0)); g.e("v_cmp_gt_u32 vcc, 3, v%d" % t2)
    g.e("v_lshl_add_u32 v%d, v%d, 7, v%d" % (t1, t2, t1))
    g.e("s_bfe_u32 %s, s2, 0x20001" % sT0); g.e("s_mul_i32 %s, %s, %d" % (sT0, sT0, 512 * 896))
    g.e("v_cndmask_b32 v%d, v%d, v%d, vcc" % (t1, t3, t1))
    n = 0
    for srd in ("s[16:19]", "s[20:23]"):
        for c0 in (1, 4):
            g.e("buffer_load_dword v%d, v%d, %s, %s offen offset:%d" % (186 + n, t1, srd, sT0, c0 * 128)); n += 1
    g.e("s_branch %s" % end)
    g.lab(isw)
    g.e("s_mov_b32 s16, s34"); g.e("s_mov_b32 s17, s35"); g.e("s_mov_b32 s18, 0x%x" % W_BYTES)
    g.e("s_mov_b32 s20, s40"); g.e("s_mov_b32 s21, s41"); g.e("s_mov_b32 s22, 0x%x" % W_BYTES)
    g.e("v_lshrrev_b32 v%d, 3, v%d" % (t2, t0)); g.e("v_cmp_gt_u32 vcc, 192, v%d" % t2)
    g.e("v_mul_u32_u24 v%d, 2688, v%d" % (t1, t2))
    g.e("v_bfe_u32 v%d, v%d, 2, 1" % (t2, t0)); g.e("v_mul_u32_u24 v%d, 896, v%d" % (t2, t2)); g.e("v_add_u32 v%d, v%d, v%d" % (t1, t1, t2))
    g.e("v_and_b32 v%d, 3, v%d" % (t2, t0)); g.e("v_lshlrev_b32 v%d, 7, v%d" % (t2, t2)); g.e("v_add_u32 v%d, v%d, v%d" % (t1, t1, t2))
    g.e("v_cndmask_b32 v%d, v%d, v%d, vcc" % (t1, t3, t1))
    g.e("v_lshrrev_b32 v%d, 2, v%d" % (t0, t0)); g.e("v_mul_u32_u24 v%d, 2688, v%d" % (t0, t0)); g.e("v_add_u32 v%d, v%d, v%d" % (t0, t0, t2))
    g.e("s_and_b32 %s, s2, 1" % sT0); g.e("s_mul_i32 %s, %s, 384" % (sT0, sT0))
    g.e("s_add_u32 %s, %s, %d" % (sT1, sT0, 64 * 2688 + 896)); g.e("s_add_u32 %s, %s, %d" % (sT2, sT0, 4 * 64 * 2688 + 896))
    n = 0
    for srd in ("s[16:19]", "s[20:23]"):
        for so in (sT1, sT2):
            g.e("buffer_load_dword v%d, v%d, %s, %s offen" % (186 + n, t1, srd, so)); n += 1
        g.e("buffer_load_dword v%d, v%d, %s, %s offen" % (186 + n, t0, srd, sT0)); n += 1
    g.lab(end)

def touch_own(g, first):
    t0, t1, t2 = vT, vT + 1, vT + 2
    g.e("s_bfe_u32 %s, s2, 0x40003" % sT0); g.e("s_lshl_b32 %s, %s, 8" % (sT0, sT0))
    g.e("v_and_b32 v%d, 255, v0" % t0); g.e("v_add_u32 v%d, %s, v%d" % (t0, sT0, t0))
    g.e("v_and_b32 v%d, 511, v%d" % (t1, t0)); g.e("v_mul_u32_u24 v%d, 896, v%d" % (t1, t1))
    g.e("v_lshrrev_b32 v%d, 9, v%d" % (t2, t0)); g.e("v_add_u32 v%d, %d, v%d" % (t2, first, t2))
    g.e("v_cmp_gt_u32 vcc, 7, v%d" % t2)
    g.e("v_lshl_add_u32 v%d, v%d, 7, v%d" % (t1, t2, t1))
    g.e("v_mov_b32 v%d, 0x%x" % (t2, OOB))
    g.e("v_cndmask_b32 v%d, v%d, v%d, vcc" % (t1, t2, t1))
    g.e("s_bfe_u32 %s, s2, 0x20001" % sT0); g.e("s_mul_i32 %s, %s, %d" % (sT0, sT0, 512 * 896))
    g.e("v_lshrrev_b32 v%d, 2, v%d" % (t2, t0))
    g.e("buffer_load_dword v88, v%d, %s, %s offen" % (t1, sX, sT0))
    g.e("v_mul_u32_u24 v%d, 896, v%d" % (t2, t2))
    g.e("v_and_b32 v%d, 3, v%d" % (t0, t0)); g.e("v_lshl_add_u32 v%d, v%d, 7, v%d" % (t2, t0, t2))
    g.e("s_and_b32 %s, s2, 1" % sT0); g.e("s_mul_i32 %s, %s, 384" % (sT0, sT0)); g.e("s_add_u32 %s, %s, %d" % (sT0, sT0, first * 64 * 2688 + WBIAS))
    g.e("buffer_load_dword v89, v%d, %s, %s offen" % (t2, sW, sT0))

def touch1(g):
    t0, t1, t2 = vT, vT + 1, vT + 2
    for tb in ([0] if g.touch == 3 else [0, 1] if g.map == 0 else [1]):
        px, pw = (32, 34) if tb == 0 else (4, None)
        if tb == 0:
            g.e("s_mov_b32 s16, s32"); g.e("s_mov_b32 s17, s33"); g.e("s_mov_b32 s20, s34"); g.e("s_mov_b32 s21, s35")
        else:
            g.e("s_mov_b32 s16, s4"); g.e("s_mov_b32 s17, s5"); g.e("s_mov_b32 s20, s40"); g.e("s_mov_b32 s21, s41")
        g.e("s_mov_b32 s18, 0x%x" % X_BYTES); g.e("s_mov_b32 s19, 0x20000"); g.e("s_mov_b32 s22, 0x%x" % W_BYTES); g.e("s_mov_b32 s23, 0x20000")
        g.e("s_bfe_u32 %s, s2, 0x40003" % sT0); g.e("s_lshl_b32 %s, %s, 8" % (sT0, sT0))
        g.e("v_add_u32 v%d, %s, v0" % (t0, sT0))
        g.e("v_and_b32 v%d, 511, v%d" % (t1, t0)); g.e("v_mul_u32_u24 v%d, 896, v%d" % (t1, t1))
        g.e("v_lshrrev_b32 v%d, 9, v%d" % (t2, t0)); g.e("v_add_u32 v%d, %d, v%d" % (t2, g.tfirst, t2))
        g.e("v_cmp_gt_u32 vcc, 7, v%d" % t2)
        g.e("v_lshl_add_u32 v%d, v%d, 7, v%d" % (t1, t2, t1))
        g.e("v_mov_b32 v%d, 0x%x" % (t2, OOB))
        g.e("v_cndmask_b32 v%d, v%d, v%d, vcc" % (t1, t2, t1))
        g.e("s_bfe_u32 %s, s2, 0x20001" % sT0); g.e("s_mul_i32 %s, %s, %d" % (sT0, sT0, 512 * 896))
        g.e("v_lshrrev_b32 v%d, 2, v%d" % (t2, t0))
        g.e("buffer_load_dword v%d, v%d, s[16:19], %s offen%s" % (188 + 2*tb, t1, sT0, g.tf))
        g.e("v_mul_u32_u24 v%d, 896, v%d" % (t2, t2))
        g.e("v_and_b32 v%d, 3, v%d" % (t0, t0)); g.e("v_lshl_add_u32 v%d, v%d, 7, v%d" % (t2, t0, t2))
        g.e("s_and_b32 %s, s2, 1" % sT0); g.e("s_mul_i32 %s, %s, 384" % (sT0, sT0)); g.e("s_add_u32 %s, %s, %d" % (sT0, sT0, g.tfirst * 64 * 2688))
        g.e("buffer_load_dword v%d, v%d, s[20:23], %s offen%s" % (189 + 2*tb, t2, sT0, g.tf))

def max16(g, s, dst, first=True):
    if first:
        g.e("v_max3_f32 v%d, v%d, v%d, v%d" % (dst, s, s + 1, s + 2)); rest = list(range(3, 16))
    else: rest = list(range(16))
    while len(rest) >= 2:
        a, b = rest.pop(0), rest.pop(0)
        g.e("v_max3_f32 v%d, v%d, v%d, v%d" % (dst, dst, s + a, s + b))
    if rest: g.e("v_max_f32 v%d, v%d, v%d" % (dst, dst, s + rest[0]))
def xhalf_max(g):
    g.e("v_mov_b32 v%d, v%d" % (vM2, vM)); g.e("s_nop 1")
    g.e("v_permlane32_swap_b32 v%d, v%d" % (vM, vM2)); g.e("s_nop 1")
    g.e("v_max_f32 v%d, v%d, v%d" % (vM, vM, vM2))
def set_shift(g):
    g.e("v_cvt_pk_bf16_f32 v%d, -v%d, 0" % (vM2, vM))
    g.e("v_lshlrev_b32 v%d, 16, v%d" % (vNM, vM2))
    g.e("v_cndmask_b32 v%d, v%d, v%d, %s" % (vQF + 6, vQF + 6, vM2, sUP))
def bcast_l(g):
    g.e("v_mov_b32 v%d, v%d" % (vM, vO + 12)); g.e("v_mov_b32 v%d, v%d" % (vM2, vO + 12)); g.e("s_nop 1")
    g.e("v_permlane32_swap_b32 v%d, v%d" % (vM, vM2)); g.e("s_nop 1")
def finish_o(g):
    g.e("v_rcp_f32 v%d, v%d" % (vM, vM2))
    g.e("s_lshl_b32 %s, %s, 6" % (sT0, sBR)); g.e("s_lshl_b32 %s, %s, 2" % (sT1, sR)); g.e("s_add_u32 %s, %s, %s" % (sT0, sT0, sT1))
    g.e("v_cndmask_b32 v%d, v%d, 0, %s" % (vM2, vM, sUP))
    g.e("s_add_u32 %s, %s, %s" % (sT0, sT0, sRT)); g.e("s_mul_i32 %s, %s, %d" % (sT0, sT0, g.ofs))
    g.e("s_lshl_b32 %s, %s, 1" % (sT1, sHP)); g.e("s_add_u32 %s, %s, %s" % (sT1, sT1, sHH))
    g.e("s_lshl_b32 %s, %s, 11" % (sT1, sT1)); g.e("s_add_u32 %s, %s, %s" % (sT0, sT0, sT1)); g.e("s_add_u32 %s, %s, 0x%x" % (sT0, sT0, WS_OF))
    for f in range(2):
        for r in range(8*f, 8*f + 8): g.e("v_mul_f32 v%d, v%d, v%d" % (vO + r, vM2 if r >= 12 else vM, vO + r))
        for i in range(4*f, 4*f + 4): g.e("v_cvt_pk_bf16_f32 v%d, v%d, v%d" % (vP + i, vO + 2*i, vO + 2*i + 1))
        g.e("buffer_store_dwordx4 %s, v%d, %s, %s offen offset:%d%s" % (vr(vP + 4*f, 4), vL16, sWS, sT0, f * 1024, g.stf))
def dbg_q(g):
    if not g.dbgq: return
    g.e("s_lshl_b32 %s, %s, 2" % (sT0, sHH)); g.e("s_add_u32 %s, %s, %s" % (sT0, sT0, sRT)); g.e("s_lshl_b32 %s, %s, 11" % (sT0, sT0))
    g.e("s_lshr_b32 %s, %s, 1" % (sT1, sKVO)); g.e("s_add_u32 %s, %s, %s" % (sT0, sT0, sT1)); g.e("s_add_u32 %s, %s, 0x%x" % (sT0, sT0, WS_QDBG))
    g.e("s_waitcnt lgkmcnt(0)")
    for f in range(2): g.e("buffer_store_dwordx4 %s, v%d, %s, %s offen offset:%d" % (vr(vQF + 4*f, 4), vL16, sWS, sT0, f * 1024))
    g.e("s_waitcnt vmcnt(0)")

def wo_dma(g, m, ldsbase, row0, last=False):
    sk = g.newlab("L_wsk")
    if last:
        g.e("s_cmp_eq_u32 %s, 7" % sWV); g.e("s_cbranch_scc1 %s" % sk)
    g.e("s_add_u32 m0, %s, %d" % (sW1K, ldsbase + m * 8192))
    g.e("s_add_u32 %s, %s, %d" % (sT3, sWOS, row0 * 896 + m * 8 * 3584))
    g.e("buffer_load_dwordx4 v%d, %s, %s offen lds" % (vWOO, sWO, sT3))
    if last: g.lab(sk)
def wo1(g, n):
    if n < 4: wo_dma(g, n, L_W1A, 0, last=(n == 3))
    else: wo_dma(g, n - 4, L_W1B, 120)

def attn_A(g):
    lg = Q(); lg.add("q", 2)
    nwo = [0]; nwo0 = [0]; nwoS = {}
    def site(u):
        for (cond, b) in ((u - 1, 0), (u - 5, 1)):
            if 0 <= cond <= 3:
                sk = g.newlab("L_site")
                g.e("s_cmp_lg_u32 %s, %d" % (sRT, cond)); g.e("s_cbranch_scc1 %s" % sk)
                check(g, 1, vG1, F_KV(b, 0), vGV + b)
                if g.r2late == 2 and b == 0 and cond >= 2:
                    g.e("s_cmp_ge_u32 %s, 4" % sWV); g.e("s_cbranch_scc1 %s" % sk)
                    fetch_remote(g, True)
                    nwoS[cond] = nwo[0]
                g.lab(sk)
    def rdF(): g.e("ds_read2_b32 %s, v%d offset0:%d offset1:%d" % (vr(vGV, 2), vG1, F_KV(0, 0) // 4, F_KV(1, 0) // 4)); lg.add("x")
    def rdK(u):
        for j in range(2): g.e("ds_read_b128 %s, v%d offset:%d" % (vr(vKB + (u % 2) * 8 + 4*j, 4), vAD + u, j * 1024))
        lg.add(("K", u), 2)
    def rdV(u):
        for j in range(2): g.e("ds_read_b128 %s, v%d offset:%d" % (vr(vVB + (u % 2) * 8 + 4*j, 4), vAD + u, 2048 + j * 1024))
        lg.add(("V", u), 2)
    def qk(u, j):
        s = vS + (u % 3) * 16
        g.mfma(s, vKB + (u % 2) * 8 + 4*j, vQF + 4*j, s if j else (vC1 if u == 0 else vC2 if u == 8 else None))
    def pv(u, j):
        g.mfma(vO, vVB + (u % 2) * 8 + 4*j, vS + (u % 3) * 16 + 4*j, None if (u == 0 and j == 0) else vO)
    if "ast" in g.exp: g.only = None; g.stamp(1); g.only = (0, 14)
    rdF(); rdK(0)
    g.wl(lg.wait(("K", 0))); qk(0, 0); qk(0, 1)
    bump(g, vGW, F_CQ); lg.add("x")
    g.e("s_nop 10")
    max16(g, vS, vM); xhalf_max(g); set_shift(g)
    for r in range(16): g.e("v_add_f32 v%d, v%d, v%d" % (vS + r, vNM, vS + r))
    for u in range(9):
        s = vS + (u % 3) * 16
        ex = lambda a, b: [g.e("v_exp_f32 v%d, v%d" % (s + r, s + r)) for r in range(a, b)]
        if g.r2late == 1 and u == g.r2fetch:
            sk = g.newlab("L_r2f")
            g.e("s_cmp_ge_u32 %s, 2" % sWV); g.e("s_cbranch_scc1 %s" % sk)
            fetch_remote(g, True)
            g.lab(sk)
            nwo0[0] = nwo[0]
        if g.r2late == 2 and u in (g.r2step, g.r2step + 1):
            sk = g.newlab("L_ld2")
            g.e("s_cmp_lg_u32 %s, %d" % (sWV, 1 if u == g.r2step else 0)); g.e("s_cbranch_scc1 %s" % sk)
            g.e("s_waitcnt vmcnt(%d)" % (nwo[0] - nwoS[2 if u == g.r2step else 3])); bump(g, vFB)
            g.lab(sk)
        if u in ((0,) if g.r2late == 2 else (0, g.r2step)):
            sk = g.newlab("L_ld")
            g.e("s_cmp_%s_u32 %s, 2" % ("lt" if u == 0 else "ge", sWV)); g.e("s_cbranch_scc1 %s" % sk)
            if u == 0:
                g.e("s_cmp_ge_u32 %s, 4" % sWV); g.e("s_cbranch_scc1 %s" % sk)
            g.e("s_waitcnt vmcnt(%d)" % (nwo[0] - nwo0[0])); bump(g, vFB)
            g.lab(sk)
        if u < 8: site(u + 1)
        if "ast" in g.exp: g.only = None; g.stamp(2 + u); g.only = (0, 14)
        if u < 7: rdF()
        if u == g.wostep - 1: g.e("ds_read_b32 v%d, v%d offset:%d" % (vGX, vGR, F_CQ)); lg.add("x")
        if u < 8: rdK(u + 1)
        rdV(u)
        if u > 0: g.wl(lg.wait(("V", u - 1))); pv(u - 1, 0)
        ex(0, 5)
        if u > 0: pv(u - 1, 1)
        if g.wostep <= u < g.wostep + 4:
            if u == g.wostep: check(g, 8, vGR, F_CQ, vGX)
            for _ in range(2): wo1(g, nwo[0]); nwo[0] += 1
        ex(5, 10)
        if u < 8: g.wl(lg.wait(("K", u + 1))); qk(u + 1, 0)
        ex(10, 16)
        if u < 8: qk(u + 1, 1)
        else: g.e("s_nop 0")
        for i in range(8): g.e("v_cvt_pk_bf16_f32 v%d, v%d, v%d" % (s + i, s + 2*i, s + 2*i + 1))
    g.wl(lg.wait(("V", 8))); g.e("s_nop 0"); pv(8, 0); pv(8, 1)
    g.e("s_nop 11")
    bcast_l(g)
    fb = g.newlab("L_fb"); ok = g.newlab("L_aok")
    g.e("s_mov_b32 %s, 0x%08x" % (sT0, LBIG))
    g.e("v_cmp_ngt_f32 vcc, %s, v%d" % (sT0, vM2))
    g.e("s_cbranch_vccnz %s" % fb)
    g.lab(ok)
    g.fb = (fb, ok)
    if "ast" in g.exp: g.only = None; g.stamp(11); g.only = (0, 14)
    g.stamp(8)
    finish_o(g)

def fallback_A(g):
    fb, ok = g.fb
    g.lab(fb)
    g.e("s_lshl_b32 %s, %s, 2" % (sT1, sR)); g.e("s_add_u32 %s, %s, %s" % (sT1, sT1, sRT))
    g.e("v_mov_b32 v%d, 0" % vM2)
    g.e("v_cndmask_b32 v%d, v%d, v%d, %s" % (vQF + 6, vQF + 6, vM2, sUP))
    g.e("v_mov_b32 v%d, 0x%08x" % (vM, NEG))
    for r in range(16): g.e("v_mov_b32 v%d, 0" % (vO + r))
    for pas in range(2):
        lp = g.newlab("L_fbl"); l0 = g.newlab("L_fb0"); l8 = g.newlab("L_fb8"); lj = g.newlab("L_fbj")
        g.e("s_mov_b32 %s, 0" % sT4)
        g.lab(lp)
        g.e("s_add_u32 %s, %s, 8" % (sT0, sRT)); g.e("s_sub_u32 %s, %s, %s" % (sT0, sT0, sT4))
        g.e("s_lshr_b32 %s, %s, 2" % (sT2, sT0)); g.e("s_mul_i32 %s, %s, %d" % (sT2, sT2, g.kvs))
        g.e("s_and_b32 %s, %s, 3" % (sT0, sT0)); g.e("s_lshl_b32 %s, %s, 12" % (sT0, sT0)); g.e("s_add_u32 %s, %s, %s" % (sT0, sT0, sT2))
        g.e("s_lshl_b32 %s, %s, 14" % (sT2, sHH)); g.e("s_add_u32 %s, %s, %s" % (sT0, sT0, sT2))
        g.e("s_add_u32 %s, %s, s37" % (sT0, sT0)); g.e("s_sub_u32 %s, %s, %d" % (sT0, sT0, 2 * g.kvs))
        for j in range(4): g.e("buffer_load_dwordx4 %s, v%d, %s, %s offen offset:%d sc1" % (vr(vKB + 4*j, 4), vL16, sWS, sT0, j * 1024))
        g.e("s_waitcnt vmcnt(0)")
        g.e("s_cmp_eq_u32 %s, 0" % sT4); g.e("s_cbranch_scc1 %s" % l0)
        g.e("s_cmp_eq_u32 %s, 8" % sT4); g.e("s_cbranch_scc1 %s" % l8)
        g.mfma(vS, vKB, vQF, None); g.e("s_branch %s" % lj)
        g.lab(l0); g.mfma(vS, vKB, vQF, vC1); g.e("s_branch %s" % lj)
        g.lab(l8); g.mfma(vS, vKB, vQF, vC2)
        g.lab(lj)
        g.mfma(vS, vKB + 4, vQF + 4, vS)
        g.e("s_nop 11")
        if pas == 0: max16(g, vS, vM, first=False)
        else:
            for r in range(16): g.e("v_exp_f32 v%d, v%d" % (vS + r, vS + r))
            g.e("s_nop 0")
            for i in range(8): g.e("v_cvt_pk_bf16_f32 v%d, v%d, v%d" % (vS + i, vS + 2*i, vS + 2*i + 1))
            g.e("s_nop 1")
            g.mfma(vO, vKB + 8, vS, vO); g.mfma(vO, vKB + 12, vS + 4, vO)
            g.e("s_nop 11")
        g.e("s_add_u32 %s, %s, 1" % (sT4, sT4))
        g.e("s_min_u32 %s, %s, 8" % (sT0, sT1))
        g.e("s_cmp_le_u32 %s, %s" % (sT4, sT0)); g.e("s_cbranch_scc1 %s" % lp)
        if pas == 0:
            xhalf_max(g); set_shift(g); g.e("s_nop 1")
    bcast_l(g)
    g.e("s_branch %s" % ok)

def attn_B(g):
    for j in range(2): g.e("ds_read_b128 %s, v%d offset:%d" % (vr(vKB + 4*j, 4), vAD, j * 1024))
    for j in range(2): g.e("ds_read_b128 %s, v%d offset:%d" % (vr(vVB + 4*j, 4), vAD, 2048 + j * 1024))
    g.e("s_waitcnt lgkmcnt(2)")
    g.mfma(vS, vKB, vQF, vC1); g.mfma(vS, vKB + 4, vQF + 4, vS)
    bump(g, vGW, F_CQ)
    sk = g.newlab("L_bs")
    g.e("s_cmp_lg_u32 %s, 0" % sRT); g.e("s_cbranch_scc1 %s" % sk)
    spin(g, 1, vG1, F_KV(0, 0), vGV)
    g.lab(sk)
    for j in range(2): g.e("ds_read_b128 %s, v%d offset:%d" % (vr(vKB + 8 + 4*j, 4), vAD + 1, j * 1024))
    for j in range(2): g.e("ds_read_b128 %s, v%d offset:%d" % (vr(vVB + 8 + 4*j, 4), vAD + 1, 2048 + j * 1024))
    g.e("s_waitcnt lgkmcnt(2)")
    g.mfma(vS + 16, vKB + 8, vQF, vC2); g.mfma(vS + 16, vKB + 12, vQF + 4, vS + 16)
    g.e("s_nop 4")
    max16(g, vS, vM); g.e("s_nop 0"); max16(g, vS + 16, vM, first=False); xhalf_max(g)
    for r in range(32): g.e("v_sub_f32 v%d, v%d, v%d" % (vS + r, vS + r, vM))
    for t in range(2):
        s = vS + 16 * t
        for r in range(16): g.e("v_exp_f32 v%d, v%d" % (s + r, s + r))
        g.e("s_nop 0")
        for i in range(8): g.e("v_cvt_pk_bf16_f32 v%d, v%d, v%d" % (s + i, s + 2*i, s + 2*i + 1))
        g.e("s_waitcnt lgkmcnt(0)"); g.e("s_nop 0")
        g.mfma(vO, vVB + 8*t, s, None if t == 0 else vO); g.mfma(vO, vVB + 8*t + 4, s + 4, vO)
    g.e("s_nop 11")
    bcast_l(g)
    g.stamp(8)
    finish_o(g)
    if g.bpre:
        spin(g, 8, vGR, F_CQ, vGX)
        for n in range(8): wo1(g, n)

def p3(g):
    t0, t1, t2 = vT, vT + 1, vT + 2
    sCT, sRT2 = sKC, sXB
    A1, A2, A3 = 4, 5, 6
    vFL = 3; vB0, vB1 = 13, 14; vOA = 56
    g.e("s_lshr_b32 %s, %s, 1" % (sCT, sWV)); g.e("s_and_b32 %s, %s, 1" % (sRT2, sWV))
    g.e("v_bfe_u32 v%d, v%d, 2, 2" % (t0, vLANE)); g.e("v_lshrrev_b32 v%d, 5, v%d" % (t1, vLANE))
    g.e("v_lshl_add_u32 v%d, v%d, 2, v%d" % (t1, t1, t0)); g.e("v_lshlrev_b32 v%d, 8, v%d" % (t1, t1))
    g.e("v_lshlrev_b32 v%d, 6, v%d" % (t0, t0))
    g.e("v_and_b32 v%d, 3, v%d" % (t2, vLANE)); g.e("v_lshlrev_b32 v%d, 3, v%d" % (t2, t2))
    g.e("v_and_b32 v%d, 16, v%d" % (A3, vLANE)); g.e("v_lshl_add_u32 v%d, v%d, 1, v%d" % (t2, A3, t2))
    g.e("s_lshl_b32 %s, %s, 6" % (sT0, sCT)); g.e("v_add_u32 v%d, %s, v%d" % (t2, sT0, t2))
    g.e("v_xor_b32 v%d, v%d, v%d" % (t2, t2, t0)); g.e("v_add_u32 v%d, v%d, v%d" % (A3, t1, t2))
    g.e("v_add_u32 v%d, 0x%x, v%d" % (A1, L_W1A, A3)); g.e("v_add_u32 v%d, 0x%x, v%d" % (A2, L_W1B, A3))
    g.e("s_lshr_b32 %s, %s, 1" % (sT0, sRB)); g.e("s_lshl_b32 %s, %s, 4" % (sT1, sBR)); g.e("s_add_u32 %s, %s, %s" % (sT0, sT0, sT1))
    g.e("s_lshl_b32 %s, %s, 10" % (sT0, sT0)); g.e("s_add_u32 %s, %s, 0x%x" % (sT0, sT0, WS_OFLAG))
    g.e("v_lshlrev_b32 v%d, 7, v%d" % (vFL, vLANE)); g.e("v_add_u32 v%d, %s, v%d" % (vFL, sT0, vFL))
    g.e("s_add_u32 %s, %s, %s" % (sT1, sT1, sR)); g.e("s_lshl_b32 %s, %s, 3" % (sT1, sT1)); g.e("s_add_u32 %s, %s, %s" % (sT1, sT1, sHP))
    g.e("s_lshl_b32 %s, %s, 7" % (sT1, sT1)); g.e("s_add_u32 s36, %s, 0x%x" % (sT1, WS_OFLAG))
    g.e("s_lshr_b32 %s, %s, 2" % (sT2, sWV))
    sOS, sOL = sXS, sWSO
    g.e("s_and_b32 %s, %s, 3" % (sT0, sWV)); g.e("s_lshl_b32 %s, %s, 11" % (sT0, sT0))
    g.e("s_lshl_b32 %s, %s, 13" % (sOL, sT2)); g.e("s_add_u32 %s, %s, %s" % (sOL, sOL, sT0))
    g.e("s_lshl_b32 %s, %s, 6" % (sOS, sBR)); g.e("s_lshl_b32 %s, %s, 1" % (sT1, sRB)); g.e("s_add_u32 %s, %s, %s" % (sOS, sOS, sT1))
    g.e("s_add_u32 %s, %s, %s" % (sOS, sOS, sT2)); g.e("s_mul_i32 %s, %s, %d" % (sOS, sOS, g.ofs))
    g.e("s_add_u32 %s, %s, %s" % (sOS, sOS, sT0)); g.e("s_add_u32 %s, %s, 0x%x" % (sOS, sOS, WS_OF))
    g.e("s_lshl_b32 %s, %s, 13" % (sT0, sRT2)); g.e("v_add_u32 v%d, %s, v%d" % (vB0, sT0, vL16))
    g.e("v_add_u32 v%d, 0x%x, v%d" % (vB1, L_O, vB0)); g.e("v_add_u32 v%d, 0x%x, v%d" % (vB0, L_W1A, vB0))
    vSW, vSR = 58, 59
    if g.ostage:
        STG = 0
        g.e("v_and_b32 v%d, 31, v%d" % (t0, vLANE)); g.e("v_mul_u32_u24 v%d, 272, v%d" % (t0, t0))
        g.e("v_lshrrev_b32 v%d, 5, v%d" % (t1, vLANE)); g.e("v_lshl_add_u32 v%d, v%d, 4, v%d" % (t0, t1, t0))
        g.e("s_mul_i32 %s, %s, %d" % (sT0, sRT2, 32 * 272)); g.e("s_lshl_b32 %s, %s, 6" % (sT1, sCT)); g.e("s_add_u32 %s, %s, %s" % (sT0, sT0, sT1))
        g.e("v_add_u32 v%d, %s, v%d" % (vSW, sT0, t0))
        g.e("v_lshrrev_b32 v%d, 4, v%d" % (t0, vLANE)); g.e("v_and_b32 v%d, 15, v%d" % (t1, vLANE))
        g.e("v_mul_u32_u24 v%d, 272, v%d" % (t2, t0)); g.e("v_lshl_add_u32 v%d, v%d, 4, v%d" % (t2, t1, t2))
        g.e("s_mul_i32 %s, %s, %d" % (sT0, sWV, 8 * 272)); g.e("v_add_u32 v%d, %s, v%d" % (vSR, sT0, t2))
        g.e("v_mul_u32_u24 v%d, 1792, v%d" % (t2, t0)); g.e("v_lshl_add_u32 v%d, v%d, 4, v%d" % (t2, t1, t2))
        g.e("s_cmp_eq_u32 %s, 3" % sCB); g.e("s_cselect_b32 %s, 8, 64" % sT0)
        g.e("v_mov_b32 v%d, 0x%x" % (t0, OOB))
        g.e("v_cmp_le_u32 vcc, %s, v%d" % (sT0, t1))
        g.e("s_lshl_b32 %s, %s, 3" % (sT0, sRB)); g.e("s_add_u32 %s, %s, %s" % (sT0, sT0, sWV)); g.e("s_mul_i32 %s, %s, %d" % (sT4, sT0, 8 * 1792))
        g.e("v_cndmask_b32 v%d, v%d, v%d, vcc" % (vOA, t2, t0))
        g.e("v_add_u32 v%d, %d, v%d" % (vOA + 1, 4 * 1792, vOA))
        g.e("s_mul_i32 %s, %s, 896" % (sT0, sBR)); g.e("s_add_u32 %s, %s, %s" % (sT4, sT4, sT0))
        g.e("s_lshl_b32 %s, %s, 8" % (sT0, sCB)); g.e("s_add_u32 %s, %s, %s" % (sT4, sT4, sT0))
    else:
        g.e("v_and_b32 v%d, 31, v%d" % (t0, vLANE)); g.e("v_mul_u32_u24 v%d, 1792, v%d" % (t0, t0))
        g.e("v_lshrrev_b32 v%d, 5, v%d" % (t1, vLANE)); g.e("v_lshl_add_u32 v%d, v%d, 4, v%d" % (vOA, t1, t0))
        g.e("s_lshl_b32 %s, %s, 1" % (sT0, sRB)); g.e("s_add_u32 %s, %s, %s" % (sT0, sT0, sRT2)); g.e("s_mul_i32 %s, %s, %d" % (sT4, sT0, 32 * 1792))
        g.e("s_mul_i32 %s, %s, 896" % (sT0, sBR)); g.e("s_add_u32 %s, %s, %s" % (sT4, sT4, sT0))
        g.e("s_lshl_b32 %s, %s, 8" % (sT0, sCB)); g.e("s_add_u32 %s, %s, %s" % (sT4, sT4, sT0))
        g.e("s_lshl_b32 %s, %s, 6" % (sT0, sCT)); g.e("s_add_u32 %s, %s, %s" % (sT4, sT4, sT0))
    if g.bpre:
        wa = g.newlab("L_wa"); wb = g.newlab("L_wb")
        g.e("s_cmp_eq_u32 %s, 0" % sBR); g.e("s_cbranch_scc1 %s" % wa)
        g.e("s_waitcnt vmcnt(7)"); g.e("s_branch %s" % wb)
        g.lab(wa); g.e("s_waitcnt vmcnt(0)"); g.lab(wb)
    else: g.e("s_waitcnt vmcnt(0)")
    g.e("s_barrier")
    nf = g.newlab("L_nof")
    g.e("s_cmp_lg_u32 %s, 0" % sWV); g.e("s_cbranch_scc1 %s" % nf)
    store_flag(g, "s36")
    g.lab(nf)
    g.stamp(9)
    if not g.bpre:
        early = g.newlab("L_early")
        g.e("s_cmp_eq_u32 %s, 0" % sBR); g.e("s_cbranch_scc1 %s" % early)
        for n in range(8): wo1(g, n)
        g.lab(early)
    for m in range(7): wo_dma(g, m, L_W2, 248)
    early2 = g.newlab("L_early2")
    g.e("s_cmp_eq_u32 %s, 0" % sBR); g.e("s_cbranch_scc1 %s" % early2)
    g.e("s_waitcnt vmcnt(7)"); g.e("s_barrier")
    g.lab(early2)
    WFR = 96
    def trs(sel):
        for h in range(16):
            for j in range(2):
                for i in range(2):
                    row = 28 * h + 16 * j + 8 * i
                    if not sel(row): continue
                    a, off = (A1, row * 256) if row < 120 else (A2, (row - 120) * 256) if row < 248 else (A3, (row - 248) * 256)
                    g.e("ds_read_b64_tr_b16 %s, v%d offset:%d" % (vr(WFR + (h * 2 + j) * 4 + 2 * i, 2), a, off))
    trs(lambda row: row < 248)
    g.stamp(10)
    np_ = g.newlab("L_np3")
    g.e("s_cmp_lg_u32 %s, 7" % sWV); g.e("s_cbranch_scc1 %s" % np_)
    if g.poll2: poll2(g, vFL, "0xff")
    else: poll(g, vFL, "0xff")
    g.lab(np_)
    g.e("s_waitcnt vmcnt(0) lgkmcnt(0)")
    g.e("s_barrier")
    g.stamp(11)
    for a in range(4):
        g.e("s_add_u32 m0, %s, %d" % (sOL, L_O + a * 16384 if a < 2 else L_W1A + (a - 2) * 16384))
        g.e("s_add_u32 %s, %s, %d" % (sT2, sOS, a * 8192))
        for f in range(2): g.e("buffer_load_dwordx4 v%d, %s, %s offen offset:%d sc1 lds" % (vL16, sWS, sT2, f * 1024))
    trs(lambda row: row >= 248)
    OB = 16
    lg = Q()
    def rd(k):
        a = k // 8
        bars = eval(g.obars)
        if k % 8 == 0 and a in bars:
            nxtb = min([x for x in bars if x > a] + [4])
            g.e("s_waitcnt vmcnt(%d)" % (8 - 2 * nxtb)); g.e("s_barrier")
            if a == 0: g.stamp(12)
        g.e("ds_read_b128 %s, v%d offset:%d" % (vr(OB + (k % 4) * 4, 4), vB1 if a < 2 else vB0, (a % 2) * 16384 + (k % 8) * 1024))
        lg.add(k)
    for k in range(3): rd(k)
    for k in range(32):
        g.wl(lg.wait(k))
        g.mfma(vO, WFR + 4 * k, OB + (k % 4) * 4, None if k == 0 else vO)
        if k + 3 < 32: rd(k + 3)
    g.stamp(13)
    if not g.ostage:
        done = g.newlab("L_nostore")
        g.e("s_cmp_lt_u32 %s, 3" % sCB); g.e("s_cselect_b32 %s, 4, 2" % sT0)
        g.e("s_cmp_ge_u32 %s, %s" % (sCT, sT0)); g.e("s_cbranch_scc1 %s" % done)
        g.e("s_nop 8")
        PK = 48
        for i in range(8): g.e("v_cvt_pk_bf16_f32 v%d, v%d, v%d" % (PK + i, vO + 2*i, vO + 2*i + 1))
        g.e("s_nop 1")
        for b in (0, 4):
            g.e("v_permlane32_swap_b32 v%d, v%d" % (PK + b, PK + b + 2)); g.e("v_permlane32_swap_b32 v%d, v%d" % (PK + b + 1, PK + b + 3))
        g.e("s_nop 1")
        for b in range(2): g.e("buffer_store_dwordx4 %s, v%d, %s, %s offen offset:%d%s" % (vr(PK + 4*b, 4), vOA, sOUT, sT4, 32 * b, g.outflag))
        g.lab(done)
        return
    PK = 48
    g.e("s_nop 11")
    for i in range(8): g.e("v_cvt_pk_bf16_f32 v%d, v%d, v%d" % (PK + i, vO + 2*i, vO + 2*i + 1))
    g.e("s_nop 1")
    for b in (0, 4):
        g.e("v_permlane32_swap_b32 v%d, v%d" % (PK + b, PK + b + 2)); g.e("v_permlane32_swap_b32 v%d, v%d" % (PK + b + 1, PK + b + 3))
    g.e("s_nop 1")
    for b in range(2): g.e("ds_write_b128 v%d, %s offset:%d" % (vSW, vr(PK + 4*b, 4), 32 * b))
    g.e("s_waitcnt lgkmcnt(0)")
    g.e("s_barrier")
    for b in range(2): g.e("ds_read_b128 %s, v%d offset:%d" % (vr(PK + 4*b, 4), vSR, 4 * 272 * b))
    for b in range(2):
        g.e("s_waitcnt lgkmcnt(%d)" % (1 - b))
        g.e("buffer_store_dwordx4 %s, v%d, %s, %s offen%s" % (vr(PK + 4*b, 4), vOA + b, sOUT, sT4, g.outflag))

def write_stamps(g):
    if not g.stamps: return
    g.e("s_waitcnt vmcnt(0)")
    g.stamp(14)
    g.e("s_waitcnt lgkmcnt(0)")
    g.e("s_getreg_b32 s100, hwreg(HW_REG_XCC_ID)"); g.e("s_getreg_b32 s101, hwreg(HW_REG_HW_ID)")
    g.e("s_lshl_b32 %s, s2, 3" % sT0); g.e("s_add_u32 %s, %s, %s" % (sT0, sT0, sWV)); g.e("s_lshl_b32 %s, %s, 7" % (sT0, sT0))
    g.e("s_add_u32 %s, %s, 0x%x" % (sT0, sT0, WS_STAMP))
    g.e("s_mov_b64 exec, 1")
    for i in range(16):
        g.e("v_mov_b32 v20, s%d" % (70 + 2*i)); g.e("v_mov_b32 v21, s%d" % (71 + 2*i))
        g.e("buffer_store_dwordx2 v[20:21], v%d, %s, %s offen offset:%d" % (vZ, sWS, sT0, 8 * i))
        g.e("s_nop 1")

def branch(g, isA):
    n = "A" if isA else "B"
    g.e("s_cmp_lt_u32 %s, 4" % sWV); g.e("s_cbranch_scc1 L_cons%s" % n)
    producer(g, isA)
    g.e("s_branch L_x%s" % n)
    g.lab("L_cons%s" % n)
    consumer(g, isA)
    g.lab("L_x%s" % n)
    g.stamp(7)
    if g.cprio:
        sk = g.newlab("L_cp")
        g.e("s_cmp_ge_u32 %s, 4" % sWV); g.e("s_cbranch_scc1 %s" % sk); g.e("s_setprio %d" % g.cprio); g.lab(sk)
    dbg_q(g)
    if isA: attn_A(g)
    else: attn_B(g)

def build(**kw):
    g = G(**kw)
    K = NAME + "_kernel"
    hdr = open("cdna_kernels/%s.s.ref" % NAME).read().split("; Override launch")[0]
    g.l.append(hdr.rstrip())
    g.l.append("; @launch grid=(256,1,1) block=(512,1,1) lds=163840")
    g.l += ["; " + x for x in DOC.strip().split("\n")]
    g.l += ['.amdgcn_target "amdgcn-amd-amdhsa--gfx950"', ".text", ".globl " + K, ".p2align 8", ".type %s,@function" % K, K + ":"]
    g.e("s_cmp_ge_u32 s2, 256"); g.e("s_cbranch_scc1 L_end")
    g.e("s_load_dwordx16 s[32:47], s[0:1], 0"); g.e("s_load_dwordx2 s[48:49], s[0:1], 64")
    if "probe" in g.exp: g.e("s_memrealtime s[70:71]")
    if g.stamps:
        for i in range(15): g.e("s_mov_b64 s[%d:%d], 0" % (70 + 2*i, 71 + 2*i))
    g.stamp(0)
    if "pit" in g.exp: g.only = (0, 1, 2, 14)
    if "pdet" in g.exp or "ast" in g.exp: g.only = (0, 14)
    g.e("v_lshrrev_b32 v%d, 6, v0" % vT)
    g.e("v_and_b32 v%d, 63, v0" % vLANE)
    g.e("v_readfirstlane_b32 %s, v%d" % (sWV, vT))
    if g.map == 0:
        g.e("s_lshr_b32 %s, s2, 7" % sBR)
        g.e("s_bfe_u32 %s, s2, 0x20003" % sT2); g.e("s_bfe_u32 %s, s2, 0x20005" % sT3)
        g.e("s_and_b32 %s, s2, 1" % sHP); g.e("s_lshl_b32 %s, %s, 2" % (sHP, sHP)); g.e("s_add_u32 %s, %s, %s" % (sHP, sHP, sT2))
        g.e("s_bfe_u32 %s, s2, 0x20001" % sR); g.e("s_lshl_b32 %s, %s, 2" % (sR, sR)); g.e("s_add_u32 %s, %s, %s" % (sR, sR, sT3))
    else:
        g.e("s_bfe_u32 %s, s2, 0x10002" % sBR)
        g.e("s_bfe_u32 %s, s2, 0x20003" % sT2); g.e("s_lshr_b32 %s, s2, 5" % sT3)
        g.e("s_and_b32 %s, s2, 1" % sHP); g.e("s_lshl_b32 %s, %s, 2" % (sHP, sHP)); g.e("s_add_u32 %s, %s, %s" % (sHP, sHP, sT2))
        g.e("s_bfe_u32 %s, s2, 0x10001" % sR); g.e("s_lshl_b32 %s, %s, 3" % (sR, sR)); g.e("s_add_u32 %s, %s, %s" % (sR, sR, sT3))
    g.e("s_and_b32 %s, %s, 3" % (sP, sWV))
    t0, t1 = vT, vT + 1
    nz = g.newlab("L_nz")
    g.e("s_cmp_lg_u32 %s, 0" % sWV); g.e("s_cbranch_scc1 %s" % nz)
    g.e("v_and_b32 v%d, 7, v%d" % (t0, vLANE)); g.e("v_and_b32 v%d, 2, v%d" % (t1, t0)); g.e("v_lshlrev_b32 v%d, 5, v%d" % (t1, t1))
    g.e("v_lshlrev_b32 v%d, 7, v%d" % (t0, t0)); g.e("v_sub_u32 v%d, v%d, v%d" % (t0, t0, t1))
    g.e("v_add_u32 v%d, %d, v%d" % (t0, FBASE + 112, t0))
    for k in range(4): g.e("v_mov_b32 v%d, 0" % (vACC + k))
    g.e("s_mov_b64 exec, 0xff")
    g.e("ds_write_b128 v%d, %s" % (t0, vr(vACC, 4)))
    g.e("s_mov_b64 exec, -1")
    g.lab(nz)
    producer_prep(g)
    flag_regs(g, True)
    xrd_addr(g, vXRD, sXB)
    g.e("s_mov_b32 s6, 0x%x" % X_BYTES); g.e("s_mov_b32 s7, 0x20000"); g.e("s_mov_b32 s10, 0x%x" % (W_BYTES + WBIAS)); g.e("s_mov_b32 s11, 0x20000")
    g.e("s_cmp_eq_u32 %s, 0" % sBR)
    if "st0" in g.exp: g.stamp(3)
    g.e("s_waitcnt lgkmcnt(0)")
    if "st0" in g.exp: g.stamp(4)
    g.e("s_cselect_b32 s4, s32, s38"); g.e("s_cselect_b32 s5, s33, s39"); g.e("s_cselect_b32 s8, s34, s40"); g.e("s_cselect_b32 s9, s35, s41")
    g.e("s_sub_u32 s8, s8, %d" % WBIAS); g.e("s_subb_u32 s9, s9, 0")
    g.e("s_cmp_lt_u32 %s, 4" % sWV); g.e("s_cbranch_scc1 L_noiss0")
    issue_item(g, Q(), 0)
    g.lab("L_noiss0")
    g.e("s_barrier")
    g.e("s_cmp_lt_u32 %s, 4" % sWV); g.e("s_cbranch_scc1 L_noiss")
    issue_item(g, Q(), 1)
    g.lab("L_noiss")
    g.e("s_cmp_eq_u32 %s, 0" % sBR)
    g.e("s_cbranch_scc1 L_A")
    branch(g, False)
    g.e("s_branch L_p3")
    g.lab("L_A")
    branch(g, True)
    g.lab("L_p3")
    p3(g)
    write_stamps(g)
    if "probe" in g.exp:
        g.e("s_cmp_lg_u32 s2, %d" % g.pwg); g.e("s_cbranch_scc1 L_end")
        g.e("s_cmp_lg_u32 %s, %d" % (sWV, g.pw)); g.e("s_cbranch_scc1 L_end")
        g.e("s_waitcnt vmcnt(0) lgkmcnt(0)")
        if g.pk is None: g.e("s_memrealtime s[72:73]"); g.e("s_waitcnt lgkmcnt(0)")
        g.e("s_sub_u32 s74, s72, s70")
        if g.pcyc: g.e("s_lshr_b32 s74, s74, 1")
        else: g.e("s_lshl_b32 s74, s74, 3")
        g.e("s_memrealtime s[72:73]"); g.e("s_waitcnt lgkmcnt(0)")
        g.lab("L_probe")
        g.e("s_memrealtime s[76:77]"); g.e("s_waitcnt lgkmcnt(0)")
        g.e("s_sub_u32 s75, s76, s72"); g.e("s_cmp_lt_u32 s75, s74"); g.e("s_cbranch_scc1 L_probe")
    g.lab("L_end"); g.e("s_endpgm")
    for (sl, back, need, areg, off, vsrc) in g.slow:
        g.lab(sl); spin(g, need, areg, off, vsrc); g.e("s_branch %s" % back)
    fallback_A(g)
    g.lab("L_codeend")
    g.l += ['.section .rodata,"a"', ".p2align 6", ".amdhsa_kernel " + K, "  .amdhsa_next_free_vgpr 256", "  .amdhsa_next_free_sgpr 102",
            "  .amdhsa_accum_offset 256", "  .amdhsa_group_segment_fixed_size 0", "  .amdhsa_kernarg_size 72", "  .amdhsa_user_sgpr_count 2",
            "  .amdhsa_user_sgpr_kernarg_segment_ptr 1", "  .amdhsa_system_sgpr_workgroup_id_x 1", ".end_amdhsa_kernel"]
    return "\n".join(g.l) + "\n"

if __name__ == "__main__":
    ap = argparse.ArgumentParser()
    ap.add_argument("-o", default="k.s"); ap.add_argument("--stamps", action="store_true"); ap.add_argument("--dbgq", action="store_true")
    ap.add_argument("--exp", default=""); ap.add_argument("--dA", type=int, default=2); ap.add_argument("--dB", type=int, default=2)
    ap.add_argument("--wotouch", type=int, default=1); ap.add_argument("--touch", type=int, default=1); ap.add_argument("--tfirst", type=int, default=2)
    ap.add_argument("--map", type=int, default=0); ap.add_argument("--pk", type=int, default=None); ap.add_argument("--pk0", type=int, default=-1); ap.add_argument("--pcyc", type=int, default=0); ap.add_argument("--pw", type=int, default=0); ap.add_argument("--pwg", type=int, default=26); ap.add_argument("--kvs", type=int, default=33280); ap.add_argument("--ofs", type=int, default=33280); ap.add_argument("--wsoff", type=int, default=0); ap.add_argument("--late7", type=int, default=0); ap.add_argument("--ptouch", type=int, default=0); ap.add_argument("--poll2", type=int, default=0); ap.add_argument("--obars", default="[0,1,2,3]"); ap.add_argument("--ostage", type=int, default=1); ap.add_argument("--qpj", type=int, default=0); ap.add_argument("--qwait", type=int, default=0); ap.add_argument("--c1prio", type=int, default=0); ap.add_argument("--slp", type=int, default=0); ap.add_argument("--pslp", type=int, default=0); ap.add_argument("--mfirst", type=int, default=1); ap.add_argument("--qround", type=int, default=1); ap.add_argument("--cdist", default="[2,1,2,1]"); ap.add_argument("--pprio", type=int, default=0); ap.add_argument("--gate", type=int, default=0); ap.add_argument("--gsig", type=int, default=4); ap.add_argument("--gitem", type=int, default=3); ap.add_argument("--r2late", type=int, default=1); ap.add_argument("--r2fetch", type=int, default=2); ap.add_argument("--ctouch", type=int, default=0); ap.add_argument("--cprio", type=int, default=0); ap.add_argument("--inl", type=int, default=1); ap.add_argument("--ps1", type=int, default=0); ap.add_argument("--ps2", type=int, default=1); ap.add_argument("--ldf", default=""); ap.add_argument("--tf", default=""); ap.add_argument("--late8", type=int, default=0); ap.add_argument("--bpre", type=int, default=1); ap.add_argument("--qprio", type=int, default=0); ap.add_argument("--aprio", type=int, default=0); ap.add_argument("--stf", default=" sc1"); ap.add_argument("--qst", type=int, default=0); ap.add_argument("--r2step", type=int, default=4); ap.add_argument("--wostep", type=int, default=2); ap.add_argument("--outflag", default=" sc1")
    a = ap.parse_args()
    o = a.o; d = vars(a); d.pop("o")
    open(o, "w").write(build(**d))
```

```python
import sys, math, struct, argparse
NAME = "concat_heads__sliding_block__sliding_local_dilated__prompt"
def f32bits(x): return struct.unpack("<I", struct.pack("<f", x))[0]

X_BYTES = 2048*896; W_BYTES = 448*2688; WO_BYTES = 448*896; OUT_BYTES = 2048*1792
WS_OF = 10 << 20; WS_KVFLAG = 16 << 20; WS_OFLAG = (16 << 20) + 65536; WS_GFLAG = (16 << 20) + 131072; WS_QDBG = 20 << 20; WS_STAMP = 32 << 20
WS_RECORDS = 36 << 20
NEG = f32bits(-1.0e30); CSCALE = f32bits((28 ** -0.5) * math.log2(math.e)); LBIG = f32bits(2.0 ** 64)
OOB = 0x7FF00000; SPIN_MAX = 1 << 20; WBIAS = 4096

def vr(a, n): return "v[%d:%d]" % (a, a + n - 1)
sX, sW, sWO, sWS, sOUT, sDBG = "s[4:7]", "s[8:11]", "s[12:15]", "s[16:19]", "s[20:23]", "s[24:27]"
sBR, sHP, sR, sWV = "s28", "s29", "s30", "s31"
sRT, sHH, sW1K, sKC, sXS, sP, sWSO, sXB, sWB, sKVO = "s50", "s51", "s52", "s53", "s54", "s55", "s56", "s57", "s58", "s59"
sNON = "s[60:61]"; sT0, sT1, sT2, sT3 = "s62", "s63", "s64", "s65"; sTM = "s[64:65]"; sC = "s66"; sT4 = "s67"; sUP = "s[68:69]"
sCB, sRB, sWOS, sSPN = "s32", "s33", "s34", "s35"
sHM = "s[38:39]"
vLANE = 1; vKVW = 2; vQW = 3; vXRD = 4; vWRD = 8; vL16 = 9; vT = 10; vZ = 15
vQF = 16
vACC = 32
vC1, vC2 = 96, 112
vXB = 128; vWB = 152
vXF = 128
vAD = 176
vNON = 240; vFA = 244; vFB = 245; vFV = 246; vONE = 247; vWOO = 248; vGR = 249; vGW = 250; vG1 = 251; vGV = 252; vGX = 254
vXO = 16; vWO = 20; vWQ = 24
vO = 32; vS = 128; vKB = 48; vVB = 64; vM = 80; vM2 = 81; vNM = 82; vP = 84
SLOT = 32768
L_R1 = 32768; L_R2 = 0; L_OWN = 131072; L_QA = 122880; L_WQ = 65536
L_W1A = 65536; L_W1B = 98304; L_W2 = 0; L_O = 131072
FBASE = 98304 - 1024
def fw(r, hi): return r * 128 + (112 if ((r >> 1) & 1) == 0 else 48) + 8 + 4 * hi
F_KV = lambda b, h: fw(2 * b + h, 1)
F_OWN, F_QRDY, F_CQ, F_XD = fw(4, 1), fw(5, 1), fw(6, 1), fw(7, 1)
F_V1 = 112
F_ST = fw(0, 0) - 4

DOC = """
Generated by dev/gen3.py (own generator).  One persistent workgroup per CU: (branch, head pair, 128-row block).
 phase 1  waves 4-7 stream x / wqkv through an LDS ring (LDS-DMA) and keep their x fragments; waves 0-3 compute K,V
          (MFMA 32x32x16, results already in attention operand layout); then waves 4-7 compute Q.
 hand-off K/V and attention outputs go through d_ws with sc1 stores + tagged flags (tag = per-launch value in d_debug).
 phase 2  attention per wave (head, 32 queries); row sum via a ones column of V; shift = max of the diagonal tile with
          a run-time guard that falls back to the exact two-pass softmax (true row max).
 phase 3  output projection, 64x128 tile per workgroup.
"""
def lane_mask(fn):
    m = 0
    for l in range(64):
        if fn(l): m |= 1 << l
    return m
def key_of(r, l): return (r & 3) + 8 * (r >> 2) + 4 * (l >> 5)

class Q:
    def __init__(self): self.q = []
    def add(self, tag, n=1): self.q += [tag] * n
    def wait(self, tag):
        idx = [i for i, t in enumerate(self.q) if t == tag]
        if not idx: return None
        n = len(self.q) - 1 - idx[-1]
        self.q = self.q[idx[-1] + 1:]
        return n
    def clear(self): self.q = []

class G:
    def __init__(self, **kw):
        self.l = []; self.nlab = 0; self.slow = []
        self.__dict__.update(kw)
    def e(self, s): self.l.append("    " + s)
    def lab(self, s): self.l.append(s + ":")
    def newlab(self, p="L"):
        self.nlab += 1; return "%s_%d" % (p, self.nlab)
    def stamp(self, i):
        if self.pk is not None:
            if i == self.pk: self.e("%s s[72:73]" % ("s_memtime" if self.pcyc else "s_memrealtime"))
            if i == self.pk0: self.e("%s s[70:71]" % ("s_memtime" if self.pcyc else "s_memrealtime"))
            return
        if getattr(self, "only", None) and i not in self.only: return
        if self.stamps: self.e("%s s[%d:%d]" % ("s_memtime" if "cyc" in self.exp else "s_memrealtime", 70 + 2*i, 71 + 2*i))
    def mask(self, m):
        self.e("s_mov_b32 s64, 0x%08x" % (m & 0xffffffff)); self.e("s_mov_b32 s65, 0x%08x" % (m >> 32))
    def mfma(self, d, a, b, c):
        self.e("v_mfma_f32_32x32x16_bf16 %s, %s, %s, %s" % (vr(d, 16), vr(a, 4), vr(b, 4), "0" if c is None else vr(c, 16)))
    def wl(self, n):
        if n is not None: self.e("s_waitcnt lgkmcnt(%d)" % min(n, 15))
    def wv(self, n):
        if n is not None: self.e("s_waitcnt vmcnt(%d)" % min(n, 63))
    def capture(self, fn):
        save = self.l; self.l = []; groups = []
        def cut():
            if self.l: groups.append(self.l)
            self.l = []
        fn(cut); cut(); self.l = save
        return groups

def spin(g, need, areg, off, vdst):
    lp = g.newlab("L_spin"); ok = g.newlab("L_spok")
    g.e("s_mov_b32 %s, 0" % sSPN)
    g.lab(lp)
    g.e("ds_read_b32 v%d, v%d offset:%d" % (vdst, areg, off))
    g.e("s_add_u32 %s, %s, 1" % (sSPN, sSPN))
    g.e("s_waitcnt lgkmcnt(0)")
    g.e("v_cmp_gt_u32 vcc, %d, v%d" % (need, vdst))
    g.e("s_cmp_gt_u32 %s, %d" % (sSPN, SPIN_MAX * 8)); g.e("s_cbranch_scc1 %s" % ok)
    g.e("s_cbranch_vccnz %s" % lp)
    g.lab(ok)
def check(g, need, areg, off, vsrc):
    if g.inl:
        lp = g.newlab("L_cl"); ok = g.newlab("L_cok")
        g.e("s_mov_b32 %s, %d" % (sSPN, -(SPIN_MAX * 8) & 0xffffffff))
        g.lab(lp)
        g.e("v_cmp_gt_u32 vcc, %d, v%d" % (need, vsrc)); g.e("s_cbranch_vccz %s" % ok)
        if g.slp: g.e("s_sleep %d" % g.slp)
        g.e("ds_read_b32 v%d, v%d offset:%d" % (vsrc, areg, off))
        g.e("s_add_u32 %s, %s, 1" % (sSPN, sSPN))
        g.e("s_waitcnt lgkmcnt(0)")
        g.e("s_cbranch_scc0 %s" % lp)
        g.lab(ok)
        return
    sl = g.newlab("L_slow"); back = g.newlab("L_back")
    g.e("v_cmp_gt_u32 vcc, %d, v%d" % (need, vsrc)); g.e("s_cbranch_vccnz %s" % sl); g.lab(back)
    g.slow.append((sl, back, need, areg, off, vsrc))
def bump(g, areg, off=0): g.e("ds_add_u32 v%d, v%d offset:%d" % (areg, vONE, off))

def flag_regs(g, prod):
    t0 = vT
    g.e("v_and_b32 v%d, 3, v%d" % (t0, vLANE)); g.e("v_and_b32 v%d, 2, v%d" % (vFA, t0)); g.e("v_lshlrev_b32 v%d, 5, v%d" % (vFA, vFA))
    g.e("v_lshlrev_b32 v%d, 7, v%d" % (t0, t0)); g.e("v_sub_u32 v%d, v%d, v%d" % (vFA, t0, vFA))
    g.e("v_add_u32 v%d, %d, v%d" % (vFA, FBASE + 120, vFA))
    g.e("v_mov_b32 v%d, %d" % (vGR, FBASE)); g.e("v_mov_b32 v%d, 0x7ffffff0" % vGW); g.e("v_mov_b32 v%d, 1" % vONE)
    g.e("v_cmp_eq_u32 vcc, 0, v%d" % vLANE)
    g.e("s_lshl_b32 %s, %s, 7" % (sT0, sP)); g.e("s_and_b32 %s, %s, 2" % (sT1, sP)); g.e("s_lshl_b32 %s, %s, 5" % (sT1, sT1))
    g.e("s_sub_u32 %s, %s, %s" % (sT0, sT0, sT1))
    g.e("s_cmp_lt_u32 %s, 4" % sWV); g.e("s_cselect_b32 %s, 512, 0" % sT1); g.e("s_add_u32 %s, %s, %s" % (sT0, sT0, sT1)); g.e("s_add_u32 %s, %s, 120" % (sT0, sT0))
    g.e("v_cndmask_b32 v%d, v%d, v%d, vcc" % (vGW, vGW, vGR))
    g.e("v_add_u32 v%d, %s, v%d" % (vFB, sT0, vGW))

def get_nonce(g):
    lp = g.newlab("L_nlp"); ok = g.newlab("L_nok")
    g.e("s_mov_b32 %s, 0" % sSPN)
    g.lab(lp)
    g.e("v_readfirstlane_b32 s60, v%d" % vNON); g.e("v_readfirstlane_b32 s61, v%d" % (vNON + 1))
    g.e("s_add_u32 %s, %s, 1" % (sSPN, sSPN))
    g.e("s_cmp_lg_u32 s60, 0"); g.e("s_cbranch_scc1 %s" % ok)
    g.e("s_cmp_gt_u32 %s, %d" % (sSPN, SPIN_MAX)); g.e("s_cbranch_scc1 %s" % ok)
    g.e("buffer_load_dwordx2 %s, v%d, %s, 0 offen sc1" % (vr(vNON, 2), vZ, sDBG))
    g.e("s_waitcnt vmcnt(0)")
    g.e("s_branch %s" % lp)
    g.lab(ok)
def store_flag(g, soff):
    g.e("s_mov_b64 exec, 1")
    g.e("buffer_store_dwordx2 %s, v%d, %s, %s offen sc1" % (vr(vNON, 2), vZ, sWS, soff))
    g.e("s_mov_b64 exec, -1")
def poll(g, vaddr, mask):
    lp = g.newlab("L_poll"); ok = g.newlab("L_pok")
    g.e("s_mov_b64 exec, %s" % mask)
    g.e("s_mov_b32 %s, 0" % sSPN)
    g.lab(lp)
    g.e("buffer_load_dwordx2 %s, v%d, %s, 0 offen sc1" % (vr(vNON + 2, 2), vaddr, sWS))
    g.e("s_add_u32 %s, %s, 1" % (sSPN, sSPN))
    g.e("s_waitcnt vmcnt(0)")
    g.e("v_cmp_ne_u64 vcc, %s, %s" % (sNON, vr(vNON + 2, 2)))
    g.e("s_cmp_gt_u32 %s, %d" % (sSPN, SPIN_MAX)); g.e("s_cbranch_scc1 %s" % ok)
    if g.pslp:
        g.e("s_cbranch_vccz %s" % ok); g.e("s_sleep %d" % g.pslp); g.e("s_branch %s" % lp)
    else: g.e("s_cbranch_vccnz %s" % lp)
    g.lab(ok)
    g.e("s_mov_b64 exec, -1")

def poll2(g, vaddr, mask):
    lp = g.newlab("L_poll"); ok = g.newlab("L_pok")
    A, B = vNON + 2, 60
    g.e("s_mov_b64 exec, %s" % mask)
    g.e("s_mov_b32 %s, 0" % sSPN)
    g.e("s_waitcnt vmcnt(0)")
    g.e("buffer_load_dwordx2 %s, v%d, %s, 0 offen sc1" % (vr(A, 2), vaddr, sWS))
    g.e("s_nop 15"); g.e("s_nop 15"); g.e("s_nop 15"); g.e("s_nop 15")
    g.lab(lp)
    g.e("buffer_load_dwordx2 %s, v%d, %s, 0 offen sc1" % (vr(B, 2), vaddr, sWS))
    g.e("s_waitcnt vmcnt(1)")
    g.e("v_cmp_ne_u64 vcc, %s, %s" % (sNON, vr(A, 2)))
    g.e("s_cbranch_vccz %s" % ok)
    g.e("buffer_load_dwordx2 %s, v%d, %s, 0 offen sc1" % (vr(A, 2), vaddr, sWS))
    g.e("s_add_u32 %s, %s, 1" % (sSPN, sSPN))
    g.e("s_waitcnt vmcnt(1)")
    g.e("v_cmp_ne_u64 vcc, %s, %s" % (sNON, vr(B, 2)))
    g.e("s_cmp_gt_u32 %s, %d" % (sSPN, SPIN_MAX)); g.e("s_cbranch_scc1 %s" % ok)
    g.e("s_cbranch_vccnz %s" % lp)
    g.lab(ok)
    g.e("s_mov_b64 exec, -1")

def setup_scalars(g, cut):
    g.e("s_cmp_eq_u32 %s, 0" % sBR)
    g.e("s_cselect_b32 s12, s36, s42"); g.e("s_cselect_b32 s13, s37, s43"); cut()
    g.e("s_mov_b32 s14, 0x%x" % WO_BYTES); g.e("s_mov_b32 s15, 0x20000"); cut()
    for (srd, a, n) in ((16, 48, WS_RECORDS), (20, 44, OUT_BYTES)):
        if srd == 16 and g.wsoff:
            g.e("s_add_u32 s16, s48, 0x%x" % (g.wsoff << 20)); g.e("s_addc_u32 s17, s49, 0"); cut()
        else:
            g.e("s_mov_b32 s%d, s%d" % (srd, a)); g.e("s_mov_b32 s%d, s%d" % (srd + 1, a + 1)); cut()
        g.e("s_mov_b32 s%d, 0x%x" % (srd + 2, n)); g.e("s_mov_b32 s%d, 0x20000" % (srd + 3)); cut()
    g.e("s_mov_b32 s68, 0"); g.e("s_mov_b32 s69, -1"); cut()
    g.e("s_mov_b32 %s, 0x%08x" % (sC, CSCALE)); g.e("s_lshl_b32 %s, %s, 10" % (sW1K, sWV)); cut()
    g.e("s_lshr_b32 %s, %s, 2" % (sHH, sWV)); g.e("s_sub_u32 %s, 3, %s" % (sT1, sP)); cut()
    g.e("s_cmp_lt_u32 %s, 4" % sWV); g.e("s_cselect_b32 %s, %s, %s" % (sRT, sT1, sP)); cut()
    g.e("s_lshl_b32 %s, %s, 3" % (sKVO, sBR)); g.e("s_add_u32 %s, %s, %s" % (sKVO, sKVO, sHP)); cut()
    g.e("s_lshl_b32 %s, %s, 4" % (sKVO, sKVO)); g.e("s_add_u32 %s, %s, %s" % (sKVO, sKVO, sR)); g.e("s_mul_i32 s37, %s, %d" % (sKVO, g.kvs)); g.e("s_lshl_b32 %s, %s, 15" % (sKVO, sKVO)); cut()
    if g.p3map:
        g.e("s_and_b32 %s, %s, 3" % (sCB, sHP)); g.e("s_lshr_b32 %s, %s, 2" % (sT0, sHP)); cut()
        g.e("s_lshl_b32 %s, %s, 1" % (sRB, sR)); g.e("s_add_u32 %s, %s, %s" % (sRB, sRB, sT0)); cut()
    elif g.map == 0:
        g.e("s_and_b32 %s, s2, 1" % sCB); g.e("s_lshl_b32 %s, %s, 1" % (sCB, sCB)); cut()
        g.e("s_bfe_u32 %s, s2, 0x10003" % sT0); g.e("s_add_u32 %s, %s, %s" % (sCB, sCB, sT0)); cut()
        g.e("s_bfe_u32 %s, s2, 0x20001" % sRB); g.e("s_lshl_b32 %s, %s, 3" % (sRB, sRB)); cut()
        g.e("s_bfe_u32 %s, s2, 0x30004" % sT0); g.e("s_add_u32 %s, %s, %s" % (sRB, sRB, sT0)); cut()
    else:
        g.e("s_and_b32 %s, s2, 1" % sCB); g.e("s_lshl_b32 %s, %s, 1" % (sCB, sCB)); cut()
        g.e("s_bfe_u32 %s, s2, 0x10003" % sT0); g.e("s_add_u32 %s, %s, %s" % (sCB, sCB, sT0)); cut()
        g.e("s_bfe_u32 %s, s2, 0x10001" % sRB); g.e("s_lshl_b32 %s, %s, 4" % (sRB, sRB)); cut()
        g.e("s_lshr_b32 %s, s2, 4" % sT0); g.e("s_add_u32 %s, %s, %s" % (sRB, sRB, sT0)); cut()
    g.e("s_mul_i32 %s, %s, 3584" % (sWOS, sWV)); g.e("s_lshl_b32 %s, %s, 8" % (sT0, sCB)); g.e("s_add_u32 %s, %s, %s" % (sWOS, sWOS, sT0)); cut()

def setup_vec(g, isA, cut):
    t0, t1, t2 = vT, vT + 1, vT + 2
    g.e("s_lshl_b32 %s, %s, 14" % (sT0, sHH)); g.e("s_lshl_b32 %s, %s, 12" % (sT1, sRT)); cut()
    g.e("s_add_u32 %s, %s, %s" % (sT0, sT0, sT1)); g.e("s_add_u32 %s, %s, %d" % (sT0, sT0, L_OWN)); g.e("v_add_u32 v%d, %s, v%d" % (vAD, sT0, vL16)); cut()
    for u in range(1, 9 if isA else 2):
        cross = ((L_R1 - L_OWN) if u <= 4 else (L_R2 - L_R1)) + 12288
        g.e("s_mov_b32 %s, 0x%x" % (sT1, cross & 0xffffffff))
        g.e("s_cmp_eq_u32 %s, %d" % (sRT, (u - 1) % 4))
        g.e("s_cselect_b32 %s, %s, 0x%x" % (sT0, sT1, (-4096) & 0xffffffff))
        g.e("v_add_u32 v%d, %s, v%d" % (vAD + u, sT0, vAD + u - 1)); cut()
    g.e("v_lshrrev_b32 v%d, 4, v%d" % (t0, vLANE)); g.e("v_lshlrev_b32 v%d, 2, v%d" % (t1, t0)); cut()
    g.e("v_and_b32 v%d, 15, v%d" % (t2, vLANE)); g.e("v_xor_b32 v%d, v%d, v%d" % (t1, t1, t2)); cut()
    g.e("v_mul_u32_u24 v%d, 896, v%d" % (vWOO, t0)); g.e("v_lshl_add_u32 v%d, v%d, 4, v%d" % (vWOO, t1, vWOO)); cut()
    g.e("s_cmp_eq_u32 %s, 3" % sCB); g.e("s_cselect_b32 %s, 8, 64" % sT0)
    g.e("v_mov_b32 v%d, 0x%x" % (t2, OOB)); cut()
    g.e("v_cmp_le_u32 vcc, %s, v%d" % (sT0, t1))
    g.e("s_lshl_b32 %s, %s, 7" % (sT1, sHH)); g.e("v_add_u32 v%d, %s, v%d" % (vG1, sT1, vGR))
    g.e("v_cndmask_b32 v%d, v%d, v%d, vcc" % (vWOO, vWOO, t2)); cut()

def masks(g, isA):
    g.e("v_mov_b32 v%d, 0x%08x" % (vT, NEG))
    for r in range(16):
        if isA:
            g.mask(lane_mask(lambda l: key_of(r, l) <= (l & 31)))
            g.e("v_cndmask_b32 v%d, v%d, 0, %s" % (vC1 + r, vT, sTM))
            g.e("v_cndmask_b32 v%d, 0, v%d, %s" % (vC2 + r, vT, sTM))
        else:
            g.mask(lane_mask(lambda l: ((l & 31) - key_of(r, l)) in range(0, 16, 2)))
            g.e("v_cndmask_b32 v%d, v%d, 0, %s" % (vC1 + r, vT, sTM))
            g.mask(lane_mask(lambda l: (32 + (l & 31) - key_of(r, l)) in range(0, 16, 2)))
            g.e("v_cndmask_b32 v%d, v%d, 0, %s" % (vC2 + r, vT, sTM))
    if not isA:
        skip = g.newlab("L_c2")
        g.e("s_or_b32 %s, %s, %s" % (sT0, sR, sRT)); g.e("s_cmp_lg_u32 %s, 0" % sT0); g.e("s_cbranch_scc1 %s" % skip)
        for r in range(16): g.e("v_mov_b32 v%d, v%d" % (vC2 + r, vT))
        g.lab(skip)

def xrd_addr(g, dst, srow_shift_reg):
    t0, t1, t2 = vT, vT + 1, vT + 2
    g.e("v_and_b32 v%d, 31, v%d" % (t0, vLANE)); g.e("v_bfe_u32 v%d, v%d, 1, 3" % (t1, vLANE))
    g.e("v_lshrrev_b32 v%d, 5, v%d" % (t2, vLANE)); g.e("v_xor_b32 v%d, v%d, v%d" % (t1, t1, t2))
    g.e("v_lshlrev_b32 v%d, 7, v%d" % (t0, t0)); g.e("v_add_u32 v%d, %s, v%d" % (t0, srow_shift_reg, t0))
    g.e("v_lshl_add_u32 v%d, v%d, 4, v%d" % (dst, t1, t0))
    for k in range(1, 4): g.e("v_xor_b32 v%d, %d, v%d" % (dst + k, k << 5, dst))
def wrd_addr(g, dst, colbyte):
    t0, t1, t2 = vT, vT + 1, vT + 2
    g.e("v_bfe_u32 v%d, v%d, 2, 2" % (t0, vLANE)); g.e("v_lshrrev_b32 v%d, 5, v%d" % (t2, vLANE))
    g.e("v_lshl_add_u32 v%d, v%d, 3, v%d" % (t1, t2, t0)); g.e("v_lshlrev_b32 v%d, 7, v%d" % (t1, t1))
    g.e("v_lshrrev_b32 v%d, 1, v%d" % (t0, t0)); g.e("v_lshlrev_b32 v%d, 6, v%d" % (t0, t0))
    g.e("v_and_b32 v%d, 3, v%d" % (t2, vLANE)); g.e("v_lshlrev_b32 v%d, 3, v%d" % (t2, t2))
    g.e("v_and_b32 v%d, 16, v%d" % (dst, vLANE)); g.e("v_lshl_add_u32 v%d, v%d, 1, v%d" % (t2, dst, t2))
    g.e("v_add_u32 v%d, %s, v%d" % (t2, colbyte, t2))
    g.e("v_xor_b32 v%d, v%d, v%d" % (t2, t2, t0)); g.e("v_add_u32 v%d, v%d, v%d" % (dst, t1, t2))

def producer_prep(g):
    t0, t1, t2, t3 = vT, vT + 1, vT + 2, vT + 3
    g.e("v_lshrrev_b32 v%d, 3, v%d" % (t0, vLANE)); g.e("v_lshrrev_b32 v%d, 4, v%d" % (t1, vLANE))
    g.e("v_xor_b32 v%d, v%d, v%d" % (t1, t1, vLANE)); g.e("v_and_b32 v%d, 7, v%d" % (t1, t1))
    g.e("v_mul_u32_u24 v%d, 896, v%d" % (t2, t0))
    g.e("v_lshl_add_u32 v%d, v%d, 4, v%d" % (vXO, t1, t2))
    g.e("v_xor_b32 v%d, 64, v%d" % (t3, vXO))
    g.e("v_add_u32 v%d, %d, v%d" % (vXO + 1, 7168 - 1024, t3))
    g.e("v_add_u32 v%d, %d, v%d" % (vXO + 2, 2 * (7168 - 1024), vXO))
    g.e("v_add_u32 v%d, %d, v%d" % (vXO + 3, 3 * (7168 - 1024), t3))
    g.e("v_lshrrev_b32 v%d, 2, v%d" % (t1, vLANE)); g.e("v_and_b32 v%d, 4, v%d" % (t1, t1))
    g.e("v_and_b32 v%d, 7, v%d" % (t2, vLANE)); g.e("v_xor_b32 v%d, v%d, v%d" % (t1, t1, t2)); g.e("v_min_u32 v%d, 6, v%d" % (t1, t1))
    g.e("v_mul_u32_u24 v%d, 2688, v%d" % (t2, t0)); g.e("v_lshl_add_u32 v%d, v%d, 4, v%d" % (t2, t1, t2))
    for q in range(4):
        t, h = divmod(q, 2)
        g.e("v_add_u32 v%d, %d, v%d" % (vWO + q, WBIAS + h * 8 * 2688 + (t + 1) * 896 - q * 1024, t2))
    for h in range(2): g.e("v_add_u32 v%d, %d, v%d" % (vWQ + h, WBIAS + h * 8 * 2688 - h * 1024, t2))
    g.e("s_mul_i32 %s, %s, %d" % (sXS, sR, 128 * 896)); g.e("s_mul_i32 %s, %s, %d" % (sT1, sP, 32 * 896)); g.e("s_add_u32 %s, %s, %s" % (sXS, sXS, sT1))
    g.e("s_mul_i32 %s, %s, 112" % (sWSO, sHP)); g.e("s_mul_i32 %s, %s, %d" % (sT1, sP, 16 * 2688)); g.e("s_add_u32 %s, %s, %s" % (sWSO, sWSO, sT1))
    g.e("s_lshl_b32 %s, %s, 12" % (sXB, sP)); g.e("s_lshl_b32 %s, %s, 11" % (sWB, sP))

def issue_item(g, vm, i):
    if i < 7:
        slot = (i % 5) * SLOT
        g.e("s_add_u32 m0, %s, %d" % (sXB, slot))
        if i: g.e("s_add_u32 %s, %s, 128" % (sXS, sXS))
        else: g.e("s_nop 0")
        for m in range(4): g.e("buffer_load_dwordx4 v%d, %s, %s offen%s%s lds" % (vXO + m, sX, sXS, " offset:%d" % (m * 1024) if m else "", g.ldf))
        g.e("s_add_u32 m0, %s, %d" % (sXB, slot + 16384))
        if i: g.e("s_add_u32 %s, %s, %d" % (sWSO, sWSO, 64 * 2688))
        else: g.e("s_mov_b32 %s, %s" % (sKC, sWSO))
        for q in range(4):
            if i == 2 and q == 3: g.e("s_mov_b64 exec, %s" % sHM)
            g.e("buffer_load_dwordx4 v%d, %s, %s offen%s%s lds" % (vWO + q, sW, sWSO, " offset:%d" % (q * 1024) if q else "", g.ldf))
        if i == 2: g.e("s_mov_b64 exec, -1")
        vm.add(i, 8)
    else:
        cs = range(4) if i == 7 else range(4, 7)
        for c in cs:
            g.e("s_add_u32 m0, %s, %d" % (sWB, L_WQ + c * 8192))
            if c: g.e("s_add_u32 %s, %s, %d" % (sKC, sKC, 64 * 2688))
            else: g.e("s_nop 0")
            g.e("buffer_load_dwordx4 v%d, %s, %s offen lds" % (vWQ, sW, sKC))
            if c == 3: g.e("s_mov_b64 exec, %s" % sHM)
            g.e("buffer_load_dwordx4 v%d, %s, %s offen offset:1024 lds" % (vWQ + 1, sW, sKC))
            if c == 3: g.e("s_mov_b64 exec, -1")
        vm.add(i, 2 * len(cs))

def early_dbg(g):
    g.e("s_mov_b32 s24, s46"); g.e("s_mov_b32 s25, s47"); g.e("s_mov_b32 s26, 256"); g.e("s_mov_b32 s27, 0x20000")
    g.e("v_mov_b32 v%d, 0" % vZ); g.e("v_lshlrev_b32 v%d, 4, v%d" % (vL16, vLANE))

def producer(g, isA):
    dist = g.dA if isA else g.dB
    assert dist >= 2
    vm = Q(); lg = Q()
    vm.add(0, 8)
    if g.pprio: g.e("s_setprio %d" % g.pprio)
    m = lane_mask(lambda l: ((l & 7) ^ (4 * ((l >> 4) & 1))) != 7)
    g.e("s_mov_b32 s38, 0x%08x" % (m & 0xffffffff)); g.e("s_mov_b32 s39, 0x%08x" % (m >> 32))
    g.e("s_cmp_eq_u32 %s, 7" % sWV); g.e("s_cselect_b64 %s, %s, -1" % (sHM, sHM))
    XW = lambda wn, k: (vXRD + k) if wn == 0 else (64 + 4 * (wn - 1) + k)
    vm.add(1, 8)
    g.stamp(1)
    nxt = 2
    for i in range(9):
        g.wv(vm.wait(i))
        if i >= 1: g.wl(lg.wait(("x", i - 1)))
        def pst(k):
            if "pdet" in g.exp and i in (3, 4, 5): g.only = None; g.stamp(1 + (i - 3) * 4 + k); g.only = (0, 14)
        pst(0)
        bump(g, vFB); lg.add("f")
        if i == 0: g.stamp(2)
        if "pit" in g.exp and i >= 1: g.only = None; g.stamp(2 + i); g.only = (0, 1, 2, 14)
        if i < 7:
            if i + dist >= 5 and i + dist <= 8:
                g.e("ds_read_b32 v%d, v%d offset:512" % (vFV, vFA)); lg.add("dn")
            if "nopx" not in g.exp:
                for ks in range(4): g.e("ds_read_b128 %s, v%d offset:%d" % (vr(vXF + 16 * i + 4 * ks, 4), XW((i % 5) // 2, ks), (i % 5 % 2) * SLOT))
                lg.add(("x", i), 4)
        if g.gate and isA and i == g.gsig:
            sk = g.newlab("L_gs")
            g.e("s_cmp_lg_u32 %s, 4" % sWV); g.e("s_cbranch_scc1 %s" % sk)
            get_nonce(g)
            g.e("s_lshl_b32 %s, s2, 7" % sT0); g.e("s_add_u32 %s, %s, 0x%x" % (sT0, sT0, WS_GFLAG))
            store_flag(g, sT0)
            g.lab(sk)
        while nxt <= 8 and nxt <= i + dist:
            if g.gate and not isA and nxt == g.gitem:
                g.e("s_waitcnt vmcnt(0)"); vm.clear()
                get_nonce(g)
                g.e("s_sub_u32 %s, s2, 128" % sT0); g.e("s_lshl_b32 %s, %s, 7" % (sT0, sT0)); g.e("s_add_u32 %s, %s, 0x%x" % (sT0, sT0, WS_GFLAG))
                g.e("v_mov_b32 v%d, %s" % (vT, sT0))
                poll(g, vT, "1")
                if g.touch == 3: touch_own(g, g.gitem + 1); vm.add("t", 2)
            pst(1)
            if nxt >= 5:
                n = lg.wait("dn")
                if n is None: spin(g, nxt - 4, vFA, 512, vFV); lg.clear()
                else:
                    g.wl(n); check(g, nxt - 4, vFA, 512, vFV)
            pst(2)
            if nxt == 8 and g.late8: break
            if nxt == 7 and g.late7: break
            issue_item(g, vm, nxt); nxt += 1
            pst(3)
        if i == 0 and g.gate:
            early_dbg(g)
            g.e("s_mov_b32 s16, s48"); g.e("s_mov_b32 s17, s49"); g.e("s_mov_b32 s18, 0x%x" % WS_RECORDS); g.e("s_mov_b32 s19, 0x20000")
            g.e("buffer_load_dwordx2 %s, v%d, %s, 0 offen sc1" % (vr(vNON, 2), vZ, sDBG)); vm.add("non0")
        if i == g.ps1:
            for wn in (1, 2):
                for k in range(4): g.e("v_add_u32 v%d, 0x%x, v%d" % (XW(wn, k), wn * 65536, vXRD + k))
            early_dbg(g)
            for grp in g.capture(lambda cut: setup_scalars(g, cut)): g.l += grp
        if i == g.ps2:
            wrd_addr(g, vWRD, 0); g.e("v_add_u32 v%d, %d, v%d" % (vWRD, L_WQ, vWRD)); wrd_addr(g, vQW, 56); g.e("v_add_u32 v%d, %d, v%d" % (vQW, L_WQ, vQW))
            masks(g, isA)
        if i == 6 and g.late7:
            spin(g, 4, vGR, F_ST, vFV); lg.clear()
            bump(g, vGW, F_XD); lg.add("f")
            issue_item(g, vm, 7); issue_item(g, vm, 8); nxt = 9
        if i == 7:
            if not g.late7: bump(g, vGW, F_XD); lg.add("f")
            g.e("buffer_load_dwordx2 %s, v%d, %s, 0 offen sc1" % (vr(vNON, 2), vZ, sDBG)); vm.add("non")
            g.stamp(3)
            q_phase_begin = True
            break
    late = g.capture(lambda cut: setup_vec(g, isA, cut))
    aQ = vACC; WB = 64
    def rd(j, hds=(0, 1)):
        c, ks = divmod(j, 4)
        b = WB + (j % 3) * 8
        for hd in hds:
            for h in range(2):
                g.e("ds_read_b64_tr_b16 %s, v%d offset:%d" % (vr(b + 4*hd + 2*h, 2), vQW if hd else vWRD, c * 8192 + ks * 2048 + h * 512))
            lg.add((j, hd), 2)
    spin(g, 8, vFA, 0, vFV); lg.clear()
    if g.late8 == 1:
        spin(g, 4, vGR, F_ST, vFV); issue_item(g, vm, 8)
    if g.qwait: spin(g, 7, vFA, 512, vFV)
    g.stamp(5)
    rd(0); rd(1)
    for j in range(28):
        b = WB + (j % 3) * 8
        if j == g.qpj and g.qprio: g.e("s_setprio %d" % g.qprio)
        if j == g.late8 and g.late8 > 1: issue_item(g, vm, 8)
        if j == 12 - 0 * g.late8 + (0 if g.late8 else -2):
            g.wv(vm.wait(8)); bump(g, vFB); lg.add("f")
        for hd in range(2):
            g.wl(lg.wait((j, hd)))
            g.mfma(aQ + 16 * hd, b + 4 * hd, vXF + 4 * j, None if j == 0 else aQ + 16 * hd)
            if hd == 0:
                if j == 13: g.e("ds_read_b32 v%d, v%d" % (vFV, vFA)); lg.add("flag")
                if j == 14:
                    g.wl(lg.wait("flag")); check(g, 9, vFA, 0, vFV); g.stamp(6)
            if j + 2 < 28: rd(j + 2, (hd,))
            if late and j >= 16: g.l += late.pop(0)
    for grp in late: g.l += grp
    g.e("v_mov_b32 v%d, %s" % (vT + 1, sC))
    g.e("v_cndmask_b32 v%d, v%d, 0, %s" % (vT + 2, vT + 1, sUP))
    g.e("s_lshl_b32 %s, %s, 11" % (sT0, sP)); g.e("s_add_u32 %s, %s, %d" % (sT0, sT0, L_QA)); g.e("v_add_u32 v%d, %s, v%d" % (vT, sT0, vL16))
    g.e("s_nop 5")
    for hd in range(2):
        a = aQ + 16 * hd; p = a if hd == 0 else vQF
        if g.qround:
            for i in range(8):
                g.e("v_cvt_pk_bf16_f32 v%d, v%d, v%d" % (a + 2*i + 1, a + 2*i, a + 2*i + 1))
                g.e("v_lshlrev_b32 v%d, 16, v%d" % (a + 2*i, a + 2*i + 1))
                g.e("v_and_b32 v%d, 0xffff0000, v%d" % (a + 2*i + 1, a + 2*i + 1))
        for r in range(16): g.e("v_mul_f32 v%d, v%d, v%d" % (a + r, vT + (2 if r >= 12 else 1), a + r))
        for i in range(8): g.e("v_cvt_pk_bf16_f32 v%d, v%d, v%d" % (p + i, a + 2*i, a + 2*i + 1))
        if hd == 0:
            for f in range(2): g.e("ds_write_b128 v%d, %s offset:%d" % (vT, vr(p + 4*f, 4), f * 1024))
            g.e("s_waitcnt lgkmcnt(0)")
            bump(g, vGW, F_QRDY)
    if g.qprio: g.e("s_setprio %d" % g.aprio)
    g.e("s_waitcnt vmcnt(0)")
    get_nonce(g)
    if g.wotouch and g.p3map:
        g.e("s_and_b32 %s, %s, 3" % (sT0, sR)); g.e("s_mul_i32 %s, %s, %d" % (sT0, sT0, 112 * 896))
        g.e("s_lshl_b32 %s, %s, 8" % (sT1, sCB)); g.e("s_add_u32 %s, %s, %s" % (sT0, sT0, sT1))
        g.e("s_and_b32 %s, %s, 1" % (sT1, sP)); g.e("s_lshl_b32 %s, %s, 7" % (sT1, sT1)); g.e("s_add_u32 %s, %s, %s" % (sT0, sT0, sT1))
        g.e("s_lshr_b32 %s, %s, 1" % (sT1, sP)); g.e("s_mul_i32 %s, %s, %d" % (sT1, sT1, 56 * 896)); g.e("s_add_u32 %s, %s, %s" % (sT0, sT0, sT1))
        g.e("v_mul_u32_u24 v%d, 896, v%d" % (vT, vLANE))
        g.mask((1 << 56) - 1); g.e("s_mov_b64 exec, %s" % sTM)
        g.e("buffer_load_dword v%d, v%d, %s, %s offen" % (vGX + 1, vT, sWO, sT0))
        g.e("s_mov_b64 exec, -1")
    elif g.wotouch:
        nt = g.newlab("L_nwt")
        g.e("s_cmp_gt_u32 %s, 5" % sWV); g.e("s_cbranch_scc1 %s" % nt)
        nsh = 8 if g.map == 0 else 16
        g.e("s_and_b32 %s, %s, %d" % (sT0, sRB, nsh - 1)); g.e("s_mul_i32 %s, %s, %d" % (sT0, sT0, (448 // nsh) * 896))
        g.e("s_lshl_b32 %s, %s, 8" % (sT1, sCB)); g.e("s_add_u32 %s, %s, %s" % (sT0, sT0, sT1))
        g.e("s_and_b32 %s, %s, 1" % (sT1, sWV)); g.e("s_lshl_b32 %s, %s, 7" % (sT1, sT1)); g.e("s_add_u32 %s, %s, %s" % (sT0, sT0, sT1))
        g.e("v_mul_u32_u24 v%d, 896, v%d" % (vT, vLANE))
        mm = (1 << (448 // nsh)) - 1
        g.mask(mm); g.e("s_mov_b64 exec, %s" % sTM)
        g.e("buffer_load_dword v%d, v%d, %s, %s offen" % (vGX + 1, vT, sWO, sT0))
        g.e("s_mov_b64 exec, -1")
        g.lab(nt)
    g.stamp(4)
    if g.woea == 1:
        spin(g, 4, vGR, F_QRDY, vFV)
        g.e("s_sub_u32 %s, %s, %d" % (sT2, sWOS, 4 * 3584)); g.e("s_lshl_b32 %s, %s, 10" % (sT1, sP))
        for m in range(8):
            sk = g.newlab("L_w1s")
            if m == 7:
                g.e("s_cmp_eq_u32 %s, 7" % sWV); g.e("s_cbranch_scc1 %s" % sk)
            g.e("s_add_u32 m0, %s, %d" % (sT1, L_W1A + m * 4096))
            g.e("s_add_u32 %s, %s, %d" % (sT3, sT2, m * 4 * 3584))
            g.e("buffer_load_dwordx4 v%d, %s, %s offen lds" % (vWOO, sWO, sT3))
            if m == 7: g.lab(sk)
    spin(g, 4, vGR, F_OWN, vFV)

def consumer(g, isA):
    t0, t1, t2 = vT, vT + 1, vT + 2
    early_dbg(g)
    skip = g.newlab("L_non")
    g.e("s_or_b32 %s, s2, %s" % (sT0, sWV)); g.e("s_cmp_lg_u32 %s, 0" % sT0); g.e("s_cbranch_scc1 %s" % skip)
    g.e("s_memrealtime %s" % sNON); g.e("s_waitcnt lgkmcnt(0)"); g.e("s_or_b32 s60, s60, 1")
    g.e("v_mov_b32 v%d, s60" % vNON); g.e("v_mov_b32 v%d, s61" % (vNON + 1))
    g.e("s_mov_b64 exec, 1")
    g.e("buffer_store_dwordx2 %s, v%d, %s, 0 offen sc1" % (vr(vNON, 2), vZ, sDBG))
    g.e("s_mov_b64 exec, -1")
    g.lab(skip)
    if g.ctouch:
        ct = g.newlab("L_ct")
        g.e("s_cmp_lg_u32 %s, 1" % sWV); g.e("s_cbranch_scc1 %s" % ct)
        pc = g.newlab("L_pc")
        g.e("s_getpc_b64 s[16:17]")
        g.lab(pc)
        g.e("s_sub_u32 s16, s16, %s-%s_kernel" % (pc, NAME)); g.e("s_subb_u32 s17, s17, 0")
        g.e("s_mov_b32 s18, L_codeend-%s_kernel" % NAME); g.e("s_mov_b32 s19, 0x20000")
        g.e("s_lshr_b32 %s, s2, 3" % sT0); g.e("s_mul_i32 %s, %s, %d" % (sT0, sT0, 16 * 128))
        g.e("v_lshlrev_b32 v%d, 7, v%d" % (vT, vLANE))
        g.e("s_mov_b64 exec, 0xffff")
        g.e("buffer_load_dword v192, v%d, s[16:19], %s offen" % (vT, sT0))
        g.e("s_mov_b64 exec, -1")
        g.lab(ct)
    if g.touch and not isA: touch(g)
    g.e("s_and_b32 %s, %s, 1" % (sT2, sWV)); g.e("s_lshl_b32 %s, %s, 13" % (sT2, sT2))
    xrd_addr(g, vXRD, sT2)
    g.e("s_lshr_b32 %s, %s, 1" % (sT3, sWV)); g.e("s_mul_i32 %s, %s, 56" % (sT1, sT3))
    wrd_addr(g, vWRD, sT1)
    sa = lambda wn, k: vQF + 5 * wn + k
    for wn in range(3):
        for k in range(4): g.e("v_add_u32 v%d, 0x%x, v%d" % (sa(wn, k), wn * 65536, vXRD + k))
        g.e("v_add_u32 v%d, 0x%x, v%d" % (sa(wn, 4), wn * 65536, vWRD))
    g.e("s_lshl_b32 %s, %s, 13" % (sT4, sWV))
    g.e("s_add_u32 %s, %s, %d" % (sT0, sT4, L_OWN)); g.e("v_add_u32 v%d, %s, v%d" % (vKVW, sT0, vL16))
    for grp in g.capture(lambda cut: setup_scalars(g, cut)): g.l += grp
    if g.ptouch:
        pt = g.newlab("L_pt")
        g.e("s_cmp_lg_u32 %s, 1" % sWV); g.e("s_cbranch_scc1 %s" % pt)
        g.e("v_lshlrev_b32 v%d, 21, v%d" % (vT, vLANE))
        g.e("s_lshl_b32 %s, s2, 7" % sT0); g.e("s_add_u32 %s, %s, 0x100000" % (sT0, sT0))
        g.e("s_mov_b64 exec, 0x1ff")
        g.e("buffer_load_dword v193, v%d, %s, %s offen" % (vT, sWS, sT0))
        g.e("s_mov_b64 exec, 3")
        g.e("buffer_load_dword v194, v%d, %s, %s offen" % (vT, sOUT, sT0))
        g.e("s_mov_b64 exec, 1")
        g.e("s_lshl_b32 %s, s2, 7" % sT0)
        g.e("buffer_load_dword v195, v%d, %s, %s offen" % (vT, sWO, sT0))
        g.e("s_mov_b64 exec, -1")
        g.lab(pt)
    g.stamp(1)
    lg = Q()
    KF = g.kfirst
    xbuf = lambda j: 192 if (KF and j == 27) else vXB + (j % 3) * 8
    kbuf = lambda j: vWB + (j % 3) * 8
    vbuf = lambda j: (200 + (j - 24) * 4) if (KF and j >= 24) else vWB + (j % 3) * 8 + 4
    def rd_ops(j):
        i, ks = divmod(j, 4)
        xb = xbuf(j)
        sl = i % 5; ax = sa(sl // 2, ks); aw = sa(sl // 2, 4); base = (sl % 2) * SLOT
        tr = lambda t, h: "ds_read_b64_tr_b16 %s, v%d offset:%d" % (vr((vbuf(j) if t else kbuf(j)) + 2*h, 2), aw, base + 16384 + ks * 4096 + t * 2048 + h * 512)
        return [((j, "x0"), "ds_read_b128 %s, v%d offset:%d" % (vr(xb, 4), ax, base)), ((j, "k"), tr(0, 0)), ((j, "k"), tr(0, 1)),
                ((j, "x1"), "ds_read_b128 %s, v%d offset:%d" % (vr(xb + 4, 4), ax, base + 4096)), ((j, "v"), tr(1, 0)), ((j, "v"), tr(1, 1))]
    def emit(op):
        g.e(op[1]); lg.add(op[0])
    spin(g, 1, vFA, 0, vFV)
    g.stamp(2)
    for j in range(2):
        for op in rd_ops(j): emit(op)
    aK, aV = vACC, vACC + 32
    dist = eval(g.cdist)
    for j in range(28):
        xb = xbuf(j)
        nx = rd_ops(j + 2) if j + 2 < 28 else []
        mms = [((j, "k"), aK, kbuf(j), xb), ((j, "x1"), aK + 16, kbuf(j), xb + 4)]
        tailk = KF and j >= 24
        if not tailk: mms += [((j, "v"), aV, xb, vbuf(j)), (None, aV + 16, xb + 4, vbuf(j))]
        for n, (dep, d, a, b) in enumerate(mms):
            if dep is not None: g.wl(lg.wait(dep))
            g.mfma(d, a, b, None if j == 0 else d)
            if n == 0 and nx and (j + 2) % 4 == 0:
                g.wl(lg.wait(("flag", (j + 2) // 4))); check(g, (j + 2) // 4 + 1, vFA, 0, vFV)
                if "pit" in g.exp: g.only = None; g.stamp(2 + (j + 2) // 4); g.only = (0, 1, 2, 14)
            for _ in range(3 if tailk else dist[n]):
                if nx: emit(nx.pop(0))
            if n == 1 and (j + 3) % 4 == 0 and j + 3 < 28:
                g.e("ds_read_b32 v%d, v%d" % (vFV, vFA)); lg.add(("flag", (j + 3) // 4))
            if n == 3 and j % 4 == 3:
                bump(g, vFB); lg.add("done")
            if n == 1 and j == 26:
                g.e("ds_read_b32 v%d, v%d offset:512" % (vFV, vFA)); lg.add("alldone")
            if j == 18 and n == 3: g.e("buffer_load_dwordx2 %s, v%d, %s, 0 offen sc1" % (vr(vNON, 2), vZ, sDBG))
    def pre():
        g.e("v_mov_b32 v%d, 0x3f803f80" % vT)
        g.mask(lane_mask(lambda l: (l & 31) == 28))
        g.e("s_add_u32 %s, %s, s37" % (sT1, sT4)); g.e("s_add_u32 %s, %s, 4096" % (sT0, sT1))
        if not isA:
            g.e("s_bitcmp1_b32 %s, 0" % sWV); g.e("s_cselect_b32 %s, %s, 0x%x" % (sT0, sT0, OOB))
    def pub(t, f, p):
        if isA or t == 1: g.e("buffer_store_dwordx4 %s, v%d, %s, %s offen offset:%d%s" % (vr(p, 4), vL16, sWS, sT0 if t else sT1, f * 1024, g.stf))
    def packK(t):
        p = aK + 16 * t
        for i in range(8): g.e("v_cvt_pk_bf16_f32 v%d, v%d, v%d" % (p + i, p + 2*i, p + 2*i + 1))
        g.e("v_cndmask_b32 v%d, v%d, v%d, %s" % (p + 6, p + 6, vT, sUP))
        for f in range(2): pub(t, f, p + 4*f)
    def packV(t):
        p = aV + 16 * t
        for f in range(2):
            for i in range(4*f, 4*f + 4): g.e("v_cvt_pk_bf16_f32 v%d, v%d, v%d" % (p + i, p + 2*i, p + 2*i + 1))
            for i in range(4*f, 4*f + 4): g.e("v_cndmask_b32 v%d, v%d, v%d, %s" % (p + i, p + i, vT, sTM))
            pub(t, 2 + f, p + 4*f)
    if KF:
        to = (0, 1) if isA else (1, 0)
        fill = [x for grp in g.capture(lambda cut: (pre(), g.e("s_nop 1"), packK(to[0]), packK(to[1]))) for x in grp]
        g.e("s_waitcnt lgkmcnt(0)"); lg.clear()
        bump(g, vFB)
        seq = [(t, j) for t in to for j in range(24, 28)]
        for n, (t, j) in enumerate(seq):
            g.mfma(aV + 16 * t, xbuf(j) + 4 * t, vbuf(j), aV + 16 * t)
            k = 5 if n < 2 else 4
            g.l += fill[:k]; del fill[:k]
        g.l += fill
        g.stamp(3)
        check(g, 5, vFA, 512, vFV)
        packV(to[0]); packV(to[1])
    else:
        g.stamp(3)
        pre()
        g.wl(lg.wait("alldone")); check(g, 5, vFA, 512, vFV)
        g.e("s_nop 1")
        if isA: packK(0); packK(1); packV(0); packV(1)
        else: packK(1); packV(1); packK(0); packV(0)
    bump(g, vGW, F_ST)
    for t in range(2):
        for f in range(4):
            p = (aK + 16*t + 4*f) if f < 2 else (aV + 16*t + 4*(f - 2))
            g.e("ds_write_b128 v%d, %s offset:%d" % (vKVW, vr(p, 4), t * 4096 + f * 1024))
    for grp in g.capture(lambda cut: setup_vec(g, isA, cut)): g.l += grp
    g.e("s_waitcnt lgkmcnt(0)")
    bump(g, vGW, F_OWN)
    g.e("s_lshr_b32 %s, %s, 8" % (sT1, sKVO)); g.e("s_lshl_b32 %s, %s, 3" % (sT2, sWV))
    g.e("s_add_u32 %s, %s, %s" % (sT1, sT1, sT2)); g.e("s_add_u32 %s, %s, 0x%x" % (sT1, sT1, WS_KVFLAG))
    if isA and g.ksplit:
        g.e("s_waitcnt vmcnt(4)")
        get_nonce(g)
        store_flag(g, sT1)
        g.e("s_add_u32 %s, %s, 64" % (sT1, sT1))
        g.e("s_waitcnt vmcnt(1)")
        store_flag(g, sT1)
    else:
        g.e("s_waitcnt vmcnt(0)")
        get_nonce(g)
        store_flag(g, sT1)
    g.stamp(4)
    done = g.newlab("L_ldd")
    if g.mfirst: masks(g, isA)
    if not isA or g.r2late:
        g.e("s_cmp_lt_u32 %s, 2" % sWV); g.e("s_cbranch_scc1 %s" % done)
    if isA and g.ksplit == 2: fetch_r1(g)
    else: fetch_remote(g, isA, split=(isA and g.ksplit and g.r2late))
    if not isA:
        g.e("s_waitcnt vmcnt(0)")
        bump(g, vFB)
    g.lab(done)
    g.stamp(6)
    if not g.mfirst: masks(g, isA)
    g.e("s_lshl_b32 %s, %s, 11" % (sT0, sRT)); g.e("s_add_u32 %s, %s, %d" % (sT0, sT0, L_QA)); g.e("v_add_u32 v%d, %s, v%d" % (vT, sT0, vL16))
    spin(g, 4, vGR, F_OWN, vFV); spin(g, 4, vGR, F_QRDY, vFV)
    for f in range(2): g.e("ds_read_b128 %s, v%d offset:%d" % (vr(vQF + 4*f, 4), vT, f * 1024))

def fetch_remote(g, isA, split=False):
    both = isA and g.ksplit
    g.e("s_lshr_b32 %s, %s, 1" % (sT3, sRT))
    spin(g, 7, vFA, 512, vFV); spin(g, 4, vGR, F_XD, vFV)
    g.e("s_and_b32 %s, %s, 1" % (sT2, sRT)); g.e("s_add_u32 %s, %s, 1" % (sT4, sT3))
    g.e("s_lshl_b32 %s, %s, 15" % (sT0, sT4)); g.e("s_sub_u32 %s, %s, %s" % (sXS, sKVO, sT0))
    g.e("s_lshr_b32 %s, %s, 8" % (sT0, sXS)); g.e("s_lshl_b32 %s, %s, 4" % (sT1, sT2)); g.e("s_add_u32 %s, %s, %s" % (sT0, sT0, sT1))
    g.e("s_add_u32 %s, %s, 0x%x" % (sT0, sT0, WS_KVFLAG))
    g.e("v_and_b32 v%d, 1, v%d" % (vT, vLANE)); g.e("v_lshlrev_b32 v%d, 3, v%d" % (vT, vT)); g.e("v_add_u32 v%d, %s, v%d" % (vT, sT0, vT))
    g.e("v_and_b32 v%d, 2, v%d" % (vT + 1, vLANE)); g.e("v_lshl_add_u32 v%d, v%d, 5, v%d" % (vT, vT + 1, vT))
    g.e("s_lshl_b32 %s, %s, 7" % (sT0, sRT)); g.e("s_lshl_b32 %s, %s, 6" % (sT1, sT3)); g.e("s_sub_u32 %s, %s, %s" % (sT0, sT0, sT1))
    g.e("s_add_u32 %s, %s, 124" % (sT0, sT0)); g.e("v_add_u32 v%d, %s, v%d" % (vFB, sT0, vGW))
    g.e("s_mul_i32 %s, %s, %d" % (sT0, sT4, g.kvs)); g.e("s_sub_u32 %s, s37, %s" % (sT0, sT0))
    g.e("s_lshl_b32 %s, %s, 14" % (sT2, sT2)); g.e("s_add_u32 %s, %s, %s" % (sWSO, sT0, sT2))
    g.e("s_lshl_b32 %s, %s, 15" % (sT0, sT3)); g.e("s_sub_u32 %s, %d, %s" % (sT0, L_R1, sT0)); g.e("s_add_u32 %s, %s, %s" % (sT2, sT2, sT0))
    g.e("s_cmp_lt_u32 %s, %s" % (sR, sT4)); g.e("s_cselect_b32 %s, 0x%x, %s" % (sWSO, OOB, sWSO))
    def pl(mask):
        nopoll = g.newlab("L_nopoll")
        g.e("s_cmp_lt_u32 %s, %s" % (sR, sT4)); g.e("s_cbranch_scc1 %s" % nopoll)
        poll(g, vT, mask)
        g.lab(nopoll)
    def dma(fs):
        for t in ((3, 2, 1, 0) if isA else (3,)):
            g.e("s_add_u32 m0, %s, %d" % (sT2, t * 4096))
            g.e("s_add_u32 %s, %s, %d" % (sT0, sWSO, t * 4096))
            for f in fs: g.e("buffer_load_dwordx4 v%d, %s, %s offen offset:%d sc1 lds" % (vL16, sWS, sT0, f * 1024))
    if split:
        pl("3"); g.stamp(5); dma((0, 1))
        g.e("s_waitcnt vmcnt(0)"); bump(g, vFB)
        pl("12"); dma((2, 3))
    else:
        pl(("15" if both else "3") if isA else "2"); g.stamp(5); dma((0, 1, 2, 3))

def fetch_r1(g):
    spin(g, 7, vFA, 512, vFV); spin(g, 4, vGR, F_XD, vFV)
    g.e("s_lshr_b32 %s, %s, 8" % (sT0, sKVO)); g.e("s_lshl_b32 %s, %s, 6" % (sT1, sRT)); g.e("s_add_u32 %s, %s, %s" % (sT0, sT0, sT1))
    g.e("s_add_u32 %s, %s, 0x%x" % (sT0, sT0, WS_KVFLAG - 128))
    g.e("v_lshlrev_b32 v%d, 3, v%d" % (vT, vLANE)); g.e("v_add_u32 v%d, %s, v%d" % (vT, sT0, vT))
    g.e("s_lshl_b32 %s, %s, 11" % (sT2, sRT))
    g.e("s_sub_u32 %s, s37, %d" % (sWSO, g.kvs)); g.e("s_add_u32 %s, %s, %s" % (sWSO, sWSO, sT2))
    g.e("s_cmp_eq_u32 %s, 0" % sR); g.e("s_cselect_b32 %s, 0x%x, %s" % (sWSO, OOB, sWSO))
    nopoll = g.newlab("L_nopoll")
    g.e("s_cbranch_scc1 %s" % nopoll)
    poll(g, vT, "15")
    g.lab(nopoll)
    g.stamp(5)
    for t in (3, 2, 1, 0):
        for h in range(2):
            g.e("s_add_u32 m0, %s, %d" % (sT2, L_R1 + h * 16384 + t * 4096))
            g.e("s_add_u32 %s, %s, %d" % (sT0, sWSO, h * 16384 + t * 4096))
            for f in range(2): g.e("buffer_load_dwordx4 v%d, %s, %s offen offset:%d sc1 lds" % (vL16, sWS, sT0, f * 1024))
    g.e("s_mul_i32 %s, %s, 12" % (sT0, sRT)); g.e("s_sub_u32 %s, 124, %s" % (sT0, sT0)); g.e("v_add_u32 v%d, %s, v%d" % (vFB, sT0, vGW))

def touch(g):
    if g.map == 2: return touch_m2(g)
    if g.touch in (1, 3): return touch1(g)
    t0, t1, t2, t3 = vT, vT + 1, vT + 2, vT + 3
    isw = g.newlab("L_tw"); end = g.newlab("L_te")
    g.e("s_bfe_u32 %s, s2, 0x40003" % sT0); g.e("s_lshl_b32 %s, %s, 7" % (sT0, sT0))
    g.e("v_and_b32 v%d, 127, v0" % t0); g.e("v_add_u32 v%d, %s, v%d" % (t0, sT0, t0))
    g.e("v_mov_b32 v%d, 0x%x" % (t3, OOB))
    g.e("s_mov_b32 s19, 0x20000"); g.e("s_mov_b32 s23, 0x20000")
    g.e("s_cmp_ge_u32 %s, 2" % sWV); g.e("s_cbranch_scc1 %s" % isw)
    g.e("s_mov_b32 s16, s32"); g.e("s_mov_b32 s17, s33"); g.e("s_mov_b32 s18, 0x%x" % X_BYTES)
    g.e("s_mov_b32 s20, s4"); g.e("s_mov_b32 s21, s5"); g.e("s_mov_b32 s22, 0x%x" % X_BYTES)
    g.e("v_and_b32 v%d, 511, v%d" % (t1, t0)); g.e("v_mul_u32_u24 v%d, 896, v%d" % (t1, t1))
    g.e("v_lshrrev_b32 v%d, 9, v%d" % (t2, t0)); g.e("v_cmp_gt_u32 vcc, 3, v%d" % t2)
    g.e("v_lshl_add_u32 v%d, v%d, 7, v%d" % (t1, t2, t1))
    g.e("s_bfe_u32 %s, s2, 0x20001" % sT0); g.e("s_mul_i32 %s, %s, %d" % (sT0, sT0, 512 * 896))
    g.e("v_cndmask_b32 v%d, v%d, v%d, vcc" % (t1, t3, t1))
    n = 0
    for srd in ("s[16:19]", "s[20:23]"):
        for c0 in (1, 4):
            g.e("buffer_load_dword v%d, v%d, %s, %s offen offset:%d" % (186 + n, t1, srd, sT0, c0 * 128)); n += 1
    g.e("s_branch %s" % end)
    g.lab(isw)
    g.e("s_mov_b32 s16, s34"); g.e("s_mov_b32 s17, s35"); g.e("s_mov_b32 s18, 0x%x" % W_BYTES)
    g.e("s_mov_b32 s20, s40"); g.e("s_mov_b32 s21, s41"); g.e("s_mov_b32 s22, 0x%x" % W_BYTES)
    g.e("v_lshrrev_b32 v%d, 3, v%d" % (t2, t0)); g.e("v_cmp_gt_u32 vcc, 192, v%d" % t2)
    g.e("v_mul_u32_u24 v%d, 2688, v%d" % (t1, t2))
    g.e("v_bfe_u32 v%d, v%d, 2, 1" % (t2, t0)); g.e("v_mul_u32_u24 v%d, 896, v%d" % (t2, t2)); g.e("v_add_u32 v%d, v%d, v%d" % (t1, t1, t2))
    g.e("v_and_b32 v%d, 3, v%d" % (t2, t0)); g.e("v_lshlrev_b32 v%d, 7, v%d" % (t2, t2)); g.e("v_add_u32 v%d, v%d, v%d" % (t1, t1, t2))
    g.e("v_cndmask_b32 v%d, v%d, v%d, vcc" % (t1, t3, t1))
    g.e("v_lshrrev_b32 v%d, 2, v%d" % (t0, t0)); g.e("v_mul_u32_u24 v%d, 2688, v%d" % (t0, t0)); g.e("v_add_u32 v%d, v%d, v%d" % (t0, t0, t2))
    g.e("s_and_b32 %s, s2, 1" % sT0); g.e("s_mul_i32 %s, %s, 384" % (sT0, sT0))
    g.e("s_add_u32 %s, %s, %d" % (sT1, sT0, 64 * 2688 + 896)); g.e("s_add_u32 %s, %s, %d" % (sT2, sT0, 4 * 64 * 2688 + 896))
    n = 0
    for srd in ("s[16:19]", "s[20:23]"):
        for so in (sT1, sT2):
            g.e("buffer_load_dword v%d, v%d, %s, %s offen" % (186 + n, t1, srd, so)); n += 1
        g.e("buffer_load_dword v%d, v%d, %s, %s offen" % (186 + n, t0, srd, sT0)); n += 1
    g.lab(end)

def touch_own(g, first):
    t0, t1, t2 = vT, vT + 1, vT + 2
    g.e("s_bfe_u32 %s, s2, 0x40003" % sT0); g.e("s_lshl_b32 %s, %s, 8" % (sT0, sT0))
    g.e("v_and_b32 v%d, 255, v0" % t0); g.e("v_add_u32 v%d, %s, v%d" % (t0, sT0, t0))
    g.e("v_and_b32 v%d, 511, v%d" % (t1, t0)); g.e("v_mul_u32_u24 v%d, 896, v%d" % (t1, t1))
    g.e("v_lshrrev_b32 v%d, 9, v%d" % (t2, t0)); g.e("v_add_u32 v%d, %d, v%d" % (t2, first, t2))
    g.e("v_cmp_gt_u32 vcc, 7, v%d" % t2)
    g.e("v_lshl_add_u32 v%d, v%d, 7, v%d" % (t1, t2, t1))
    g.e("v_mov_b32 v%d, 0x%x" % (t2, OOB))
    g.e("v_cndmask_b32 v%d, v%d, v%d, vcc" % (t1, t2, t1))
    g.e("s_bfe_u32 %s, s2, 0x20001" % sT0); g.e("s_mul_i32 %s, %s, %d" % (sT0, sT0, 512 * 896))
    g.e("v_lshrrev_b32 v%d, 2, v%d" % (t2, t0))
    g.e("buffer_load_dword v88, v%d, %s, %s offen" % (t1, sX, sT0))
    g.e("v_mul_u32_u24 v%d, 896, v%d" % (t2, t2))
    g.e("v_and_b32 v%d, 3, v%d" % (t0, t0)); g.e("v_lshl_add_u32 v%d, v%d, 7, v%d" % (t2, t0, t2))
    g.e("s_and_b32 %s, s2, 1" % sT0); g.e("s_mul_i32 %s, %s, 384" % (sT0, sT0)); g.e("s_add_u32 %s, %s, %d" % (sT0, sT0, first * 64 * 2688 + WBIAS))
    g.e("buffer_load_dword v89, v%d, %s, %s offen" % (t2, sW, sT0))

def touch_m2(g):
    t0, t1, t2 = vT, vT + 1, vT + 2
    g.e("s_bfe_u32 %s, s2, 0x40003" % sT0); g.e("s_lshl_b32 %s, %s, 8" % (sT0, sT0))
    g.e("v_add_u32 v%d, %s, v0" % (t0, sT0))
    g.e("v_and_b32 v%d, 255, v%d" % (t1, t0)); g.e("v_mul_u32_u24 v%d, 896, v%d" % (t1, t1))
    g.e("v_lshrrev_b32 v%d, 8, v%d" % (t2, t0)); g.e("v_add_u32 v%d, %d, v%d" % (t2, g.tfirst, t2))
    g.e("v_cmp_gt_u32 vcc, 7, v%d" % t2)
    g.e("v_lshl_add_u32 v%d, v%d, 7, v%d" % (t1, t2, t1))
    g.e("v_mov_b32 v%d, 0x%x" % (t2, OOB))
    g.e("v_cndmask_b32 v%d, v%d, v%d, vcc" % (t1, t2, t1))
    g.e("v_lshlrev_b32 v%d, 7, v%d" % (t0, t0))
    g.e("s_and_b32 %s, s2, 7" % sT0); g.e("s_mul_i32 %s, %s, %d" % (sT0, sT0, 256 * 896))
    g.e("s_mov_b32 %s, %d" % (sT1, g.tfirst * 64 * 2688)); g.e("s_mov_b32 %s, %d" % (sT2, g.tfirst * 64 * 2688 + 4096 * 128))
    n = 0
    for tb in (0, 1):
        if tb == 0:
            g.e("s_mov_b32 s16, s32"); g.e("s_mov_b32 s17, s33"); g.e("s_mov_b32 s20, s34"); g.e("s_mov_b32 s21, s35")
        else:
            g.e("s_mov_b32 s16, s4"); g.e("s_mov_b32 s17, s5"); g.e("s_mov_b32 s20, s40"); g.e("s_mov_b32 s21, s41")
        g.e("s_mov_b32 s18, 0x%x" % X_BYTES); g.e("s_mov_b32 s19, 0x20000"); g.e("s_mov_b32 s22, 0x%x" % W_BYTES); g.e("s_mov_b32 s23, 0x20000")
        g.e("buffer_load_dword v%d, v%d, s[20:23], %s offen" % (186 + n, t0, sT1)); n += 1
        g.e("buffer_load_dword v%d, v%d, s[16:19], %s offen" % (186 + n, t1, sT0)); n += 1
        g.e("buffer_load_dword v%d, v%d, s[20:23], %s offen" % (186 + n, t0, sT2)); n += 1

def touch1(g):
    t0, t1, t2 = vT, vT + 1, vT + 2
    for tb in ([0] if g.touch == 3 else [0, 1] if g.map == 0 else [1]):
        px, pw = (32, 34) if tb == 0 else (4, None)
        if tb == 0:
            g.e("s_mov_b32 s16, s32"); g.e("s_mov_b32 s17, s33"); g.e("s_mov_b32 s20, s34"); g.e("s_mov_b32 s21, s35")
        else:
            g.e("s_mov_b32 s16, s4"); g.e("s_mov_b32 s17, s5"); g.e("s_mov_b32 s20, s40"); g.e("s_mov_b32 s21, s41")
        g.e("s_mov_b32 s18, 0x%x" % X_BYTES); g.e("s_mov_b32 s19, 0x20000"); g.e("s_mov_b32 s22, 0x%x" % W_BYTES); g.e("s_mov_b32 s23, 0x20000")
        g.e("s_bfe_u32 %s, s2, 0x40003" % sT0); g.e("s_lshl_b32 %s, %s, 8" % (sT0, sT0))
        g.e("v_add_u32 v%d, %s, v0" % (t0, sT0))
        g.e("v_and_b32 v%d, 511, v%d" % (t1, t0)); g.e("v_mul_u32_u24 v%d, 896, v%d" % (t1, t1))
        g.e("v_lshrrev_b32 v%d, 9, v%d" % (t2, t0)); g.e("v_add_u32 v%d, %d, v%d" % (t2, g.tfirst, t2))
        g.e("v_cmp_gt_u32 vcc, 7, v%d" % t2)
        g.e("v_lshl_add_u32 v%d, v%d, 7, v%d" % (t1, t2, t1))
        g.e("v_mov_b32 v%d, 0x%x" % (t2, OOB))
        g.e("v_cndmask_b32 v%d, v%d, v%d, vcc" % (t1, t2, t1))
        g.e("s_bfe_u32 %s, s2, 0x20001" % sT0); g.e("s_mul_i32 %s, %s, %d" % (sT0, sT0, 512 * 896))
        g.e("v_lshrrev_b32 v%d, 2, v%d" % (t2, t0))
        g.e("buffer_load_dword v%d, v%d, s[16:19], %s offen%s" % (188 + 2*tb, t1, sT0, g.tf))
        g.e("v_mul_u32_u24 v%d, 896, v%d" % (t2, t2))
        g.e("v_and_b32 v%d, 3, v%d" % (t0, t0)); g.e("v_lshl_add_u32 v%d, v%d, 7, v%d" % (t2, t0, t2))
        g.e("s_and_b32 %s, s2, 1" % sT0); g.e("s_mul_i32 %s, %s, 384" % (sT0, sT0)); g.e("s_add_u32 %s, %s, %d" % (sT0, sT0, g.tfirst * 64 * 2688))
        g.e("buffer_load_dword v%d, v%d, s[20:23], %s offen%s" % (189 + 2*tb, t2, sT0, g.tf))

def max16(g, s, dst, first=True):
    if first:
        g.e("v_max3_f32 v%d, v%d, v%d, v%d" % (dst, s, s + 1, s + 2)); rest = list(range(3, 16))
    else: rest = list(range(16))
    while len(rest) >= 2:
        a, b = rest.pop(0), rest.pop(0)
        g.e("v_max3_f32 v%d, v%d, v%d, v%d" % (dst, dst, s + a, s + b))
    if rest: g.e("v_max_f32 v%d, v%d, v%d" % (dst, dst, s + rest[0]))
def xhalf_max(g):
    g.e("v_mov_b32 v%d, v%d" % (vM2, vM)); g.e("s_nop 1")
    g.e("v_permlane32_swap_b32 v%d, v%d" % (vM, vM2)); g.e("s_nop 1")
    g.e("v_max_f32 v%d, v%d, v%d" % (vM, vM, vM2))
def set_shift(g):
    g.e("v_cvt_pk_bf16_f32 v%d, -v%d, 0" % (vM2, vM))
    g.e("v_lshlrev_b32 v%d, 16, v%d" % (vNM, vM2))
    g.e("v_cndmask_b32 v%d, v%d, v%d, %s" % (vQF + 6, vQF + 6, vM2, sUP))
def bcast_l(g):
    g.e("v_mov_b32 v%d, v%d" % (vM, vO + 12)); g.e("v_mov_b32 v%d, v%d" % (vM2, vO + 12)); g.e("s_nop 1")
    g.e("v_permlane32_swap_b32 v%d, v%d" % (vM, vM2)); g.e("s_nop 1")
def finish_o(g):
    g.e("v_rcp_f32 v%d, v%d" % (vM, vM2))
    g.e("s_lshl_b32 %s, %s, 6" % (sT0, sBR)); g.e("s_lshl_b32 %s, %s, 2" % (sT1, sR)); g.e("s_add_u32 %s, %s, %s" % (sT0, sT0, sT1))
    g.e("v_cndmask_b32 v%d, v%d, 0, %s" % (vM2, vM, sUP))
    g.e("s_add_u32 %s, %s, %s" % (sT0, sT0, sRT)); g.e("s_mul_i32 %s, %s, %d" % (sT0, sT0, g.ofs))
    g.e("s_lshl_b32 %s, %s, 1" % (sT1, sHP)); g.e("s_add_u32 %s, %s, %s" % (sT1, sT1, sHH))
    g.e("s_lshl_b32 %s, %s, 11" % (sT1, sT1)); g.e("s_add_u32 %s, %s, %s" % (sT0, sT0, sT1)); g.e("s_add_u32 %s, %s, 0x%x" % (sT0, sT0, WS_OF))
    for f in range(2):
        for r in range(8*f, 8*f + 8): g.e("v_mul_f32 v%d, v%d, v%d" % (vO + r, vM2 if r >= 12 else vM, vO + r))
        for i in range(4*f, 4*f + 4): g.e("v_cvt_pk_bf16_f32 v%d, v%d, v%d" % (vP + i, vO + 2*i, vO + 2*i + 1))
        g.e("buffer_store_dwordx4 %s, v%d, %s, %s offen offset:%d%s" % (vr(vP + 4*f, 4), vL16, sWS, sT0, f * 1024, g.stf))
def dbg_q(g):
    if not g.dbgq: return
    g.e("s_lshl_b32 %s, %s, 2" % (sT0, sHH)); g.e("s_add_u32 %s, %s, %s" % (sT0, sT0, sRT)); g.e("s_lshl_b32 %s, %s, 11" % (sT0, sT0))
    g.e("s_lshr_b32 %s, %s, 1" % (sT1, sKVO)); g.e("s_add_u32 %s, %s, %s" % (sT0, sT0, sT1)); g.e("s_add_u32 %s, %s, 0x%x" % (sT0, sT0, WS_QDBG))
    g.e("s_waitcnt lgkmcnt(0)")
    for f in range(2): g.e("buffer_store_dwordx4 %s, v%d, %s, %s offen offset:%d" % (vr(vQF + 4*f, 4), vL16, sWS, sT0, f * 1024))
    g.e("s_waitcnt vmcnt(0)")

def wo_dma(g, m, ldsbase, row0, last=False):
    sk = g.newlab("L_wsk")
    if last:
        g.e("s_cmp_eq_u32 %s, 7" % sWV); g.e("s_cbranch_scc1 %s" % sk)
    g.e("s_add_u32 m0, %s, %d" % (sW1K, ldsbase + m * 8192))
    g.e("s_add_u32 %s, %s, %d" % (sT3, sWOS, row0 * 896 + m * 8 * 3584))
    g.e("buffer_load_dwordx4 v%d, %s, %s offen lds" % (vWOO, sWO, sT3))
    if last: g.lab(sk)
def wo1(g, n):
    if n < 4: wo_dma(g, n, L_W1A, 0, last=(n == 3))
    else: wo_dma(g, n - 4, L_W1B, 120)

def attn_A(g):
    lg = Q(); lg.add("q", 2)
    nwo = [0]; nwo0 = [0]; nwoS = {}
    def site(u):
        for (cond, b) in ((u - 1, 0), (u - 5, 1)):
            if 0 <= cond <= 3:
                sk = g.newlab("L_site")
                g.e("s_cmp_lg_u32 %s, %d" % (sRT, cond)); g.e("s_cbranch_scc1 %s" % sk)
                check(g, 1, vG1, F_KV(b, 0), vGV + b)
                if g.r2late == 2 and b == 0 and cond >= 2:
                    g.e("s_cmp_ge_u32 %s, 4" % sWV); g.e("s_cbranch_scc1 %s" % sk)
                    fetch_remote(g, True)
                    nwoS[cond] = nwo[0]
                g.lab(sk)
    def rdF(): g.e("ds_read2_b32 %s, v%d offset0:%d offset1:%d" % (vr(vGV, 2), vG1, F_KV(0, 0) // 4, F_KV(1, 0) // 4)); lg.add("x")
    def rdFV():
        if g.ksplit == 2: g.e("ds_read_b32 v%d, v%d offset:%d" % (93, vG1, F_V1)); lg.add("x")
    def rdK(u):
        for j in range(2): g.e("ds_read_b128 %s, v%d offset:%d" % (vr(vKB + (u % 2) * 8 + 4*j, 4), vAD + u, j * 1024))
        lg.add(("K", u), 2)
    def rdV(u):
        for j in range(2): g.e("ds_read_b128 %s, v%d offset:%d" % (vr(vVB + (u % 2) * 8 + 4*j, 4), vAD + u, 2048 + j * 1024))
        lg.add(("V", u), 2)
    def qk(u, j):
        s = vS + (u % 3) * 16
        g.mfma(s, vKB + (u % 2) * 8 + 4*j, vQF + 4*j, s if j else (vC1 if u == 0 else vC2 if u == 8 else None))
    def pv(u, j):
        g.mfma(vO, vVB + (u % 2) * 8 + 4*j, vS + (u % 3) * 16 + 4*j, None if (u == 0 and j == 0) else vO)
    if "ast" in g.exp: g.only = None; g.stamp(1); g.only = (0, 14)
    rdF(); rdK(0)
    g.wl(lg.wait(("K", 0))); qk(0, 0); qk(0, 1)
    bump(g, vGW, F_CQ); lg.add("x")
    g.e("s_nop 10")
    max16(g, vS, vM); xhalf_max(g); set_shift(g)
    for r in range(16): g.e("v_add_f32 v%d, v%d, v%d" % (vS + r, vNM, vS + r))
    for u in range(9):
        s = vS + (u % 3) * 16
        ex = lambda a, b: [g.e("v_exp_f32 v%d, v%d" % (s + r, s + r)) for r in range(a, b)]
        if g.r2late == 1 and u == g.r2fetch:
            sk = g.newlab("L_r2f")
            g.e("s_cmp_ge_u32 %s, 2" % sWV); g.e("s_cbranch_scc1 %s" % sk)
            fetch_remote(g, True)
            g.lab(sk)
            nwo0[0] = nwo[0]
        if g.r2late == 2 and u in (g.r2step, g.r2step + 1):
            sk = g.newlab("L_ld2")
            g.e("s_cmp_lg_u32 %s, %d" % (sWV, 1 if u == g.r2step else 0)); g.e("s_cbranch_scc1 %s" % sk)
            g.e("s_waitcnt vmcnt(%d)" % (nwo[0] - nwoS[2 if u == g.r2step else 3])); bump(g, vFB)
            g.lab(sk)
        if u in ((g.r1step,) if g.r2late == 2 else (g.r1step, g.r2step)):
            sk = g.newlab("L_ld")
            g.e("s_cmp_%s_u32 %s, 2" % ("lt" if u == g.r1step else "ge", sWV)); g.e("s_cbranch_scc1 %s" % sk)
            if u == g.r1step:
                g.e("s_cmp_ge_u32 %s, 4" % sWV); g.e("s_cbranch_scc1 %s" % sk)
            g.e("s_waitcnt vmcnt(%d)" % (nwo[0] - nwo0[0])); bump(g, vFB)
            if g.ksplit == 2 and u == g.r1step: bump(g, vFB, 128)
            g.lab(sk)
        if u < 8: site(u + 1)
        if g.ksplit and 1 <= u <= 4:
            sk = g.newlab("L_vs")
            g.e("s_cmp_lg_u32 %s, %d" % (sRT, u - 1)); g.e("s_cbranch_scc1 %s" % sk)
            if g.ksplit == 2: check(g, 1, vG1, F_V1, 93)
            else: check(g, 2, vG1, F_KV(0, 0), vGV)
            g.lab(sk)
        if "ast" in g.exp: g.only = None; g.stamp(2 + u); g.only = (0, 14)
        if u < 7: rdF()
        if u < 4: rdFV()
        if u == g.wostep - 1 and not g.woea: g.e("ds_read_b32 v%d, v%d offset:%d" % (vGX, vGR, F_CQ)); lg.add("x")
        if u < 8: rdK(u + 1)
        rdV(u)
        if u > 0: g.wl(lg.wait(("V", u - 1))); pv(u - 1, 0)
        ex(0, 5)
        if u > 0: pv(u - 1, 1)
        if g.wostep <= u < g.wostep + 4 and not g.woea:
            if u == g.wostep: check(g, 8, vGR, F_CQ, vGX)
            for _ in range(2): wo1(g, nwo[0]); nwo[0] += 1
        ex(5, 10)
        if u < 8: g.wl(lg.wait(("K", u + 1))); qk(u + 1, 0)
        ex(10, 16)
        if u < 8: qk(u + 1, 1)
        else: g.e("s_nop 0")
        for i in range(8): g.e("v_cvt_pk_bf16_f32 v%d, v%d, v%d" % (s + i, s + 2*i, s + 2*i + 1))
    g.wl(lg.wait(("V", 8))); g.e("s_nop 0"); pv(8, 0); pv(8, 1)
    g.e("s_nop 11")
    bcast_l(g)
    fb = g.newlab("L_fb"); ok = g.newlab("L_aok")
    g.e("s_mov_b32 %s, 0x%08x" % (sT0, LBIG))
    g.e("v_cmp_ngt_f32 vcc, %s, v%d" % (sT0, vM2))
    g.e("s_cbranch_vccnz %s" % fb)
    g.lab(ok)
    g.fb = (fb, ok)
    if "ast" in g.exp: g.only = None; g.stamp(11); g.only = (0, 14)
    g.stamp(8)
    finish_o(g)

def fallback_A(g):
    fb, ok = g.fb
    g.lab(fb)
    g.e("s_lshl_b32 %s, %s, 2" % (sT1, sR)); g.e("s_add_u32 %s, %s, %s" % (sT1, sT1, sRT))
    g.e("v_mov_b32 v%d, 0" % vM2)
    g.e("v_cndmask_b32 v%d, v%d, v%d, %s" % (vQF + 6, vQF + 6, vM2, sUP))
    g.e("v_mov_b32 v%d, 0x%08x" % (vM, NEG))
    for r in range(16): g.e("v_mov_b32 v%d, 0" % (vO + r))
    for pas in range(2):
        lp = g.newlab("L_fbl"); l0 = g.newlab("L_fb0"); l8 = g.newlab("L_fb8"); lj = g.newlab("L_fbj")
        g.e("s_mov_b32 %s, 0" % sT4)
        g.lab(lp)
        g.e("s_add_u32 %s, %s, 8" % (sT0, sRT)); g.e("s_sub_u32 %s, %s, %s" % (sT0, sT0, sT4))
        g.e("s_lshr_b32 %s, %s, 2" % (sT2, sT0)); g.e("s_mul_i32 %s, %s, %d" % (sT2, sT2, g.kvs))
        g.e("s_and_b32 %s, %s, 3" % (sT0, sT0)); g.e("s_lshl_b32 %s, %s, 12" % (sT0, sT0)); g.e("s_add_u32 %s, %s, %s" % (sT0, sT0, sT2))
        g.e("s_lshl_b32 %s, %s, 14" % (sT2, sHH)); g.e("s_add_u32 %s, %s, %s" % (sT0, sT0, sT2))
        g.e("s_add_u32 %s, %s, s37" % (sT0, sT0)); g.e("s_sub_u32 %s, %s, %d" % (sT0, sT0, 2 * g.kvs))
        for j in range(4): g.e("buffer_load_dwordx4 %s, v%d, %s, %s offen offset:%d sc1" % (vr(vKB + 4*j, 4), vL16, sWS, sT0, j * 1024))
        g.e("s_waitcnt vmcnt(0)")
        g.e("s_cmp_eq_u32 %s, 0" % sT4); g.e("s_cbranch_scc1 %s" % l0)
        g.e("s_cmp_eq_u32 %s, 8" % sT4); g.e("s_cbranch_scc1 %s" % l8)
        g.mfma(vS, vKB, vQF, None); g.e("s_branch %s" % lj)
        g.lab(l0); g.mfma(vS, vKB, vQF, vC1); g.e("s_branch %s" % lj)
        g.lab(l8); g.mfma(vS, vKB, vQF, vC2)
        g.lab(lj)
        g.mfma(vS, vKB + 4, vQF + 4, vS)
        g.e("s_nop 11")
        if pas == 0: max16(g, vS, vM, first=False)
        else:
            for r in range(16): g.e("v_exp_f32 v%d, v%d" % (vS + r, vS + r))
            g.e("s_nop 0")
            for i in range(8): g.e("v_cvt_pk_bf16_f32 v%d, v%d, v%d" % (vS + i, vS + 2*i, vS + 2*i + 1))
            g.e("s_nop 1")
            g.mfma(vO, vKB + 8, vS, vO); g.mfma(vO, vKB + 12, vS + 4, vO)
            g.e("s_nop 11")
        g.e("s_add_u32 %s, %s, 1" % (sT4, sT4))
        g.e("s_min_u32 %s, %s, 8" % (sT0, sT1))
        g.e("s_cmp_le_u32 %s, %s" % (sT4, sT0)); g.e("s_cbranch_scc1 %s" % lp)
        if pas == 0:
            xhalf_max(g); set_shift(g); g.e("s_nop 1")
    bcast_l(g)
    g.e("s_branch %s" % ok)

def attn_B(g):
    for j in range(2): g.e("ds_read_b128 %s, v%d offset:%d" % (vr(vKB + 4*j, 4), vAD, j * 1024))
    for j in range(2): g.e("ds_read_b128 %s, v%d offset:%d" % (vr(vVB + 4*j, 4), vAD, 2048 + j * 1024))
    g.e("s_waitcnt lgkmcnt(2)")
    g.mfma(vS, vKB, vQF, vC1); g.mfma(vS, vKB + 4, vQF + 4, vS)
    bump(g, vGW, F_CQ)
    sk = g.newlab("L_bs")
    g.e("s_cmp_lg_u32 %s, 0" % sRT); g.e("s_cbranch_scc1 %s" % sk)
    spin(g, 1, vG1, F_KV(0, 0), vGV)
    g.lab(sk)
    for j in range(2): g.e("ds_read_b128 %s, v%d offset:%d" % (vr(vKB + 8 + 4*j, 4), vAD + 1, j * 1024))
    for j in range(2): g.e("ds_read_b128 %s, v%d offset:%d" % (vr(vVB + 8 + 4*j, 4), vAD + 1, 2048 + j * 1024))
    g.e("s_waitcnt lgkmcnt(2)")
    g.mfma(vS + 16, vKB + 8, vQF, vC2); g.mfma(vS + 16, vKB + 12, vQF + 4, vS + 16)
    g.e("s_nop 4")
    max16(g, vS, vM); g.e("s_nop 0"); max16(g, vS + 16, vM, first=False); xhalf_max(g)
    for r in range(32): g.e("v_sub_f32 v%d, v%d, v%d" % (vS + r, vS + r, vM))
    for t in range(2):
        s = vS + 16 * t
        for r in range(16): g.e("v_exp_f32 v%d, v%d" % (s + r, s + r))
        g.e("s_nop 0")
        for i in range(8): g.e("v_cvt_pk_bf16_f32 v%d, v%d, v%d" % (s + i, s + 2*i, s + 2*i + 1))
        g.e("s_waitcnt lgkmcnt(0)"); g.e("s_nop 0")
        g.mfma(vO, vVB + 8*t, s, None if t == 0 else vO); g.mfma(vO, vVB + 8*t + 4, s + 4, vO)
    g.e("s_nop 11")
    bcast_l(g)
    g.stamp(8)
    finish_o(g)
    if g.bpre and not g.woea:
        spin(g, 8, vGR, F_CQ, vGX)
        for n in range(8): wo1(g, n)

def p3(g):
    t0, t1, t2 = vT, vT + 1, vT + 2
    sCT, sRT2 = sKC, sXB
    A1, A2, A3 = 4, 5, 6
    vFL = 3; vB0, vB1 = 13, 14; vOA = 56
    g.e("s_lshr_b32 %s, %s, 1" % (sCT, sWV)); g.e("s_and_b32 %s, %s, 1" % (sRT2, sWV))
    g.e("v_bfe_u32 v%d, v%d, 2, 2" % (t0, vLANE)); g.e("v_lshrrev_b32 v%d, 5, v%d" % (t1, vLANE))
    g.e("v_lshl_add_u32 v%d, v%d, 2, v%d" % (t1, t1, t0)); g.e("v_lshlrev_b32 v%d, 8, v%d" % (t1, t1))
    g.e("v_lshlrev_b32 v%d, 6, v%d" % (t0, t0))
    g.e("v_and_b32 v%d, 3, v%d" % (t2, vLANE)); g.e("v_lshlrev_b32 v%d, 3, v%d" % (t2, t2))
    g.e("v_and_b32 v%d, 16, v%d" % (A3, vLANE)); g.e("v_lshl_add_u32 v%d, v%d, 1, v%d" % (t2, A3, t2))
    g.e("s_lshl_b32 %s, %s, 6" % (sT0, sCT)); g.e("v_add_u32 v%d, %s, v%d" % (t2, sT0, t2))
    g.e("v_xor_b32 v%d, v%d, v%d" % (t2, t2, t0)); g.e("v_add_u32 v%d, v%d, v%d" % (A3, t1, t2))
    g.e("v_add_u32 v%d, 0x%x, v%d" % (A1, L_W1A, A3)); g.e("v_add_u32 v%d, 0x%x, v%d" % (A2, L_W1B, A3))
    g.e("s_lshr_b32 %s, %s, 1" % (sT0, sRB)); g.e("s_lshl_b32 %s, %s, 4" % (sT1, sBR)); g.e("s_add_u32 %s, %s, %s" % (sT0, sT0, sT1))
    g.e("s_lshl_b32 %s, %s, 10" % (sT0, sT0)); g.e("s_add_u32 %s, %s, 0x%x" % (sT0, sT0, WS_OFLAG))
    g.e("v_lshlrev_b32 v%d, 7, v%d" % (vFL, vLANE)); g.e("v_add_u32 v%d, %s, v%d" % (vFL, sT0, vFL))
    g.e("s_add_u32 %s, %s, %s" % (sT1, sT1, sR)); g.e("s_lshl_b32 %s, %s, 3" % (sT1, sT1)); g.e("s_add_u32 %s, %s, %s" % (sT1, sT1, sHP))
    g.e("s_lshl_b32 %s, %s, 7" % (sT1, sT1)); g.e("s_add_u32 s36, %s, 0x%x" % (sT1, WS_OFLAG))
    g.e("s_lshr_b32 %s, %s, 2" % (sT2, sWV))
    sOS, sOL = sXS, sWSO
    g.e("s_and_b32 %s, %s, 3" % (sT0, sWV)); g.e("s_lshl_b32 %s, %s, 11" % (sT0, sT0))
    g.e("s_lshl_b32 %s, %s, 13" % (sOL, sT2)); g.e("s_add_u32 %s, %s, %s" % (sOL, sOL, sT0))
    g.e("s_lshl_b32 %s, %s, 6" % (sOS, sBR)); g.e("s_lshl_b32 %s, %s, 1" % (sT1, sRB)); g.e("s_add_u32 %s, %s, %s" % (sOS, sOS, sT1))
    g.e("s_add_u32 %s, %s, %s" % (sOS, sOS, sT2)); g.e("s_mul_i32 %s, %s, %d" % (sOS, sOS, g.ofs))
    g.e("s_add_u32 %s, %s, %s" % (sOS, sOS, sT0)); g.e("s_add_u32 %s, %s, 0x%x" % (sOS, sOS, WS_OF))
    g.e("s_lshl_b32 %s, %s, 13" % (sT0, sRT2)); g.e("v_add_u32 v%d, %s, v%d" % (vB0, sT0, vL16))
    g.e("v_add_u32 v%d, 0x%x, v%d" % (vB1, L_O, vB0)); g.e("v_add_u32 v%d, 0x%x, v%d" % (vB0, L_W1A, vB0))
    vSW, vSR = 58, 59
    if g.ostage:
        STG = 0
        g.e("v_and_b32 v%d, 31, v%d" % (t0, vLANE)); g.e("v_mul_u32_u24 v%d, 272, v%d" % (t0, t0))
        g.e("v_lshrrev_b32 v%d, 5, v%d" % (t1, vLANE)); g.e("v_lshl_add_u32 v%d, v%d, 4, v%d" % (t0, t1, t0))
        g.e("s_mul_i32 %s, %s, %d" % (sT0, sRT2, 32 * 272)); g.e("s_lshl_b32 %s, %s, 6" % (sT1, sCT)); g.e("s_add_u32 %s, %s, %s" % (sT0, sT0, sT1))
        g.e("v_add_u32 v%d, %s, v%d" % (vSW, sT0, t0))
        g.e("v_lshrrev_b32 v%d, 4, v%d" % (t0, vLANE)); g.e("v_and_b32 v%d, 15, v%d" % (t1, vLANE))
        g.e("v_mul_u32_u24 v%d, 272, v%d" % (t2, t0)); g.e("v_lshl_add_u32 v%d, v%d, 4, v%d" % (t2, t1, t2))
        g.e("s_mul_i32 %s, %s, %d" % (sT0, sWV, 8 * 272)); g.e("v_add_u32 v%d, %s, v%d" % (vSR, sT0, t2))
        g.e("v_mul_u32_u24 v%d, 1792, v%d" % (t2, t0)); g.e("v_lshl_add_u32 v%d, v%d, 4, v%d" % (t2, t1, t2))
        g.e("s_cmp_eq_u32 %s, 3" % sCB); g.e("s_cselect_b32 %s, 8, 64" % sT0)
        g.e("v_mov_b32 v%d, 0x%x" % (t0, OOB))
        g.e("v_cmp_le_u32 vcc, %s, v%d" % (sT0, t1))
        g.e("s_lshl_b32 %s, %s, 3" % (sT0, sRB)); g.e("s_add_u32 %s, %s, %s" % (sT0, sT0, sWV)); g.e("s_mul_i32 %s, %s, %d" % (sT4, sT0, 8 * 1792))
        g.e("v_cndmask_b32 v%d, v%d, v%d, vcc" % (vOA, t2, t0))
        g.e("v_add_u32 v%d, %d, v%d" % (vOA + 1, 4 * 1792, vOA))
        g.e("s_mul_i32 %s, %s, 896" % (sT0, sBR)); g.e("s_add_u32 %s, %s, %s" % (sT4, sT4, sT0))
        g.e("s_lshl_b32 %s, %s, 8" % (sT0, sCB)); g.e("s_add_u32 %s, %s, %s" % (sT4, sT4, sT0))
    else:
        g.e("v_and_b32 v%d, 31, v%d" % (t0, vLANE)); g.e("v_mul_u32_u24 v%d, 1792, v%d" % (t0, t0))
        g.e("v_lshrrev_b32 v%d, 5, v%d" % (t1, vLANE)); g.e("v_lshl_add_u32 v%d, v%d, 4, v%d" % (vOA, t1, t0))
        g.e("s_lshl_b32 %s, %s, 1" % (sT0, sRB)); g.e("s_add_u32 %s, %s, %s" % (sT0, sT0, sRT2)); g.e("s_mul_i32 %s, %s, %d" % (sT4, sT0, 32 * 1792))
        g.e("s_mul_i32 %s, %s, 896" % (sT0, sBR)); g.e("s_add_u32 %s, %s, %s" % (sT4, sT4, sT0))
        g.e("s_lshl_b32 %s, %s, 8" % (sT0, sCB)); g.e("s_add_u32 %s, %s, %s" % (sT4, sT4, sT0))
        g.e("s_lshl_b32 %s, %s, 6" % (sT0, sCT)); g.e("s_add_u32 %s, %s, %s" % (sT4, sT4, sT0))
    if g.bpre and not g.woea:
        wa = g.newlab("L_wa"); wb = g.newlab("L_wb")
        g.e("s_cmp_eq_u32 %s, 0" % sBR); g.e("s_cbranch_scc1 %s" % wa)
        g.e("s_waitcnt vmcnt(7)"); g.e("s_branch %s" % wb)
        g.lab(wa); g.e("s_waitcnt vmcnt(0)"); g.lab(wb)
    else: g.e("s_waitcnt vmcnt(0)")
    g.e("s_barrier")
    nf = g.newlab("L_nof")
    g.e("s_cmp_lg_u32 %s, 0" % sWV); g.e("s_cbranch_scc1 %s" % nf)
    store_flag(g, "s36")
    g.lab(nf)
    g.stamp(9)
    if g.woea:
        if g.woea == 2:
            for m in range(4): wo_dma(g, m, L_W1A, 0)
        for m in range(4): wo_dma(g, m, L_W1B, 120)
    elif not g.bpre:
        early = g.newlab("L_early")
        g.e("s_cmp_eq_u32 %s, 0" % sBR); g.e("s_cbranch_scc1 %s" % early)
        for n in range(8): wo1(g, n)
        g.lab(early)
    for m in range(7): wo_dma(g, m, L_W2, 248)
    if not g.woea:
        early2 = g.newlab("L_early2")
        g.e("s_cmp_eq_u32 %s, 0" % sBR); g.e("s_cbranch_scc1 %s" % early2)
        g.e("s_waitcnt vmcnt(7)"); g.e("s_barrier")
        g.lab(early2)
    if g.woea == 2:
        g.e("s_waitcnt vmcnt(7)"); g.e("s_barrier")
    wsplit = 120 if g.woea == 1 else 248
    WFR = 96
    def trs(sel):
        for h in range(16):
            for j in range(2):
                for i in range(2):
                    row = 28 * h + 16 * j + 8 * i
                    if not sel(row): continue
                    a, off = (A1, row * 256) if row < 120 else (A2, (row - 120) * 256) if row < 248 else (A3, (row - 248) * 256)
                    g.e("ds_read_b64_tr_b16 %s, v%d offset:%d" % (vr(WFR + (h * 2 + j) * 4 + 2 * i, 2), a, off))
    trs(lambda row: row < wsplit)
    g.stamp(10)
    np_ = g.newlab("L_np3")
    g.e("s_cmp_lg_u32 %s, 7" % sWV); g.e("s_cbranch_scc1 %s" % np_)
    if g.poll2: poll2(g, vFL, "0xff")
    else: poll(g, vFL, "0xff")
    g.lab(np_)
    g.e("s_waitcnt vmcnt(0) lgkmcnt(0)")
    g.e("s_barrier")
    g.stamp(11)
    for a in range(4):
        g.e("s_add_u32 m0, %s, %d" % (sOL, L_O + a * 16384 if a < 2 else L_W1A + (a - 2) * 16384))
        g.e("s_add_u32 %s, %s, %d" % (sT2, sOS, a * 8192))
        for f in range(2): g.e("buffer_load_dwordx4 v%d, %s, %s offen offset:%d sc1 lds" % (vL16, sWS, sT2, f * 1024))
    trs(lambda row: row >= wsplit)
    OB = 16
    lg = Q()
    def rd(k):
        a = k // 8
        bars = eval(g.obars)
        if k % 8 == 0 and a in bars:
            nxtb = min([x for x in bars if x > a] + [4])
            g.e("s_waitcnt vmcnt(%d)" % (8 - 2 * nxtb)); g.e("s_barrier")
            if a == 0: g.stamp(12)
        g.e("ds_read_b128 %s, v%d offset:%d" % (vr(OB + (k % 4) * 4, 4), vB1 if a < 2 else vB0, (a % 2) * 16384 + (k % 8) * 1024))
        lg.add(k)
    for k in range(3): rd(k)
    for k in range(32):
        g.wl(lg.wait(k))
        g.mfma(vO, WFR + 4 * k, OB + (k % 4) * 4, None if k == 0 else vO)
        if k + 3 < 32: rd(k + 3)
    g.stamp(13)
    if not g.ostage:
        done = g.newlab("L_nostore")
        g.e("s_cmp_lt_u32 %s, 3" % sCB); g.e("s_cselect_b32 %s, 4, 2" % sT0)
        g.e("s_cmp_ge_u32 %s, %s" % (sCT, sT0)); g.e("s_cbranch_scc1 %s" % done)
        g.e("s_nop 8")
        PK = 48
        for i in range(8): g.e("v_cvt_pk_bf16_f32 v%d, v%d, v%d" % (PK + i, vO + 2*i, vO + 2*i + 1))
        g.e("s_nop 1")
        for b in (0, 4):
            g.e("v_permlane32_swap_b32 v%d, v%d" % (PK + b, PK + b + 2)); g.e("v_permlane32_swap_b32 v%d, v%d" % (PK + b + 1, PK + b + 3))
        g.e("s_nop 1")
        for b in range(2): g.e("buffer_store_dwordx4 %s, v%d, %s, %s offen offset:%d%s" % (vr(PK + 4*b, 4), vOA, sOUT, sT4, 32 * b, g.outflag))
        g.lab(done)
        return
    PK = 48
    g.e("s_nop 11")
    for i in range(8): g.e("v_cvt_pk_bf16_f32 v%d, v%d, v%d" % (PK + i, vO + 2*i, vO + 2*i + 1))
    g.e("s_nop 1")
    for b in (0, 4):
        g.e("v_permlane32_swap_b32 v%d, v%d" % (PK + b, PK + b + 2)); g.e("v_permlane32_swap_b32 v%d, v%d" % (PK + b + 1, PK + b + 3))
    g.e("s_nop 1")
    for b in range(2): g.e("ds_write_b128 v%d, %s offset:%d" % (vSW, vr(PK + 4*b, 4), 32 * b))
    g.e("s_waitcnt lgkmcnt(0)")
    g.e("s_barrier")
    for b in range(2): g.e("ds_read_b128 %s, v%d offset:%d" % (vr(PK + 4*b, 4), vSR, 4 * 272 * b))
    for b in range(2):
        g.e("s_waitcnt lgkmcnt(%d)" % (1 - b))
        g.e("buffer_store_dwordx4 %s, v%d, %s, %s offen%s" % (vr(PK + 4*b, 4), vOA + b, sOUT, sT4, g.outflag))

def write_stamps(g):
    if not g.stamps: return
    g.e("s_waitcnt vmcnt(0)")
    g.stamp(14)
    g.e("s_waitcnt lgkmcnt(0)")
    g.e("s_getreg_b32 s100, hwreg(HW_REG_XCC_ID)"); g.e("s_getreg_b32 s101, hwreg(HW_REG_HW_ID)")
    g.e("s_lshl_b32 %s, s2, 3" % sT0); g.e("s_add_u32 %s, %s, %s" % (sT0, sT0, sWV)); g.e("s_lshl_b32 %s, %s, 7" % (sT0, sT0))
    g.e("s_add_u32 %s, %s, 0x%x" % (sT0, sT0, WS_STAMP))
    g.e("s_mov_b64 exec, 1")
    for i in range(16):
        g.e("v_mov_b32 v20, s%d" % (70 + 2*i)); g.e("v_mov_b32 v21, s%d" % (71 + 2*i))
        g.e("buffer_store_dwordx2 v[20:21], v%d, %s, %s offen offset:%d" % (vZ, sWS, sT0, 8 * i))
        g.e("s_nop 1")

def branch(g, isA):
    n = "A" if isA else "B"
    g.e("s_cmp_lt_u32 %s, 4" % sWV); g.e("s_cbranch_scc1 L_cons%s" % n)
    producer(g, isA)
    g.e("s_branch L_x%s" % n)
    g.lab("L_cons%s" % n)
    consumer(g, isA)
    g.lab("L_x%s" % n)
    g.stamp(7)
    if g.cprio:
        sk = g.newlab("L_cp")
        g.e("s_cmp_ge_u32 %s, 4" % sWV); g.e("s_cbranch_scc1 %s" % sk); g.e("s_setprio %d" % g.cprio); g.lab(sk)
    dbg_q(g)
    if isA: attn_A(g)
    else: attn_B(g)

def build(**kw):
    g = G(**kw)
    K = NAME + "_kernel"
    hdr = open("cdna_kernels/%s.s.ref" % NAME).read().split("; Override launch")[0]
    g.l.append(hdr.rstrip())
    g.l.append("; @launch grid=(256,1,1) block=(512,1,1) lds=163840")
    g.l += ["; " + x for x in DOC.strip().split("\n")]
    g.l += ['.amdgcn_target "amdgcn-amd-amdhsa--gfx950"', ".text", ".globl " + K, ".p2align 8", ".type %s,@function" % K, K + ":"]
    g.e("s_cmp_ge_u32 s2, 256"); g.e("s_cbranch_scc1 L_end")
    g.e("s_load_dwordx16 s[32:47], s[0:1], 0"); g.e("s_load_dwordx2 s[48:49], s[0:1], 64")
    if "probe" in g.exp: g.e("s_memrealtime s[70:71]")
    if g.stamps:
        for i in range(15): g.e("s_mov_b64 s[%d:%d], 0" % (70 + 2*i, 71 + 2*i))
    g.stamp(0)
    if "pit" in g.exp: g.only = (0, 1, 2, 14)
    if "pdet" in g.exp or "ast" in g.exp: g.only = (0, 14)
    g.e("v_lshrrev_b32 v%d, 6, v0" % vT)
    g.e("v_and_b32 v%d, 63, v0" % vLANE)
    g.e("v_readfirstlane_b32 %s, v%d" % (sWV, vT))
    if g.map == 0:
        g.e("s_lshr_b32 %s, s2, 7" % sBR)
        g.e("s_bfe_u32 %s, s2, 0x20003" % sT2); g.e("s_bfe_u32 %s, s2, 0x20005" % sT3)
        g.e("s_and_b32 %s, s2, 1" % sHP); g.e("s_lshl_b32 %s, %s, 2" % (sHP, sHP)); g.e("s_add_u32 %s, %s, %s" % (sHP, sHP, sT2))
        g.e("s_bfe_u32 %s, s2, 0x20001" % sR); g.e("s_lshl_b32 %s, %s, 2" % (sR, sR)); g.e("s_add_u32 %s, %s, %s" % (sR, sR, sT3))
    elif g.map == 2:
        g.e("s_lshr_b32 %s, s2, 7" % sBR)
        g.e("s_bfe_u32 %s, s2, 0x30003" % sHP)
        g.e("s_and_b32 %s, s2, 7" % sR); g.e("s_lshl_b32 %s, %s, 1" % (sR, sR)); g.e("s_bfe_u32 %s, s2, 0x10006" % sT3); g.e("s_add_u32 %s, %s, %s" % (sR, sR, sT3))
    else:
        g.e("s_bfe_u32 %s, s2, 0x10002" % sBR)
        g.e("s_bfe_u32 %s, s2, 0x20003" % sT2); g.e("s_lshr_b32 %s, s2, 5" % sT3)
        g.e("s_and_b32 %s, s2, 1" % sHP); g.e("s_lshl_b32 %s, %s, 2" % (sHP, sHP)); g.e("s_add_u32 %s, %s, %s" % (sHP, sHP, sT2))
        g.e("s_bfe_u32 %s, s2, 0x10001" % sR); g.e("s_lshl_b32 %s, %s, 3" % (sR, sR)); g.e("s_add_u32 %s, %s, %s" % (sR, sR, sT3))
    g.e("s_and_b32 %s, %s, 3" % (sP, sWV))
    t0, t1 = vT, vT + 1
    nz = g.newlab("L_nz")
    g.e("s_cmp_lg_u32 %s, 0" % sWV); g.e("s_cbranch_scc1 %s" % nz)
    g.e("v_and_b32 v%d, 7, v%d" % (t0, vLANE)); g.e("v_and_b32 v%d, 2, v%d" % (t1, t0)); g.e("v_lshlrev_b32 v%d, 5, v%d" % (t1, t1))
    g.e("v_lshlrev_b32 v%d, 7, v%d" % (t0, t0)); g.e("v_sub_u32 v%d, v%d, v%d" % (t0, t0, t1))
    g.e("v_add_u32 v%d, %d, v%d" % (t0, FBASE + 112, t0))
    for k in range(4): g.e("v_mov_b32 v%d, 0" % (vACC + k))
    g.e("s_mov_b64 exec, 0xff")
    g.e("ds_write_b128 v%d, %s" % (t0, vr(vACC, 4)))
    g.e("s_mov_b64 exec, -1")
    g.lab(nz)
    producer_prep(g)
    flag_regs(g, True)
    xrd_addr(g, vXRD, sXB)
    g.e("s_mov_b32 s6, 0x%x" % X_BYTES); g.e("s_mov_b32 s7, 0x20000"); g.e("s_mov_b32 s10, 0x%x" % (W_BYTES + WBIAS)); g.e("s_mov_b32 s11, 0x20000")
    g.e("s_cmp_eq_u32 %s, 0" % sBR)
    if "st0" in g.exp: g.stamp(3)
    g.e("s_waitcnt lgkmcnt(0)")
    if "st0" in g.exp: g.stamp(4)
    g.e("s_cselect_b32 s4, s32, s38"); g.e("s_cselect_b32 s5, s33, s39"); g.e("s_cselect_b32 s8, s34, s40"); g.e("s_cselect_b32 s9, s35, s41")
    g.e("s_sub_u32 s8, s8, %d" % WBIAS); g.e("s_subb_u32 s9, s9, 0")
    g.e("s_cmp_lt_u32 %s, 4" % sWV); g.e("s_cbranch_scc1 L_noiss0")
    issue_item(g, Q(), 0)
    g.lab("L_noiss0")
    g.e("s_barrier")
    g.e("s_cmp_lt_u32 %s, 4" % sWV); g.e("s_cbranch_scc1 L_noiss")
    issue_item(g, Q(), 1)
    g.lab("L_noiss")
    g.e("s_cmp_eq_u32 %s, 0" % sBR)
    g.e("s_cbranch_scc1 L_A")
    branch(g, False)
    g.e("s_branch L_p3")
    g.lab("L_A")
    branch(g, True)
    g.lab("L_p3")
    p3(g)
    write_stamps(g)
    if "probe" in g.exp:
        g.e("s_cmp_lg_u32 s2, %d" % g.pwg); g.e("s_cbranch_scc1 L_end")
        g.e("s_cmp_lg_u32 %s, %d" % (sWV, g.pw)); g.e("s_cbranch_scc1 L_end")
        g.e("s_waitcnt vmcnt(0) lgkmcnt(0)")
        if g.pk is None: g.e("s_memrealtime s[72:73]"); g.e("s_waitcnt lgkmcnt(0)")
        g.e("s_sub_u32 s74, s72, s70")
        if g.pcyc: g.e("s_lshr_b32 s74, s74, 1")
        else: g.e("s_lshl_b32 s74, s74, 3")
        g.e("s_memrealtime s[72:73]"); g.e("s_waitcnt lgkmcnt(0)")
        g.lab("L_probe")
        g.e("s_memrealtime s[76:77]"); g.e("s_waitcnt lgkmcnt(0)")
        g.e("s_sub_u32 s75, s76, s72"); g.e("s_cmp_lt_u32 s75, s74"); g.e("s_cbranch_scc1 L_probe")
    g.lab("L_end"); g.e("s_endpgm")
    for (sl, back, need, areg, off, vsrc) in g.slow:
        g.lab(sl); spin(g, need, areg, off, vsrc); g.e("s_branch %s" % back)
    fallback_A(g)
    g.lab("L_codeend")
    g.l += ['.section .rodata,"a"', ".p2align 6", ".amdhsa_kernel " + K, "  .amdhsa_next_free_vgpr 256", "  .amdhsa_next_free_sgpr 102",
            "  .amdhsa_accum_offset 256", "  .amdhsa_group_segment_fixed_size 0", "  .amdhsa_kernarg_size 72", "  .amdhsa_user_sgpr_count 2",
            "  .amdhsa_user_sgpr_kernarg_segment_ptr 1", "  .amdhsa_system_sgpr_workgroup_id_x 1", ".end_amdhsa_kernel"]
    return "\n".join(g.l) + "\n"

if __name__ == "__main__":
    ap = argparse.ArgumentParser()
    ap.add_argument("-o", default="k.s"); ap.add_argument("--stamps", action="store_true"); ap.add_argument("--dbgq", action="store_true")
    ap.add_argument("--exp", default=""); ap.add_argument("--dA", type=int, default=2); ap.add_argument("--dB", type=int, default=2)
    ap.add_argument("--wotouch", type=int, default=1); ap.add_argument("--touch", type=int, default=1); ap.add_argument("--tfirst", type=int, default=2)
    ap.add_argument("--map", type=int, default=0); ap.add_argument("--woea", type=int, default=0); ap.add_argument("--ksplit", type=int, default=0); ap.add_argument("--r1step", type=int, default=0); ap.add_argument("--kfirst", type=int, default=1); ap.add_argument("--p3map", type=int, default=1); ap.add_argument("--pk", type=int, default=None); ap.add_argument("--pk0", type=int, default=-1); ap.add_argument("--pcyc", type=int, default=0); ap.add_argument("--pw", type=int, default=0); ap.add_argument("--pwg", type=int, default=26); ap.add_argument("--kvs", type=int, default=33280); ap.add_argument("--ofs", type=int, default=33280); ap.add_argument("--wsoff", type=int, default=0); ap.add_argument("--late7", type=int, default=0); ap.add_argument("--ptouch", type=int, default=0); ap.add_argument("--poll2", type=int, default=0); ap.add_argument("--obars", default="[0,1,2,3]"); ap.add_argument("--ostage", type=int, default=1); ap.add_argument("--qpj", type=int, default=0); ap.add_argument("--qwait", type=int, default=0); ap.add_argument("--c1prio", type=int, default=0); ap.add_argument("--slp", type=int, default=0); ap.add_argument("--pslp", type=int, default=0); ap.add_argument("--mfirst", type=int, default=1); ap.add_argument("--qround", type=int, default=1); ap.add_argument("--cdist", default="[2,1,2,1]"); ap.add_argument("--pprio", type=int, default=0); ap.add_argument("--gate", type=int, default=0); ap.add_argument("--gsig", type=int, default=4); ap.add_argument("--gitem", type=int, default=3); ap.add_argument("--r2late", type=int, default=1); ap.add_argument("--r2fetch", type=int, default=2); ap.add_argument("--ctouch", type=int, default=0); ap.add_argument("--cprio", type=int, default=0); ap.add_argument("--inl", type=int, default=1); ap.add_argument("--ps1", type=int, default=0); ap.add_argument("--ps2", type=int, default=1); ap.add_argument("--ldf", default=""); ap.add_argument("--tf", default=""); ap.add_argument("--late8", type=int, default=0); ap.add_argument("--bpre", type=int, default=1); ap.add_argument("--qprio", type=int, default=0); ap.add_argument("--aprio", type=int, default=0); ap.add_argument("--stf", default=" sc1"); ap.add_argument("--qst", type=int, default=0); ap.add_argument("--r2step", type=int, default=4); ap.add_argument("--wostep", type=int, default=2); ap.add_argument("--outflag", default=" sc1")
    a = ap.parse_args()
    o = a.o; d = vars(a); d.pop("o")
    open(o, "w").write(build(**d))
```

```python
import sys, math, struct, argparse
NAME = "concat_heads__sliding_block__sliding_local_dilated__prompt"
def f32bits(x): return struct.unpack("<I", struct.pack("<f", x))[0]

X_BYTES = 2048*896; W_BYTES = 448*2688; WO_BYTES = 448*896; OUT_BYTES = 2048*1792
WS_OF = 10 << 20; WS_KVFLAG = 16 << 20; WS_OFLAG = (16 << 20) + 65536; WS_GFLAG = (16 << 20) + 131072; WS_QDBG = 20 << 20; WS_STAMP = 32 << 20
WS_RECORDS = 36 << 20
NEG = f32bits(-1.0e30); CSCALE = f32bits((28 ** -0.5) * math.log2(math.e)); LBIG = f32bits(2.0 ** 64)
OOB = 0x7FF00000; SPIN_MAX = 1 << 20; WBIAS = 4096

def vr(a, n): return "v[%d:%d]" % (a, a + n - 1)
sX, sW, sWO, sWS, sOUT, sDBG = "s[4:7]", "s[8:11]", "s[12:15]", "s[16:19]", "s[20:23]", "s[24:27]"
sBR, sHP, sR, sWV = "s28", "s29", "s30", "s31"
sRT, sHH, sW1K, sKC, sXS, sP, sWSO, sXB, sWB, sKVO = "s50", "s51", "s52", "s53", "s54", "s55", "s56", "s57", "s58", "s59"
sNON = "s[60:61]"; sT0, sT1, sT2, sT3 = "s62", "s63", "s64", "s65"; sTM = "s[64:65]"; sC = "s66"; sT4 = "s67"; sUP = "s[68:69]"
sCB, sRB, sWOS, sSPN = "s32", "s33", "s34", "s35"
sHM = "s[38:39]"
vLANE = 1; vKVW = 2; vQW = 3; vXRD = 4; vWRD = 8; vL16 = 9; vT = 10; vZ = 15
vQF = 16
vACC = 32
vC1, vC2 = 96, 112
vXB = 128; vWB = 152
vXF = 128
vAD = 176
vNON = 240; vFA = 244; vFB = 245; vFV = 246; vONE = 247; vWOO = 248; vGR = 249; vGW = 250; vG1 = 251; vGV = 252; vGX = 254
vXO = 16; vWO = 20; vWQ = 24
vO = 32; vS = 128; vKB = 48; vVB = 64; vM = 80; vM2 = 81; vNM = 82; vP = 84
SLOT = 32768
L_R1 = 32768; L_R2 = 0; L_OWN = 131072; L_QA = 122880; L_WQ = 65536
L_W1A = 65536; L_W1B = 98304; L_W2 = 0; L_O = 131072
FBASE = 98304 - 1024
def fw(r, hi): return r * 128 + (112 if ((r >> 1) & 1) == 0 else 48) + 8 + 4 * hi
F_KV = lambda b, h: fw(2 * b + h, 1)
F_OWN, F_QRDY, F_CQ, F_XD = fw(4, 1), fw(5, 1), fw(6, 1), fw(7, 1)
F_V1 = 112
F_ST = fw(0, 0) - 4

DOC = """
Generated by dev/gen3.py (own generator).  One persistent workgroup per CU: (branch, head pair, 128-row block).
 phase 1  waves 4-7 stream x / wqkv through an LDS ring (LDS-DMA) and keep their x fragments; waves 0-3 compute K,V
          (MFMA 32x32x16, results already in attention operand layout); then waves 4-7 compute Q.
 hand-off K/V and attention outputs go through d_ws with sc1 stores + tagged flags (tag = per-launch value in d_debug).
 phase 2  attention per wave (head, 32 queries); row sum via a ones column of V; shift = max of the diagonal tile with
          a run-time guard that falls back to the exact two-pass softmax (true row max).
 phase 3  output projection, 64x128 tile per workgroup.
"""
def lane_mask(fn):
    m = 0
    for l in range(64):
        if fn(l): m |= 1 << l
    return m
def key_of(r, l): return (r & 3) + 8 * (r >> 2) + 4 * (l >> 5)

class Q:
    def __init__(self): self.q = []
    def add(self, tag, n=1): self.q += [tag] * n
    def wait(self, tag):
        idx = [i for i, t in enumerate(self.q) if t == tag]
        if not idx: return None
        n = len(self.q) - 1 - idx[-1]
        self.q = self.q[idx[-1] + 1:]
        return n
    def clear(self): self.q = []

class G:
    def __init__(self, **kw):
        self.l = []; self.nlab = 0; self.slow = []
        self.__dict__.update(kw)
    def e(self, s): self.l.append("    " + s)
    def lab(self, s): self.l.append(s + ":")
    def newlab(self, p="L"):
        self.nlab += 1; return "%s_%d" % (p, self.nlab)
    def stamp(self, i):
        if self.pk is not None:
            if i == self.pk: self.e("%s s[72:73]" % ("s_memtime" if self.pcyc else "s_memrealtime"))
            if i == self.pk0: self.e("%s s[70:71]" % ("s_memtime" if self.pcyc else "s_memrealtime"))
            return
        if getattr(self, "only", None) and i not in self.only: return
        if self.stamps: self.e("%s s[%d:%d]" % ("s_memtime" if "cyc" in self.exp else "s_memrealtime", 70 + 2*i, 71 + 2*i))
    def mask(self, m):
        self.e("s_mov_b32 s64, 0x%08x" % (m & 0xffffffff)); self.e("s_mov_b32 s65, 0x%08x" % (m >> 32))
    def mfma(self, d, a, b, c):
        self.e("v_mfma_f32_32x32x16_bf16 %s, %s, %s, %s" % (vr(d, 16), vr(a, 4), vr(b, 4), "0" if c is None else vr(c, 16)))
    def wl(self, n):
        if n is not None: self.e("s_waitcnt lgkmcnt(%d)" % min(n, 15))
    def wv(self, n):
        if n is not None: self.e("s_waitcnt vmcnt(%d)" % min(n, 63))
    def capture(self, fn):
        save = self.l; self.l = []; groups = []
        def cut():
            if self.l: groups.append(self.l)
            self.l = []
        fn(cut); cut(); self.l = save
        return groups

def spin(g, need, areg, off, vdst):
    lp = g.newlab("L_spin"); ok = g.newlab("L_spok")
    g.e("s_mov_b32 %s, 0" % sSPN)
    g.lab(lp)
    g.e("ds_read_b32 v%d, v%d offset:%d" % (vdst, areg, off))
    g.e("s_add_u32 %s, %s, 1" % (sSPN, sSPN))
    g.e("s_waitcnt lgkmcnt(0)")
    g.e("v_cmp_gt_u32 vcc, %d, v%d" % (need, vdst))
    g.e("s_cmp_gt_u32 %s, %d" % (sSPN, SPIN_MAX * 8)); g.e("s_cbranch_scc1 %s" % ok)
    g.e("s_cbranch_vccnz %s" % lp)
    g.lab(ok)
def check(g, need, areg, off, vsrc):
    if g.inl:
        lp = g.newlab("L_cl"); ok = g.newlab("L_cok")
        g.e("s_mov_b32 %s, %d" % (sSPN, -(SPIN_MAX * 8) & 0xffffffff))
        g.lab(lp)
        g.e("v_cmp_gt_u32 vcc, %d, v%d" % (need, vsrc)); g.e("s_cbranch_vccz %s" % ok)
        if g.slp: g.e("s_sleep %d" % g.slp)
        g.e("ds_read_b32 v%d, v%d offset:%d" % (vsrc, areg, off))
        g.e("s_add_u32 %s, %s, 1" % (sSPN, sSPN))
        g.e("s_waitcnt lgkmcnt(0)")
        g.e("s_cbranch_scc0 %s" % lp)
        g.lab(ok)
        return
    sl = g.newlab("L_slow"); back = g.newlab("L_back")
    g.e("v_cmp_gt_u32 vcc, %d, v%d" % (need, vsrc)); g.e("s_cbranch_vccnz %s" % sl); g.lab(back)
    g.slow.append((sl, back, need, areg, off, vsrc))
def bump(g, areg, off=0): g.e("ds_add_u32 v%d, v%d offset:%d" % (areg, vONE, off))

def flag_regs(g, prod):
    t0 = vT
    g.e("v_and_b32 v%d, 3, v%d" % (t0, vLANE)); g.e("v_and_b32 v%d, 2, v%d" % (vFA, t0)); g.e("v_lshlrev_b32 v%d, 5, v%d" % (vFA, vFA))
    g.e("v_lshlrev_b32 v%d, 7, v%d" % (t0, t0)); g.e("v_sub_u32 v%d, v%d, v%d" % (vFA, t0, vFA))
    g.e("v_add_u32 v%d, %d, v%d" % (vFA, FBASE + 120, vFA))
    g.e("v_mov_b32 v%d, %d" % (vGR, FBASE)); g.e("v_mov_b32 v%d, 0x7ffffff0" % vGW); g.e("v_mov_b32 v%d, 1" % vONE)
    g.e("v_cmp_eq_u32 vcc, 0, v%d" % vLANE)
    g.e("s_lshl_b32 %s, %s, 7" % (sT0, sP)); g.e("s_and_b32 %s, %s, 2" % (sT1, sP)); g.e("s_lshl_b32 %s, %s, 5" % (sT1, sT1))
    g.e("s_sub_u32 %s, %s, %s" % (sT0, sT0, sT1))
    g.e("s_cmp_lt_u32 %s, 4" % sWV); g.e("s_cselect_b32 %s, 512, 0" % sT1); g.e("s_add_u32 %s, %s, %s" % (sT0, sT0, sT1)); g.e("s_add_u32 %s, %s, 120" % (sT0, sT0))
    g.e("v_cndmask_b32 v%d, v%d, v%d, vcc" % (vGW, vGW, vGR))
    g.e("v_add_u32 v%d, %s, v%d" % (vFB, sT0, vGW))

def get_nonce(g):
    lp = g.newlab("L_nlp"); ok = g.newlab("L_nok")
    g.e("s_mov_b32 %s, 0" % sSPN)
    g.lab(lp)
    g.e("v_readfirstlane_b32 s60, v%d" % vNON); g.e("v_readfirstlane_b32 s61, v%d" % (vNON + 1))
    g.e("s_add_u32 %s, %s, 1" % (sSPN, sSPN))
    g.e("s_cmp_lg_u32 s60, 0"); g.e("s_cbranch_scc1 %s" % ok)
    g.e("s_cmp_gt_u32 %s, %d" % (sSPN, SPIN_MAX)); g.e("s_cbranch_scc1 %s" % ok)
    g.e("buffer_load_dwordx2 %s, v%d, %s, 0 offen sc1" % (vr(vNON, 2), vZ, sDBG))
    g.e("s_waitcnt vmcnt(0)")
    g.e("s_branch %s" % lp)
    g.lab(ok)
def store_flag(g, soff):
    g.e("s_mov_b64 exec, 1")
    g.e("buffer_store_dwordx2 %s, v%d, %s, %s offen sc1" % (vr(vNON, 2), vZ, sWS, soff))
    g.e("s_mov_b64 exec, -1")
def poll(g, vaddr, mask):
    lp = g.newlab("L_poll"); ok = g.newlab("L_pok")
    g.e("s_mov_b64 exec, %s" % mask)
    g.e("s_mov_b32 %s, 0" % sSPN)
    g.lab(lp)
    g.e("buffer_load_dwordx2 %s, v%d, %s, 0 offen sc1" % (vr(vNON + 2, 2), vaddr, sWS))
    g.e("s_add_u32 %s, %s, 1" % (sSPN, sSPN))
    g.e("s_waitcnt vmcnt(0)")
    g.e("v_cmp_ne_u64 vcc, %s, %s" % (sNON, vr(vNON + 2, 2)))
    g.e("s_cmp_gt_u32 %s, %d" % (sSPN, SPIN_MAX)); g.e("s_cbranch_scc1 %s" % ok)
    if g.pslp:
        g.e("s_cbranch_vccz %s" % ok); g.e("s_sleep %d" % g.pslp); g.e("s_branch %s" % lp)
    else: g.e("s_cbranch_vccnz %s" % lp)
    g.lab(ok)
    g.e("s_mov_b64 exec, -1")

def poll2(g, vaddr, mask):
    lp = g.newlab("L_poll"); ok = g.newlab("L_pok")
    A, B = vNON + 2, 60
    g.e("s_mov_b64 exec, %s" % mask)
    g.e("s_mov_b32 %s, 0" % sSPN)
    g.e("s_waitcnt vmcnt(0)")
    g.e("buffer_load_dwordx2 %s, v%d, %s, 0 offen sc1" % (vr(A, 2), vaddr, sWS))
    g.e("s_nop 15"); g.e("s_nop 15"); g.e("s_nop 15"); g.e("s_nop 15")
    g.lab(lp)
    g.e("buffer_load_dwordx2 %s, v%d, %s, 0 offen sc1" % (vr(B, 2), vaddr, sWS))
    g.e("s_waitcnt vmcnt(1)")
    g.e("v_cmp_ne_u64 vcc, %s, %s" % (sNON, vr(A, 2)))
    g.e("s_cbranch_vccz %s" % ok)
    g.e("buffer_load_dwordx2 %s, v%d, %s, 0 offen sc1" % (vr(A, 2), vaddr, sWS))
    g.e("s_add_u32 %s, %s, 1" % (sSPN, sSPN))
    g.e("s_waitcnt vmcnt(1)")
    g.e("v_cmp_ne_u64 vcc, %s, %s" % (sNON, vr(B, 2)))
    g.e("s_cmp_gt_u32 %s, %d" % (sSPN, SPIN_MAX)); g.e("s_cbranch_scc1 %s" % ok)
    g.e("s_cbranch_vccnz %s" % lp)
    g.lab(ok)
    g.e("s_mov_b64 exec, -1")

def setup_scalars(g, cut):
    g.e("s_cmp_eq_u32 %s, 0" % sBR)
    g.e("s_cselect_b32 s12, s36, s42"); g.e("s_cselect_b32 s13, s37, s43"); cut()
    g.e("s_mov_b32 s14, 0x%x" % WO_BYTES); g.e("s_mov_b32 s15, 0x20000"); cut()
    for (srd, a, n) in ((16, 48, WS_RECORDS), (20, 44, OUT_BYTES)):
        if srd == 16 and g.wsoff:
            g.e("s_add_u32 s16, s48, 0x%x" % (g.wsoff << 20)); g.e("s_addc_u32 s17, s49, 0"); cut()
        else:
            g.e("s_mov_b32 s%d, s%d" % (srd, a)); g.e("s_mov_b32 s%d, s%d" % (srd + 1, a + 1)); cut()
        g.e("s_mov_b32 s%d, 0x%x" % (srd + 2, n)); g.e("s_mov_b32 s%d, 0x20000" % (srd + 3)); cut()
    g.e("s_mov_b32 s68, 0"); g.e("s_mov_b32 s69, -1"); cut()
    g.e("s_mov_b32 %s, 0x%08x" % (sC, CSCALE)); g.e("s_lshl_b32 %s, %s, 10" % (sW1K, sWV)); cut()
    g.e("s_lshr_b32 %s, %s, 2" % (sHH, sWV)); g.e("s_sub_u32 %s, 3, %s" % (sT1, sP)); cut()
    g.e("s_cmp_lt_u32 %s, 4" % sWV); g.e("s_cselect_b32 %s, %s, %s" % (sRT, sT1, sP)); cut()
    g.e("s_lshl_b32 %s, %s, 3" % (sKVO, sBR)); g.e("s_add_u32 %s, %s, %s" % (sKVO, sKVO, sHP)); cut()
    g.e("s_lshl_b32 %s, %s, 4" % (sKVO, sKVO)); g.e("s_add_u32 %s, %s, %s" % (sKVO, sKVO, sR)); g.e("s_mul_i32 s37, %s, %d" % (sKVO, g.kvs)); g.e("s_lshl_b32 %s, %s, 15" % (sKVO, sKVO)); cut()
    if g.p3map:
        g.e("s_and_b32 %s, %s, 3" % (sCB, sHP)); g.e("s_lshr_b32 %s, %s, 2" % (sT0, sHP))
        if g.p3map == 2:
            g.e("s_mul_i32 %s, %s, 3" % (sT1, sT0)); g.e("s_xor_b32 %s, %s, %s" % (sCB, sCB, sT1))
        cut()
        g.e("s_lshl_b32 %s, %s, 1" % (sRB, sR)); g.e("s_add_u32 %s, %s, %s" % (sRB, sRB, sT0)); cut()
    elif g.map == 0:
        g.e("s_and_b32 %s, s2, 1" % sCB); g.e("s_lshl_b32 %s, %s, 1" % (sCB, sCB)); cut()
        g.e("s_bfe_u32 %s, s2, 0x10003" % sT0); g.e("s_add_u32 %s, %s, %s" % (sCB, sCB, sT0)); cut()
        g.e("s_bfe_u32 %s, s2, 0x20001" % sRB); g.e("s_lshl_b32 %s, %s, 3" % (sRB, sRB)); cut()
        g.e("s_bfe_u32 %s, s2, 0x30004" % sT0); g.e("s_add_u32 %s, %s, %s" % (sRB, sRB, sT0)); cut()
    else:
        g.e("s_and_b32 %s, s2, 1" % sCB); g.e("s_lshl_b32 %s, %s, 1" % (sCB, sCB)); cut()
        g.e("s_bfe_u32 %s, s2, 0x10003" % sT0); g.e("s_add_u32 %s, %s, %s" % (sCB, sCB, sT0)); cut()
        g.e("s_bfe_u32 %s, s2, 0x10001" % sRB); g.e("s_lshl_b32 %s, %s, 4" % (sRB, sRB)); cut()
        g.e("s_lshr_b32 %s, s2, 4" % sT0); g.e("s_add_u32 %s, %s, %s" % (sRB, sRB, sT0)); cut()
    g.e("s_mul_i32 %s, %s, 3584" % (sWOS, sWV)); g.e("s_lshl_b32 %s, %s, 8" % (sT0, sCB)); g.e("s_add_u32 %s, %s, %s" % (sWOS, sWOS, sT0)); cut()

def setup_vec(g, isA, cut):
    t0, t1, t2 = vT, vT + 1, vT + 2
    g.e("s_lshl_b32 %s, %s, 14" % (sT0, sHH)); g.e("s_lshl_b32 %s, %s, 12" % (sT1, sRT)); cut()
    g.e("s_add_u32 %s, %s, %s" % (sT0, sT0, sT1)); g.e("s_add_u32 %s, %s, %d" % (sT0, sT0, L_OWN)); g.e("v_add_u32 v%d, %s, v%d" % (vAD, sT0, vL16)); cut()
    for u in range(1, 9 if isA else 2):
        cross = ((L_R1 - L_OWN) if u <= 4 else (L_R2 - L_R1)) + 12288
        g.e("s_mov_b32 %s, 0x%x" % (sT1, cross & 0xffffffff))
        g.e("s_cmp_eq_u32 %s, %d" % (sRT, (u - 1) % 4))
        g.e("s_cselect_b32 %s, %s, 0x%x" % (sT0, sT1, (-4096) & 0xffffffff))
        g.e("v_add_u32 v%d, %s, v%d" % (vAD + u, sT0, vAD + u - 1)); cut()
    g.e("v_lshrrev_b32 v%d, 4, v%d" % (t0, vLANE)); g.e("v_lshlrev_b32 v%d, 2, v%d" % (t1, t0)); cut()
    g.e("v_and_b32 v%d, 15, v%d" % (t2, vLANE)); g.e("v_xor_b32 v%d, v%d, v%d" % (t1, t1, t2)); cut()
    g.e("v_mul_u32_u24 v%d, 896, v%d" % (vWOO, t0)); g.e("v_lshl_add_u32 v%d, v%d, 4, v%d" % (vWOO, t1, vWOO)); cut()
    g.e("s_cmp_eq_u32 %s, 3" % sCB); g.e("s_cselect_b32 %s, 8, 64" % sT0)
    g.e("v_mov_b32 v%d, 0x%x" % (t2, OOB)); cut()
    g.e("v_cmp_le_u32 vcc, %s, v%d" % (sT0, t1))
    g.e("s_lshl_b32 %s, %s, 7" % (sT1, sHH)); g.e("v_add_u32 v%d, %s, v%d" % (vG1, sT1, vGR))
    g.e("v_cndmask_b32 v%d, v%d, v%d, vcc" % (vWOO, vWOO, t2)); cut()

def masks(g, isA):
    g.e("v_mov_b32 v%d, 0x%08x" % (vT, NEG))
    for r in range(16):
        if isA:
            g.mask(lane_mask(lambda l: key_of(r, l) <= (l & 31)))
            g.e("v_cndmask_b32 v%d, v%d, 0, %s" % (vC1 + r, vT, sTM))
            g.e("v_cndmask_b32 v%d, 0, v%d, %s" % (vC2 + r, vT, sTM))
        else:
            g.mask(lane_mask(lambda l: ((l & 31) - key_of(r, l)) in range(0, 16, 2)))
            g.e("v_cndmask_b32 v%d, v%d, 0, %s" % (vC1 + r, vT, sTM))
            g.mask(lane_mask(lambda l: (32 + (l & 31) - key_of(r, l)) in range(0, 16, 2)))
            g.e("v_cndmask_b32 v%d, v%d, 0, %s" % (vC2 + r, vT, sTM))
    if not isA:
        skip = g.newlab("L_c2")
        g.e("s_or_b32 %s, %s, %s" % (sT0, sR, sRT)); g.e("s_cmp_lg_u32 %s, 0" % sT0); g.e("s_cbranch_scc1 %s" % skip)
        for r in range(16): g.e("v_mov_b32 v%d, v%d" % (vC2 + r, vT))
        g.lab(skip)

def xrd_addr(g, dst, srow_shift_reg):
    t0, t1, t2 = vT, vT + 1, vT + 2
    g.e("v_and_b32 v%d, 31, v%d" % (t0, vLANE)); g.e("v_bfe_u32 v%d, v%d, 1, 3" % (t1, vLANE))
    g.e("v_lshrrev_b32 v%d, 5, v%d" % (t2, vLANE)); g.e("v_xor_b32 v%d, v%d, v%d" % (t1, t1, t2))
    g.e("v_lshlrev_b32 v%d, 7, v%d" % (t0, t0)); g.e("v_add_u32 v%d, %s, v%d" % (t0, srow_shift_reg, t0))
    g.e("v_lshl_add_u32 v%d, v%d, 4, v%d" % (dst, t1, t0))
    for k in range(1, 4): g.e("v_xor_b32 v%d, %d, v%d" % (dst + k, k << 5, dst))
def wrd_addr(g, dst, colbyte):
    t0, t1, t2 = vT, vT + 1, vT + 2
    g.e("v_bfe_u32 v%d, v%d, 2, 2" % (t0, vLANE)); g.e("v_lshrrev_b32 v%d, 5, v%d" % (t2, vLANE))
    g.e("v_lshl_add_u32 v%d, v%d, 3, v%d" % (t1, t2, t0)); g.e("v_lshlrev_b32 v%d, 7, v%d" % (t1, t1))
    g.e("v_lshrrev_b32 v%d, 1, v%d" % (t0, t0)); g.e("v_lshlrev_b32 v%d, 6, v%d" % (t0, t0))
    g.e("v_and_b32 v%d, 3, v%d" % (t2, vLANE)); g.e("v_lshlrev_b32 v%d, 3, v%d" % (t2, t2))
    g.e("v_and_b32 v%d, 16, v%d" % (dst, vLANE)); g.e("v_lshl_add_u32 v%d, v%d, 1, v%d" % (t2, dst, t2))
    g.e("v_add_u32 v%d, %s, v%d" % (t2, colbyte, t2))
    g.e("v_xor_b32 v%d, v%d, v%d" % (t2, t2, t0)); g.e("v_add_u32 v%d, v%d, v%d" % (dst, t1, t2))

def producer_prep(g):
    t0, t1, t2, t3 = vT, vT + 1, vT + 2, vT + 3
    g.e("v_lshrrev_b32 v%d, 3, v%d" % (t0, vLANE)); g.e("v_lshrrev_b32 v%d, 4, v%d" % (t1, vLANE))
    g.e("v_xor_b32 v%d, v%d, v%d" % (t1, t1, vLANE)); g.e("v_and_b32 v%d, 7, v%d" % (t1, t1))
    g.e("v_mul_u32_u24 v%d, 896, v%d" % (t2, t0))
    g.e("v_lshl_add_u32 v%d, v%d, 4, v%d" % (vXO, t1, t2))
    g.e("v_xor_b32 v%d, 64, v%d" % (t3, vXO))
    g.e("v_add_u32 v%d, %d, v%d" % (vXO + 1, 7168 - 1024, t3))
    g.e("v_add_u32 v%d, %d, v%d" % (vXO + 2, 2 * (7168 - 1024), vXO))
    g.e("v_add_u32 v%d, %d, v%d" % (vXO + 3, 3 * (7168 - 1024), t3))
    g.e("v_lshrrev_b32 v%d, 2, v%d" % (t1, vLANE)); g.e("v_and_b32 v%d, 4, v%d" % (t1, t1))
    g.e("v_and_b32 v%d, 7, v%d" % (t2, vLANE)); g.e("v_xor_b32 v%d, v%d, v%d" % (t1, t1, t2)); g.e("v_min_u32 v%d, 6, v%d" % (t1, t1))
    g.e("v_mul_u32_u24 v%d, 2688, v%d" % (t2, t0)); g.e("v_lshl_add_u32 v%d, v%d, 4, v%d" % (t2, t1, t2))
    for q in range(4):
        t, h = divmod(q, 2)
        g.e("v_add_u32 v%d, %d, v%d" % (vWO + q, WBIAS + h * 8 * 2688 + (t + 1) * 896 - q * 1024, t2))
    for h in range(2): g.e("v_add_u32 v%d, %d, v%d" % (vWQ + h, WBIAS + h * 8 * 2688 - h * 1024, t2))
    g.e("s_mul_i32 %s, %s, %d" % (sXS, sR, 128 * 896)); g.e("s_mul_i32 %s, %s, %d" % (sT1, sP, 32 * 896)); g.e("s_add_u32 %s, %s, %s" % (sXS, sXS, sT1))
    g.e("s_mul_i32 %s, %s, 112" % (sWSO, sHP)); g.e("s_mul_i32 %s, %s, %d" % (sT1, sP, 16 * 2688)); g.e("s_add_u32 %s, %s, %s" % (sWSO, sWSO, sT1))
    g.e("s_lshl_b32 %s, %s, 12" % (sXB, sP)); g.e("s_lshl_b32 %s, %s, 11" % (sWB, sP))

def issue_item(g, vm, i):
    if i < 7:
        slot = (i % 5) * SLOT
        g.e("s_add_u32 m0, %s, %d" % (sXB, slot))
        if i: g.e("s_add_u32 %s, %s, 128" % (sXS, sXS))
        else: g.e("s_nop 0")
        for m in range(4): g.e("buffer_load_dwordx4 v%d, %s, %s offen%s%s lds" % (vXO + m, sX, sXS, " offset:%d" % (m * 1024) if m else "", g.ldf))
        g.e("s_add_u32 m0, %s, %d" % (sXB, slot + 16384))
        if i: g.e("s_add_u32 %s, %s, %d" % (sWSO, sWSO, 64 * 2688))
        else: g.e("s_mov_b32 %s, %s" % (sKC, sWSO))
        for q in range(4):
            if i == 2 and q == 3: g.e("s_mov_b64 exec, %s" % sHM)
            g.e("buffer_load_dwordx4 v%d, %s, %s offen%s%s lds" % (vWO + q, sW, sWSO, " offset:%d" % (q * 1024) if q else "", g.ldf))
        if i == 2: g.e("s_mov_b64 exec, -1")
        vm.add(i, 8)
    else:
        cs = range(4) if i == 7 else range(4, 7)
        for c in cs:
            g.e("s_add_u32 m0, %s, %d" % (sWB, L_WQ + c * 8192))
            if c: g.e("s_add_u32 %s, %s, %d" % (sKC, sKC, 64 * 2688))
            else: g.e("s_nop 0")
            g.e("buffer_load_dwordx4 v%d, %s, %s offen lds" % (vWQ, sW, sKC))
            if c == 3: g.e("s_mov_b64 exec, %s" % sHM)
            g.e("buffer_load_dwordx4 v%d, %s, %s offen offset:1024 lds" % (vWQ + 1, sW, sKC))
            if c == 3: g.e("s_mov_b64 exec, -1")
        vm.add(i, 2 * len(cs))

def early_dbg(g):
    g.e("s_mov_b32 s24, s46"); g.e("s_mov_b32 s25, s47"); g.e("s_mov_b32 s26, 256"); g.e("s_mov_b32 s27, 0x20000")
    g.e("v_mov_b32 v%d, 0" % vZ); g.e("v_lshlrev_b32 v%d, 4, v%d" % (vL16, vLANE))

def producer(g, isA):
    dist = g.dA if isA else g.dB
    assert dist >= 2
    vm = Q(); lg = Q()
    vm.add(0, 8)
    if g.pprio: g.e("s_setprio %d" % g.pprio)
    m = lane_mask(lambda l: ((l & 7) ^ (4 * ((l >> 4) & 1))) != 7)
    g.e("s_mov_b32 s38, 0x%08x" % (m & 0xffffffff)); g.e("s_mov_b32 s39, 0x%08x" % (m >> 32))
    g.e("s_cmp_eq_u32 %s, 7" % sWV); g.e("s_cselect_b64 %s, %s, -1" % (sHM, sHM))
    XW = lambda wn, k: (vXRD + k) if wn == 0 else (64 + 4 * (wn - 1) + k)
    vm.add(1, 8)
    g.stamp(1)
    nxt = 2
    for i in range(9):
        g.wv(vm.wait(i))
        if i >= 1: g.wl(lg.wait(("x", i - 1)))
        def pst(k):
            if "pdet" in g.exp and i in (3, 4, 5): g.only = None; g.stamp(1 + (i - 3) * 4 + k); g.only = (0, 14)
        pst(0)
        bump(g, vFB); lg.add("f")
        if i == 0: g.stamp(2)
        if "pit" in g.exp and i >= 1: g.only = None; g.stamp(2 + i); g.only = (0, 1, 2, 14)
        if i < 7:
            if i + dist >= 5 and i + dist <= 8:
                g.e("ds_read_b32 v%d, v%d offset:512" % (vFV, vFA)); lg.add("dn")
            if "nopx" not in g.exp:
                for ks in range(4): g.e("ds_read_b128 %s, v%d offset:%d" % (vr(vXF + 16 * i + 4 * ks, 4), XW((i % 5) // 2, ks), (i % 5 % 2) * SLOT))
                lg.add(("x", i), 4)
        if g.gate and isA and i == g.gsig:
            sk = g.newlab("L_gs")
            g.e("s_cmp_lg_u32 %s, 4" % sWV); g.e("s_cbranch_scc1 %s" % sk)
            get_nonce(g)
            g.e("s_lshl_b32 %s, s2, 7" % sT0); g.e("s_add_u32 %s, %s, 0x%x" % (sT0, sT0, WS_GFLAG))
            store_flag(g, sT0)
            g.lab(sk)
        while nxt <= 8 and nxt <= i + dist:
            if g.gate and not isA and nxt == g.gitem:
                g.e("s_waitcnt vmcnt(0)"); vm.clear()
                get_nonce(g)
                g.e("s_sub_u32 %s, s2, 128" % sT0); g.e("s_lshl_b32 %s, %s, 7" % (sT0, sT0)); g.e("s_add_u32 %s, %s, 0x%x" % (sT0, sT0, WS_GFLAG))
                g.e("v_mov_b32 v%d, %s" % (vT, sT0))
                poll(g, vT, "1")
                if g.touch == 3: touch_own(g, g.gitem + 1); vm.add("t", 2)
            pst(1)
            if nxt >= 5:
                n = lg.wait("dn")
                if n is None: spin(g, nxt - 4, vFA, 512, vFV); lg.clear()
                else:
                    g.wl(n); check(g, nxt - 4, vFA, 512, vFV)
            pst(2)
            if nxt == 8 and g.late8: break
            if nxt == 7 and g.late7: break
            issue_item(g, vm, nxt); nxt += 1
            pst(3)
        if i == 0 and g.gate:
            early_dbg(g)
            g.e("s_mov_b32 s16, s48"); g.e("s_mov_b32 s17, s49"); g.e("s_mov_b32 s18, 0x%x" % WS_RECORDS); g.e("s_mov_b32 s19, 0x20000")
            g.e("buffer_load_dwordx2 %s, v%d, %s, 0 offen sc1" % (vr(vNON, 2), vZ, sDBG)); vm.add("non0")
        if i == g.ps1:
            for wn in (1, 2):
                for k in range(4): g.e("v_add_u32 v%d, 0x%x, v%d" % (XW(wn, k), wn * 65536, vXRD + k))
            early_dbg(g)
            for grp in g.capture(lambda cut: setup_scalars(g, cut)): g.l += grp
        if i == g.ps2:
            wrd_addr(g, vWRD, 0); g.e("v_add_u32 v%d, %d, v%d" % (vWRD, L_WQ, vWRD)); wrd_addr(g, vQW, 56); g.e("v_add_u32 v%d, %d, v%d" % (vQW, L_WQ, vQW))
            masks(g, isA)
        if i == 6 and g.late7:
            spin(g, 4, vGR, F_ST, vFV); lg.clear()
            bump(g, vGW, F_XD); lg.add("f")
            issue_item(g, vm, 7); issue_item(g, vm, 8); nxt = 9
        if i == 7:
            if not g.late7: bump(g, vGW, F_XD); lg.add("f")
            g.e("buffer_load_dwordx2 %s, v%d, %s, 0 offen sc1" % (vr(vNON, 2), vZ, sDBG)); vm.add("non")
            g.stamp(3)
            q_phase_begin = True
            break
    late = g.capture(lambda cut: setup_vec(g, isA, cut))
    aQ = vACC; WB = 64
    def rd(j, hds=(0, 1)):
        c, ks = divmod(j, 4)
        b = WB + (j % 3) * 8
        for hd in hds:
            for h in range(2):
                g.e("ds_read_b64_tr_b16 %s, v%d offset:%d" % (vr(b + 4*hd + 2*h, 2), vQW if hd else vWRD, c * 8192 + ks * 2048 + h * 512))
            lg.add((j, hd), 2)
    spin(g, 8, vFA, 0, vFV); lg.clear()
    if g.late8 == 1:
        spin(g, 4, vGR, F_ST, vFV); issue_item(g, vm, 8)
    if g.qwait: spin(g, 7, vFA, 512, vFV)
    g.stamp(5)
    rd(0); rd(1)
    for j in range(28):
        b = WB + (j % 3) * 8
        if j == g.qpj and g.qprio: g.e("s_setprio %d" % g.qprio)
        if j == g.late8 and g.late8 > 1: issue_item(g, vm, 8)
        if j == 12 - 0 * g.late8 + (0 if g.late8 else -2):
            g.wv(vm.wait(8)); bump(g, vFB); lg.add("f")
        for hd in range(2):
            g.wl(lg.wait((j, hd)))
            g.mfma(aQ + 16 * hd, b + 4 * hd, vXF + 4 * j, None if j == 0 else aQ + 16 * hd)
            if hd == 0:
                if j == 13: g.e("ds_read_b32 v%d, v%d" % (vFV, vFA)); lg.add("flag")
                if j == 14:
                    g.wl(lg.wait("flag")); check(g, 9, vFA, 0, vFV); g.stamp(6)
            if j + 2 < 28: rd(j + 2, (hd,))
            if late and j >= 16: g.l += late.pop(0)
    for grp in late: g.l += grp
    g.e("v_mov_b32 v%d, %s" % (vT + 1, sC))
    g.e("v_cndmask_b32 v%d, v%d, 0, %s" % (vT + 2, vT + 1, sUP))
    g.e("s_lshl_b32 %s, %s, 11" % (sT0, sP)); g.e("s_add_u32 %s, %s, %d" % (sT0, sT0, L_QA)); g.e("v_add_u32 v%d, %s, v%d" % (vT, sT0, vL16))
    g.e("s_nop 5")
    for hd in range(2):
        a = aQ + 16 * hd; p = a if hd == 0 else vQF
        if g.qround:
            for i in range(8):
                g.e("v_cvt_pk_bf16_f32 v%d, v%d, v%d" % (a + 2*i + 1, a + 2*i, a + 2*i + 1))
                g.e("v_lshlrev_b32 v%d, 16, v%d" % (a + 2*i, a + 2*i + 1))
                g.e("v_and_b32 v%d, 0xffff0000, v%d" % (a + 2*i + 1, a + 2*i + 1))
        for r in range(16): g.e("v_mul_f32 v%d, v%d, v%d" % (a + r, vT + (2 if r >= 12 else 1), a + r))
        for i in range(8): g.e("v_cvt_pk_bf16_f32 v%d, v%d, v%d" % (p + i, a + 2*i, a + 2*i + 1))
        if hd == 0:
            for f in range(2): g.e("ds_write_b128 v%d, %s offset:%d" % (vT, vr(p + 4*f, 4), f * 1024))
            g.e("s_waitcnt lgkmcnt(0)")
            bump(g, vGW, F_QRDY)
    if g.qprio: g.e("s_setprio %d" % g.aprio)
    g.e("s_waitcnt vmcnt(0)")
    get_nonce(g)
    if g.wotouch and g.p3map:
        g.e("s_and_b32 %s, %s, 3" % (sT0, sR)); g.e("s_mul_i32 %s, %s, %d" % (sT0, sT0, 112 * 896))
        g.e("s_lshl_b32 %s, %s, 8" % (sT1, sCB)); g.e("s_add_u32 %s, %s, %s" % (sT0, sT0, sT1))
        g.e("s_and_b32 %s, %s, 1" % (sT1, sP)); g.e("s_lshl_b32 %s, %s, 7" % (sT1, sT1)); g.e("s_add_u32 %s, %s, %s" % (sT0, sT0, sT1))
        g.e("s_lshr_b32 %s, %s, 1" % (sT1, sP)); g.e("s_mul_i32 %s, %s, %d" % (sT1, sT1, 56 * 896)); g.e("s_add_u32 %s, %s, %s" % (sT0, sT0, sT1))
        g.e("v_mul_u32_u24 v%d, 896, v%d" % (vT, vLANE))
        g.mask((1 << 56) - 1); g.e("s_mov_b64 exec, %s" % sTM)
        g.e("buffer_load_dword v%d, v%d, %s, %s offen" % (vGX + 1, vT, sWO, sT0))
        g.e("s_mov_b64 exec, -1")
    elif g.wotouch:
        nt = g.newlab("L_nwt")
        g.e("s_cmp_gt_u32 %s, 5" % sWV); g.e("s_cbranch_scc1 %s" % nt)
        nsh = 8 if g.map == 0 else 16
        g.e("s_and_b32 %s, %s, %d" % (sT0, sRB, nsh - 1)); g.e("s_mul_i32 %s, %s, %d" % (sT0, sT0, (448 // nsh) * 896))
        g.e("s_lshl_b32 %s, %s, 8" % (sT1, sCB)); g.e("s_add_u32 %s, %s, %s" % (sT0, sT0, sT1))
        g.e("s_and_b32 %s, %s, 1" % (sT1, sWV)); g.e("s_lshl_b32 %s, %s, 7" % (sT1, sT1)); g.e("s_add_u32 %s, %s, %s" % (sT0, sT0, sT1))
        g.e("v_mul_u32_u24 v%d, 896, v%d" % (vT, vLANE))
        mm = (1 << (448 // nsh)) - 1
        g.mask(mm); g.e("s_mov_b64 exec, %s" % sTM)
        g.e("buffer_load_dword v%d, v%d, %s, %s offen" % (vGX + 1, vT, sWO, sT0))
        g.e("s_mov_b64 exec, -1")
        g.lab(nt)
    g.stamp(4)
    if g.woea == 1:
        spin(g, 4, vGR, F_QRDY, vFV)
        g.e("s_sub_u32 %s, %s, %d" % (sT2, sWOS, 4 * 3584)); g.e("s_lshl_b32 %s, %s, 10" % (sT1, sP))
        for m in range(8):
            sk = g.newlab("L_w1s")
            if m == 7:
                g.e("s_cmp_eq_u32 %s, 7" % sWV); g.e("s_cbranch_scc1 %s" % sk)
            g.e("s_add_u32 m0, %s, %d" % (sT1, L_W1A + m * 4096))
            g.e("s_add_u32 %s, %s, %d" % (sT3, sT2, m * 4 * 3584))
            g.e("buffer_load_dwordx4 v%d, %s, %s offen lds" % (vWOO, sWO, sT3))
            if m == 7: g.lab(sk)
    spin(g, 4, vGR, F_OWN, vFV)

def consumer(g, isA):
    t0, t1, t2 = vT, vT + 1, vT + 2
    early_dbg(g)
    skip = g.newlab("L_non")
    g.e("s_or_b32 %s, s2, %s" % (sT0, sWV)); g.e("s_cmp_lg_u32 %s, 0" % sT0); g.e("s_cbranch_scc1 %s" % skip)
    g.e("s_memrealtime %s" % sNON); g.e("s_waitcnt lgkmcnt(0)"); g.e("s_or_b32 s60, s60, 1")
    g.e("v_mov_b32 v%d, s60" % vNON); g.e("v_mov_b32 v%d, s61" % (vNON + 1))
    g.e("s_mov_b64 exec, 1")
    g.e("buffer_store_dwordx2 %s, v%d, %s, 0 offen sc1" % (vr(vNON, 2), vZ, sDBG))
    g.e("s_mov_b64 exec, -1")
    g.lab(skip)
    if g.ctouch:
        ct = g.newlab("L_ct")
        g.e("s_cmp_lg_u32 %s, 1" % sWV); g.e("s_cbranch_scc1 %s" % ct)
        pc = g.newlab("L_pc")
        g.e("s_getpc_b64 s[16:17]")
        g.lab(pc)
        g.e("s_sub_u32 s16, s16, %s-%s_kernel" % (pc, NAME)); g.e("s_subb_u32 s17, s17, 0")
        g.e("s_mov_b32 s18, L_codeend-%s_kernel" % NAME); g.e("s_mov_b32 s19, 0x20000")
        g.e("s_lshr_b32 %s, s2, 3" % sT0); g.e("s_mul_i32 %s, %s, %d" % (sT0, sT0, 16 * 128))
        g.e("v_lshlrev_b32 v%d, 7, v%d" % (vT, vLANE))
        g.e("s_mov_b64 exec, 0xffff")
        g.e("buffer_load_dword v192, v%d, s[16:19], %s offen" % (vT, sT0))
        g.e("s_mov_b64 exec, -1")
        g.lab(ct)
    if g.touch and not isA: touch(g)
    g.e("s_and_b32 %s, %s, 1" % (sT2, sWV)); g.e("s_lshl_b32 %s, %s, 13" % (sT2, sT2))
    xrd_addr(g, vXRD, sT2)
    g.e("s_lshr_b32 %s, %s, 1" % (sT3, sWV)); g.e("s_mul_i32 %s, %s, 56" % (sT1, sT3))
    wrd_addr(g, vWRD, sT1)
    sa = lambda wn, k: vQF + 5 * wn + k
    for wn in range(3):
        for k in range(4): g.e("v_add_u32 v%d, 0x%x, v%d" % (sa(wn, k), wn * 65536, vXRD + k))
        g.e("v_add_u32 v%d, 0x%x, v%d" % (sa(wn, 4), wn * 65536, vWRD))
    g.e("s_lshl_b32 %s, %s, 13" % (sT4, sWV))
    g.e("s_add_u32 %s, %s, %d" % (sT0, sT4, L_OWN)); g.e("v_add_u32 v%d, %s, v%d" % (vKVW, sT0, vL16))
    for grp in g.capture(lambda cut: setup_scalars(g, cut)): g.l += grp
    if g.ptouch:
        pt = g.newlab("L_pt")
        g.e("s_cmp_lg_u32 %s, 1" % sWV); g.e("s_cbranch_scc1 %s" % pt)
        g.e("v_lshlrev_b32 v%d, 21, v%d" % (vT, vLANE))
        g.e("s_lshl_b32 %s, s2, 7" % sT0); g.e("s_add_u32 %s, %s, 0x100000" % (sT0, sT0))
        g.e("s_mov_b64 exec, 0x1ff")
        g.e("buffer_load_dword v193, v%d, %s, %s offen" % (vT, sWS, sT0))
        g.e("s_mov_b64 exec, 3")
        g.e("buffer_load_dword v194, v%d, %s, %s offen" % (vT, sOUT, sT0))
        g.e("s_mov_b64 exec, 1")
        g.e("s_lshl_b32 %s, s2, 7" % sT0)
        g.e("buffer_load_dword v195, v%d, %s, %s offen" % (vT, sWO, sT0))
        g.e("s_mov_b64 exec, -1")
        g.lab(pt)
    g.stamp(1)
    lg = Q()
    KF = g.kfirst
    xbuf = lambda j: 192 if (KF and j == 27) else vXB + (j % 3) * 8
    kbuf = lambda j: vWB + (j % 3) * 8
    vbuf = lambda j: (200 + (j - 24) * 4) if (KF and j >= 24) else vWB + (j % 3) * 8 + 4
    def rd_ops(j):
        i, ks = divmod(j, 4)
        xb = xbuf(j)
        sl = i % 5; ax = sa(sl // 2, ks); aw = sa(sl // 2, 4); base = (sl % 2) * SLOT
        tr = lambda t, h: "ds_read_b64_tr_b16 %s, v%d offset:%d" % (vr((vbuf(j) if t else kbuf(j)) + 2*h, 2), aw, base + 16384 + ks * 4096 + t * 2048 + h * 512)
        return [((j, "x0"), "ds_read_b128 %s, v%d offset:%d" % (vr(xb, 4), ax, base)), ((j, "k"), tr(0, 0)), ((j, "k"), tr(0, 1)),
                ((j, "x1"), "ds_read_b128 %s, v%d offset:%d" % (vr(xb + 4, 4), ax, base + 4096)), ((j, "v"), tr(1, 0)), ((j, "v"), tr(1, 1))]
    def emit(op):
        g.e(op[1]); lg.add(op[0])
    spin(g, 1, vFA, 0, vFV)
    g.stamp(2)
    for j in range(2):
        for op in rd_ops(j): emit(op)
    aK, aV = vACC, vACC + 32
    dist = eval(g.cdist)
    for j in range(28):
        xb = xbuf(j)
        nx = rd_ops(j + 2) if j + 2 < 28 else []
        mms = [((j, "k"), aK, kbuf(j), xb), ((j, "x1"), aK + 16, kbuf(j), xb + 4)]
        tailk = KF and j >= 24
        if not tailk: mms += [((j, "v"), aV, xb, vbuf(j)), (None, aV + 16, xb + 4, vbuf(j))]
        for n, (dep, d, a, b) in enumerate(mms):
            if dep is not None: g.wl(lg.wait(dep))
            g.mfma(d, a, b, None if j == 0 else d)
            if n == 0 and nx and (j + 2) % 4 == 0:
                g.wl(lg.wait(("flag", (j + 2) // 4))); check(g, (j + 2) // 4 + 1, vFA, 0, vFV)
                if "pit" in g.exp: g.only = None; g.stamp(2 + (j + 2) // 4); g.only = (0, 1, 2, 14)
            for _ in range(3 if tailk else dist[n]):
                if nx: emit(nx.pop(0))
            if n == 1 and (j + 3) % 4 == 0 and j + 3 < 28:
                g.e("ds_read_b32 v%d, v%d" % (vFV, vFA)); lg.add(("flag", (j + 3) // 4))
            if n == 3 and j % 4 == 3:
                bump(g, vFB); lg.add("done")
            if n == 1 and j == 26:
                g.e("ds_read_b32 v%d, v%d offset:512" % (vFV, vFA)); lg.add("alldone")
            if j == 18 and n == 3: g.e("buffer_load_dwordx2 %s, v%d, %s, 0 offen sc1" % (vr(vNON, 2), vZ, sDBG))
    def pre():
        g.e("v_mov_b32 v%d, 0x3f803f80" % vT)
        g.mask(lane_mask(lambda l: (l & 31) == 28))
        g.e("s_add_u32 %s, %s, s37" % (sT1, sT4)); g.e("s_add_u32 %s, %s, 4096" % (sT0, sT1))
        if not isA:
            g.e("s_bitcmp1_b32 %s, 0" % sWV); g.e("s_cselect_b32 %s, %s, 0x%x" % (sT0, sT0, OOB))
    def pub(t, f, p):
        if isA or t == 1: g.e("buffer_store_dwordx4 %s, v%d, %s, %s offen offset:%d%s" % (vr(p, 4), vL16, sWS, sT0 if t else sT1, f * 1024, g.stf))
    def packK(t):
        p = aK + 16 * t
        for i in range(8): g.e("v_cvt_pk_bf16_f32 v%d, v%d, v%d" % (p + i, p + 2*i, p + 2*i + 1))
        g.e("v_cndmask_b32 v%d, v%d, v%d, %s" % (p + 6, p + 6, vT, sUP))
        for f in range(2): pub(t, f, p + 4*f)
    def packV(t):
        p = aV + 16 * t
        for f in range(2):
            for i in range(4*f, 4*f + 4): g.e("v_cvt_pk_bf16_f32 v%d, v%d, v%d" % (p + i, p + 2*i, p + 2*i + 1))
            for i in range(4*f, 4*f + 4): g.e("v_cndmask_b32 v%d, v%d, v%d, %s" % (p + i, p + i, vT, sTM))
            pub(t, 2 + f, p + 4*f)
    if KF:
        to = (0, 1) if isA else (1, 0)
        fill = [x for grp in g.capture(lambda cut: (pre(), g.e("s_nop 1"), packK(to[0]), packK(to[1]))) for x in grp]
        g.e("s_waitcnt lgkmcnt(0)"); lg.clear()
        bump(g, vFB)
        seq = [(t, j) for t in to for j in range(24, 28)]
        for n, (t, j) in enumerate(seq):
            g.mfma(aV + 16 * t, xbuf(j) + 4 * t, vbuf(j), aV + 16 * t)
            k = 5 if n < 2 else 4
            g.l += fill[:k]; del fill[:k]
        g.l += fill
        g.stamp(3)
        check(g, 5, vFA, 512, vFV)
        packV(to[0]); packV(to[1])
    else:
        g.stamp(3)
        pre()
        g.wl(lg.wait("alldone")); check(g, 5, vFA, 512, vFV)
        g.e("s_nop 1")
        if isA: packK(0); packK(1); packV(0); packV(1)
        else: packK(1); packV(1); packK(0); packV(0)
    bump(g, vGW, F_ST)
    for t in range(2):
        for f in range(4):
            p = (aK + 16*t + 4*f) if f < 2 else (aV + 16*t + 4*(f - 2))
            g.e("ds_write_b128 v%d, %s offset:%d" % (vKVW, vr(p, 4), t * 4096 + f * 1024))
    for grp in g.capture(lambda cut: setup_vec(g, isA, cut)): g.l += grp
    g.e("s_waitcnt lgkmcnt(0)")
    bump(g, vGW, F_OWN)
    g.e("s_lshr_b32 %s, %s, 8" % (sT1, sKVO)); g.e("s_lshl_b32 %s, %s, 3" % (sT2, sWV))
    g.e("s_add_u32 %s, %s, %s" % (sT1, sT1, sT2)); g.e("s_add_u32 %s, %s, 0x%x" % (sT1, sT1, WS_KVFLAG))
    if isA and g.ksplit:
        g.e("s_waitcnt vmcnt(4)")
        get_nonce(g)
        store_flag(g, sT1)
        g.e("s_add_u32 %s, %s, 64" % (sT1, sT1))
        g.e("s_waitcnt vmcnt(1)")
        store_flag(g, sT1)
    else:
        g.e("s_waitcnt vmcnt(0)")
        get_nonce(g)
        store_flag(g, sT1)
    g.stamp(4)
    done = g.newlab("L_ldd")
    if g.mfirst: masks(g, isA)
    if not isA or g.r2late:
        g.e("s_cmp_lt_u32 %s, 2" % sWV); g.e("s_cbranch_scc1 %s" % done)
    if isA and g.ksplit == 2: fetch_r1(g)
    else: fetch_remote(g, isA, split=(isA and g.ksplit and g.r2late))
    if not isA:
        g.e("s_waitcnt vmcnt(0)")
        bump(g, vFB)
    g.lab(done)
    g.stamp(6)
    if not g.mfirst: masks(g, isA)
    g.e("s_lshl_b32 %s, %s, 11" % (sT0, sRT)); g.e("s_add_u32 %s, %s, %d" % (sT0, sT0, L_QA)); g.e("v_add_u32 v%d, %s, v%d" % (vT, sT0, vL16))
    spin(g, 4, vGR, F_OWN, vFV); spin(g, 4, vGR, F_QRDY, vFV)
    for f in range(2): g.e("ds_read_b128 %s, v%d offset:%d" % (vr(vQF + 4*f, 4), vT, f * 1024))

def fetch_remote(g, isA, split=False):
    both = isA and g.ksplit
    g.e("s_lshr_b32 %s, %s, 1" % (sT3, sRT))
    spin(g, 7, vFA, 512, vFV); spin(g, 4, vGR, F_XD, vFV)
    g.e("s_and_b32 %s, %s, 1" % (sT2, sRT)); g.e("s_add_u32 %s, %s, 1" % (sT4, sT3))
    g.e("s_lshl_b32 %s, %s, 15" % (sT0, sT4)); g.e("s_sub_u32 %s, %s, %s" % (sXS, sKVO, sT0))
    g.e("s_lshr_b32 %s, %s, 8" % (sT0, sXS)); g.e("s_lshl_b32 %s, %s, 4" % (sT1, sT2)); g.e("s_add_u32 %s, %s, %s" % (sT0, sT0, sT1))
    g.e("s_add_u32 %s, %s, 0x%x" % (sT0, sT0, WS_KVFLAG))
    g.e("v_and_b32 v%d, 1, v%d" % (vT, vLANE)); g.e("v_lshlrev_b32 v%d, 3, v%d" % (vT, vT)); g.e("v_add_u32 v%d, %s, v%d" % (vT, sT0, vT))
    g.e("v_and_b32 v%d, 2, v%d" % (vT + 1, vLANE)); g.e("v_lshl_add_u32 v%d, v%d, 5, v%d" % (vT, vT + 1, vT))
    g.e("s_lshl_b32 %s, %s, 7" % (sT0, sRT)); g.e("s_lshl_b32 %s, %s, 6" % (sT1, sT3)); g.e("s_sub_u32 %s, %s, %s" % (sT0, sT0, sT1))
    g.e("s_add_u32 %s, %s, 124" % (sT0, sT0)); g.e("v_add_u32 v%d, %s, v%d" % (vFB, sT0, vGW))
    g.e("s_mul_i32 %s, %s, %d" % (sT0, sT4, g.kvs)); g.e("s_sub_u32 %s, s37, %s" % (sT0, sT0))
    g.e("s_lshl_b32 %s, %s, 14" % (sT2, sT2)); g.e("s_add_u32 %s, %s, %s" % (sWSO, sT0, sT2))
    g.e("s_lshl_b32 %s, %s, 15" % (sT0, sT3)); g.e("s_sub_u32 %s, %d, %s" % (sT0, L_R1, sT0)); g.e("s_add_u32 %s, %s, %s" % (sT2, sT2, sT0))
    g.e("s_cmp_lt_u32 %s, %s" % (sR, sT4)); g.e("s_cselect_b32 %s, 0x%x, %s" % (sWSO, OOB, sWSO))
    def pl(mask):
        nopoll = g.newlab("L_nopoll")
        g.e("s_cmp_lt_u32 %s, %s" % (sR, sT4)); g.e("s_cbranch_scc1 %s" % nopoll)
        poll(g, vT, mask)
        g.lab(nopoll)
    def dma(fs):
        for t in ((3, 2, 1, 0) if isA else (3,)):
            g.e("s_add_u32 m0, %s, %d" % (sT2, t * 4096))
            g.e("s_add_u32 %s, %s, %d" % (sT0, sWSO, t * 4096))
            for f in fs: g.e("buffer_load_dwordx4 v%d, %s, %s offen offset:%d sc1 lds" % (vL16, sWS, sT0, f * 1024))
    if split:
        pl("3"); g.stamp(5); dma((0, 1))
        g.e("s_waitcnt vmcnt(0)"); bump(g, vFB)
        pl("12"); dma((2, 3))
    else:
        pl(("15" if both else "3") if isA else "2"); g.stamp(5); dma((0, 1, 2, 3))

def fetch_r1(g):
    spin(g, 7, vFA, 512, vFV); spin(g, 4, vGR, F_XD, vFV)
    g.e("s_lshr_b32 %s, %s, 8" % (sT0, sKVO)); g.e("s_lshl_b32 %s, %s, 6" % (sT1, sRT)); g.e("s_add_u32 %s, %s, %s" % (sT0, sT0, sT1))
    g.e("s_add_u32 %s, %s, 0x%x" % (sT0, sT0, WS_KVFLAG - 128))
    g.e("v_lshlrev_b32 v%d, 3, v%d" % (vT, vLANE)); g.e("v_add_u32 v%d, %s, v%d" % (vT, sT0, vT))
    g.e("s_lshl_b32 %s, %s, 11" % (sT2, sRT))
    g.e("s_sub_u32 %s, s37, %d" % (sWSO, g.kvs)); g.e("s_add_u32 %s, %s, %s" % (sWSO, sWSO, sT2))
    g.e("s_cmp_eq_u32 %s, 0" % sR); g.e("s_cselect_b32 %s, 0x%x, %s" % (sWSO, OOB, sWSO))
    nopoll = g.newlab("L_nopoll")
    g.e("s_cbranch_scc1 %s" % nopoll)
    poll(g, vT, "15")
    g.lab(nopoll)
    g.stamp(5)
    for t in (3, 2, 1, 0):
        for h in range(2):
            g.e("s_add_u32 m0, %s, %d" % (sT2, L_R1 + h * 16384 + t * 4096))
            g.e("s_add_u32 %s, %s, %d" % (sT0, sWSO, h * 16384 + t * 4096))
            for f in range(2): g.e("buffer_load_dwordx4 v%d, %s, %s offen offset:%d sc1 lds" % (vL16, sWS, sT0, f * 1024))
    g.e("s_mul_i32 %s, %s, 12" % (sT0, sRT)); g.e("s_sub_u32 %s, 124, %s" % (sT0, sT0)); g.e("v_add_u32 v%d, %s, v%d" % (vFB, sT0, vGW))

def touch(g):
    if g.map == 2: return touch_m2(g)
    if g.touch in (1, 3): return touch1(g)
    t0, t1, t2, t3 = vT, vT + 1, vT + 2, vT + 3
    isw = g.newlab("L_tw"); end = g.newlab("L_te")
    g.e("s_bfe_u32 %s, s2, 0x40003" % sT0); g.e("s_lshl_b32 %s, %s, 7" % (sT0, sT0))
    g.e("v_and_b32 v%d, 127, v0" % t0); g.e("v_add_u32 v%d, %s, v%d" % (t0, sT0, t0))
    g.e("v_mov_b32 v%d, 0x%x" % (t3, OOB))
    g.e("s_mov_b32 s19, 0x20000"); g.e("s_mov_b32 s23, 0x20000")
    g.e("s_cmp_ge_u32 %s, 2" % sWV); g.e("s_cbranch_scc1 %s" % isw)
    g.e("s_mov_b32 s16, s32"); g.e("s_mov_b32 s17, s33"); g.e("s_mov_b32 s18, 0x%x" % X_BYTES)
    g.e("s_mov_b32 s20, s4"); g.e("s_mov_b32 s21, s5"); g.e("s_mov_b32 s22, 0x%x" % X_BYTES)
    g.e("v_and_b32 v%d, 511, v%d" % (t1, t0)); g.e("v_mul_u32_u24 v%d, 896, v%d" % (t1, t1))
    g.e("v_lshrrev_b32 v%d, 9, v%d" % (t2, t0)); g.e("v_cmp_gt_u32 vcc, 3, v%d" % t2)
    g.e("v_lshl_add_u32 v%d, v%d, 7, v%d" % (t1, t2, t1))
    g.e("s_bfe_u32 %s, s2, 0x20001" % sT0); g.e("s_mul_i32 %s, %s, %d" % (sT0, sT0, 512 * 896))
    g.e("v_cndmask_b32 v%d, v%d, v%d, vcc" % (t1, t3, t1))
    n = 0
    for srd in ("s[16:19]", "s[20:23]"):
        for c0 in (1, 4):
            g.e("buffer_load_dword v%d, v%d, %s, %s offen offset:%d" % (186 + n, t1, srd, sT0, c0 * 128)); n += 1
    g.e("s_branch %s" % end)
    g.lab(isw)
    g.e("s_mov_b32 s16, s34"); g.e("s_mov_b32 s17, s35"); g.e("s_mov_b32 s18, 0x%x" % W_BYTES)
    g.e("s_mov_b32 s20, s40"); g.e("s_mov_b32 s21, s41"); g.e("s_mov_b32 s22, 0x%x" % W_BYTES)
    g.e("v_lshrrev_b32 v%d, 3, v%d" % (t2, t0)); g.e("v_cmp_gt_u32 vcc, 192, v%d" % t2)
    g.e("v_mul_u32_u24 v%d, 2688, v%d" % (t1, t2))
    g.e("v_bfe_u32 v%d, v%d, 2, 1" % (t2, t0)); g.e("v_mul_u32_u24 v%d, 896, v%d" % (t2, t2)); g.e("v_add_u32 v%d, v%d, v%d" % (t1, t1, t2))
    g.e("v_and_b32 v%d, 3, v%d" % (t2, t0)); g.e("v_lshlrev_b32 v%d, 7, v%d" % (t2, t2)); g.e("v_add_u32 v%d, v%d, v%d" % (t1, t1, t2))
    g.e("v_cndmask_b32 v%d, v%d, v%d, vcc" % (t1, t3, t1))
    g.e("v_lshrrev_b32 v%d, 2, v%d" % (t0, t0)); g.e("v_mul_u32_u24 v%d, 2688, v%d" % (t0, t0)); g.e("v_add_u32 v%d, v%d, v%d" % (t0, t0, t2))
    g.e("s_and_b32 %s, s2, 1" % sT0); g.e("s_mul_i32 %s, %s, 384" % (sT0, sT0))
    g.e("s_add_u32 %s, %s, %d" % (sT1, sT0, 64 * 2688 + 896)); g.e("s_add_u32 %s, %s, %d" % (sT2, sT0, 4 * 64 * 2688 + 896))
    n = 0
    for srd in ("s[16:19]", "s[20:23]"):
        for so in (sT1, sT2):
            g.e("buffer_load_dword v%d, v%d, %s, %s offen" % (186 + n, t1, srd, so)); n += 1
        g.e("buffer_load_dword v%d, v%d, %s, %s offen" % (186 + n, t0, srd, sT0)); n += 1
    g.lab(end)

def touch_own(g, first):
    t0, t1, t2 = vT, vT + 1, vT + 2
    g.e("s_bfe_u32 %s, s2, 0x40003" % sT0); g.e("s_lshl_b32 %s, %s, 8" % (sT0, sT0))
    g.e("v_and_b32 v%d, 255, v0" % t0); g.e("v_add_u32 v%d, %s, v%d" % (t0, sT0, t0))
    g.e("v_and_b32 v%d, 511, v%d" % (t1, t0)); g.e("v_mul_u32_u24 v%d, 896, v%d" % (t1, t1))
    g.e("v_lshrrev_b32 v%d, 9, v%d" % (t2, t0)); g.e("v_add_u32 v%d, %d, v%d" % (t2, first, t2))
    g.e("v_cmp_gt_u32 vcc, 7, v%d" % t2)
    g.e("v_lshl_add_u32 v%d, v%d, 7, v%d" % (t1, t2, t1))
    g.e("v_mov_b32 v%d, 0x%x" % (t2, OOB))
    g.e("v_cndmask_b32 v%d, v%d, v%d, vcc" % (t1, t2, t1))
    g.e("s_bfe_u32 %s, s2, 0x20001" % sT0); g.e("s_mul_i32 %s, %s, %d" % (sT0, sT0, 512 * 896))
    g.e("v_lshrrev_b32 v%d, 2, v%d" % (t2, t0))
    g.e("buffer_load_dword v88, v%d, %s, %s offen" % (t1, sX, sT0))
    g.e("v_mul_u32_u24 v%d, 896, v%d" % (t2, t2))
    g.e("v_and_b32 v%d, 3, v%d" % (t0, t0)); g.e("v_lshl_add_u32 v%d, v%d, 7, v%d" % (t2, t0, t2))
    g.e("s_and_b32 %s, s2, 1" % sT0); g.e("s_mul_i32 %s, %s, 384" % (sT0, sT0)); g.e("s_add_u32 %s, %s, %d" % (sT0, sT0, first * 64 * 2688 + WBIAS))
    g.e("buffer_load_dword v89, v%d, %s, %s offen" % (t2, sW, sT0))

def touch_m2(g):
    t0, t1, t2 = vT, vT + 1, vT + 2
    g.e("s_bfe_u32 %s, s2, 0x40003" % sT0); g.e("s_lshl_b32 %s, %s, 8" % (sT0, sT0))
    g.e("v_add_u32 v%d, %s, v0" % (t0, sT0))
    g.e("v_and_b32 v%d, 255, v%d" % (t1, t0)); g.e("v_mul_u32_u24 v%d, 896, v%d" % (t1, t1))
    g.e("v_lshrrev_b32 v%d, 8, v%d" % (t2, t0)); g.e("v_add_u32 v%d, %d, v%d" % (t2, g.tfirst, t2))
    g.e("v_cmp_gt_u32 vcc, 7, v%d" % t2)
    g.e("v_lshl_add_u32 v%d, v%d, 7, v%d" % (t1, t2, t1))
    g.e("v_mov_b32 v%d, 0x%x" % (t2, OOB))
    g.e("v_cndmask_b32 v%d, v%d, v%d, vcc" % (t1, t2, t1))
    g.e("v_lshlrev_b32 v%d, 7, v%d" % (t0, t0))
    g.e("s_and_b32 %s, s2, 7" % sT0); g.e("s_mul_i32 %s, %s, %d" % (sT0, sT0, 256 * 896))
    g.e("s_mov_b32 %s, %d" % (sT1, g.tfirst * 64 * 2688)); g.e("s_mov_b32 %s, %d" % (sT2, g.tfirst * 64 * 2688 + 4096 * 128))
    n = 0
    for tb in (0, 1):
        if tb == 0:
            g.e("s_mov_b32 s16, s32"); g.e("s_mov_b32 s17, s33"); g.e("s_mov_b32 s20, s34"); g.e("s_mov_b32 s21, s35")
        else:
            g.e("s_mov_b32 s16, s4"); g.e("s_mov_b32 s17, s5"); g.e("s_mov_b32 s20, s40"); g.e("s_mov_b32 s21, s41")
        g.e("s_mov_b32 s18, 0x%x" % X_BYTES); g.e("s_mov_b32 s19, 0x20000"); g.e("s_mov_b32 s22, 0x%x" % W_BYTES); g.e("s_mov_b32 s23, 0x20000")
        g.e("buffer_load_dword v%d, v%d, s[20:23], %s offen" % (186 + n, t0, sT1)); n += 1
        g.e("buffer_load_dword v%d, v%d, s[16:19], %s offen" % (186 + n, t1, sT0)); n += 1
        g.e("buffer_load_dword v%d, v%d, s[20:23], %s offen" % (186 + n, t0, sT2)); n += 1

def touch1(g):
    t0, t1, t2 = vT, vT + 1, vT + 2
    for tb in ([0] if g.touch == 3 else [0, 1] if g.map == 0 else [1]):
        px, pw = (32, 34) if tb == 0 else (4, None)
        if tb == 0:
            g.e("s_mov_b32 s16, s32"); g.e("s_mov_b32 s17, s33"); g.e("s_mov_b32 s20, s34"); g.e("s_mov_b32 s21, s35")
        else:
            g.e("s_mov_b32 s16, s4"); g.e("s_mov_b32 s17, s5"); g.e("s_mov_b32 s20, s40"); g.e("s_mov_b32 s21, s41")
        g.e("s_mov_b32 s18, 0x%x" % X_BYTES); g.e("s_mov_b32 s19, 0x20000"); g.e("s_mov_b32 s22, 0x%x" % W_BYTES); g.e("s_mov_b32 s23, 0x20000")
        g.e("s_bfe_u32 %s, s2, 0x40003" % sT0); g.e("s_lshl_b32 %s, %s, 8" % (sT0, sT0))
        g.e("v_add_u32 v%d, %s, v0" % (t0, sT0))
        g.e("v_and_b32 v%d, 511, v%d" % (t1, t0)); g.e("v_mul_u32_u24 v%d, 896, v%d" % (t1, t1))
        g.e("v_lshrrev_b32 v%d, 9, v%d" % (t2, t0)); g.e("v_add_u32 v%d, %d, v%d" % (t2, g.tfirst, t2))
        g.e("v_cmp_gt_u32 vcc, 7, v%d" % t2)
        g.e("v_lshl_add_u32 v%d, v%d, 7, v%d" % (t1, t2, t1))
        g.e("v_mov_b32 v%d, 0x%x" % (t2, OOB))
        g.e("v_cndmask_b32 v%d, v%d, v%d, vcc" % (t1, t2, t1))
        g.e("s_bfe_u32 %s, s2, 0x20001" % sT0); g.e("s_mul_i32 %s, %s, %d" % (sT0, sT0, 512 * 896))
        g.e("v_lshrrev_b32 v%d, 2, v%d" % (t2, t0))
        g.e("buffer_load_dword v%d, v%d, s[16:19], %s offen%s" % (188 + 2*tb, t1, sT0, g.tf))
        g.e("v_mul_u32_u24 v%d, 896, v%d" % (t2, t2))
        g.e("v_and_b32 v%d, 3, v%d" % (t0, t0)); g.e("v_lshl_add_u32 v%d, v%d, 7, v%d" % (t2, t0, t2))
        g.e("s_and_b32 %s, s2, 1" % sT0); g.e("s_mul_i32 %s, %s, 384" % (sT0, sT0)); g.e("s_add_u32 %s, %s, %d" % (sT0, sT0, g.tfirst * 64 * 2688))
        g.e("buffer_load_dword v%d, v%d, s[20:23], %s offen%s" % (189 + 2*tb, t2, sT0, g.tf))

def max16(g, s, dst, first=True):
    if first:
        g.e("v_max3_f32 v%d, v%d, v%d, v%d" % (dst, s, s + 1, s + 2)); rest = list(range(3, 16))
    else: rest = list(range(16))
    while len(rest) >= 2:
        a, b = rest.pop(0), rest.pop(0)
        g.e("v_max3_f32 v%d, v%d, v%d, v%d" % (dst, dst, s + a, s + b))
    if rest: g.e("v_max_f32 v%d, v%d, v%d" % (dst, dst, s + rest[0]))
def xhalf_max(g):
    g.e("v_mov_b32 v%d, v%d" % (vM2, vM)); g.e("s_nop 1")
    g.e("v_permlane32_swap_b32 v%d, v%d" % (vM, vM2)); g.e("s_nop 1")
    g.e("v_max_f32 v%d, v%d, v%d" % (vM, vM, vM2))
def set_shift(g):
    g.e("v_cvt_pk_bf16_f32 v%d, -v%d, 0" % (vM2, vM))
    g.e("v_lshlrev_b32 v%d, 16, v%d" % (vNM, vM2))
    g.e("v_cndmask_b32 v%d, v%d, v%d, %s" % (vQF + 6, vQF + 6, vM2, sUP))
def bcast_l(g):
    g.e("v_mov_b32 v%d, v%d" % (vM, vO + 12)); g.e("v_mov_b32 v%d, v%d" % (vM2, vO + 12)); g.e("s_nop 1")
    g.e("v_permlane32_swap_b32 v%d, v%d" % (vM, vM2)); g.e("s_nop 1")
def finish_o(g):
    g.e("v_rcp_f32 v%d, v%d" % (vM, vM2))
    g.e("s_lshl_b32 %s, %s, 6" % (sT0, sBR)); g.e("s_lshl_b32 %s, %s, 2" % (sT1, sR)); g.e("s_add_u32 %s, %s, %s" % (sT0, sT0, sT1))
    g.e("v_cndmask_b32 v%d, v%d, 0, %s" % (vM2, vM, sUP))
    g.e("s_add_u32 %s, %s, %s" % (sT0, sT0, sRT)); g.e("s_mul_i32 %s, %s, %d" % (sT0, sT0, g.ofs))
    g.e("s_lshl_b32 %s, %s, 1" % (sT1, sHP)); g.e("s_add_u32 %s, %s, %s" % (sT1, sT1, sHH))
    g.e("s_lshl_b32 %s, %s, 11" % (sT1, sT1)); g.e("s_add_u32 %s, %s, %s" % (sT0, sT0, sT1)); g.e("s_add_u32 %s, %s, 0x%x" % (sT0, sT0, WS_OF))
    for f in range(2):
        for r in range(8*f, 8*f + 8): g.e("v_mul_f32 v%d, v%d, v%d" % (vO + r, vM2 if r >= 12 else vM, vO + r))
        for i in range(4*f, 4*f + 4): g.e("v_cvt_pk_bf16_f32 v%d, v%d, v%d" % (vP + i, vO + 2*i, vO + 2*i + 1))
        g.e("buffer_store_dwordx4 %s, v%d, %s, %s offen offset:%d%s" % (vr(vP + 4*f, 4), vL16, sWS, sT0, f * 1024, g.stf))
def dbg_q(g):
    if not g.dbgq: return
    g.e("s_lshl_b32 %s, %s, 2" % (sT0, sHH)); g.e("s_add_u32 %s, %s, %s" % (sT0, sT0, sRT)); g.e("s_lshl_b32 %s, %s, 11" % (sT0, sT0))
    g.e("s_lshr_b32 %s, %s, 1" % (sT1, sKVO)); g.e("s_add_u32 %s, %s, %s" % (sT0, sT0, sT1)); g.e("s_add_u32 %s, %s, 0x%x" % (sT0, sT0, WS_QDBG))
    g.e("s_waitcnt lgkmcnt(0)")
    for f in range(2): g.e("buffer_store_dwordx4 %s, v%d, %s, %s offen offset:%d" % (vr(vQF + 4*f, 4), vL16, sWS, sT0, f * 1024))
    g.e("s_waitcnt vmcnt(0)")

def wo_dma(g, m, ldsbase, row0, last=False):
    sk = g.newlab("L_wsk")
    if last:
        g.e("s_cmp_eq_u32 %s, 7" % sWV); g.e("s_cbranch_scc1 %s" % sk)
    g.e("s_add_u32 m0, %s, %d" % (sW1K, ldsbase + m * 8192))
    g.e("s_add_u32 %s, %s, %d" % (sT3, sWOS, row0 * 896 + m * 8 * 3584))
    g.e("buffer_load_dwordx4 v%d, %s, %s offen lds" % (vWOO, sWO, sT3))
    if last: g.lab(sk)
def wo1(g, n):
    if n < 4: wo_dma(g, n, L_W1A, 0, last=(n == 3))
    else: wo_dma(g, n - 4, L_W1B, 120)

def attn_A(g):
    lg = Q(); lg.add("q", 2)
    nwo = [0]; nwo0 = [0]; nwoS = {}
    def site(u):
        for (cond, b) in ((u - 1, 0), (u - 5, 1)):
            if 0 <= cond <= 3:
                sk = g.newlab("L_site")
                g.e("s_cmp_lg_u32 %s, %d" % (sRT, cond)); g.e("s_cbranch_scc1 %s" % sk)
                check(g, 1, vG1, F_KV(b, 0), vGV + b)
                if g.r2late == 2 and b == 0 and cond >= 2:
                    g.e("s_cmp_ge_u32 %s, 4" % sWV); g.e("s_cbranch_scc1 %s" % sk)
                    fetch_remote(g, True)
                    nwoS[cond] = nwo[0]
                g.lab(sk)
    def rdF(): g.e("ds_read2_b32 %s, v%d offset0:%d offset1:%d" % (vr(vGV, 2), vG1, F_KV(0, 0) // 4, F_KV(1, 0) // 4)); lg.add("x")
    def rdFV():
        if g.ksplit == 2: g.e("ds_read_b32 v%d, v%d offset:%d" % (93, vG1, F_V1)); lg.add("x")
    def rdK(u):
        for j in range(2): g.e("ds_read_b128 %s, v%d offset:%d" % (vr(vKB + (u % 2) * 8 + 4*j, 4), vAD + u, j * 1024))
        lg.add(("K", u), 2)
    def rdV(u):
        for j in range(2): g.e("ds_read_b128 %s, v%d offset:%d" % (vr(vVB + (u % 2) * 8 + 4*j, 4), vAD + u, 2048 + j * 1024))
        lg.add(("V", u), 2)
    def qk(u, j):
        s = vS + (u % 3) * 16
        g.mfma(s, vKB + (u % 2) * 8 + 4*j, vQF + 4*j, s if j else (vC1 if u == 0 else vC2 if u == 8 else None))
    def pv(u, j):
        g.mfma(vO, vVB + (u % 2) * 8 + 4*j, vS + (u % 3) * 16 + 4*j, None if (u == 0 and j == 0) else vO)
    if "ast" in g.exp: g.only = None; g.stamp(1); g.only = (0, 14)
    rdF(); rdK(0)
    g.wl(lg.wait(("K", 0))); qk(0, 0); qk(0, 1)
    bump(g, vGW, F_CQ); lg.add("x")
    g.e("s_nop 10")
    max16(g, vS, vM); xhalf_max(g); set_shift(g)
    for r in range(16): g.e("v_add_f32 v%d, v%d, v%d" % (vS + r, vNM, vS + r))
    for u in range(9):
        s = vS + (u % 3) * 16
        ex = lambda a, b: [g.e("v_exp_f32 v%d, v%d" % (s + r, s + r)) for r in range(a, b)]
        if g.r2late == 1 and u == g.r2fetch:
            sk = g.newlab("L_r2f")
            g.e("s_cmp_ge_u32 %s, 2" % sWV); g.e("s_cbranch_scc1 %s" % sk)
            fetch_remote(g, True)
            g.lab(sk)
            nwo0[0] = nwo[0]
        if g.r2late == 2 and u in (g.r2step, g.r2step + 1):
            sk = g.newlab("L_ld2")
            g.e("s_cmp_lg_u32 %s, %d" % (sWV, 1 if u == g.r2step else 0)); g.e("s_cbranch_scc1 %s" % sk)
            g.e("s_waitcnt vmcnt(%d)" % (nwo[0] - nwoS[2 if u == g.r2step else 3])); bump(g, vFB)
            g.lab(sk)
        if u in ((g.r1step,) if g.r2late == 2 else (g.r1step, g.r2step)):
            sk = g.newlab("L_ld")
            g.e("s_cmp_%s_u32 %s, 2" % ("lt" if u == g.r1step else "ge", sWV)); g.e("s_cbranch_scc1 %s" % sk)
            if u == g.r1step:
                g.e("s_cmp_ge_u32 %s, 4" % sWV); g.e("s_cbranch_scc1 %s" % sk)
            g.e("s_waitcnt vmcnt(%d)" % (nwo[0] - nwo0[0])); bump(g, vFB)
            if g.ksplit == 2 and u == g.r1step: bump(g, vFB, 128)
            g.lab(sk)
        if u < 8: site(u + 1)
        if g.ksplit and 1 <= u <= 4:
            sk = g.newlab("L_vs")
            g.e("s_cmp_lg_u32 %s, %d" % (sRT, u - 1)); g.e("s_cbranch_scc1 %s" % sk)
            if g.ksplit == 2: check(g, 1, vG1, F_V1, 93)
            else: check(g, 2, vG1, F_KV(0, 0), vGV)
            g.lab(sk)
        if "ast" in g.exp: g.only = None; g.stamp(2 + u); g.only = (0, 14)
        if u < 7: rdF()
        if u < 4: rdFV()
        if u == g.wostep - 1 and not g.woea: g.e("ds_read_b32 v%d, v%d offset:%d" % (vGX, vGR, F_CQ)); lg.add("x")
        if u < 8: rdK(u + 1)
        rdV(u)
        if u > 0: g.wl(lg.wait(("V", u - 1))); pv(u - 1, 0)
        ex(0, 5)
        if u > 0: pv(u - 1, 1)
        if g.wostep <= u < g.wostep + 4 and not g.woea:
            if u == g.wostep: check(g, 8, vGR, F_CQ, vGX)
            for _ in range(2): wo1(g, nwo[0]); nwo[0] += 1
        ex(5, 10)
        if u < 8: g.wl(lg.wait(("K", u + 1))); qk(u + 1, 0)
        ex(10, 16)
        if u < 8: qk(u + 1, 1)
        else: g.e("s_nop 0")
        for i in range(8): g.e("v_cvt_pk_bf16_f32 v%d, v%d, v%d" % (s + i, s + 2*i, s + 2*i + 1))
    g.wl(lg.wait(("V", 8))); g.e("s_nop 0"); pv(8, 0); pv(8, 1)
    g.e("s_nop 11")
    bcast_l(g)
    fb = g.newlab("L_fb"); ok = g.newlab("L_aok")
    g.e("s_mov_b32 %s, 0x%08x" % (sT0, LBIG))
    g.e("v_cmp_ngt_f32 vcc, %s, v%d" % (sT0, vM2))
    g.e("s_cbranch_vccnz %s" % fb)
    g.lab(ok)
    g.fb = (fb, ok)
    if "ast" in g.exp: g.only = None; g.stamp(11); g.only = (0, 14)
    g.stamp(8)
    finish_o(g)

def fallback_A(g):
    fb, ok = g.fb
    g.lab(fb)
    g.e("s_lshl_b32 %s, %s, 2" % (sT1, sR)); g.e("s_add_u32 %s, %s, %s" % (sT1, sT1, sRT))
    g.e("v_mov_b32 v%d, 0" % vM2)
    g.e("v_cndmask_b32 v%d, v%d, v%d, %s" % (vQF + 6, vQF + 6, vM2, sUP))
    g.e("v_mov_b32 v%d, 0x%08x" % (vM, NEG))
    for r in range(16): g.e("v_mov_b32 v%d, 0" % (vO + r))
    for pas in range(2):
        lp = g.newlab("L_fbl"); l0 = g.newlab("L_fb0"); l8 = g.newlab("L_fb8"); lj = g.newlab("L_fbj")
        g.e("s_mov_b32 %s, 0" % sT4)
        g.lab(lp)
        g.e("s_add_u32 %s, %s, 8" % (sT0, sRT)); g.e("s_sub_u32 %s, %s, %s" % (sT0, sT0, sT4))
        g.e("s_lshr_b32 %s, %s, 2" % (sT2, sT0)); g.e("s_mul_i32 %s, %s, %d" % (sT2, sT2, g.kvs))
        g.e("s_and_b32 %s, %s, 3" % (sT0, sT0)); g.e("s_lshl_b32 %s, %s, 12" % (sT0, sT0)); g.e("s_add_u32 %s, %s, %s" % (sT0, sT0, sT2))
        g.e("s_lshl_b32 %s, %s, 14" % (sT2, sHH)); g.e("s_add_u32 %s, %s, %s" % (sT0, sT0, sT2))
        g.e("s_add_u32 %s, %s, s37" % (sT0, sT0)); g.e("s_sub_u32 %s, %s, %d" % (sT0, sT0, 2 * g.kvs))
        for j in range(4): g.e("buffer_load_dwordx4 %s, v%d, %s, %s offen offset:%d sc1" % (vr(vKB + 4*j, 4), vL16, sWS, sT0, j * 1024))
        g.e("s_waitcnt vmcnt(0)")
        g.e("s_cmp_eq_u32 %s, 0" % sT4); g.e("s_cbranch_scc1 %s" % l0)
        g.e("s_cmp_eq_u32 %s, 8" % sT4); g.e("s_cbranch_scc1 %s" % l8)
        g.mfma(vS, vKB, vQF, None); g.e("s_branch %s" % lj)
        g.lab(l0); g.mfma(vS, vKB, vQF, vC1); g.e("s_branch %s" % lj)
        g.lab(l8); g.mfma(vS, vKB, vQF, vC2)
        g.lab(lj)
        g.mfma(vS, vKB + 4, vQF + 4, vS)
        g.e("s_nop 11")
        if pas == 0: max16(g, vS, vM, first=False)
        else:
            for r in range(16): g.e("v_exp_f32 v%d, v%d" % (vS + r, vS + r))
            g.e("s_nop 0")
            for i in range(8): g.e("v_cvt_pk_bf16_f32 v%d, v%d, v%d" % (vS + i, vS + 2*i, vS + 2*i + 1))
            g.e("s_nop 1")
            g.mfma(vO, vKB + 8, vS, vO); g.mfma(vO, vKB + 12, vS + 4, vO)
            g.e("s_nop 11")
        g.e("s_add_u32 %s, %s, 1" % (sT4, sT4))
        g.e("s_min_u32 %s, %s, 8" % (sT0, sT1))
        g.e("s_cmp_le_u32 %s, %s" % (sT4, sT0)); g.e("s_cbranch_scc1 %s" % lp)
        if pas == 0:
            xhalf_max(g); set_shift(g); g.e("s_nop 1")
    bcast_l(g)
    g.e("s_branch %s" % ok)

def attn_B(g):
    for j in range(2): g.e("ds_read_b128 %s, v%d offset:%d" % (vr(vKB + 4*j, 4), vAD, j * 1024))
    for j in range(2): g.e("ds_read_b128 %s, v%d offset:%d" % (vr(vVB + 4*j, 4), vAD, 2048 + j * 1024))
    g.e("s_waitcnt lgkmcnt(2)")
    g.mfma(vS, vKB, vQF, vC1); g.mfma(vS, vKB + 4, vQF + 4, vS)
    bump(g, vGW, F_CQ)
    sk = g.newlab("L_bs")
    g.e("s_cmp_lg_u32 %s, 0" % sRT); g.e("s_cbranch_scc1 %s" % sk)
    spin(g, 1, vG1, F_KV(0, 0), vGV)
    g.lab(sk)
    for j in range(2): g.e("ds_read_b128 %s, v%d offset:%d" % (vr(vKB + 8 + 4*j, 4), vAD + 1, j * 1024))
    for j in range(2): g.e("ds_read_b128 %s, v%d offset:%d" % (vr(vVB + 8 + 4*j, 4), vAD + 1, 2048 + j * 1024))
    g.e("s_waitcnt lgkmcnt(2)")
    g.mfma(vS + 16, vKB + 8, vQF, vC2); g.mfma(vS + 16, vKB + 12, vQF + 4, vS + 16)
    g.e("s_nop 4")
    max16(g, vS, vM); g.e("s_nop 0"); max16(g, vS + 16, vM, first=False); xhalf_max(g)
    for r in range(32): g.e("v_sub_f32 v%d, v%d, v%d" % (vS + r, vS + r, vM))
    for t in range(2):
        s = vS + 16 * t
        for r in range(16): g.e("v_exp_f32 v%d, v%d" % (s + r, s + r))
        g.e("s_nop 0")
        for i in range(8): g.e("v_cvt_pk_bf16_f32 v%d, v%d, v%d" % (s + i, s + 2*i, s + 2*i + 1))
        g.e("s_waitcnt lgkmcnt(0)"); g.e("s_nop 0")
        g.mfma(vO, vVB + 8*t, s, None if t == 0 else vO); g.mfma(vO, vVB + 8*t + 4, s + 4, vO)
    g.e("s_nop 11")
    bcast_l(g)
    g.stamp(8)
    finish_o(g)
    if g.bpre and not g.woea:
        spin(g, 8, vGR, F_CQ, vGX)
        for n in range(8): wo1(g, n)

def p3(g):
    t0, t1, t2 = vT, vT + 1, vT + 2
    sCT, sRT2 = sKC, sXB
    A1, A2, A3 = 4, 5, 6
    vFL = 3; vB0, vB1 = 13, 14; vOA = 56
    g.e("s_lshr_b32 %s, %s, 1" % (sCT, sWV)); g.e("s_and_b32 %s, %s, 1" % (sRT2, sWV))
    g.e("v_bfe_u32 v%d, v%d, 2, 2" % (t0, vLANE)); g.e("v_lshrrev_b32 v%d, 5, v%d" % (t1, vLANE))
    g.e("v_lshl_add_u32 v%d, v%d, 2, v%d" % (t1, t1, t0)); g.e("v_lshlrev_b32 v%d, 8, v%d" % (t1, t1))
    g.e("v_lshlrev_b32 v%d, 6, v%d" % (t0, t0))
    g.e("v_and_b32 v%d, 3, v%d" % (t2, vLANE)); g.e("v_lshlrev_b32 v%d, 3, v%d" % (t2, t2))
    g.e("v_and_b32 v%d, 16, v%d" % (A3, vLANE)); g.e("v_lshl_add_u32 v%d, v%d, 1, v%d" % (t2, A3, t2))
    g.e("s_lshl_b32 %s, %s, 6" % (sT0, sCT)); g.e("v_add_u32 v%d, %s, v%d" % (t2, sT0, t2))
    g.e("v_xor_b32 v%d, v%d, v%d" % (t2, t2, t0)); g.e("v_add_u32 v%d, v%d, v%d" % (A3, t1, t2))
    g.e("v_add_u32 v%d, 0x%x, v%d" % (A1, L_W1A, A3)); g.e("v_add_u32 v%d, 0x%x, v%d" % (A2, L_W1B, A3))
    g.e("s_lshr_b32 %s, %s, 1" % (sT0, sRB)); g.e("s_lshl_b32 %s, %s, 4" % (sT1, sBR)); g.e("s_add_u32 %s, %s, %s" % (sT0, sT0, sT1))
    g.e("s_lshl_b32 %s, %s, 10" % (sT0, sT0)); g.e("s_add_u32 %s, %s, 0x%x" % (sT0, sT0, WS_OFLAG))
    g.e("v_lshlrev_b32 v%d, 7, v%d" % (vFL, vLANE)); g.e("v_add_u32 v%d, %s, v%d" % (vFL, sT0, vFL))
    g.e("s_add_u32 %s, %s, %s" % (sT1, sT1, sR)); g.e("s_lshl_b32 %s, %s, 3" % (sT1, sT1)); g.e("s_add_u32 %s, %s, %s" % (sT1, sT1, sHP))
    g.e("s_lshl_b32 %s, %s, 7" % (sT1, sT1)); g.e("s_add_u32 s36, %s, 0x%x" % (sT1, WS_OFLAG))
    g.e("s_lshr_b32 %s, %s, 2" % (sT2, sWV))
    sOS, sOL = sXS, sWSO
    g.e("s_and_b32 %s, %s, 3" % (sT0, sWV)); g.e("s_lshl_b32 %s, %s, 11" % (sT0, sT0))
    g.e("s_lshl_b32 %s, %s, 13" % (sOL, sT2)); g.e("s_add_u32 %s, %s, %s" % (sOL, sOL, sT0))
    g.e("s_lshl_b32 %s, %s, 6" % (sOS, sBR)); g.e("s_lshl_b32 %s, %s, 1" % (sT1, sRB)); g.e("s_add_u32 %s, %s, %s" % (sOS, sOS, sT1))
    g.e("s_add_u32 %s, %s, %s" % (sOS, sOS, sT2)); g.e("s_mul_i32 %s, %s, %d" % (sOS, sOS, g.ofs))
    g.e("s_add_u32 %s, %s, %s" % (sOS, sOS, sT0)); g.e("s_add_u32 %s, %s, 0x%x" % (sOS, sOS, WS_OF))
    g.e("s_lshl_b32 %s, %s, 13" % (sT0, sRT2)); g.e("v_add_u32 v%d, %s, v%d" % (vB0, sT0, vL16))
    g.e("v_add_u32 v%d, 0x%x, v%d" % (vB1, L_O, vB0)); g.e("v_add_u32 v%d, 0x%x, v%d" % (vB0, L_W1A, vB0))
    vSW, vSR = 58, 59
    if g.ostage:
        STG = 0
        g.e("v_and_b32 v%d, 31, v%d" % (t0, vLANE)); g.e("v_mul_u32_u24 v%d, 272, v%d" % (t0, t0))
        g.e("v_lshrrev_b32 v%d, 5, v%d" % (t1, vLANE)); g.e("v_lshl_add_u32 v%d, v%d, 4, v%d" % (t0, t1, t0))
        g.e("s_mul_i32 %s, %s, %d" % (sT0, sRT2, 32 * 272)); g.e("s_lshl_b32 %s, %s, 6" % (sT1, sCT)); g.e("s_add_u32 %s, %s, %s" % (sT0, sT0, sT1))
        g.e("v_add_u32 v%d, %s, v%d" % (vSW, sT0, t0))
        g.e("v_lshrrev_b32 v%d, 4, v%d" % (t0, vLANE)); g.e("v_and_b32 v%d, 15, v%d" % (t1, vLANE))
        g.e("v_mul_u32_u24 v%d, 272, v%d" % (t2, t0)); g.e("v_lshl_add_u32 v%d, v%d, 4, v%d" % (t2, t1, t2))
        g.e("s_mul_i32 %s, %s, %d" % (sT0, sWV, 8 * 272)); g.e("v_add_u32 v%d, %s, v%d" % (vSR, sT0, t2))
        g.e("v_mul_u32_u24 v%d, 1792, v%d" % (t2, t0)); g.e("v_lshl_add_u32 v%d, v%d, 4, v%d" % (t2, t1, t2))
        g.e("s_cmp_eq_u32 %s, 3" % sCB); g.e("s_cselect_b32 %s, 8, 64" % sT0)
        g.e("v_mov_b32 v%d, 0x%x" % (t0, OOB))
        g.e("v_cmp_le_u32 vcc, %s, v%d" % (sT0, t1))
        g.e("s_lshl_b32 %s, %s, 3" % (sT0, sRB)); g.e("s_add_u32 %s, %s, %s" % (sT0, sT0, sWV)); g.e("s_mul_i32 %s, %s, %d" % (sT4, sT0, 8 * 1792))
        g.e("v_cndmask_b32 v%d, v%d, v%d, vcc" % (vOA, t2, t0))
        g.e("v_add_u32 v%d, %d, v%d" % (vOA + 1, 4 * 1792, vOA))
        g.e("s_mul_i32 %s, %s, 896" % (sT0, sBR)); g.e("s_add_u32 %s, %s, %s" % (sT4, sT4, sT0))
        g.e("s_lshl_b32 %s, %s, 8" % (sT0, sCB)); g.e("s_add_u32 %s, %s, %s" % (sT4, sT4, sT0))
    else:
        g.e("v_and_b32 v%d, 31, v%d" % (t0, vLANE)); g.e("v_mul_u32_u24 v%d, 1792, v%d" % (t0, t0))
        g.e("v_lshrrev_b32 v%d, 5, v%d" % (t1, vLANE)); g.e("v_lshl_add_u32 v%d, v%d, 4, v%d" % (vOA, t1, t0))
        g.e("s_lshl_b32 %s, %s, 1" % (sT0, sRB)); g.e("s_add_u32 %s, %s, %s" % (sT0, sT0, sRT2)); g.e("s_mul_i32 %s, %s, %d" % (sT4, sT0, 32 * 1792))
        g.e("s_mul_i32 %s, %s, 896" % (sT0, sBR)); g.e("s_add_u32 %s, %s, %s" % (sT4, sT4, sT0))
        g.e("s_lshl_b32 %s, %s, 8" % (sT0, sCB)); g.e("s_add_u32 %s, %s, %s" % (sT4, sT4, sT0))
        g.e("s_lshl_b32 %s, %s, 6" % (sT0, sCT)); g.e("s_add_u32 %s, %s, %s" % (sT4, sT4, sT0))
    if g.bpre and not g.woea:
        wa = g.newlab("L_wa"); wb = g.newlab("L_wb")
        g.e("s_cmp_eq_u32 %s, 0" % sBR); g.e("s_cbranch_scc1 %s" % wa)
        g.e("s_waitcnt vmcnt(7)"); g.e("s_branch %s" % wb)
        g.lab(wa); g.e("s_waitcnt vmcnt(0)"); g.lab(wb)
    else: g.e("s_waitcnt vmcnt(0)")
    g.e("s_barrier")
    nf = g.newlab("L_nof")
    g.e("s_cmp_lg_u32 %s, 0" % sWV); g.e("s_cbranch_scc1 %s" % nf)
    store_flag(g, "s36")
    g.lab(nf)
    g.stamp(9)
    if g.woea:
        if g.woea == 2:
            for m in range(4): wo_dma(g, m, L_W1A, 0)
        for m in range(4): wo_dma(g, m, L_W1B, 120)
    elif not g.bpre:
        early = g.newlab("L_early")
        g.e("s_cmp_eq_u32 %s, 0" % sBR); g.e("s_cbranch_scc1 %s" % early)
        for n in range(8): wo1(g, n)
        g.lab(early)
    for m in range(7): wo_dma(g, m, L_W2, 248)
    if not g.woea:
        early2 = g.newlab("L_early2")
        g.e("s_cmp_eq_u32 %s, 0" % sBR); g.e("s_cbranch_scc1 %s" % early2)
        g.e("s_waitcnt vmcnt(7)"); g.e("s_barrier")
        g.lab(early2)
    if g.woea == 2:
        g.e("s_waitcnt vmcnt(7)"); g.e("s_barrier")
    wsplit = 120 if g.woea == 1 else 248
    WFR = 96
    def trs(sel):
        for h in range(16):
            for j in range(2):
                for i in range(2):
                    row = 28 * h + 16 * j + 8 * i
                    if not sel(row): continue
                    a, off = (A1, row * 256) if row < 120 else (A2, (row - 120) * 256) if row < 248 else (A3, (row - 248) * 256)
                    g.e("ds_read_b64_tr_b16 %s, v%d offset:%d" % (vr(WFR + (h * 2 + j) * 4 + 2 * i, 2), a, off))
    trs(lambda row: row < wsplit)
    g.stamp(10)
    np_ = g.newlab("L_np3")
    g.e("s_cmp_lg_u32 %s, 7" % sWV); g.e("s_cbranch_scc1 %s" % np_)
    if g.poll2: poll2(g, vFL, "0xff")
    else: poll(g, vFL, "0xff")
    g.lab(np_)
    g.e("s_waitcnt vmcnt(0) lgkmcnt(0)")
    g.e("s_barrier")
    g.stamp(11)
    for a in range(4):
        g.e("s_add_u32 m0, %s, %d" % (sOL, L_O + a * 16384 if a < 2 else L_W1A + (a - 2) * 16384))
        g.e("s_add_u32 %s, %s, %d" % (sT2, sOS, a * 8192))
        for f in range(2): g.e("buffer_load_dwordx4 v%d, %s, %s offen offset:%d sc1 lds" % (vL16, sWS, sT2, f * 1024))
    trs(lambda row: row >= wsplit)
    OB = 16
    lg = Q()
    def rd(k):
        a = k // 8
        bars = eval(g.obars)
        if k % 8 == 0 and a in bars:
            nxtb = min([x for x in bars if x > a] + [4])
            g.e("s_waitcnt vmcnt(%d)" % (8 - 2 * nxtb)); g.e("s_barrier")
            if a == 0: g.stamp(12)
        g.e("ds_read_b128 %s, v%d offset:%d" % (vr(OB + (k % 4) * 4, 4), vB1 if a < 2 else vB0, (a % 2) * 16384 + (k % 8) * 1024))
        lg.add(k)
    for k in range(3): rd(k)
    for k in range(32):
        g.wl(lg.wait(k))
        g.mfma(vO, WFR + 4 * k, OB + (k % 4) * 4, None if k == 0 else vO)
        if k + 3 < 32: rd(k + 3)
    g.stamp(13)
    if not g.ostage:
        done = g.newlab("L_nostore")
        g.e("s_cmp_lt_u32 %s, 3" % sCB); g.e("s_cselect_b32 %s, 4, 2" % sT0)
        g.e("s_cmp_ge_u32 %s, %s" % (sCT, sT0)); g.e("s_cbranch_scc1 %s" % done)
        g.e("s_nop 8")
        PK = 48
        for i in range(8): g.e("v_cvt_pk_bf16_f32 v%d, v%d, v%d" % (PK + i, vO + 2*i, vO + 2*i + 1))
        g.e("s_nop 1")
        for b in (0, 4):
            g.e("v_permlane32_swap_b32 v%d, v%d" % (PK + b, PK + b + 2)); g.e("v_permlane32_swap_b32 v%d, v%d" % (PK + b + 1, PK + b + 3))
        g.e("s_nop 1")
        for b in range(2): g.e("buffer_store_dwordx4 %s, v%d, %s, %s offen offset:%d%s" % (vr(PK + 4*b, 4), vOA, sOUT, sT4, 32 * b, g.outflag))
        g.lab(done)
        return
    PK = 48
    g.e("s_nop 11")
    for i in range(8): g.e("v_cvt_pk_bf16_f32 v%d, v%d, v%d" % (PK + i, vO + 2*i, vO + 2*i + 1))
    g.e("s_nop 1")
    for b in (0, 4):
        g.e("v_permlane32_swap_b32 v%d, v%d" % (PK + b, PK + b + 2)); g.e("v_permlane32_swap_b32 v%d, v%d" % (PK + b + 1, PK + b + 3))
    g.e("s_nop 1")
    for b in range(2): g.e("ds_write_b128 v%d, %s offset:%d" % (vSW, vr(PK + 4*b, 4), 32 * b))
    g.e("s_waitcnt lgkmcnt(0)")
    g.e("s_barrier")
    for b in range(2): g.e("ds_read_b128 %s, v%d offset:%d" % (vr(PK + 4*b, 4), vSR, 4 * 272 * b))
    for b in range(2):
        g.e("s_waitcnt lgkmcnt(%d)" % (1 - b))
        g.e("buffer_store_dwordx4 %s, v%d, %s, %s offen%s" % (vr(PK + 4*b, 4), vOA + b, sOUT, sT4, g.outflag))

def write_stamps(g):
    if not g.stamps: return
    g.e("s_waitcnt vmcnt(0)")
    g.stamp(14)
    g.e("s_waitcnt lgkmcnt(0)")
    g.e("s_getreg_b32 s100, hwreg(HW_REG_XCC_ID)"); g.e("s_getreg_b32 s101, hwreg(HW_REG_HW_ID)")
    g.e("s_lshl_b32 %s, s2, 3" % sT0); g.e("s_add_u32 %s, %s, %s" % (sT0, sT0, sWV)); g.e("s_lshl_b32 %s, %s, 7" % (sT0, sT0))
    g.e("s_add_u32 %s, %s, 0x%x" % (sT0, sT0, WS_STAMP))
    g.e("s_mov_b64 exec, 1")
    for i in range(16):
        g.e("v_mov_b32 v20, s%d" % (70 + 2*i)); g.e("v_mov_b32 v21, s%d" % (71 + 2*i))
        g.e("buffer_store_dwordx2 v[20:21], v%d, %s, %s offen offset:%d" % (vZ, sWS, sT0, 8 * i))
        g.e("s_nop 1")

def branch(g, isA):
    n = "A" if isA else "B"
    g.e("s_cmp_lt_u32 %s, 4" % sWV); g.e("s_cbranch_scc1 L_cons%s" % n)
    producer(g, isA)
    g.e("s_branch L_x%s" % n)
    g.lab("L_cons%s" % n)
    consumer(g, isA)
    g.lab("L_x%s" % n)
    g.stamp(7)
    if g.cprio:
        sk = g.newlab("L_cp")
        g.e("s_cmp_ge_u32 %s, 4" % sWV); g.e("s_cbranch_scc1 %s" % sk); g.e("s_setprio %d" % g.cprio); g.lab(sk)
    dbg_q(g)
    if isA: attn_A(g)
    else: attn_B(g)

def build(**kw):
    g = G(**kw)
    K = NAME + "_kernel"
    hdr = open("cdna_kernels/%s.s.ref" % NAME).read().split("; Override launch")[0]
    g.l.append(hdr.rstrip())
    g.l.append("; @launch grid=(256,1,1) block=(512,1,1) lds=163840")
    g.l += ["; " + x for x in DOC.strip().split("\n")]
    g.l += ['.amdgcn_target "amdgcn-amd-amdhsa--gfx950"', ".text", ".globl " + K, ".p2align 8", ".type %s,@function" % K, K + ":"]
    g.e("s_cmp_ge_u32 s2, 256"); g.e("s_cbranch_scc1 L_end")
    g.e("s_load_dwordx16 s[32:47], s[0:1], 0"); g.e("s_load_dwordx2 s[48:49], s[0:1], 64")
    if "probe" in g.exp: g.e("s_memrealtime s[70:71]")
    if g.stamps:
        for i in range(15): g.e("s_mov_b64 s[%d:%d], 0" % (70 + 2*i, 71 + 2*i))
    g.stamp(0)
    if "pit" in g.exp: g.only = (0, 1, 2, 14)
    if "pdet" in g.exp or "ast" in g.exp: g.only = (0, 14)
    g.e("v_lshrrev_b32 v%d, 6, v0" % vT)
    g.e("v_and_b32 v%d, 63, v0" % vLANE)
    g.e("v_readfirstlane_b32 %s, v%d" % (sWV, vT))
    if g.map == 0:
        g.e("s_lshr_b32 %s, s2, 7" % sBR)
        g.e("s_bfe_u32 %s, s2, 0x20003" % sT2); g.e("s_bfe_u32 %s, s2, 0x20005" % sT3)
        g.e("s_and_b32 %s, s2, 1" % sHP); g.e("s_lshl_b32 %s, %s, 2" % (sHP, sHP)); g.e("s_add_u32 %s, %s, %s" % (sHP, sHP, sT2))
        g.e("s_bfe_u32 %s, s2, 0x20001" % sR); g.e("s_lshl_b32 %s, %s, 2" % (sR, sR)); g.e("s_add_u32 %s, %s, %s" % (sR, sR, sT3))
    elif g.map == 2:
        g.e("s_lshr_b32 %s, s2, 7" % sBR)
        g.e("s_bfe_u32 %s, s2, 0x30003" % sHP)
        g.e("s_and_b32 %s, s2, 7" % sR); g.e("s_lshl_b32 %s, %s, 1" % (sR, sR)); g.e("s_bfe_u32 %s, s2, 0x10006" % sT3); g.e("s_add_u32 %s, %s, %s" % (sR, sR, sT3))
    else:
        g.e("s_bfe_u32 %s, s2, 0x10002" % sBR)
        g.e("s_bfe_u32 %s, s2, 0x20003" % sT2); g.e("s_lshr_b32 %s, s2, 5" % sT3)
        g.e("s_and_b32 %s, s2, 1" % sHP); g.e("s_lshl_b32 %s, %s, 2" % (sHP, sHP)); g.e("s_add_u32 %s, %s, %s" % (sHP, sHP, sT2))
        g.e("s_bfe_u32 %s, s2, 0x10001" % sR); g.e("s_lshl_b32 %s, %s, 3" % (sR, sR)); g.e("s_add_u32 %s, %s, %s" % (sR, sR, sT3))
    g.e("s_and_b32 %s, %s, 3" % (sP, sWV))
    t0, t1 = vT, vT + 1
    nz = g.newlab("L_nz")
    g.e("s_cmp_lg_u32 %s, 0" % sWV); g.e("s_cbranch_scc1 %s" % nz)
    g.e("v_and_b32 v%d, 7, v%d" % (t0, vLANE)); g.e("v_and_b32 v%d, 2, v%d" % (t1, t0)); g.e("v_lshlrev_b32 v%d, 5, v%d" % (t1, t1))
    g.e("v_lshlrev_b32 v%d, 7, v%d" % (t0, t0)); g.e("v_sub_u32 v%d, v%d, v%d" % (t0, t0, t1))
    g.e("v_add_u32 v%d, %d, v%d" % (t0, FBASE + 112, t0))
    for k in range(4): g.e("v_mov_b32 v%d, 0" % (vACC + k))
    g.e("s_mov_b64 exec, 0xff")
    g.e("ds_write_b128 v%d, %s" % (t0, vr(vACC, 4)))
    g.e("s_mov_b64 exec, -1")
    g.lab(nz)
    producer_prep(g)
    flag_regs(g, True)
    xrd_addr(g, vXRD, sXB)
    g.e("s_mov_b32 s6, 0x%x" % X_BYTES); g.e("s_mov_b32 s7, 0x20000"); g.e("s_mov_b32 s10, 0x%x" % (W_BYTES + WBIAS)); g.e("s_mov_b32 s11, 0x20000")
    g.e("s_cmp_eq_u32 %s, 0" % sBR)
    if "st0" in g.exp: g.stamp(3)
    g.e("s_waitcnt lgkmcnt(0)")
    if "st0" in g.exp: g.stamp(4)
    g.e("s_cselect_b32 s4, s32, s38"); g.e("s_cselect_b32 s5, s33, s39"); g.e("s_cselect_b32 s8, s34, s40"); g.e("s_cselect_b32 s9, s35, s41")
    g.e("s_sub_u32 s8, s8, %d" % WBIAS); g.e("s_subb_u32 s9, s9, 0")
    g.e("s_cmp_lt_u32 %s, 4" % sWV); g.e("s_cbranch_scc1 L_noiss0")
    issue_item(g, Q(), 0)
    g.lab("L_noiss0")
    g.e("s_barrier")
    g.e("s_cmp_lt_u32 %s, 4" % sWV); g.e("s_cbranch_scc1 L_noiss")
    issue_item(g, Q(), 1)
    g.lab("L_noiss")
    g.e("s_cmp_eq_u32 %s, 0" % sBR)
    g.e("s_cbranch_scc1 L_A")
    branch(g, False)
    g.e("s_branch L_p3")
    g.lab("L_A")
    branch(g, True)
    g.lab("L_p3")
    p3(g)
    write_stamps(g)
    if "probe" in g.exp:
        g.e("s_cmp_lg_u32 s2, %d" % g.pwg); g.e("s_cbranch_scc1 L_end")
        g.e("s_cmp_lg_u32 %s, %d" % (sWV, g.pw)); g.e("s_cbranch_scc1 L_end")
        g.e("s_waitcnt vmcnt(0) lgkmcnt(0)")
        if g.pk is None: g.e("s_memrealtime s[72:73]"); g.e("s_waitcnt lgkmcnt(0)")
        g.e("s_sub_u32 s74, s72, s70")
        if g.pcyc: g.e("s_lshr_b32 s74, s74, 1")
        else: g.e("s_lshl_b32 s74, s74, 3")
        g.e("s_memrealtime s[72:73]"); g.e("s_waitcnt lgkmcnt(0)")
        g.lab("L_probe")
        g.e("s_memrealtime s[76:77]"); g.e("s_waitcnt lgkmcnt(0)")
        g.e("s_sub_u32 s75, s76, s72"); g.e("s_cmp_lt_u32 s75, s74"); g.e("s_cbranch_scc1 L_probe")
    g.lab("L_end"); g.e("s_endpgm")
    for (sl, back, need, areg, off, vsrc) in g.slow:
        g.lab(sl); spin(g, need, areg, off, vsrc); g.e("s_branch %s" % back)
    fallback_A(g)
    g.lab("L_codeend")
    g.l += ['.section .rodata,"a"', ".p2align 6", ".amdhsa_kernel " + K, "  .amdhsa_next_free_vgpr 256", "  .amdhsa_next_free_sgpr 102",
            "  .amdhsa_accum_offset 256", "  .amdhsa_group_segment_fixed_size 0", "  .amdhsa_kernarg_size 72", "  .amdhsa_user_sgpr_count 2",
            "  .amdhsa_user_sgpr_kernarg_segment_ptr 1", "  .amdhsa_system_sgpr_workgroup_id_x 1", ".end_amdhsa_kernel"]
    return "\n".join(g.l) + "\n"

if __name__ == "__main__":
    ap = argparse.ArgumentParser()
    ap.add_argument("-o", default="k.s"); ap.add_argument("--stamps", action="store_true"); ap.add_argument("--dbgq", action="store_true")
    ap.add_argument("--exp", default=""); ap.add_argument("--dA", type=int, default=2); ap.add_argument("--dB", type=int, default=2)
    ap.add_argument("--wotouch", type=int, default=1); ap.add_argument("--touch", type=int, default=1); ap.add_argument("--tfirst", type=int, default=2)
    ap.add_argument("--map", type=int, default=0); ap.add_argument("--woea", type=int, default=0); ap.add_argument("--ksplit", type=int, default=0); ap.add_argument("--r1step", type=int, default=0); ap.add_argument("--kfirst", type=int, default=1); ap.add_argument("--p3map", type=int, default=1); ap.add_argument("--pk", type=int, default=None); ap.add_argument("--pk0", type=int, default=-1); ap.add_argument("--pcyc", type=int, default=0); ap.add_argument("--pw", type=int, default=0); ap.add_argument("--pwg", type=int, default=26); ap.add_argument("--kvs", type=int, default=33280); ap.add_argument("--ofs", type=int, default=33280); ap.add_argument("--wsoff", type=int, default=0); ap.add_argument("--late7", type=int, default=0); ap.add_argument("--ptouch", type=int, default=0); ap.add_argument("--poll2", type=int, default=0); ap.add_argument("--obars", default="[0,1,2,3]"); ap.add_argument("--ostage", type=int, default=1); ap.add_argument("--qpj", type=int, default=0); ap.add_argument("--qwait", type=int, default=0); ap.add_argument("--c1prio", type=int, default=0); ap.add_argument("--slp", type=int, default=0); ap.add_argument("--pslp", type=int, default=0); ap.add_argument("--mfirst", type=int, default=1); ap.add_argument("--qround", type=int, default=1); ap.add_argument("--cdist", default="[2,1,2,1]"); ap.add_argument("--pprio", type=int, default=0); ap.add_argument("--gate", type=int, default=0); ap.add_argument("--gsig", type=int, default=4); ap.add_argument("--gitem", type=int, default=3); ap.add_argument("--r2late", type=int, default=1); ap.add_argument("--r2fetch", type=int, default=2); ap.add_argument("--ctouch", type=int, default=0); ap.add_argument("--cprio", type=int, default=0); ap.add_argument("--inl", type=int, default=1); ap.add_argument("--ps1", type=int, default=0); ap.add_argument("--ps2", type=int, default=1); ap.add_argument("--ldf", default=""); ap.add_argument("--tf", default=""); ap.add_argument("--late8", type=int, default=0); ap.add_argument("--bpre", type=int, default=1); ap.add_argument("--qprio", type=int, default=0); ap.add_argument("--aprio", type=int, default=0); ap.add_argument("--stf", default=" sc1"); ap.add_argument("--qst", type=int, default=0); ap.add_argument("--r2step", type=int, default=4); ap.add_argument("--wostep", type=int, default=2); ap.add_argument("--outflag", default=" sc1")
    a = ap.parse_args()
    o = a.o; d = vars(a); d.pop("o")
    open(o, "w").write(build(**d))
```
